```python
import torch

def _softmax(x, axis=-1):
    return torch.softmax(x, dim=axis)
def _gelu(x):
    return torch.nn.functional.gelu(x, approximate="tanh")
def _silu(x):
    return torch.nn.functional.silu(x)
def _sigmoid(x):
    return torch.sigmoid(x)
def _layernorm(x, axis=-1, eps=1e-5):
    m = x.mean(dim=axis, keepdim=True)
    v = x.var(dim=axis, keepdim=True, unbiased=False)
    return (x - m) / torch.sqrt(v + eps)
def _scatter_add(tgt, idx, src, axis=0):
    return tgt.clone().index_add_(axis, idx, src)
def _segment_sum(src, seg, n):
    out = torch.zeros((n,) + src.shape[1:], dtype=src.dtype)
    return out.index_add_(0, seg, src)
def _pad(x, pw):
    flat = tuple(v for pair in reversed(pw) for v in pair)
    return torch.nn.functional.pad(x, flat)

kernel_name = 'sequential_preLN__spectral_fnet__moe_arch_mod__prompt'

def setup_inputs():

    _w = (lambda a: (lambda t: t.to(torch.bfloat16) if t.is_floating_point() else t)(torch.as_tensor(a)))
    def _A_setup():
        B, S, D = 1, 2048, 640
        ns = torch.arange(S)[:, None] * torch.arange(S)[None, :]
        nd = torch.arange(D)[:, None] * torch.arange(D)[None, :]
        Ws_re = torch.cos(-2.0 * torch.pi * ns / S).to(float)
        Ws_im = torch.sin(-2.0 * torch.pi * ns / S).to(float)
        Wd_re = torch.cos(-2.0 * torch.pi * nd / D).to(float)
        Wd_im = torch.sin(-2.0 * torch.pi * nd / D).to(float)
        return {
            "x": _w((lambda *s: torch.randn(*s, dtype=torch.bfloat16) * 0.1)(B, S, D)),
            "dft_seq_re": _w(Ws_re),
            "dft_seq_im": _w(Ws_im),
            "dft_hid_re": _w(Wd_re),
            "dft_hid_im": _w(Wd_im),
        }
    _A_in = _A_setup()

    def _B_setup():
        B, S, D, F, C = 1, 2048, 640, 1728, 8
        return {
            "x": _w((lambda *s: torch.randn(*s, dtype=torch.bfloat16) * 0.1)(B, S, D)),
            "w_r": _w((lambda *s: torch.randn(*s, dtype=torch.bfloat16) * 1.6)(D)),
            "w_gate": _w((lambda *s: torch.randn(*s, dtype=torch.bfloat16) * 0.8)(D, F)),
            "w_up": _w((lambda *s: torch.randn(*s, dtype=torch.bfloat16) * 0.8)(D, F)),
            "w_down": _w((lambda *s: torch.randn(*s, dtype=torch.bfloat16) * 0.8)(F, D)),
        }
    _B_in = _B_setup()

    return {
        "A_x": _A_in["x"],
        "A_dft_seq_re": _A_in["dft_seq_re"],
        "A_dft_seq_im": _A_in["dft_seq_im"],
        "A_dft_hid_re": _A_in["dft_hid_re"],
        "A_dft_hid_im": _A_in["dft_hid_im"],
        "B_x": _B_in["x"],
        "B_w_r": _B_in["w_r"],
        "B_w_gate": _B_in["w_gate"],
        "B_w_up": _B_in["w_up"],
        "B_w_down": _B_in["w_down"],
    }

def reference(A_x, A_dft_seq_re, A_dft_seq_im, A_dft_hid_re, A_dft_hid_im, B_x, B_w_r, B_w_gate, B_w_up, B_w_down):
    def _A_ref(x, dft_seq_re, dft_seq_im, dft_hid_re, dft_hid_im):
        a = torch.einsum("bsd,ed->bse", x, dft_hid_re)
        b = torch.einsum("bsd,ed->bse", x, dft_hid_im)
        y = torch.einsum("ts,bse->bte", dft_seq_re, a) - torch.einsum("ts,bse->bte", dft_seq_im, b)
        return y

    def _B_ref(x, w_r, w_gate, w_up, w_down):
        B, S, D = x.shape
        C = 8
        r = x @ w_r
        idx = torch.argsort(-r, axis=-1)[:, :C]
        idx_e = (lambda x, n, axis: torch.repeat_interleave(x, n, dim=axis))(idx.reshape(B, C, 1), D, axis=2)
        x_sel = (lambda x, i, axis: torch.take_along_dim(x, i, dim=axis))(x, idx_e, axis=1)
        g = _silu(x_sel @ w_gate)
        u = x_sel @ w_up
        y = (g * u) @ w_down
        r_sel = _sigmoid((lambda x, i, axis: torch.take_along_dim(x, i, dim=axis))(r, idx, axis=1))
        y = y * r_sel.reshape(B, C, 1)
        b_off = (torch.arange(B) * S).reshape(B, 1)
        flat_idx = (idx + b_off).reshape(B * C)
        zero = (x * 0.0).reshape(B * S, D)
        upd = _scatter_add(zero, flat_idx, y.reshape(B * C, D), axis=0)
        return x + upd.reshape(B, S, D)

    x = A_x
    h = x + _A_ref(_layernorm(x, axis=-1), A_dft_seq_re, A_dft_seq_im, A_dft_hid_re, A_dft_hid_im)
    h2 = h + _B_ref(_layernorm(h, axis=-1), B_w_r, B_w_gate, B_w_up, B_w_down)
    return h2
```

```python
import sys
NAME="sequential_preLN__spectral_fnet__moe_arch_mod__prompt"
nempty = int(sys.argv[1]) if len(sys.argv)>1 else 0
outp = sys.argv[2] if len(sys.argv)>2 else "cdna_kernels/simple.s"
opts = sys.argv[3:]
L=[]
def e(s): L.append(s)
WS_XN=0
WS_AB=0x400000
WS_H =0xA00000
WS_HN=0xD00000
WS_R =0x1000000
WS_ACT=0x1010000
WS_IDX=0x1020000
kern=[]
def kstart(name, grid, block, lds=0):
    kern.append((name,grid,block,lds))
    e(f".globl {name}\n.p2align 8\n.type {name},@function\n{name}:")
def srd(d, base, size, off=0):
    if off:
        e(f"s_add_u32 s{d}, s{base}, {off}\ns_addc_u32 s{d+1}, s{base+1}, 0")
    else:
        e(f"s_mov_b32 s{d}, s{base}\ns_mov_b32 s{d+1}, s{base+1}")
    e(f"s_mov_b32 s{d+2}, {size}\ns_mov_b32 s{d+3}, 0x20000")
def rbf(v):
    e(f"v_cvt_pk_bf16_f32 v{v}, v{v}, v{v}\nv_and_b32 v{v}, 0xffff0000, v{v}")
def wave_sum(v, t, a):
    for m in (1,2,4,8,16,32):
        e(f"v_xor_b32 v{t}, {m*4}, v{a}\nds_bpermute_b32 v{t}, v{t}, v{v}\ns_waitcnt lgkmcnt(0)\nv_add_f32 v{v}, v{v}, v{t}")
def ln_row(src, dst):
    for i in range(5):
        e(f"v_lshlrev_b32 v{20+2*i}, 16, v{10+i}\nv_and_b32 v{21+2*i}, 0xffff0000, v{10+i}")
    e("v_mov_b32 v4, v20")
    for i in range(1,10): e(f"v_add_f32 v4, v4, v{20+i}")
    wave_sum(4,5,3)
    e("v_mul_f32 v4, 0x3acccccd, v4")
    e("v_mov_b32 v6, 0")
    for i in range(10):
        e(f"v_sub_f32 v7, v{20+i}, v4\nv_fma_f32 v6, v7, v7, v6")
    wave_sum(6,5,3)
    e("v_mul_f32 v6, 0x3acccccd, v6")
    rbf(4); rbf(6)
    e("v_add_f32 v6, 0x3727c5ac, v6")
    rbf(6)
    e("v_sqrt_f32 v6, v6\ns_nop 0")
    rbf(6)
    e("v_rcp_f32 v6, v6\ns_nop 0")
    for i in range(10):
        e(f"v_sub_f32 v{30+i}, v{20+i}, v4")
        rbf(30+i)
        e(f"v_mul_f32 v{30+i}, v{30+i}, v6")
        rbf(30+i)

kstart("ka_kernel",(512,1,1),(256,1,1))
e("s_cmp_ge_u32 s2, 512\ns_cbranch_scc1 ka_end")
e("s_load_dwordx2 s[4:5], s[0:1], 0\ns_load_dwordx2 s[6:7], s[0:1], 96\ns_waitcnt lgkmcnt(0)")
srd(8,4,2048*1280); srd(12,6,2048*1280,WS_XN)
e("v_lshrrev_b32 v1, 6, v0\nv_and_b32 v2, 63, v0\nv_lshlrev_b32 v3, 2, v2")
e("s_lshl_b32 s3, s2, 2\nv_add_u32 v1, s3, v1\nv_mul_u32_u24 v1, 1280, v1\nv_add_u32 v1, v1, v3")
for i in range(5): e(f"buffer_load_dword v{10+i}, v1, s[8:11], 0 offen offset:{i*256}")
e("s_waitcnt vmcnt(0)")
ln_row(0,0)
for i in range(5):
    e(f"v_cvt_pk_bf16_f32 v{10+i}, v{30+2*i}, v{31+2*i}")
    e(f"buffer_store_dword v{10+i}, v1, s[12:15], 0 offen offset:{i*256}")
e("ka_end:\ns_endpgm")

kstart("kb_kernel",(2560,1,1),(64,1,1))
e("s_cmp_ge_u32 s2, 2560\ns_cbranch_scc1 kb_end")
e("s_load_dwordx2 s[4:5], s[0:1], 24\ns_load_dwordx2 s[16:17], s[0:1], 32\ns_load_dwordx2 s[6:7], s[0:1], 96\ns_waitcnt lgkmcnt(0)")
e("s_and_b32 s20, s2, 63\ns_lshr_b32 s21, s2, 6")
e("s_cmp_ge_u32 s21, 20\ns_cselect_b32 s4, s16, s4\ns_cselect_b32 s5, s17, s5\ns_cselect_b32 s22, 20, 0\ns_sub_u32 s22, s21, s22")
srd(8,4,640*1280); srd(12,6,2048*1280,WS_XN); srd(16,6,1280*4096,WS_AB)
e("v_and_b32 v1, 31, v0\nv_lshrrev_b32 v2, 5, v0")
e("s_lshl_b32 s23, s20, 5\nv_add_u32 v3, s23, v1\nv_mul_u32_u24 v3, 1280, v3\nv_lshl_add_u32 v3, v2, 4, v3")
e("s_lshl_b32 s24, s22, 5\nv_add_u32 v4, s24, v1\nv_mul_u32_u24 v4, 1280, v4\nv_lshl_add_u32 v4, v2, 4, v4")
for i in range(16): e(f"v_mov_b32 v{16+i}, 0")
e("s_mov_b32 s25, 0\nkb_loop:")
e("buffer_load_dwordx4 v[8:11], v3, s[12:15], s25 offen\nbuffer_load_dwordx4 v[12:15], v4, s[8:11], s25 offen")
e("s_waitcnt vmcnt(0)\nv_mfma_f32_32x32x16_bf16 v[16:31], v[8:11], v[12:15], v[16:31]")
e("s_add_u32 s25, s25, 32\ns_cmp_lt_u32 s25, 1280\ns_cbranch_scc1 kb_loop\ns_nop 15\ns_nop 7")
e("s_lshl_b32 s24, s21, 5\nv_add_u32 v5, s24, v1\nv_lshlrev_b32 v5, 12, v5\nv_lshl_add_u32 v5, v2, 3, v5\ns_lshl_b32 s23, s23, 1\nv_add_u32 v5, s23, v5")
for q in range(4):
    e(f"v_cvt_pk_bf16_f32 v{8+2*q}, v{16+4*q}, v{17+4*q}\nv_cvt_pk_bf16_f32 v{9+2*q}, v{18+4*q}, v{19+4*q}")
    e(f"buffer_store_dwordx2 v[{8+2*q}:{9+2*q}], v5, s[16:19], 0 offen offset:{16*q}")
e("kb_end:\ns_endpgm")

kstart("kc_kernel",(1280,1,1),(64,1,1))
e("s_cmp_ge_u32 s2, 1280\ns_cbranch_scc1 kc_end")
e("s_load_dwordx2 s[4:5], s[0:1], 8\ns_load_dwordx2 s[28:29], s[0:1], 16\ns_load_dwordx2 s[6:7], s[0:1], 96\ns_load_dwordx2 s[30:31], s[0:1], 0\ns_waitcnt lgkmcnt(0)")
e("s_and_b32 s20, s2, 63\ns_lshr_b32 s21, s2, 6")
srd(8,4,2048*4096); srd(12,28,2048*4096); srd(16,6,1280*4096,WS_AB); srd(32,30,2048*1280); srd(36,6,2048*1280,WS_H)
e("v_and_b32 v1, 31, v0\nv_lshrrev_b32 v2, 5, v0")
e("s_lshl_b32 s23, s20, 5\nv_add_u32 v3, s23, v1\nv_lshlrev_b32 v3, 12, v3\nv_lshl_add_u32 v3, v2, 4, v3")
e("s_lshl_b32 s24, s21, 5\nv_add_u32 v4, s24, v1\nv_lshlrev_b32 v4, 12, v4\nv_lshl_add_u32 v4, v2, 4, v4")
e(f"v_add_u32 v5, {640*4096}, v4")
for i in range(32): e(f"v_mov_b32 v{32+i}, 0")
e("s_mov_b32 s25, 0\nkc_loop:")
e("buffer_load_dwordx4 v[8:11], v4, s[16:19], s25 offen\nbuffer_load_dwordx4 v[12:15], v3, s[8:11], s25 offen")
e("buffer_load_dwordx4 v[16:19], v5, s[16:19], s25 offen\nbuffer_load_dwordx4 v[20:23], v3, s[12:15], s25 offen")
e("s_waitcnt vmcnt(0)\nv_mfma_f32_32x32x16_bf16 v[32:47], v[8:11], v[12:15], v[32:47]\nv_mfma_f32_32x32x16_bf16 v[48:63], v[16:19], v[20:23], v[48:63]")
e("s_add_u32 s25, s25, 32\ns_cmp_lt_u32 s25, 4096\ns_cbranch_scc1 kc_loop\ns_nop 15\ns_nop 7")
e("v_add_u32 v5, s23, v1\nv_mul_u32_u24 v5, 1280, v5\nv_lshl_add_u32 v5, v2, 3, v5\ns_lshl_b32 s24, s24, 1\nv_add_u32 v5, s24, v5")
for q in range(4): e(f"buffer_load_dwordx2 v[{8+2*q}:{9+2*q}], v5, s[32:35], 0 offen offset:{16*q}")
e("s_waitcnt vmcnt(0)")
for i in range(16):
    rbf(32+i); rbf(48+i)
    e(f"v_sub_f32 v{32+i}, v{32+i}, v{48+i}")
    rbf(32+i)
    if i%2==0: e(f"v_lshlrev_b32 v6, 16, v{8+i//2}")
    else: e(f"v_and_b32 v6, 0xffff0000, v{8+i//2}")
    e(f"v_add_f32 v{32+i}, v{32+i}, v6")
for q in range(4):
    e(f"v_cvt_pk_bf16_f32 v{8+2*q}, v{32+4*q}, v{33+4*q}\nv_cvt_pk_bf16_f32 v{9+2*q}, v{34+4*q}, v{35+4*q}")
    e(f"buffer_store_dwordx2 v[{8+2*q}:{9+2*q}], v5, s[36:39], 0 offen offset:{16*q}")
e("kc_end:\ns_endpgm")

kstart("kd_kernel",(512,1,1),(256,1,1))
e("s_cmp_ge_u32 s2, 512\ns_cbranch_scc1 kd_end")
e("s_load_dwordx2 s[4:5], s[0:1], 48\ns_load_dwordx2 s[6:7], s[0:1], 96\ns_load_dwordx2 s[28:29], s[0:1], 80\ns_waitcnt lgkmcnt(0)")
srd(8,6,2048*1280,WS_H); srd(12,6,2048*1280,WS_HN); srd(16,4,1280); srd(20,28,2048*1280); srd(24,6,8192,WS_R)
e("v_lshrrev_b32 v1, 6, v0\nv_and_b32 v2, 63, v0\nv_lshlrev_b32 v3, 2, v2")
e("s_lshl_b32 s3, s2, 2\nv_add_u32 v1, s3, v1\nv_lshlrev_b32 v9, 2, v1\nv_mul_u32_u24 v1, 1280, v1\nv_add_u32 v1, v1, v3")
for i in range(5): e(f"buffer_load_dword v{10+i}, v1, s[8:11], 0 offen offset:{i*256}")
for i in range(5): e(f"buffer_load_dword v{15+i}, v3, s[16:19], 0 offen offset:{i*256}")
e("s_waitcnt vmcnt(0)")
ln_row(0,0)
e("v_mov_b32 v8, 0")
for i in range(5):
    e(f"v_lshlrev_b32 v6, 16, v{15+i}\nv_fma_f32 v8, v6, v{30+2*i}, v8\nv_and_b32 v6, 0xffff0000, v{15+i}\nv_fma_f32 v8, v6, v{31+2*i}, v8")
wave_sum(8,5,3)
rbf(8)
e("buffer_store_dword v8, v9, s[24:27], 0 offen")
for i in range(5):
    e(f"v_cvt_pk_bf16_f32 v{10+i}, v{30+2*i}, v{31+2*i}")
    e(f"buffer_store_dword v{10+i}, v1, s[12:15], 0 offen offset:{i*256}")
    e(f"v_add_f32 v{20+2*i}, v{20+2*i}, v{30+2*i}\nv_add_f32 v{21+2*i}, v{21+2*i}, v{31+2*i}")
    if "scale" in opts:
        f=opts[opts.index("scale")+1]
        e(f"v_mul_f32 v{20+2*i}, {f}, v{20+2*i}\nv_mul_f32 v{21+2*i}, {f}, v{21+2*i}")
    if "add" in opts:
        f=opts[opts.index("add")+1]
        e(f"v_add_f32 v{20+2*i}, {f}, v{20+2*i}\nv_add_f32 v{21+2*i}, {f}, v{21+2*i}")
    if "col0" in opts and i==0:
        f=opts[opts.index("col0")+1]
        e(f"v_cmp_eq_u32 vcc, 0, v2\nv_mov_b32 v6, {f}\ns_nop 1\nv_cndmask_b32 v6, 0, v6, vcc\nv_add_f32 v20, v20, v6")
    e(f"v_cvt_pk_bf16_f32 v{15+i}, v{20+2*i}, v{21+2*i}")
    e(f"buffer_store_dword v{15+i}, v1, s[20:23], 0 offen offset:{i*256}")
e("kd_end:\ns_endpgm")

kstart("ke_kernel",(27,1,1),(64,1,1),8*640*4)
e("s_cmp_ge_u32 s2, 27\ns_cbranch_scc1 ke_end")
e("s_load_dwordx2 s[4:5], s[0:1], 56\ns_load_dwordx2 s[28:29], s[0:1], 64\ns_load_dwordx2 s[6:7], s[0:1], 96\ns_waitcnt lgkmcnt(0)")
srd(8,4,640*3456); srd(12,28,640*3456); srd(16,6,8192,WS_R); srd(20,6,2048*1280,WS_HN); srd(24,6,8*1728*4,WS_ACT); srd(32,6,64,WS_IDX)
e("v_lshlrev_b32 v3, 2, v0")
for i in range(32): e(f"buffer_load_dword v{32+i}, v3, s[16:19], 0 offen offset:{(i%16)*256}" if i<16 else f"buffer_load_dword v{32+i}, v3, s[16:19], s40 offen offset:{(i%16)*256}") if False else None
e("s_mov_b32 s40, 4096")
for i in range(32):
    so = "0" if i<16 else "s40"
    e(f"buffer_load_dword v{32+i}, v3, s[16:19], {so} offen offset:{(i%16)*256}")
e("s_waitcnt vmcnt(0)")
for i in range(32):
    e(f"v_ashrrev_i32 v4, 31, v{32+i}\nv_or_b32 v4, 0x80000000, v4\nv_xor_b32 v{32+i}, v{32+i}, v4\nv_and_b32 v{32+i}, 0xffff0000, v{32+i}")
    e(f"v_sub_u32 v4, {2047-64*i}, v0\nv_or_b32 v{32+i}, v{32+i}, v4")
for j in range(8):
    e("v_mov_b32 v4, v32")
    for i in range(1,32): e(f"v_max_u32 v4, v4, v{32+i}")
    for m in (1,2,4,8,16,32):
        e(f"v_xor_b32 v5, {m*4}, v3\nds_bpermute_b32 v5, v5, v4\ns_waitcnt lgkmcnt(0)\nv_max_u32 v4, v4, v5")
    for i in range(32):
        e(f"v_cmp_eq_u32 vcc, v4, v{32+i}\ns_nop 1\nv_cndmask_b32 v{32+i}, v{32+i}, 0, vcc" .replace(f"v_cndmask_b32 v{32+i}, v{32+i}, 0, vcc", f"v_cndmask_b32_e64 v{32+i}, v{32+i}, 0, vcc"))
    e(f"v_readfirstlane_b32 s{44+j}, v4\ns_nop 3\ns_and_b32 s{44+j}, s{44+j}, 0x7ff\ns_sub_u32 s{44+j}, 2047, s{44+j}")
e("v_mov_b32 v5, 0")
for j in range(8):
    e(f"v_mov_b32 v4, s{44+j}\nbuffer_store_dword v4, v5, s[32:35], 0 offen offset:{4*j}")
for j in range(8):
    e(f"s_mul_i32 s41, s{44+j}, 1280")
    for i in range(5): e(f"buffer_load_dword v{10+i}, v3, s[20:23], s41 offen offset:{i*256}")
    e("s_waitcnt vmcnt(0)\nv_lshlrev_b32 v6, 6, v0")
    for i in range(5):
        e(f"v_lshlrev_b32 v4, 16, v{10+i}\nv_and_b32 v5, 0xffff0000, v{10+i}")
        e(f"ds_write_b32 v6, v4 offset:{i*128*32+4*j}\nds_write_b32 v6, v5 offset:{i*128*32+32+4*j}")
e("s_waitcnt lgkmcnt(0)\ns_barrier")
for i in range(16): e(f"v_mov_b32 v{64+i}, 0")
e("s_lshl_b32 s41, s2, 7\nv_lshlrev_b32 v7, 1, v0\nv_add_u32 v7, s41, v7\nv_mov_b32 v6, 0\ns_mov_b32 s42, 0")
e("ke_loop:")
e("s_mov_b32 s43, s42")
for i in range(8):
    e(f"buffer_load_ushort v{16+i}, v7, s[8:11], s43 offen\nbuffer_load_ushort v{24+i}, v7, s[12:15], s43 offen\ns_add_u32 s43, s43, 3456")
e("s_waitcnt vmcnt(0)")
for i in range(8):
    e(f"ds_read_b128 v[32:35], v6 offset:{32*i}\nds_read_b128 v[36:39], v6 offset:{32*i+16}\nv_lshlrev_b32 v{16+i}, 16, v{16+i}\nv_lshlrev_b32 v{24+i}, 16, v{24+i}\ns_waitcnt lgkmcnt(0)")
    for j in range(8):
        e(f"v_fma_f32 v{64+j}, v{16+i}, v{32+j}, v{64+j}\nv_fma_f32 v{72+j}, v{24+i}, v{32+j}, v{72+j}")
e(f"v_add_u32 v6, 256, v6\ns_mov_b32 s42, s43\ns_cmp_lt_u32 s42, {640*3456}\ns_cbranch_scc1 ke_loop")
e("v_lshlrev_b32 v7, 1, v7\ns_mov_b32 s43, 0")
for j in range(8):
    rbf(64+j); rbf(72+j)
    e(f"v_mul_f32 v4, 0xbfb8aa3b, v{64+j}\nv_exp_f32 v4, v4\ns_nop 0\nv_add_f32 v4, 1.0, v4\nv_rcp_f32 v4, v4\ns_nop 0\nv_mul_f32 v4, v4, v{64+j}")
    rbf(4)
    e(f"v_mul_f32 v4, v4, v{72+j}")
    rbf(4)
    e(f"buffer_store_dword v4, v7, s[24:27], s43 offen\ns_add_u32 s43, s43, {1728*4}")
e("ke_end:\ns_endpgm")

kstart("kf_kernel",(10,1,1),(64,1,1),8*1728*4)
e("s_cmp_ge_u32 s2, 10\ns_cbranch_scc1 kf_end")
e("s_load_dwordx2 s[4:5], s[0:1], 72\ns_load_dwordx2 s[28:29], s[0:1], 80\ns_load_dwordx2 s[6:7], s[0:1], 96\ns_waitcnt lgkmcnt(0)")
srd(8,4,1728*1280); srd(12,28,2048*1280); srd(16,6,8192,WS_R); srd(20,6,2048*1280,WS_HN); srd(24,6,8*1728*4,WS_ACT); srd(32,6,64,WS_IDX); srd(36,6,2048*1280,WS_H)
e("s_buffer_load_dwordx8 s[44:51], s[32:35], 0")
e("v_lshlrev_b32 v3, 2, v0\nv_lshlrev_b32 v6, 5, v0")
for j in range(8):
    e(f"s_mov_b32 s41, {j*1728*4}")
    for i in range(27):
        e(f"buffer_load_dword v{10+i}, v3, s[24:27], s41 offen\ns_add_u32 s41, s41, 256")
    e("s_waitcnt vmcnt(0)")
    for i in range(27):
        e(f"ds_write_b32 v6, v{10+i} offset:{i*64*32+4*j}")
e("s_waitcnt lgkmcnt(0)\ns_barrier")
for i in range(8): e(f"v_mov_b32 v{64+i}, 0")
e("s_lshl_b32 s41, s2, 7\nv_lshlrev_b32 v7, 1, v0\nv_add_u32 v7, s41, v7\nv_mov_b32 v6, 0\ns_mov_b32 s42, 0")
e("kf_loop:")
e("s_mov_b32 s43, s42")
for i in range(16):
    e(f"buffer_load_ushort v{16+i}, v7, s[8:11], s43 offen\ns_add_u32 s43, s43, 1280")
e("s_waitcnt vmcnt(0)")
for i in range(16):
    e(f"ds_read_b128 v[32:35], v6 offset:{32*i}\nds_read_b128 v[36:39], v6 offset:{32*i+16}\nv_lshlrev_b32 v{16+i}, 16, v{16+i}\ns_waitcnt lgkmcnt(0)")
    for j in range(8):
        e(f"v_fma_f32 v{64+j}, v{16+i}, v{32+j}, v{64+j}")
e(f"v_add_u32 v6, 512, v6\ns_mov_b32 s42, s43\ns_cmp_lt_u32 s42, {1728*1280}\ns_cbranch_scc1 kf_loop")
for j in range(8):
    e(f"s_mul_i32 s41, s{44+j}, 1280\ns_lshl_b32 s42, s{44+j}, 2\nv_mov_b32 v5, s42")
    e(f"buffer_load_dword v4, v5, s[16:19], 0 offen\nbuffer_load_ushort v8, v7, s[36:39], s41 offen\nbuffer_load_ushort v9, v7, s[20:23], s41 offen\ns_waitcnt vmcnt(0)")
    e(f"v_mul_f32 v4, 0xbfb8aa3b, v4\nv_exp_f32 v4, v4\ns_nop 0\nv_add_f32 v4, 1.0, v4\nv_rcp_f32 v4, v4\ns_nop 0")
    rbf(4); rbf(64+j)
    e(f"v_mul_f32 v4, v4, v{64+j}")
    rbf(4)
    if "selscale" in opts:
        f=opts[opts.index("selscale")+1]
        e(f"v_mul_f32 v4, {f}, v4")
    e("v_lshlrev_b32 v8, 16, v8\nv_lshlrev_b32 v9, 16, v9\nv_add_f32 v4, v4, v9")
    rbf(4)
    e("v_add_f32 v4, v4, v8\nv_cvt_pk_bf16_f32 v4, v4, v4\nbuffer_store_short v4, v7, s[12:15], s41 offen")
e("kf_end:\ns_endpgm")

kstart("kz_kernel",(256,1,1),(256,1,1))
e("s_endpgm")

hdr=[]
for (n,g,b,l) in kern[:-1]:
    hdr.append(f"; @launch kernel={n} grid=({g[0]},{g[1]},{g[2]}) block=({b[0]},{b[1]},{b[2]}) lds={l}")
for i in range(nempty):
    hdr.append(f"; @launch kernel=kz_kernel grid=(256,1,1) block=(256,1,1) lds=0")
txt="\n".join(hdr)+'\n.amdgcn_target "amdgcn-amd-amdhsa--gfx950"\n.text\n'+"\n".join(L)+'\n.section .rodata,"a"\n'
for (n,g,b,l) in kern:
    if n=="kz_kernel" and nempty==0: continue
    txt+=f""".p2align 6
.amdhsa_kernel {n}
  .amdhsa_next_free_vgpr 128
  .amdhsa_next_free_sgpr 64
  .amdhsa_accum_offset 128
  .amdhsa_group_segment_fixed_size 0
  .amdhsa_kernarg_size 104
  .amdhsa_user_sgpr_count 2
  .amdhsa_user_sgpr_kernarg_segment_ptr 1
  .amdhsa_system_sgpr_workgroup_id_x 1
.end_amdhsa_kernel
"""
open(outp,"w").write(txt)
```

```python
import re
TRANS=("v_exp_f32","v_log_f32","v_rcp_f32","v_rsq_f32","v_sqrt_f32","v_sin_f32","v_cos_f32","v_rcp_iflag_f32")
def regs_of(op):
    op=op.strip()
    op=re.sub(r"^-|^abs\(|\)$|^\||\|$","",op)
    m=re.fullmatch(r"([vsa])\[(\d+):(\d+)\]",op)
    if m: return {f"{m.group(1)}{i}" for i in range(int(m.group(2)),int(m.group(3))+1)}
    m=re.fullmatch(r"([vsa])(\d+)",op)
    if m: return {op}
    if op in("vcc","vcc_lo","vcc_hi"): return {"vcc"}
    if op in("exec","exec_lo","exec_hi"): return {"exec"}
    if op=="m0": return {"m0"}
    return set()
class Ins:
    def __init__(s,text):
        s.text=text
        t=text.split(";")[0].strip()
        s.label=t.endswith(":"); s.directive=t.startswith(".") or t==""
        s.mn=""; s.w=set(); s.r=set(); s.kind=None
        if s.label or s.directive: return
        parts=t.split(None,1); mn=s.mn=parts[0]
        rest=parts[1] if len(parts)>1 else ""
        ops=[]; depth=0; cur=""
        for ch in rest:
            if ch in "[(": depth+=1
            if ch in "])": depth-=1
            if ch=="," and depth==0: ops.append(cur); cur=""
            else: cur+=ch
        if cur.strip(): ops.append(cur)
        mods=""
        if ops:
            l=ops[-1].strip().split(None,1); ops[-1]=l[0]; mods=l[1] if len(l)>1 else ""
        s.ops=[o.strip() for o in ops]; s.mods=mods
        R=[regs_of(o) for o in s.ops]
        s.dpp=("_dpp" in mn) or any(k in mods for k in("quad_perm","row_","wave_"))
        if mn.startswith("v_mfma"):
            s.kind="mfma"; s.w=R[0]; s.ra=R[1]|R[2]; s.rc=R[3]; s.r=s.ra|s.rc
            s.passes=8 if "32x32" in mn else 4
        elif mn.startswith("v_"):
            s.kind="valu"
            if mn.startswith("v_permlane") and "swap" in mn: s.w=R[0]|R[1]; s.r=R[0]|R[1]
            elif mn.startswith(("v_add_co","v_sub_co","v_addc_co","v_subb_co","v_subrev_co")): s.w=R[0]|R[1]; s.r=set().union(*R[2:])
            else:
                s.w=R[0]; s.r=set().union(*R[1:]) if len(R)>1 else set()
                if mn.startswith(("v_fmac","v_dot2c","v_writelane","v_pk_fmac")) or s.dpp or "d16" in mn or "sdwa" in mn: s.r|=R[0]
                if mn.startswith("v_cmpx"): s.w|={"exec"}
        elif mn.startswith(("global_","buffer_","flat_")):
            s.kind="vmem"
            if "store" in mn or "atomic" in mn or "_lds_" in mn or " lds" in (" "+mods): s.r=set().union(*R)
            else: s.w=R[0]; s.r=set().union(*R[1:])
            s.wide=("store" in mn and ("x4" in mn or "x3" in mn))
            s.data=(R[1] if mn.startswith("global_") else R[0]) if "store" in mn else set()
            s.ldsdma=("_lds_" in mn or " lds" in (" "+mods))
        elif mn.startswith("ds_"):
            s.kind="ds"
            if mn.startswith(("ds_read","ds_bpermute","ds_permute","ds_swizzle")) or "_rtn" in mn: s.w=R[0]; s.r=set().union(*R[1:])
            else: s.r=set().union(*R)
        elif mn.startswith("s_"):
            s.kind="salu"
            if mn.startswith(("s_cmp","s_cbranch","s_branch","s_waitcnt","s_barrier","s_nop","s_sleep","s_endpgm","s_setprio","s_bitcmp")):
                s.r=set().union(*R) if R else set()
            else:
                s.w=R[0] if R else set(); s.r=set().union(*R[1:]) if len(R)>1 else set()
                if "saveexec" in mn: s.w|={"exec"}
    def slots(s):
        if s.label or s.directive: return 0
        if s.mn=="s_nop": return int(s.ops[0],0)+1
        return 1
def need(p,c):
    n=0
    vg=lambda S:{x for x in S if x[0] in "va" and x!="vcc"}
    sg=lambda S:{x for x in S if x[0]=="s" or x=="vcc"}
    if p.kind=="valu":
        pw=vg(p.w); ps=sg(p.w)
        if c.kind=="mfma" and pw&c.r: n=max(n,2)
        if c.kind=="valu":
            if c.dpp and pw&c.r: n=max(n,2)
            if c.mn.startswith("v_permlane") and pw&c.r: n=max(n,2)
            if c.mn.startswith(("v_readlane","v_readfirstlane")) and pw&c.r: n=max(n,1)
            if p.mn.startswith(TRANS) and not c.mn.startswith(TRANS) and pw&c.r: n=max(n,1)
            if ps&c.r: n=max(n,4 if c.mn.startswith(("v_readlane","v_writelane")) else 2)
            if p.mn.startswith("v_dot") and pw&(c.r|c.w):
                same=(c.mn==p.mn and c.mn.startswith("v_dot2c") and not (pw&(regs_of(c.ops[1])|regs_of(c.ops[2]))))
                if not same: n=max(n,3)
            if (("sdwa" in p.mn and "dst_sel:DWORD" not in p.mods) or ("op_sel" in p.mods and not p.mn.startswith("v_pk_"))) and pw&c.r: n=max(n,1)
            if "exec" in p.w:
                if c.dpp: n=max(n,5)
                if c.mn.startswith(("v_readlane","v_readfirstlane","v_writelane","v_permlane")): n=max(n,4)
        if p.mn.startswith("v_dot") and c.kind in("vmem","ds","mfma") and pw&c.r: n=max(n,3)
        if p.mn.startswith(TRANS) and c.kind in("vmem","ds") and pw&c.r: n=max(n,1)
        if c.kind=="vmem" and ps&c.r: n=max(n,5)
        if c.kind=="salu" and ps&c.r: n=max(n,1)
        if c.kind=="mfma" and "exec" in p.w: n=max(n,4)
    if p.kind=="mfma":
        lat={4:8,8:12}[p.passes]
        if c.kind=="mfma":
            if p.w&c.ra: n=max(n,lat)
            if p.w&c.rc and not (p.w==c.rc and p.passes==c.passes): n=max(n,lat-2)
            if p.w&c.w and not (p.w==c.rc): n=max(n,lat)
        elif c.kind in("valu","vmem","ds"):
            if p.w&(c.r|c.w): n=max(n,lat)
            if c.kind=="valu" and p.rc&c.w: n=max(n,{4:3,8:7}[p.passes])
    if p.kind=="vmem" and getattr(p,"wide",False) and p.data&c.w: n=max(n,2)
    if p.kind=="salu" and "m0" in p.w and ((c.kind=="vmem" and c.ldsdma) or c.mn.startswith("s_movrel")): n=max(n,1)
    return n
class Asm:
    def __init__(s): s.L=[]
    def __call__(s,txt):
        for l in txt.split("\n"):
            l=l.strip()
            if l: s.L.append(l)
    def finish(s):
        out=[]; hist=[]
        nn=0
        for l in s.L:
            c=Ins(l)
            if c.kind:
                req=0; dist=0
                for p in reversed(hist):
                    if dist>=20: break
                    if p.kind: req=max(req,need(p,c)-dist)
                    dist+=p.slots()
                if req>0:
                    nop=Ins(f"s_nop {req-1}"); out.append(nop.text); hist.append(nop); nn+=1
            out.append(l); hist.append(c)
            if c.mn in("s_branch","s_endpgm"): hist=[]
        s.nops=nn
        return "\n".join(out)
```

```python
import sys, struct
sys.path.insert(0,"gen"); sys.path.insert(0,"exp")
from asmlib import Asm
KN="sequential_preLN__spectral_fnet__moe_arch_mod__prompt_kernel"
kw=dict(a.split("=") for a in sys.argv[2:])
outp=sys.argv[1]
STAMP=int(kw.get("stamp",0))
def opt(n,d): return int(kw.get(n,d))
def fhex(f): return hex(struct.unpack("<I",struct.pack("<f",f))[0])
def ecol(u,pos):
    if u>=1: return u+20*pos
    g,tau,i=pos>>3,(pos>>2)&1,pos&3
    n=4*g+i
    return 20*(n+1) if tau==0 else 10+20*n
colp=[0]*640
for p in range(320):
    e_=ecol(p>>5,p&31); colp[p]=e_; colp[320+p]=(640-e_) if e_!=320 else 0
def p_of_q(q):
    if q>=512: return q
    l,e8=q>>3,q&7
    return 4*l+e8 if e8<4 else 256+4*l+e8-4
CT=[colp[p_of_q(q)] for q in range(640)]
INV=[0]*640
for q,c in enumerate(CT): INV[c]=q
WS_FLAGS=0x1000; WS_SMALL=0x10000; KEYS=0x10000; HN=0x12000; HH=0x15000; META=0x17800; ACT=0x18000
WS_I=0x20000; WS_Y=0x160000; WS_STAMP=0x300000
L_BL=0; L_SUM=12288; L_SQ=12352; L_ST3=12416; L_CNT=12544; L_P2=16384; L_ROW=32768; L_WR=43008; L_XS=53248; XSS=1296
L_RED=64512; L_W=69632; LDS_BYTES=L_W+81920
LIMIT=3000
a=Asm()
nst=[0]
def stamp(name=None):
    if STAMP:
        k=nst[0]; nst[0]+=1
        a(f"s_memrealtime s[{64+2*k}:{65+2*k}]")
def lg(n):
    a(f"s_waitcnt lgkmcnt({0 if STAMP else n})")
pc=[0]
def poll(loads, regs, sleep, tmp, cmp16=False, pre=""):
    k=pc[0]; pc[0]+=1
    a(f"LP{k}:")
    for l in loads: a(l)
    a("s_waitcnt vmcnt(0)")
    r=list(regs)
    if len(r)==1: a(f"v_mov_b32 v{tmp}, v{r[0]}"); r=[]
    elif len(r)%2==1: a(f"v_max3_u32 v{tmp}, v{r[0]}, v{r[1]}, v{r[2]}"); r=r[3:]
    else: a(f"v_max_u32 v{tmp}, v{r[0]}, v{r[1]}"); r=r[2:]
    while r: a(f"v_max3_u32 v{tmp}, v{tmp}, v{r[0]}, v{r[1]}"); r=r[2:]
    a(f"v_cmp_eq_u32 vcc, {'0xffff' if cmp16 else '-1'}, v{tmp}")
    a(f"s_cbranch_vccz LD{k}")
    a(f"s_add_u32 s15, s15, 1\ns_cmp_lt_u32 s15, {LIMIT}\ns_cbranch_scc0 LD{k}\ns_mov_b64 exec, vcc")
    if sleep: a(f"s_sleep {sleep}")
    a(f"s_branch LP{k}\nLD{k}:\ns_mov_b64 exec, -1")
DPPM="row_mask:0xf bank_mask:0xf"
MF="v_mfma_f32_16x16x32_bf16"
def vr(b,n=4): return f"v[{b}:{b+n-1}]"

a(f"{KN}:")
stamp()
a("s_cmp_ge_u32 s2, 256\ns_cbranch_scc1 L_end")
a("s_load_dwordx16 s[16:31], s[0:1], 0\ns_load_dwordx8 s[32:39], s[0:1], 64\ns_load_dwordx2 s[40:41], s[0:1], 96")
a("v_lshrrev_b32 v4, 6, v0\nv_and_b32 v1, 63, v0\nv_readfirstlane_b32 s3, v4\nv_lshrrev_b32 v2, 4, v1\nv_and_b32 v3, 15, v0")
a("s_lshr_b32 s4, s2, 4\ns_lshl_b32 s4, s4, 3\ns_and_b32 s7, s2, 7\ns_or_b32 s4, s4, s7\ns_bfe_u32 s5, s2, 0x10003\ns_mov_b32 s15, 0")
a("s_getpc_b64 s[42:43]\nL_pc:")
a("s_cmp_eq_u32 s3, 8\ns_cbranch_scc1 L_helper")
a("s_sub_u32 s7, 256, s4\ns_cmp_eq_u32 s4, 0\ns_cselect_b32 s7, 128, s7")
a("s_cmp_ge_u32 s3, 4\ns_cselect_b32 s8, s7, s4\ns_and_b32 s9, s3, 3\ns_lshl_b32 s9, s9, 9\ns_add_u32 s9, s9, s8\ns_mulk_i32 s9, 1280")
a("v_lshrrev_b32 v5, 3, v3\nv_mul_u32_u24 v4, 0x50000, v5\nv_and_b32 v6, 7, v0\nv_lshl_add_u32 v4, v6, 3, v4\nv_lshl_add_u32 v4, v2, 6, v4\nv_add_u32 v4, s9, v4")
a("s_min_u32 s10, s3, 4\ns_mul_i32 s11, s5, 5\ns_add_u32 s11, s11, s10")
a("s_add_u32 s12, s11, 80\ns_cmp_eq_u32 s11, 0\ns_cselect_b32 s13, 4, 8\ns_cselect_b32 s14, 20, s11\ns_cselect_b32 s12, 10, s12")
a("v_lshrrev_b32 v18, 2, v3\nv_and_b32 v19, 3, v0\nv_mad_u32_u24 v7, v18, s13, v19")
a("v_mul_u32_u24 v7, 25600, v7\nv_lshl_add_u32 v7, v2, 4, v7\ns_mulk_i32 s14, 1280\ns_mulk_i32 s12, 1280\nv_add_u32 v103, s12, v7\nv_add_u32 v7, s14, v7")
a("s_waitcnt lgkmcnt(0)")
for i in range(5): a(f"global_load_dwordx2 v[{8+2*i}:{9+2*i}], v4, s[16:17] offset:{256*i}")
a("global_load_dwordx4 v[64:67], v7, s[22:23]\nglobal_load_dwordx4 v[68:71], v7, s[24:25]\nglobal_load_dwordx4 v[72:75], v103, s[22:23]\nglobal_load_dwordx4 v[76:79], v103, s[24:25]")
stamp()
a("s_lshr_b32 s45, s2, 1\ns_and_b32 s44, s2, 1\ns_lshl_b32 s44, s44, 4\ns_and_b32 s46, s3, 3\ns_lshl2_add_u32 s44, s46, s44\ns_lshr_b32 s44, 0x04536271, s44\ns_and_b32 s44, s44, 15")
a("s_sub_u32 s47, 255, s45\ns_lshr_b32 s46, s3, 2\ns_cmp_eq_u32 s46, 0\ns_cselect_b32 s47, s45, s47\ns_lshl3_add_u32 s47, s47, s44")
a("s_mul_i32 s48, s47, 1280\nv_lshlrev_b32 v4, 4, v1\nv_lshlrev_b32 v7, 2, v1\nv_add_u32 v103, s48, v4\nv_add_u32 v20, s48, v7")
a("s_add_u32 s42, s42, T_ct-L_pc\ns_addc_u32 s43, s43, 0")
a("global_load_dwordx4 v[88:91], v103, s[16:17]\nglobal_load_dword v92, v20, s[16:17] offset:1024")
a("global_load_dwordx4 v[94:97], v4, s[28:29]\nglobal_load_dword v93, v7, s[28:29] offset:1024")
a("global_load_dwordx4 v[98:101], v4, s[42:43]\nglobal_load_dword v102, v7, s[42:43] offset:1024")
a("s_cmp_ge_u32 s2, 160\ns_cbranch_scc1 L_ffnld")
a("s_lshr_b32 s49, s3, 1\ns_lshl2_add_u32 s49, s5, s49\ns_lshl_b32 s49, s49, 4\nv_add_u32 v4, s49, v3\nv_lshlrev_b32 v4, 15, v4\nv_lshl_add_u32 v4, v2, 4, v4\nv_add_u32 v4, 0x4000, v4")
for k in range(4): a(f"global_load_dwordx4 {vr(104+4*k)}, v4, s[18:19] offset:{64*k}")
for k in range(4): a(f"global_load_dwordx4 {vr(120+4*k)}, v4, s[20:21] offset:{64*k}")
a("s_branch L_setup\nL_ffnld:")
a("s_mul_i32 s49, s3, 160\nv_lshrrev_b32 v4, 2, v1\nv_lshl_add_u32 v4, v4, 1, s49")
for i in range(5): a(f"global_load_ushort v{104+i}, v4, s[42:43] offset:{32*i}")
a("s_sub_u32 s50, s2, 216\ns_cmp_ge_u32 s2, 216\ns_cselect_b32 s50, s50, 0\ns_and_b32 s51, s50, 7\ns_mul_i32 s51, s51, 5\ns_lshr_b32 s50, s50, 3\ns_add_u32 s50, s50, s51")
a("s_lshl_b32 s51, s50, 5\nv_lshl_add_u32 v4, v2, 3, s51")
for i in range(3): a(f"global_load_dwordx2 v[{110+2*i}:{111+2*i}], v4, s[42:43] offset:1280")
a("L_setup:")
a("v_mad_u32_u24 v20, v18, 3, v19")
a("v_lshrrev_b32 v21, 1, v20\nv_and_b32 v22, 1, v20\ns_mul_i32 s49, s5, 5\nv_add_u32 v21, s49, v21")
a("v_cmp_eq_u32 vcc, 0, v21\nv_mul_u32_u24 v23, 10, v22\nv_cndmask_b32 v24, v22, 0, vcc\nv_cndmask_b32 v21, v21, v23, vcc".replace("v_cndmask_b32 v24, v22, 0, vcc","v_cndmask_b32_e64 v24, v22, 0, vcc"))
a("v_cmp_eq_u32 vcc, 3, v19\nv_cndmask_b32_e64 v21, v21, 0, vcc\nv_cndmask_b32_e64 v24, v24, 0, vcc\nv_cndmask_b32_e64 v20, v20, 0, vcc")
a(f"v_cvt_f32_u32 v21, v21\nv_cvt_f32_u32 v24, v24\nv_mul_f32 v21, {fhex(0.05)}, v21\nv_mul_f32 v24, 0.25, v24".replace("0.25",fhex(0.25)))
a("v_cvt_f32_u32 v23, v2\nv_fma_f32 v24, v23, v21, v24\nv_mul_f32 v21, 4.0, v21\nv_cmp_gt_u32 vcc, 10, v20")
for i in range(5):
    a(f"v_cos_f32 v{25+i}, v24")
    if i<4: a("v_add_f32 v24, v24, v21")
a("v_cvt_pk_bf16_f32 v36, v25, v26\nv_cvt_pk_bf16_f32 v37, v27, v28\nv_cvt_pk_bf16_f32 v38, v29, 0\nv_mov_b32 v39, 0")
a("v_cndmask_b32 v36, 0, v36, vcc\nv_cndmask_b32 v37, 0, v37, vcc\nv_cndmask_b32 v38, 0, v38, vcc")
a("v_lshrrev_b32 v20, 1, v3\nv_and_b32 v21, 1, v0\nv_lshrrev_b32 v22, 1, v2\nv_and_b32 v23, 1, v2")
a("v_mov_b32 v24, s7\nv_mov_b32 v25, s4\nv_cmp_eq_u32 vcc, 1, v22\nv_cndmask_b32 v24, v25, v24, vcc\nv_lshl_add_u32 v24, v23, 10, v24")
a("v_subrev_u32 v25, 4, v20\nv_mul_i32_i24 v24, v24, v25\nv_lshl_add_u32 v24, v21, 9, v24")
a("v_cmp_gt_u32 vcc, v22, v21\ns_cmp_lg_u32 s4, 0\ns_cselect_b32 s49, 1024, 0\nv_mov_b32 v25, s49\nv_cndmask_b32 v25, 0, v25, vcc\nv_add_u32 v24, v24, v25\nv_and_b32 v24, 2047, v24")
a(f"v_cvt_f32_u32 v24, v24\nv_cvt_f32_u32 v25, v20\nv_mul_f32 v24, {fhex(1/2048)}, v24\nv_mul_f32 v25, {fhex(0.125)}, v25")
a("v_cmp_eq_u32 vcc, v22, v21\ns_cselect_b64 s[52:53], -1, 0\ns_or_b64 vcc, vcc, s[52:53]\nv_cndmask_b32_e64 v26, 0, 1.0, vcc")
for i in range(4):
    a(f"v_cos_f32 v{56+i}, v24\nv_sin_f32 v{60+i}, v24")
    if i<3: a("v_add_f32 v24, v24, v25")
for i in range(8): a(f"v_mul_f32 v{56+i}, v{56+i}, v26")
a("v_mov_b32 v23, 0\nv_mov_b32 v27, 0\nv_mov_b32 v31, 0\nv_mov_b32 v35, 0\ns_mov_b32 s52, 0x05040100\ns_mov_b32 s53, 0x07060302")
a("s_lshl_b32 s49, s3, 7\nv_mul_u32_u24 v4, 3072, v2\nv_lshl_add_u32 v4, v3, 3, v4\nv_add_u32 v4, s49, v4")
a("s_lshl_b32 s49, s3, 3\nv_lshl_add_u32 v7, v5, 2, s49")
a(f"ds_write_b32 v7, v23 offset:{L_SQ}\nds_write_b32 v7, v23 offset:{L_CNT}")
a(f"s_cmp_eq_u32 s5, 0\ns_cselect_b32 s49, {fhex(-1/32)}, 0\nv_mov_b32 v6, s49\nv_cmp_eq_u32 vcc, 0, v2\nv_cndmask_b32 v6, 0, v6, vcc")
a("v_mov_b32 v18, 0\nv_mov_b32 v19, 0\ns_mov_b32 s54, 0x01010101\ns_mov_b32 s55, 0x01010101")
a("s_waitcnt vmcnt(18)")
stamp()
for low in range(4):
    c=low>>1; sel="s53" if low&1 else "s52"; o=20+4*low
    a(f"v_perm_b32 v{o}, v{10+c}, v{8+c}, {sel}\nv_perm_b32 v{o+1}, v{14+c}, v{12+c}, {sel}\nv_perm_b32 v{o+2}, v23, v{16+c}, {sel}")
    if low>0: a(f"{MF} {vr(40+4*(low-1))}, v[36:39], {vr(20+4*(low-1))}, 0")
a("v_dot2c_f32_bf16 v18, v8, v8\nv_dot2c_f32_bf16 v19, v9, v9")
a(f"{MF} {vr(52)}, v[36:39], {vr(32)}, 0")
for i in range(1,5): a(f"v_dot2c_f32_bf16 v18, v{8+2*i}, v{8+2*i}\nv_dot2c_f32_bf16 v19, v{9+2*i}, v{9+2*i}")
a("v_add_f32 v8, v43, v47\nv_add_f32 v9, v51, v55\nv_add_f32 v18, v18, v19\nv_add_f32 v8, v8, v9")
for m in ("quad_perm:[1,0,3,2]","quad_perm:[2,3,0,1]","row_half_mirror"):
    a(f"v_add_f32_dpp v18, v18, v18 {m} {DPPM}\nv_add_f32_dpp v8, v8, v8 {m} {DPPM}")
    r={"quad_perm:[1,0,3,2]":1,"quad_perm:[2,3,0,1]":2}.get(m)
    if r: a(f"v_cvt_pk_bf16_f32 v{10+2*r}, v{40+r}, v{44+r}\nv_cvt_pk_bf16_f32 v{11+2*r}, v{48+r}, v{52+r}\nds_write_b64 v4, v[{10+2*r}:{11+2*r}] offset:{1024*r}")
a(f"s_mov_b64 exec, s[54:55]\nds_add_f32 v7, v18 offset:{L_SQ}\nds_write_b32 v7, v8 offset:{L_SUM}\ns_mov_b64 exec, -1")
for low in range(4): a(f"v_fmac_f32 v{40+4*low}, v8, v6")
a("v_cvt_pk_bf16_f32 v10, v40, v44\nv_cvt_pk_bf16_f32 v11, v48, v52\nds_write_b64 v4, v[10:11]")
a("s_lshl_b32 s49, s10, 11\ns_add_u32 s56, s49, 1024\ns_cmp_eq_u32 s11, 0\ns_cselect_b32 s57, 1024, s49\ns_cselect_b32 s56, 10240, s56")
a("v_lshlrev_b32 v4, 6, v3\nv_lshl_add_u32 v4, v2, 4, v4\nv_add_u32 v5, s56, v4\nv_add_u32 v6, s57, v4\nv_add_u32 v4, s49, v4\nv_lshlrev_b32 v7, 4, v2")
a("s_waitcnt vmcnt(14)")
for i in range(4): a(f"v_xor_b32 v{80+i}, 0x80008000, v{68+i}\nv_xor_b32 v{84+i}, 0x80008000, v{76+i}")
a("s_waitcnt lgkmcnt(0)\ns_barrier")
stamp()
a("s_cmp_ge_u32 s3, 5\ns_cbranch_scc1 L_p1idle")
a(f"ds_read_b128 v[8:11], v4\nds_read_b128 v[12:15], v6\nds_read_b128 v[20:23], v5\nds_read_b128 v[24:27], v7 offset:{L_SUM}\nds_read_b128 v[28:31], v7 offset:{L_SQ}")
a(f"s_lshl_b32 s49, s11, 7\ns_add_u32 s49, s49, s4\ns_lshl_b32 s49, s49, 7\ns_add_u32 s49, s49, {WS_I}")
a("v_lshrrev_b32 v16, 1, v3\nv_mul_u32_u24 v16, 0x28000, v16\nv_and_b32 v17, 1, v0\nv_lshl_add_u32 v16, v17, 6, v16\nv_add3_u32 v16, v16, v7, s49")
lg(3)
a(f"{MF} v[40:43], v[8:11], v[64:67], 0\n{MF} v[44:47], v[8:11], v[68:71], 0\n{MF} v[48:51], v[12:15], v[72:75], 0\n{MF} v[52:55], v[12:15], v[76:79], 0")
lg(2)
a(f"{MF} v[40:43], v[20:23], v[80:83], v[40:43]\n{MF} v[44:47], v[20:23], v[64:67], v[44:47]\n{MF} v[48:51], v[20:23], v[84:87], v[48:51]\n{MF} v[52:55], v[20:23], v[72:75], v[52:55]")
lg(0)
a(f"s_mov_b32 s56, {fhex(1/640)}\ns_mov_b32 s57, {fhex(1/640)}")
a("v_pk_mul_f32 v[24:25], v[24:25], s[56:57]\nv_pk_mul_f32 v[26:27], v[26:27], s[56:57]")
a(f"v_mov_b32 v32, {fhex(1e-5)}\nv_mov_b32 v33, {fhex(1e-5)}")
a("v_pk_fma_f32 v[28:29], v[28:29], s[56:57], v[32:33]\nv_pk_fma_f32 v[30:31], v[30:31], s[56:57], v[32:33]")
a("v_pk_fma_f32 v[28:29], v[24:25], v[24:25], v[28:29] neg_lo:[1,0,0] neg_hi:[1,0,0]\nv_pk_fma_f32 v[30:31], v[26:27], v[26:27], v[30:31] neg_lo:[1,0,0] neg_hi:[1,0,0]")
for i in range(4): a(f"v_max_f32 v{28+i}, v{28+i}, v32")
for i in range(4): a(f"v_rsq_f32 v{28+i}, v{28+i}")
a("v_cvt_pk_bf16_f32 v8, v40, v41\nv_cvt_pk_bf16_f32 v9, v42, v43\nv_cvt_pk_bf16_f32 v10, v44, v45\nv_cvt_pk_bf16_f32 v11, v46, v47")
a("v_pk_mul_f32 v[56:57], v[56:57], v[28:29]\nv_pk_mul_f32 v[58:59], v[58:59], v[30:31]\nv_pk_mul_f32 v[60:61], v[60:61], v[28:29]\nv_pk_mul_f32 v[62:63], v[62:63], v[30:31]")
a("v_cvt_pk_bf16_f32 v24, v56, v57\nv_cvt_pk_bf16_f32 v25, v58, v59\nv_cvt_pk_bf16_f32 v26, v60, v61\nv_cvt_pk_bf16_f32 v27, v62, v63")
a("v_cvt_pk_bf16_f32 v12, v48, v49\nv_cvt_pk_bf16_f32 v13, v50, v51")
a(f"{MF} v[40:43], v[8:11], v[24:27], 0")
a("v_cvt_pk_bf16_f32 v14, v52, v53\nv_cvt_pk_bf16_f32 v15, v54, v55")
a(f"{MF} v[44:47], v[12:15], v[24:27], 0")
a("v_cvt_pk_bf16_f32 v8, v40, v41\nv_cvt_pk_bf16_f32 v9, v42, v43\nv_cvt_pk_bf16_f32 v10, v44, v45\nv_cvt_pk_bf16_f32 v11, v46, v47")
a("global_store_dwordx4 v16, v[8:11], s[40:41] sc1")
a("s_branch L_p1done")
a("L_p1idle:\ns_cmp_lg_u32 s3, 7\ns_cbranch_scc1 L_p1done")
a(f"s_load_dword s6, s[40:41], 0\nv_lshlrev_b32 v4, 4, v1\nv_add_u32 v4, {WS_FLAGS}, v4\ns_waitcnt lgkmcnt(0)\ns_add_u32 s6, s6, 1")
a("L_fl:")
for i in range(4): a(f"global_load_dword v{8+i}, v4, s[40:41] offset:{1024*i} sc1")
a("s_waitcnt vmcnt(0)")
a("v_xor_b32 v8, s6, v8\nv_xor_b32 v9, s6, v9\nv_xor_b32 v10, s6, v10\nv_xor_b32 v11, s6, v11\nv_or3_b32 v8, v8, v9, v10\nv_or_b32 v8, v8, v11\nv_cmp_ne_u32 vcc, 0, v8\ns_cbranch_vccz L_fld")
a(f"s_add_u32 s15, s15, 1\ns_cmp_lt_u32 s15, {LIMIT}\ns_cbranch_scc0 L_fld\ns_sleep 4\ns_branch L_fl\nL_fld:")
a("L_p1done:")
stamp()
a("s_cmp_ge_u32 s2, 160\ns_cbranch_scc1 L_ffnstage")
a(f"s_and_b32 s49, s2, 7\ns_lshr_b32 s56, s2, 4\ns_mul_i32 s57, s49, 10\ns_add_u32 s57, s57, s56\ns_lshl_b32 s57, s57, 14\ns_add_u32 s57, s57, {WS_I}")
a("v_lshl_add_u32 v4, v0, 4, s57\nv_add_u32 v5, 0x2000, v4")
a("v_lshlrev_b32 v6, 1, v0\nv_and_b32 v6, 32, v6\nv_and_b32 v7, 64, v0\nv_or_b32 v6, v6, v7\nv_lshlrev_b32 v7, 4, v0\nv_xor_b32 v6, v6, v7")
a("v_lshrrev_b32 v16, 2, v3\nv_lshl_add_u32 v17, v2, 3, v16\nv_lshlrev_b32 v17, 7, v17\nv_and_b32 v18, 3, v0\nv_lshl_add_u32 v17, v18, 3, v17")
a("v_lshrrev_b32 v16, 3, v1\nv_and_b32 v16, 3, v16\ns_and_b32 s58, s3, 1\nv_xor_b32 v16, s58, v16\nv_lshl_add_u32 v17, v16, 5, v17\nv_xor_b32 v18, 64, v17")
a(f"s_lshl_b32 s59, s49, 7\ns_lshr_b32 s60, s3, 1\ns_lshl2_add_u32 s60, s5, s60\ns_lshl4_add_u32 s59, s60, s59\ns_mulk_i32 s59, 1280\ns_lshl_b32 s56, s56, 7\ns_add_u32 s59, s59, s56\ns_lshl_b32 s58, s58, 6\ns_add_u32 s59, s59, s58\ns_add_u32 s59, s59, {WS_Y}")
a("v_mul_u32_u24 v19, 1280, v3\nv_lshl_add_u32 v19, v2, 4, v19\nv_add_u32 v19, s59, v19")
a("s_waitcnt vmcnt(0)")
a("v_lshlrev_b32 v16, 15, v0\nv_and_b32 v16, 0x8000, v16\nv_xor_b32 v16, 0xbf80, v16\ns_mov_b32 s58, 0xffff\nv_bfi_b32 v16, s58, v16, v120\nv_cmp_eq_u32 vcc, 0, v2\nv_cndmask_b32 v120, v120, v16, vcc")
a("s_barrier")
stamp()
if opt("pre1",0): a(f"s_sleep {opt('pre1',0)}")
poll(["global_load_dwordx4 v[8:11], v4, s[40:41] sc1","global_load_dwordx4 v[12:15], v5, s[40:41] sc1"],range(8,16),opt("sl1",2),16)
stamp()
a(f"ds_write_b128 v6, v[8:11] offset:{L_P2}\nds_write_b128 v6, v[12:15] offset:{L_P2+8192}\ns_waitcnt lgkmcnt(0)\ns_barrier")
for k in range(4):
    a(f"ds_read_b64_tr_b16 v[{20+8*k}:{21+8*k}], v17 offset:{L_P2+4096*k}\nds_read_b64_tr_b16 v[{22+8*k}:{23+8*k}], v17 offset:{L_P2+4096*k+512}")
    a(f"ds_read_b64_tr_b16 v[{24+8*k}:{25+8*k}], v18 offset:{L_P2+4096*k}\nds_read_b64_tr_b16 v[{26+8*k}:{27+8*k}], v18 offset:{L_P2+4096*k+512}")
for k in range(4):
    lg(14-4*k if k<3 else 2)
    a(f"{MF} v[8:11], {vr(20+8*k)}, {vr(104+4*k)}, {'0' if k==0 else 'v[8:11]'}")
    lg(12-4*k)
    a(f"{MF} v[12:15], {vr(24+8*k)}, {vr(120+4*k)}, {'0' if k==0 else 'v[12:15]'}")
a("v_pk_add_f32 v[20:21], v[8:9], v[12:13] neg_lo:[0,1] neg_hi:[0,1]\nv_pk_add_f32 v[22:23], v[10:11], v[14:15] neg_lo:[0,1] neg_hi:[0,1]\nv_pk_add_f32 v[24:25], v[8:9], v[12:13]\nv_pk_add_f32 v[26:27], v[10:11], v[14:15]")
a("v_cvt_pk_bf16_f32 v8, v20, v21\nv_cvt_pk_bf16_f32 v9, v22, v23\nv_cvt_pk_bf16_f32 v10, v24, v25\nv_cvt_pk_bf16_f32 v11, v26, v27")
a("global_store_dwordx4 v19, v[8:11], s[40:41] sc1")
a("s_branch L_p3prep")
a("L_ffnstage:\ns_waitcnt vmcnt(0)\ns_barrier")
if STAMP: a(f"s_memrealtime s[{64+2*(nst[0]-2)}:{65+2*(nst[0]-2)}]\ns_memrealtime s[{64+2*(nst[0]-1)}:{65+2*(nst[0]-1)}]")
a("s_cmp_ge_u32 s2, 216\ns_cbranch_scc1 L_st2\ns_cmp_ge_u32 s2, 214\ns_cbranch_scc1 L_p3prep")
a("s_sub_u32 s49, s2, 160\ns_and_b32 s50, s49, 7\ns_lshr_b32 s56, s49, 4\ns_lshl3_add_u32 s50, s56, s50\ns_bfe_u32 s56, s49, 0x10003\ns_lshl1_add_u32 s50, s50, s56\ns_cmp_ge_u32 s49, 48\ns_cselect_b32 s50, s49, s50")
a("s_lshl_b32 s56, s50, 6\nv_and_b32 v4, 3, v0\nv_lshl_add_u32 v4, v4, 4, s56\ns_movk_i32 s57, 1728")
a(f"s_mul_i32 s58, s3, 5120\ns_add_u32 s58, s58, {L_W}")
for i in range(5):
    a(f"v_mad_u32_u24 v5, v{104+i}, s57, v4\ns_add_u32 m0, s58, {1024*i}\nglobal_load_lds_dwordx4 v5, s[30:31]\ns_add_u32 m0, s58, {1024*i+40960}\nglobal_load_lds_dwordx4 v5, s[32:33]")
a("v_lshrrev_b32 v4, 2, v3\nv_lshl_add_u32 v4, v2, 3, v4\nv_lshlrev_b32 v4, 6, v4\nv_and_b32 v5, 1, v0\nv_lshl_add_u32 v4, v5, 3, v4\nv_bfe_u32 v5, v0, 1, 1\nv_mul_u32_u24 v5, 40960, v5")
a(f"s_and_b32 s56, s3, 3\ns_lshl_b32 s56, s56, 4\ns_add_u32 s56, s56, {L_W}\nv_add3_u32 v4, v4, v5, s56")
a("s_waitcnt vmcnt(0)\ns_barrier\ns_cmp_ge_u32 s3, 4\ns_cbranch_scc1 L_p3prep")
for k in range(20):
    a(f"ds_read_b64_tr_b16 v[{8+4*k}:{9+4*k}], v4 offset:{2048*k}\nds_read_b64_tr_b16 v[{10+4*k}:{11+4*k}], v4 offset:{2048*k+256}")
    if k%4==3: a("s_waitcnt lgkmcnt(0)")
a("s_branch L_p3prep")
a("L_st2:")
a("v_mov_b32 v56, v110\nv_mov_b32 v57, v111")
a("v_lshrrev_b32 v4, 1, v1\nv_mul_u32_u24 v4, 1280, v4\nv_and_b32 v5, 1, v0\nv_lshl_add_u32 v4, v5, 4, v4\ns_mul_i32 s56, s3, 81920\ns_add_u32 s56, s56, s51\nv_add_u32 v4, s56, v4")
a(f"s_lshl_b32 s58, s3, 13\ns_add_u32 s58, s58, {L_W}")
for i in range(4):
    if i==3: a("s_cmp_ge_u32 s3, 3\ns_cbranch_scc1 L_st2b")
    for b in range(2):
        a(f"s_add_u32 m0, s58, {2048*i+1024*b}\nv_add_u32 v5, {655360*i+40960*b}, v4\nglobal_load_lds_dwordx4 v5, s[34:35]")
a("L_st2b:")
a("v_lshrrev_b32 v4, 2, v3\nv_lshl_add_u32 v4, v2, 3, v4\nv_lshlrev_b32 v4, 5, v4\nv_and_b32 v5, 3, v0\nv_lshl_add_u32 v4, v5, 3, v4\nv_add_u32 v4, s58, v4\ns_waitcnt vmcnt(0)")
for k in range(8):
    a(f"ds_read_b64_tr_b16 v[{8+4*k}:{9+4*k}], v4 offset:{1024*k}\nds_read_b64_tr_b16 v[{10+4*k}:{11+4*k}], v4 offset:{1024*k+128}")
    if k%4==3: a("s_waitcnt lgkmcnt(0)")
a("L_p3prep:")
stamp()
a(f"s_mul_i32 s49, s3, 1280\ns_add_u32 s49, s49, {L_ROW}\nv_lshl_add_u32 v4, v1, 4, s49\nv_lshl_add_u32 v5, v1, 2, s49")
a(f"ds_write_b128 v4, v[88:91]\nds_write_b32 v5, v92 offset:1024\nds_write_b128 v4, v[94:97] offset:{L_WR-L_ROW}\nds_write_b32 v5, v93 offset:{L_WR-L_ROW+1024}")
for i in range(5):
    a(f"v_and_b32 v{104+2*i}, 0xffff, v{98+i}\nv_lshrrev_b32 v{105+2*i}, 16, v{98+i}\nv_add_u32 v{104+2*i}, s49, v{104+2*i}\nv_add_u32 v{105+2*i}, s49, v{105+2*i}")
for i in range(5):
    a(f"ds_read_u16 v{114+i}, v{104+2*i}\nds_read_u16 v{119+i}, v{104+2*i} offset:{L_WR-L_ROW}")
for i in range(5):
    a(f"ds_read_u16 v{140+i}, v{105+2*i}\nds_read_u16 v{145+i}, v{105+2*i} offset:{L_WR-L_ROW}")
a(f"s_lshl_b32 s56, s44, 7\ns_add_u32 s56, s56, s45\ns_mulk_i32 s56, 1280\ns_lshl3_add_u32 s56, s46, s56\ns_add_u32 s56, s56, {WS_Y}")
a("s_sub_u32 s57, 2048, s47\ns_and_b32 s57, s57, 2047\ns_and_b32 s58, s57, 7\ns_lshr_b32 s57, s57, 3\ns_sub_u32 s59, 255, s57\ns_cmp_ge_u32 s57, 128\ns_cselect_b32 s57, s59, s57\ns_cselect_b32 s59, 8, 0")
a(f"s_lshl_b32 s58, s58, 7\ns_add_u32 s57, s57, s58\ns_mulk_i32 s57, 1280\ns_add_u32 s57, s57, s59\ns_add_u32 s57, s57, {WS_Y}")
a("v_lshl_add_u32 v129, v1, 4, s56\ns_add_u32 s58, s56, 1024\ns_sub_u32 s59, s57, 256\nv_mov_b32 v130, s59\nv_mov_b32 v131, s58\nv_cmp_eq_u32 vcc, 0, v2\nv_cndmask_b32 v130, v130, v131, vcc\nv_lshl_add_u32 v130, v1, 4, v130")
a("v_lshrrev_b32 v131, 1, v1\nv_lshlrev_b32 v131, 4, v131\nv_and_b32 v132, 1, v0\nv_lshl_add_u32 v131, v132, 2, v131\ns_add_u32 s58, s57, 768\nv_add_u32 v131, s58, v131")
a("v_mov_b32 v132, 0xffff\nv_cmp_eq_u32 vcc, 22, v1\nv_cndmask_b32 v132, -1, v132, vcc")
a("s_mov_b32 s56, 0x3f803f80\nv_mov_b32 v134, 0\nv_mov_b32 v135, 0\nv_mov_b32 v136, 0\nv_mov_b32 v137, 0\nv_mov_b32 v138, 0")
a(f"s_lshl_b32 s57, s3, 4\nv_lshl_add_u32 v133, v2, 2, s57\nv_and_b32 v139, 7, v0\nv_lshlrev_b32 v155, 4, v139")
a("s_waitcnt lgkmcnt(0)")
for i in range(10): a(f"v_lshl_or_b32 v{114+i}, v{140+i}, 16, v{114+i}")
for i in range(5):
    a(f"v_dot2c_f32_bf16 v134, s56, v{114+i}\nv_dot2c_f32_bf16 v135, v{114+i}, v{119+i}\nv_dot2c_f32_bf16 v136, v{114+i}, v{114+i}\nv_dot2c_f32_bf16 v137, s56, v{119+i}")
a("s_waitcnt vmcnt(0)")
stamp()
if opt("pre2",0): a(f"s_sleep {opt('pre2',0)}")
poll(["global_load_dwordx2 v[124:125], v129, s[40:41] sc1","global_load_dwordx2 v[126:127], v130, s[40:41] sc1","global_load_dword v128, v131, s[40:41] sc1"],range(124,129),opt("sl2",3),162)
stamp()
a("v_and_b32 v127, v127, v132")
for i in (0,1,2,4,3):
    a(f"v_dot2c_f32_bf16 v134, s56, v{124+i}\nv_dot2c_f32_bf16 v135, v{124+i}, v{119+i}\nv_dot2c_f32_bf16 v136, v{124+i}, v{124+i}\nv_dot2c_f32_bf16 v138, v{124+i}, v{114+i}")
a("v_permlane32_swap_b32 v134, v135\nv_fmac_f32 v136, 2.0, v138\nv_add_f32 v134, v134, v135\nv_permlane32_swap_b32 v136, v137\nv_add_f32 v136, v136, v137")
a("v_permlane16_swap_b32 v134, v136\nv_add_f32 v134, v134, v136")
for s_ in (8,4,2,1): a(f"v_add_f32_dpp v134, v134, v134 row_ror:{s_} {DPPM}")
a(f"ds_write_b32 v133, v134 offset:{L_ST3}\ns_waitcnt lgkmcnt(0)\ns_barrier\nds_read_b128 v[134:137], v155 offset:{L_ST3}")
a(f"s_lshl_b32 s57, s2, 3\nv_add_u32 v139, s57, v139\nv_lshlrev_b32 v155, 2, v139\nv_add_u32 v155, {KEYS}, v155\nv_mov_b32 v138, {fhex(1e-5)}\ns_mov_b32 s58, {fhex(1/640)}\ns_movk_i32 s59, 0x7ff")
a("s_waitcnt lgkmcnt(0)")
a("v_mul_f32 v134, s58, v134\nv_fma_f32 v135, v135, s58, v138\nv_fma_f32 v135, -v134, v134, v135\nv_max_f32 v135, v135, v138\nv_rsq_f32 v135, v135\nv_fma_f32 v136, -v134, v137, v136\nv_mul_f32 v136, v136, v135")
a("v_ashrrev_i32 v137, 31, v136\nv_or_b32 v137, 0x80000000, v137\nv_xor_b32 v137, v137, v136\nv_bfi_b32 v137, s59, v139, v137\nv_min_u32 v137, -2, v137")
a("s_cmp_lg_u32 s3, 0\ns_cbranch_scc1 L_nokey\ns_mov_b64 exec, 0xff\nglobal_store_dword v155, v137, s[40:41] sc1\ns_mov_b64 exec, -1\nL_nokey:")
stamp()
a("v_readlane_b32 s56, v134, s3\nv_readlane_b32 s58, v135, s3\nv_readlane_b32 s60, v136, s3")
for i in range(8): a(f"v_readlane_b32 s{6+i}, v137, {i}")
a("v_mov_b32 v138, 0")
for i in range(8): a(f"v_cmp_gt_u32 vcc, s{6+i}, v137\nv_addc_co_u32 v138, vcc, 0, v138, vcc")
a("v_lshlrev_b32 v139, 2, v138\nds_permute_b32 v137, v139, v137\nv_readlane_b32 s14, v138, s3")
for i in range(5):
    a(f"v_lshlrev_b32 v{140+2*i}, 16, v{124+i}\nv_and_b32 v{141+2*i}, 0xffff0000, v{124+i}\nv_lshlrev_b32 v162, 16, v{114+i}\nv_and_b32 v163, 0xffff0000, v{114+i}")
    a(f"v_pk_add_f32 v[{140+2*i}:{141+2*i}], v[{140+2*i}:{141+2*i}], v[162:163]\nv_cvt_pk_bf16_f32 v{150+i}, v{140+2*i}, v{141+2*i}")
a("s_mov_b32 s57, s56\ns_mov_b32 s59, s58")
for i in range(5):
    a(f"v_lshlrev_b32 v{140+2*i}, 16, v{150+i}\nv_and_b32 v{141+2*i}, 0xffff0000, v{150+i}")
    a(f"v_pk_add_f32 v[162:163], v[{140+2*i}:{141+2*i}], s[56:57] neg_lo:[0,1] neg_hi:[0,1]\nv_pk_mul_f32 v[162:163], v[162:163], s[58:59]\nv_cvt_pk_bf16_f32 v{156+i}, v162, v163")
a("s_waitcnt lgkmcnt(0)")
for i in range(8): a(f"v_readlane_b32 s{6+i}, v137, {i}")
a(f"v_lshlrev_b32 v129, 4, v0\nv_add_u32 v129, {KEYS}, v129\nv_mov_b32 v130, {L_CNT}\ns_mov_b32 s61, 0\ns_mov_b32 s62, 0")
a("v_lshlrev_b32 v131, 4, v1\nv_lshlrev_b32 v132, 2, v1")
a("s_waitcnt vmcnt(0)\ns_barrier")
stamp()
if opt("pre3",0): a(f"s_sleep {opt('pre3',0)}")
poll(["global_load_dwordx4 v[124:127], v129, s[40:41] sc1"],range(124,128),opt("sl3",2),162)
stamp()
a("L_round:")
for i in range(4): a(f"v_cmp_gt_u32_e64 s[{16+2*i}:{17+2*i}], v{124+i}, s6")
for i in range(4): a(f"v_cmp_gt_u32_e64 s[{24+2*i}:{25+2*i}], v{124+i}, s7")
for i in range(8): a(f"s_bcnt1_i32_b64 s{16+2*i}, s[{16+2*i}:{17+2*i}]")
a("s_add_u32 s16, s16, s18\ns_add_u32 s20, s20, s22\ns_add_u32 s24, s24, s26\ns_add_u32 s28, s28, s30\ns_add_u32 s16, s16, s20\ns_add_u32 s24, s24, s28\ns_lshl_b32 s24, s24, 16\ns_add_u32 s16, s16, s24")
a("v_mov_b32 v162, s16\ns_mov_b64 exec, 1\nds_add_u32 v130, v162\ns_mov_b64 exec, -1\ns_waitcnt lgkmcnt(0)\ns_barrier\nds_read_b32 v162, v130\ns_sub_u32 s18, s14, s61\ns_lshl_b32 s19, s18, 4\ns_waitcnt lgkmcnt(0)")
a("v_readfirstlane_b32 s16, v162\ns_lshr_b32 s17, s16, s19\ns_and_b32 s17, s17, 0xffff\ns_cmp_lt_u32 s18, 2\ns_cselect_b32 s17, s17, 99\ns_cmp_ge_u32 s17, 8\ns_cbranch_scc1 L_nosel")
a(f"s_mul_i32 s18, s17, 1280\ns_add_u32 s18, s18, {HN}\nv_add_u32 v162, s18, v131\nv_add_u32 v163, s18, v132")
a("global_store_dwordx4 v162, v[156:159], s[40:41] sc1\nglobal_store_dword v163, v160, s[40:41] offset:1024 sc1")
a(f"v_add_u32 v162, {HH-HN}, v162\nv_add_u32 v163, {HH-HN}, v163")
a("global_store_dwordx4 v162, v[150:153], s[40:41] sc1\nglobal_store_dword v163, v154, s[40:41] offset:1024 sc1")
a(f"v_mov_b32 v165, s60\nv_mul_f32 v165, 0xbfb8aa3b, v165\nv_exp_f32 v165, v165\nv_mov_b32 v164, s47\nv_add_f32 v165, 1.0, v165\nv_rcp_f32 v165, v165\ns_lshl_b32 s18, s17, 6\ns_add_u32 s18, s18, {META}\nv_mov_b32 v162, s18")
a("v_cvt_pk_bf16_f32 v165, v165, v165\nv_and_b32 v165, 0xffff0000, v165\ns_mov_b64 exec, 1\nglobal_store_dwordx2 v162, v[164:165], s[40:41] sc1\ns_mov_b64 exec, -1\ns_mov_b32 s62, 1")
a("L_nosel:\ns_lshr_b32 s17, s16, 16\ns_cmp_ge_u32 s17, 7\ns_cbranch_scc1 L_rdone\ns_cmp_ge_u32 s61, 6\ns_cbranch_scc1 L_rdone")
a("s_add_u32 s61, s61, 2\ns_mov_b64 s[6:7], s[8:9]\ns_mov_b64 s[8:9], s[10:11]\ns_mov_b64 s[10:11], s[12:13]\nv_add_u32 v130, 4, v130\ns_branch L_round")
a("L_rdone:")
stamp()
a("s_cmp_lg_u32 s62, 0\ns_cbranch_scc1 L_noout")
for i in range(5):
    a(f"v_lshlrev_b32 v162, 16, v{156+i}\nv_and_b32 v163, 0xffff0000, v{156+i}\nv_pk_add_f32 v[162:163], v[162:163], v[{140+2*i}:{141+2*i}]\nv_cvt_pk_bf16_f32 v{124+i}, v162, v163")
    a(f"ds_write_b16 v{104+2*i}, v{124+i}\nds_write_b16_d16_hi v{105+2*i}, v{124+i}")
a("ds_read_b128 v[124:127], v4\nds_read_b32 v128, v5 offset:1024\nv_add_u32 v162, s48, v131\nv_add_u32 v163, s48, v132\ns_waitcnt lgkmcnt(0)")
a("global_store_dwordx4 v162, v[124:127], s[36:37]\nglobal_store_dword v163, v128, s[36:37] offset:1024")
a("L_noout:")
a("s_cmp_eq_u32 s2, 0\ns_cbranch_scc0 L_noep\ns_cmp_eq_u32 s3, 0\ns_cbranch_scc0 L_noep")
a("s_load_dword s16, s[40:41], 0\nv_mov_b32 v162, 0\ns_waitcnt lgkmcnt(0)\ns_add_u32 s16, s16, 1\nv_mov_b32 v163, s16\ns_mov_b64 exec, 1\nglobal_store_dword v162, v163, s[40:41]\ns_mov_b64 exec, -1\nL_noep:")
a("s_cmp_lt_u32 s2, 160\ns_cbranch_scc1 L_fin\ns_cmp_ge_u32 s2, 216\ns_cbranch_scc1 L_p5\ns_cmp_ge_u32 s2, 214\ns_cbranch_scc1 L_fin")
a(f"s_mul_i32 s16, s3, 1280\ns_add_u32 s16, s16, {HN}\nv_add_u32 v162, s16, v131\nv_add_u32 v163, s16, v132")
a(f"s_mul_i32 s16, s3, {XSS}\nv_add_u32 v131, s16, v131\nv_add_u32 v132, s16, v132")
a(f"v_and_b32 v164, 7, v0\nv_mul_u32_u24 v165, {XSS}, v164\nv_lshl_add_u32 v165, v2, 4, v165\nv_bfe_u32 v166, v0, 3, 1\nv_lshl_add_u32 v165, v166, 6, v165")
a(f"s_lshl2_add_u32 s16, s50, s3\ns_lshl_b32 s16, s16, 7\ns_add_u32 s16, s16, {ACT}\nv_lshl_add_u32 v164, v164, 4, s16\nv_and_b32 v166, 1, v2\nv_lshl_add_u32 v164, v166, 3, v164\nv_lshrrev_b32 v166, 1, v2\nv_lshl_add_u32 v164, v166, 2, v164")
a("s_mov_b32 s18, 0x00ff00ff\ns_mov_b32 s19, 0x00ff00ff")
a("s_waitcnt vmcnt(0)")
if opt("pre4",0): a(f"s_sleep {opt('pre4',0)}")
poll(["global_load_dwordx4 v[124:127], v162, s[40:41] sc1","global_load_dword v128, v163, s[40:41] offset:1024 sc1"],range(124,129),opt("sl4",2),166)
stamp()
a(f"ds_write_b128 v131, v[124:127] offset:{L_XS}\nds_write_b32 v132, v128 offset:{L_XS+1024}\ns_waitcnt lgkmcnt(0)\ns_barrier\ns_cmp_ge_u32 s3, 4\ns_cbranch_scc1 L_fin")
for i in range(10): a(f"ds_read_b128 {vr(104+4*i)}, v165 offset:{L_XS+128*i}")
for i in range(10):
    lg(9-i)
    a(f"{MF} v[144:147], {vr(8+8*i)}, {vr(104+4*i)}, {'0' if i==0 else 'v[144:147]'}\n{MF} v[148:151], {vr(12+8*i)}, {vr(104+4*i)}, {'0' if i==0 else 'v[148:151]'}")
for i in range(4): a(f"v_add_f32_dpp v{144+i}, v{148+i}, v{144+i} row_ror:8 {DPPM}")
a("v_permlane32_swap_b32 v144, v146\nv_permlane32_swap_b32 v145, v147")
a("v_mul_f32 v148, 0xbfb8aa3b, v144\nv_mul_f32 v149, 0xbfb8aa3b, v145\nv_exp_f32 v148, v148\nv_exp_f32 v149, v149\nv_mul_f32 v144, v144, v146\nv_mul_f32 v145, v145, v147")
a("v_add_f32 v148, 1.0, v148\nv_add_f32 v149, 1.0, v149\nv_rcp_f32 v148, v148\nv_rcp_f32 v149, v149\nv_mul_f32 v144, v144, v148\nv_mul_f32 v145, v145, v149\nv_cvt_pk_bf16_f32 v144, v144, v145")
a("s_mov_b64 exec, s[18:19]\nglobal_store_dword v164, v144, s[40:41] sc1\ns_mov_b64 exec, -1")
stamp()
a("s_branch L_fin")
a("L_p5:")
a(f"v_and_b32 v164, 7, v0\nv_bfe_u32 v165, v0, 3, 1\nv_lshlrev_b32 v162, 4, v164\nv_lshl_add_u32 v162, v2, 7, v162\nv_lshl_add_u32 v162, v165, 9, v162\ns_lshl_b32 s16, s3, 10\ns_add_u32 s16, s16, {ACT}\nv_add_u32 v162, s16, v162")
a("v_add_u32 v163, 0x2000, v162\nv_add_u32 v166, 0x4000, v162\nv_add_u32 v167, 0x6000, v162\ns_cmp_ge_u32 s3, 3\ns_cbranch_scc0 L_p5a\nv_mov_b32 v167, v162")
for i in range(8): a(f"v_mov_b32 v{32+i}, 0")
a("L_p5a:\ns_lshl_b32 s16, s3, 10\nv_lshl_add_u32 v129, v1, 4, s16")
a("s_cmp_lg_u32 s3, 0\ns_cbranch_scc1 L_p5b")
a(f"v_lshlrev_b32 v104, 6, v164\nv_add_u32 v104, {META}, v104\nv_mul_u32_u24 v105, 1280, v164\nv_add_u32 v105, {HN}, v105")
a("v_and_b32 v106, 0xffff, v56\nv_lshrrev_b32 v107, 16, v56\nv_and_b32 v108, 0xffff, v57\nv_lshrrev_b32 v109, 16, v57")
for i in range(4): a(f"v_add_u32 v{106+i}, v{106+i}, v105\nv_add_u32 v{110+i}, {HH-HN}, v{106+i}")
poll(["global_load_dwordx2 v[60:61], v104, s[40:41] sc1"],range(60,62),8,114)
poll([f"global_load_ushort v{64+i}, v{106+i}, s[40:41] sc1" for i in range(8)],range(64,72),4,114,cmp16=True)
for i in range(8): a(f"v_lshlrev_b32 v{64+i}, 16, v{64+i}")
a("v_and_b32 v60, 2047, v60\nv_mul_u32_u24 v60, 1280, v60\nv_lshl_add_u32 v60, v2, 3, v60\nv_add_u32 v60, s51, v60")
a("v_lshl_add_u32 v62, v2, 4, v164\nv_lshlrev_b32 v62, 4, v62\nv_lshl_add_u32 v62, v165, 12, v62")
a("L_p5b:\ns_waitcnt vmcnt(0)")
if opt("pre5",0): a(f"s_sleep {opt('pre5',0)}")
poll(["global_load_dwordx4 v[40:43], v162, s[40:41] sc1","global_load_dwordx4 v[44:47], v163, s[40:41] sc1","global_load_dwordx4 v[48:51], v166, s[40:41] sc1","global_load_dwordx4 v[52:55], v167, s[40:41] sc1"],range(40,56),opt("sl5",3),114)
if STAMP: a(f"s_memrealtime s[{64+2*(nst[0]-2)}:{65+2*(nst[0]-2)}]")
for i in range(4):
    a(f"{MF} v[72:75], {vr(8+8*i)}, {vr(40+4*i)}, {'0' if i==0 else 'v[72:75]'}\n{MF} v[76:79], {vr(12+8*i)}, {vr(40+4*i)}, {'0' if i==0 else 'v[76:79]'}")
for i in range(4): a(f"v_add_f32_dpp v{72+i}, v{76+i}, v{72+i} row_ror:8 {DPPM}")
a(f"ds_write_b128 v129, v[72:75] offset:{L_XS}\ns_waitcnt lgkmcnt(0)\ns_barrier\ns_cmp_lg_u32 s3, 0\ns_cbranch_scc1 L_fin")
for i in range(4): a(f"ds_read_b128 {vr(72+4*i)}, v62 offset:{L_XS+1024*i}")
a("s_mov_b32 s18, 0x00ff00ff\ns_mov_b32 s19, 0x00ff00ff\ns_waitcnt lgkmcnt(0)")
a("v_pk_add_f32 v[72:73], v[72:73], v[76:77]\nv_pk_add_f32 v[74:75], v[74:75], v[78:79]\nv_pk_add_f32 v[80:81], v[80:81], v[84:85]\nv_pk_add_f32 v[82:83], v[82:83], v[86:87]\nv_pk_add_f32 v[72:73], v[72:73], v[80:81]\nv_pk_add_f32 v[74:75], v[74:75], v[82:83]")
for i in range(4): a(f"v_add_f32_dpp v{72+i}, v{72+i}, v{72+i} row_ror:8 {DPPM}")
for i in range(4): a(f"v_fma_f32 v{72+i}, v{72+i}, v61, v{64+i}")
for i in range(4): a(f"v_add_f32 v{72+i}, v{72+i}, v{68+i}")
a("v_cvt_pk_bf16_f32 v72, v72, v73\nv_cvt_pk_bf16_f32 v73, v74, v75\ns_mov_b64 exec, s[18:19]\nglobal_store_dwordx2 v60, v[72:73], s[36:37]\ns_mov_b64 exec, -1")
if STAMP: a(f"s_memrealtime s[{64+2*(nst[0]-1)}:{65+2*(nst[0]-1)}]")
a("L_fin:")
if STAMP:
    a("s_waitcnt vmcnt(0)")
    stamp()
    NS=nst[0]
    a(f"s_waitcnt lgkmcnt(0)\ns_mul_i32 s16, s2, 9\ns_add_u32 s16, s16, s3\ns_lshl_b32 s16, s16, 7\ns_add_u32 s16, s16, {WS_STAMP}\nv_mov_b32 v4, s16\ns_mov_b64 exec, 1")
    for k in range(NS): a(f"v_mov_b32 v5, s{64+2*k}\nglobal_store_dword v4, v5, s[40:41] offset:{4*k}")
    a(f"v_mov_b32 v5, s15\nglobal_store_dword v4, v5, s[40:41] offset:124")
a("L_end:\ns_endpgm")
a("L_helper:")
a("v_lshlrev_b32 v4, 7, v1\nv_min_u32 v5, T_end-L_pc-4, v4\nglobal_load_dword v8, v5, s[42:43]\nv_add_u32 v5, 0x2000, v4\nv_min_u32 v5, T_end-L_pc-4, v5\nglobal_load_dword v9, v5, s[42:43]")
a(f"s_mul_i32 s7, s5, 640\ns_add_u32 s7, s7, s4\ns_lshl_b32 s7, s7, 7\ns_add_u32 s7, s7, {WS_I}\nv_lshrrev_b32 v5, 3, v1\nv_mul_u32_u24 v5, 0x28000, v5\nv_and_b32 v6, 7, v0\nv_lshl_add_u32 v5, v6, 4, v5\nv_add_u32 v5, s7, v5")
a(f"s_mul_i32 s7, s2, 5120\ns_add_u32 s7, s7, {WS_Y+1024}\nv_lshl_add_u32 v6, v1, 4, s7\ns_lshl_b32 s7, s2, 8\ns_add_u32 s7, s7, {WS_SMALL}\nv_lshl_add_u32 v7, v1, 2, s7")
a("v_mov_b32 v12, -1\nv_mov_b32 v13, -1\nv_mov_b32 v14, -1\nv_mov_b32 v15, -1\ns_waitcnt lgkmcnt(0)\ns_load_dword s6, s[40:41], 0")
for i in range(5):
    a("global_store_dwordx4 v5, v[12:15], s[40:41] sc1")
    if i<4: a("v_add_u32 v5, 0x4000, v5")
for i in range(5): a(f"global_store_dwordx4 v6, v[12:15], s[40:41] offset:{1024*(i-1)} sc1")
a("global_store_dword v7, v12, s[40:41] sc1")
a(f"s_lshl_b32 s7, s2, 4\ns_add_u32 s7, s7, {WS_FLAGS}\nv_mov_b32 v5, s7\ns_mul_i32 s7, s2, {68*128}\nv_add_u32 v4, s7, v4\nv_add_u32 v6, 0x2000, v4\nv_min_u32 v4, {17279*128}, v4\nv_min_u32 v6, {17279*128}, v6")
a("s_waitcnt vmcnt(0) lgkmcnt(0)\ns_add_u32 s6, s6, 1\nv_mov_b32 v7, s6\ns_mov_b64 exec, 1\nglobal_store_dword v5, v7, s[40:41] sc1\ns_mov_b64 exec, -1")
if STAMP: a("s_memrealtime s[66:67]")
a("s_barrier")
if opt("wpf",1):
    a("global_load_dword v8, v4, s[30:31]\nglobal_load_dword v9, v4, s[32:33]\nglobal_load_dword v10, v4, s[34:35]\ns_mov_b64 exec, 15\nglobal_load_dword v11, v6, s[30:31]\nglobal_load_dword v12, v6, s[32:33]\nglobal_load_dword v13, v6, s[34:35]")
if STAMP:
    a(f"s_waitcnt lgkmcnt(0)\ns_mul_i32 s16, s2, 9\ns_add_u32 s16, s16, s3\ns_lshl_b32 s16, s16, 7\ns_add_u32 s16, s16, {WS_STAMP}\nv_mov_b32 v4, s16\ns_mov_b64 exec, 1")
    for k in range(2): a(f"v_mov_b32 v5, s{64+2*k}\nglobal_store_dword v4, v5, s[40:41] offset:{4*k}")
a("s_endpgm")
body=a.finish()
tab=".p2align 4\n.type T_ct,@object\nT_ct:\n"
for arr in (CT,INV):
    for i in range(0,640,16): tab+=".short "+", ".join(str(2*v) for v in arr[i:i+16])+"\n"
tab+="T_end:\n"
txt=f"""; FNet (hidden DFT 20x32, sequence DFT 8x256 with real/Hermitian folding) + LayerNorm + top-8 SwiGLU, one persistent launch.
; @launch grid=(256,1,1) block=(576,1,1) lds={LDS_BYTES}
.amdgcn_target "amdgcn-amd-amdhsa--gfx950"
.text
.globl {KN}
.p2align 8
.type {KN},@function
{body}
{tab}.section .rodata,"a"
.p2align 6
.amdhsa_kernel {KN}
  .amdhsa_next_free_vgpr 168
  .amdhsa_next_free_sgpr 102
  .amdhsa_accum_offset 168
  .amdhsa_group_segment_fixed_size 0
  .amdhsa_kernarg_size 104
  .amdhsa_user_sgpr_count 2
  .amdhsa_user_sgpr_kernarg_segment_ptr 1
  .amdhsa_system_sgpr_workgroup_id_x 1
.end_amdhsa_kernel
"""
open(outp,"w").write(txt)
print("nops inserted",a.nops,"stamps",nst[0],file=sys.stderr)
```

```python
import sys, struct
sys.path.insert(0,"gen"); sys.path.insert(0,"exp")
from asmlib import Asm
KN="sequential_preLN__spectral_fnet__moe_arch_mod__prompt_kernel"
kw=dict(a.split("=") for a in sys.argv[2:])
outp=sys.argv[1]
STAMP=int(kw.get("stamp",0))
def opt(n,d): return int(kw.get(n,d))
def fhex(f): return hex(struct.unpack("<I",struct.pack("<f",f))[0])
def ecol(u,pos):
    if u>=1: return u+20*pos
    g,tau,i=pos>>3,(pos>>2)&1,pos&3
    n=4*g+i
    return 20*(n+1) if tau==0 else 10+20*n
colp=[0]*640
for p in range(320):
    e_=ecol(p>>5,p&31); colp[p]=e_; colp[320+p]=(640-e_) if e_!=320 else 0
def p_of_q(q):
    if q>=512: return q
    l,e8=q>>3,q&7
    return 4*l+e8 if e8<4 else 256+4*l+e8-4
CT=[colp[p_of_q(q)] for q in range(640)]
INV=[0]*640
for q,c in enumerate(CT): INV[c]=q
WS_FLAGS=0x1000; WS_SMALL=0x10000; KEYS=0x10000; HN=0x12000; HH=0x15000; META=0x17800; ACT=0x18000
WS_I=0x20000; WS_Y=0x160000; WS_STAMP=0x300000
L_BL=0; L_SUM=12288; L_SQ=12352; L_ST3=12416; L_CNT=12544; L_P2=16384; L_ROW=32768; L_WR=43008; L_XS=53248; XSS=1296
L_RED=64512; L_W=69632; LDS_BYTES=L_W+81920
LIMIT=3000
a=Asm()
nst=[0]
def stamp(name=None):
    if STAMP:
        k=nst[0]; nst[0]+=1
        a(f"s_memrealtime s[{64+2*k}:{65+2*k}]")
def lg(n):
    a(f"s_waitcnt lgkmcnt({0 if STAMP else n})")
pc=[0]
def poll(loads, regs, sleep, tmp, cmp16=False, pre=""):
    k=pc[0]; pc[0]+=1
    a(f"LP{k}:")
    for l in loads: a(l)
    a("s_waitcnt vmcnt(0)")
    r=list(regs)
    if len(r)==1: a(f"v_mov_b32 v{tmp}, v{r[0]}"); r=[]
    elif len(r)%2==1: a(f"v_max3_u32 v{tmp}, v{r[0]}, v{r[1]}, v{r[2]}"); r=r[3:]
    else: a(f"v_max_u32 v{tmp}, v{r[0]}, v{r[1]}"); r=r[2:]
    while r: a(f"v_max3_u32 v{tmp}, v{tmp}, v{r[0]}, v{r[1]}"); r=r[2:]
    a(f"v_cmp_eq_u32 vcc, {'0xffff' if cmp16 else '-1'}, v{tmp}")
    a(f"s_cbranch_vccz LD{k}")
    a(f"s_add_u32 s15, s15, 1\ns_cmp_lt_u32 s15, {LIMIT}\ns_cbranch_scc0 LD{k}\ns_mov_b64 exec, vcc")
    if sleep: a(f"s_sleep {sleep}")
    a(f"s_branch LP{k}\nLD{k}:\ns_mov_b64 exec, -1")
DPPM="row_mask:0xf bank_mask:0xf"
MF="v_mfma_f32_16x16x32_bf16"
def vr(b,n=4): return f"v[{b}:{b+n-1}]"

a(f"{KN}:")
stamp()
a("s_cmp_ge_u32 s2, 256\ns_cbranch_scc1 L_end")
a("s_load_dwordx16 s[16:31], s[0:1], 0\ns_load_dwordx8 s[32:39], s[0:1], 64\ns_load_dwordx2 s[40:41], s[0:1], 96")
a("v_lshrrev_b32 v4, 6, v0\nv_and_b32 v1, 63, v0\nv_readfirstlane_b32 s3, v4\nv_lshrrev_b32 v2, 4, v1\nv_and_b32 v3, 15, v0")
a("s_lshr_b32 s4, s2, 4\ns_lshl_b32 s4, s4, 3\ns_and_b32 s7, s2, 7\ns_or_b32 s4, s4, s7\ns_bfe_u32 s5, s2, 0x10003\ns_mov_b32 s15, 0")
a("s_getpc_b64 s[42:43]\nL_pc:")
a("s_cmp_eq_u32 s3, 8\ns_cbranch_scc1 L_helper")
a("s_sub_u32 s7, 256, s4\ns_cmp_eq_u32 s4, 0\ns_cselect_b32 s7, 128, s7")
a("s_cmp_ge_u32 s3, 4\ns_cselect_b32 s8, s7, s4\ns_and_b32 s9, s3, 3\ns_lshl_b32 s9, s9, 9\ns_add_u32 s9, s9, s8\ns_mulk_i32 s9, 1280")
a("v_lshrrev_b32 v5, 3, v3\nv_mul_u32_u24 v4, 0x50000, v5\nv_and_b32 v6, 7, v0\nv_lshl_add_u32 v4, v6, 3, v4\nv_lshl_add_u32 v4, v2, 6, v4\nv_add_u32 v4, s9, v4")
a("s_min_u32 s10, s3, 4\ns_mul_i32 s11, s5, 5\ns_add_u32 s11, s11, s10")
a("s_add_u32 s12, s11, 80\ns_cmp_eq_u32 s11, 0\ns_cselect_b32 s13, 4, 8\ns_cselect_b32 s14, 20, s11\ns_cselect_b32 s12, 10, s12")
a("v_lshrrev_b32 v18, 2, v3\nv_and_b32 v19, 3, v0\nv_mad_u32_u24 v7, v18, s13, v19")
a("v_mul_u32_u24 v7, 25600, v7\nv_lshl_add_u32 v7, v2, 4, v7\ns_mulk_i32 s14, 1280\ns_mulk_i32 s12, 1280\nv_add_u32 v103, s12, v7\nv_add_u32 v7, s14, v7")
a("s_waitcnt lgkmcnt(0)")
for i in range(5): a(f"global_load_dwordx2 v[{8+2*i}:{9+2*i}], v4, s[16:17] offset:{256*i}")
a("global_load_dwordx4 v[64:67], v7, s[22:23]\nglobal_load_dwordx4 v[68:71], v7, s[24:25]\nglobal_load_dwordx4 v[72:75], v103, s[22:23]\nglobal_load_dwordx4 v[76:79], v103, s[24:25]")
stamp()
a("s_lshr_b32 s45, s2, 1\ns_and_b32 s44, s2, 1\ns_lshl_b32 s44, s44, 4\ns_and_b32 s46, s3, 3\ns_lshl2_add_u32 s44, s46, s44\ns_lshr_b32 s44, 0x04536271, s44\ns_and_b32 s44, s44, 15")
a("s_sub_u32 s47, 255, s45\ns_lshr_b32 s46, s3, 2\ns_cmp_eq_u32 s46, 0\ns_cselect_b32 s47, s45, s47\ns_lshl3_add_u32 s47, s47, s44")
a("s_mul_i32 s48, s47, 1280\nv_lshlrev_b32 v4, 4, v1\nv_lshlrev_b32 v7, 2, v1\nv_add_u32 v103, s48, v4\nv_add_u32 v20, s48, v7")
a("s_add_u32 s42, s42, T_ct-L_pc\ns_addc_u32 s43, s43, 0")
a("global_load_dwordx4 v[88:91], v103, s[16:17]\nglobal_load_dword v92, v20, s[16:17] offset:1024")
a("global_load_dwordx4 v[94:97], v4, s[28:29]\nglobal_load_dword v93, v7, s[28:29] offset:1024")
a("global_load_dwordx4 v[98:101], v4, s[42:43]\nglobal_load_dword v102, v7, s[42:43] offset:1024")
a("s_cmp_ge_u32 s2, 160\ns_cbranch_scc1 L_ffnld")
a("s_lshr_b32 s49, s3, 1\ns_lshl2_add_u32 s49, s5, s49\ns_lshl_b32 s49, s49, 4\nv_add_u32 v4, s49, v3\nv_lshlrev_b32 v4, 15, v4\nv_lshl_add_u32 v4, v2, 4, v4\nv_add_u32 v4, 0x4000, v4")
for k in range(4): a(f"global_load_dwordx4 {vr(104+4*k)}, v4, s[18:19] offset:{64*k}")
for k in range(4): a(f"global_load_dwordx4 {vr(120+4*k)}, v4, s[20:21] offset:{64*k}")
a("s_branch L_setup\nL_ffnld:")
a("s_mul_i32 s49, s3, 160\nv_lshrrev_b32 v4, 2, v1\nv_lshl_add_u32 v4, v4, 1, s49")
for i in range(5): a(f"global_load_ushort v{104+i}, v4, s[42:43] offset:{32*i}")
a("s_sub_u32 s50, s2, 216\ns_cmp_ge_u32 s2, 216\ns_cselect_b32 s50, s50, 0\ns_and_b32 s51, s50, 7\ns_mul_i32 s51, s51, 5\ns_lshr_b32 s50, s50, 3\ns_add_u32 s50, s50, s51")
a("s_lshl_b32 s51, s50, 5\nv_lshl_add_u32 v4, v2, 3, s51")
for i in range(3): a(f"global_load_dwordx2 v[{110+2*i}:{111+2*i}], v4, s[42:43] offset:1280")
a("L_setup:")
a("v_mad_u32_u24 v20, v18, 3, v19")
a("v_lshrrev_b32 v21, 1, v20\nv_and_b32 v22, 1, v20\ns_mul_i32 s49, s5, 5\nv_add_u32 v21, s49, v21")
a("v_cmp_eq_u32 vcc, 0, v21\nv_mul_u32_u24 v23, 10, v22\nv_cndmask_b32 v24, v22, 0, vcc\nv_cndmask_b32 v21, v21, v23, vcc".replace("v_cndmask_b32 v24, v22, 0, vcc","v_cndmask_b32_e64 v24, v22, 0, vcc"))
a("v_cmp_eq_u32 vcc, 3, v19\nv_cndmask_b32_e64 v21, v21, 0, vcc\nv_cndmask_b32_e64 v24, v24, 0, vcc\nv_cndmask_b32_e64 v20, v20, 0, vcc")
a(f"v_cvt_f32_u32 v21, v21\nv_cvt_f32_u32 v24, v24\nv_mul_f32 v21, {fhex(0.05)}, v21\nv_mul_f32 v24, 0.25, v24".replace("0.25",fhex(0.25)))
a("v_cvt_f32_u32 v23, v2\nv_fma_f32 v24, v23, v21, v24\nv_mul_f32 v21, 4.0, v21\nv_cmp_gt_u32 vcc, 10, v20")
for i in range(5):
    a(f"v_cos_f32 v{25+i}, v24")
    if i<4: a("v_add_f32 v24, v24, v21")
a("v_cvt_pk_bf16_f32 v36, v25, v26\nv_cvt_pk_bf16_f32 v37, v27, v28\nv_cvt_pk_bf16_f32 v38, v29, 0\nv_mov_b32 v39, 0")
a("v_cndmask_b32 v36, 0, v36, vcc\nv_cndmask_b32 v37, 0, v37, vcc\nv_cndmask_b32 v38, 0, v38, vcc")
a("v_lshrrev_b32 v20, 1, v3\nv_and_b32 v21, 1, v0\nv_lshrrev_b32 v22, 1, v2\nv_and_b32 v23, 1, v2")
a("v_mov_b32 v24, s7\nv_mov_b32 v25, s4\nv_cmp_eq_u32 vcc, 1, v22\nv_cndmask_b32 v24, v25, v24, vcc\nv_lshl_add_u32 v24, v23, 10, v24")
a("v_subrev_u32 v25, 4, v20\nv_mul_i32_i24 v24, v24, v25\nv_lshl_add_u32 v24, v21, 9, v24")
a("v_cmp_gt_u32 vcc, v22, v21\ns_cmp_lg_u32 s4, 0\ns_cselect_b32 s49, 1024, 0\nv_mov_b32 v25, s49\nv_cndmask_b32 v25, 0, v25, vcc\nv_add_u32 v24, v24, v25\nv_and_b32 v24, 2047, v24")
a(f"v_cvt_f32_u32 v24, v24\nv_cvt_f32_u32 v25, v20\nv_mul_f32 v24, {fhex(1/2048)}, v24\nv_mul_f32 v25, {fhex(0.125)}, v25")
a("v_cmp_eq_u32 vcc, v22, v21\ns_cselect_b64 s[52:53], -1, 0\ns_or_b64 vcc, vcc, s[52:53]\nv_cndmask_b32_e64 v26, 0, 1.0, vcc")
for i in range(4):
    a(f"v_cos_f32 v{56+i}, v24\nv_sin_f32 v{60+i}, v24")
    if i<3: a("v_add_f32 v24, v24, v25")
for i in range(8): a(f"v_mul_f32 v{56+i}, v{56+i}, v26")
a("v_mov_b32 v23, 0\nv_mov_b32 v27, 0\nv_mov_b32 v31, 0\nv_mov_b32 v35, 0\ns_mov_b32 s52, 0x05040100\ns_mov_b32 s53, 0x07060302")
a("s_lshl_b32 s49, s3, 7\nv_mul_u32_u24 v4, 3072, v2\nv_lshl_add_u32 v4, v3, 3, v4\nv_add_u32 v4, s49, v4")
a("s_lshl_b32 s49, s3, 3\nv_lshl_add_u32 v7, v5, 2, s49")
a(f"ds_write_b32 v7, v23 offset:{L_SQ}\nds_write_b32 v7, v23 offset:{L_CNT}")
a(f"s_cmp_eq_u32 s5, 0\ns_cselect_b32 s49, {fhex(-1/32)}, 0\nv_mov_b32 v6, s49\nv_cmp_eq_u32 vcc, 0, v2\nv_cndmask_b32 v6, 0, v6, vcc")
a("v_mov_b32 v18, 0\nv_mov_b32 v19, 0\ns_mov_b32 s54, 0x01010101\ns_mov_b32 s55, 0x01010101")
a("s_waitcnt vmcnt(18)")
stamp()
for low in range(4):
    c=low>>1; sel="s53" if low&1 else "s52"; o=20+4*low
    a(f"v_perm_b32 v{o}, v{10+c}, v{8+c}, {sel}\nv_perm_b32 v{o+1}, v{14+c}, v{12+c}, {sel}\nv_perm_b32 v{o+2}, v23, v{16+c}, {sel}")
    if low>0: a(f"{MF} {vr(40+4*(low-1))}, v[36:39], {vr(20+4*(low-1))}, 0")
a("v_dot2c_f32_bf16 v18, v8, v8\nv_dot2c_f32_bf16 v19, v9, v9")
a(f"{MF} {vr(52)}, v[36:39], {vr(32)}, 0")
for i in range(1,5): a(f"v_dot2c_f32_bf16 v18, v{8+2*i}, v{8+2*i}\nv_dot2c_f32_bf16 v19, v{9+2*i}, v{9+2*i}")
a("v_add_f32 v8, v43, v47\nv_add_f32 v9, v51, v55\nv_add_f32 v18, v18, v19\nv_add_f32 v8, v8, v9")
for m in ("quad_perm:[1,0,3,2]","quad_perm:[2,3,0,1]","row_half_mirror"):
    a(f"v_add_f32_dpp v18, v18, v18 {m} {DPPM}\nv_add_f32_dpp v8, v8, v8 {m} {DPPM}")
    r={"quad_perm:[1,0,3,2]":1,"quad_perm:[2,3,0,1]":2}.get(m)
    if r: a(f"v_cvt_pk_bf16_f32 v{10+2*r}, v{40+r}, v{44+r}\nv_cvt_pk_bf16_f32 v{11+2*r}, v{48+r}, v{52+r}\nds_write_b64 v4, v[{10+2*r}:{11+2*r}] offset:{1024*r}")
a(f"s_mov_b64 exec, s[54:55]\nds_add_f32 v7, v18 offset:{L_SQ}\nds_write_b32 v7, v8 offset:{L_SUM}\ns_mov_b64 exec, -1")
for low in range(4): a(f"v_fmac_f32 v{40+4*low}, v8, v6")
a("v_cvt_pk_bf16_f32 v10, v40, v44\nv_cvt_pk_bf16_f32 v11, v48, v52\nds_write_b64 v4, v[10:11]")
a("s_lshl_b32 s49, s10, 11\ns_add_u32 s56, s49, 1024\ns_cmp_eq_u32 s11, 0\ns_cselect_b32 s57, 1024, s49\ns_cselect_b32 s56, 10240, s56")
a("v_lshlrev_b32 v4, 6, v3\nv_lshl_add_u32 v4, v2, 4, v4\nv_add_u32 v5, s56, v4\nv_add_u32 v6, s57, v4\nv_add_u32 v4, s49, v4\nv_lshlrev_b32 v7, 4, v2")
a("s_waitcnt vmcnt(14)")
for i in range(4): a(f"v_xor_b32 v{80+i}, 0x80008000, v{68+i}\nv_xor_b32 v{84+i}, 0x80008000, v{76+i}")
a("s_waitcnt lgkmcnt(0)\ns_barrier")
stamp()
a("s_cmp_ge_u32 s3, 5\ns_cbranch_scc1 L_p1idle")
a(f"ds_read_b128 v[8:11], v4\nds_read_b128 v[12:15], v6\nds_read_b128 v[20:23], v5\nds_read_b128 v[24:27], v7 offset:{L_SUM}\nds_read_b128 v[28:31], v7 offset:{L_SQ}")
a(f"s_lshl_b32 s49, s11, 7\ns_add_u32 s49, s49, s4\ns_lshl_b32 s49, s49, 7\ns_add_u32 s49, s49, {WS_I}")
a("v_lshrrev_b32 v16, 1, v3\nv_mul_u32_u24 v16, 0x28000, v16\nv_and_b32 v17, 1, v0\nv_lshl_add_u32 v16, v17, 6, v16\nv_add3_u32 v16, v16, v7, s49")
lg(3)
a(f"{MF} v[40:43], v[8:11], v[64:67], 0\n{MF} v[44:47], v[8:11], v[68:71], 0\n{MF} v[48:51], v[12:15], v[72:75], 0\n{MF} v[52:55], v[12:15], v[76:79], 0")
lg(2)
a(f"{MF} v[40:43], v[20:23], v[80:83], v[40:43]\n{MF} v[44:47], v[20:23], v[64:67], v[44:47]\n{MF} v[48:51], v[20:23], v[84:87], v[48:51]\n{MF} v[52:55], v[20:23], v[72:75], v[52:55]")
lg(0)
a(f"s_mov_b32 s56, {fhex(1/640)}\ns_mov_b32 s57, {fhex(1/640)}")
a("v_pk_mul_f32 v[24:25], v[24:25], s[56:57]\nv_pk_mul_f32 v[26:27], v[26:27], s[56:57]")
a(f"v_mov_b32 v32, {fhex(1e-5)}\nv_mov_b32 v33, {fhex(1e-5)}")
a("v_pk_fma_f32 v[28:29], v[28:29], s[56:57], v[32:33]\nv_pk_fma_f32 v[30:31], v[30:31], s[56:57], v[32:33]")
a("v_pk_fma_f32 v[28:29], v[24:25], v[24:25], v[28:29] neg_lo:[1,0,0] neg_hi:[1,0,0]\nv_pk_fma_f32 v[30:31], v[26:27], v[26:27], v[30:31] neg_lo:[1,0,0] neg_hi:[1,0,0]")
for i in range(4): a(f"v_max_f32 v{28+i}, v{28+i}, v32")
for i in range(4): a(f"v_rsq_f32 v{28+i}, v{28+i}")
a("v_cvt_pk_bf16_f32 v8, v40, v41\nv_cvt_pk_bf16_f32 v9, v42, v43\nv_cvt_pk_bf16_f32 v10, v44, v45\nv_cvt_pk_bf16_f32 v11, v46, v47")
a("v_pk_mul_f32 v[56:57], v[56:57], v[28:29]\nv_pk_mul_f32 v[58:59], v[58:59], v[30:31]\nv_pk_mul_f32 v[60:61], v[60:61], v[28:29]\nv_pk_mul_f32 v[62:63], v[62:63], v[30:31]")
a("v_cvt_pk_bf16_f32 v24, v56, v57\nv_cvt_pk_bf16_f32 v25, v58, v59\nv_cvt_pk_bf16_f32 v26, v60, v61\nv_cvt_pk_bf16_f32 v27, v62, v63")
a("v_cvt_pk_bf16_f32 v12, v48, v49\nv_cvt_pk_bf16_f32 v13, v50, v51")
a(f"{MF} v[40:43], v[8:11], v[24:27], 0")
a("v_cvt_pk_bf16_f32 v14, v52, v53\nv_cvt_pk_bf16_f32 v15, v54, v55")
a(f"{MF} v[44:47], v[12:15], v[24:27], 0")
a("v_cvt_pk_bf16_f32 v8, v40, v41\nv_cvt_pk_bf16_f32 v9, v42, v43\nv_cvt_pk_bf16_f32 v10, v44, v45\nv_cvt_pk_bf16_f32 v11, v46, v47")
a("global_store_dwordx4 v16, v[8:11], s[40:41] sc1")
a("s_branch L_p1done")
a("L_p1idle:\ns_cmp_lg_u32 s3, 7\ns_cbranch_scc1 L_p1done")
a(f"s_load_dword s6, s[40:41], 0\nv_lshlrev_b32 v4, 4, v1\nv_add_u32 v4, {WS_FLAGS}, v4\ns_waitcnt lgkmcnt(0)\ns_add_u32 s6, s6, 1")
a("L_fl:")
for i in range(4): a(f"global_load_dword v{8+i}, v4, s[40:41] offset:{1024*i} sc1")
a("s_waitcnt vmcnt(0)")
a("v_xor_b32 v8, s6, v8\nv_xor_b32 v9, s6, v9\nv_xor_b32 v10, s6, v10\nv_xor_b32 v11, s6, v11\nv_or3_b32 v8, v8, v9, v10\nv_or_b32 v8, v8, v11\nv_cmp_ne_u32 vcc, 0, v8\ns_cbranch_vccz L_fld")
a(f"s_add_u32 s15, s15, 1\ns_cmp_lt_u32 s15, {LIMIT}\ns_cbranch_scc0 L_fld\ns_sleep 4\ns_branch L_fl\nL_fld:")
a("L_p1done:")
stamp()
a("s_cmp_ge_u32 s2, 160\ns_cbranch_scc1 L_ffnstage")
a(f"s_and_b32 s49, s2, 7\ns_lshr_b32 s56, s2, 4\ns_mul_i32 s57, s49, 10\ns_add_u32 s57, s57, s56\ns_lshl_b32 s57, s57, 14\ns_add_u32 s57, s57, {WS_I}")
a("v_lshl_add_u32 v4, v0, 4, s57\nv_add_u32 v5, 0x2000, v4")
a("v_lshlrev_b32 v6, 1, v0\nv_and_b32 v6, 32, v6\nv_and_b32 v7, 64, v0\nv_or_b32 v6, v6, v7\nv_lshlrev_b32 v7, 4, v0\nv_xor_b32 v6, v6, v7")
a("v_lshrrev_b32 v16, 2, v3\nv_lshl_add_u32 v17, v2, 3, v16\nv_lshlrev_b32 v17, 7, v17\nv_and_b32 v18, 3, v0\nv_lshl_add_u32 v17, v18, 3, v17")
a("v_lshrrev_b32 v16, 3, v1\nv_and_b32 v16, 3, v16\ns_and_b32 s58, s3, 1\nv_xor_b32 v16, s58, v16\nv_lshl_add_u32 v17, v16, 5, v17\nv_xor_b32 v18, 64, v17")
a(f"s_lshl_b32 s59, s49, 7\ns_lshr_b32 s60, s3, 1\ns_lshl2_add_u32 s60, s5, s60\ns_lshl4_add_u32 s59, s60, s59\ns_mulk_i32 s59, 1280\ns_lshl_b32 s56, s56, 7\ns_add_u32 s59, s59, s56\ns_lshl_b32 s58, s58, 6\ns_add_u32 s59, s59, s58\ns_add_u32 s59, s59, {WS_Y}")
a("v_mul_u32_u24 v19, 1280, v3\nv_lshl_add_u32 v19, v2, 4, v19\nv_add_u32 v19, s59, v19")
a("s_waitcnt vmcnt(0)")
a("v_lshlrev_b32 v16, 15, v0\nv_and_b32 v16, 0x8000, v16\nv_xor_b32 v16, 0xbf80, v16\ns_mov_b32 s58, 0xffff\nv_bfi_b32 v16, s58, v16, v120\nv_cmp_eq_u32 vcc, 0, v2\nv_cndmask_b32 v120, v120, v16, vcc")
a("s_barrier")
stamp()
if opt("pre1",0): a(f"s_sleep {opt('pre1',0)}")
poll(["global_load_dwordx4 v[8:11], v4, s[40:41] sc1","global_load_dwordx4 v[12:15], v5, s[40:41] sc1"],range(8,16),opt("sl1",2),16)
stamp()
a(f"ds_write_b128 v6, v[8:11] offset:{L_P2}\nds_write_b128 v6, v[12:15] offset:{L_P2+8192}\ns_waitcnt lgkmcnt(0)\ns_barrier")
for k in range(4):
    a(f"ds_read_b64_tr_b16 v[{20+8*k}:{21+8*k}], v17 offset:{L_P2+4096*k}\nds_read_b64_tr_b16 v[{22+8*k}:{23+8*k}], v17 offset:{L_P2+4096*k+512}")
    a(f"ds_read_b64_tr_b16 v[{24+8*k}:{25+8*k}], v18 offset:{L_P2+4096*k}\nds_read_b64_tr_b16 v[{26+8*k}:{27+8*k}], v18 offset:{L_P2+4096*k+512}")
for k in range(4):
    lg(14-4*k if k<3 else 2)
    a(f"{MF} v[8:11], {vr(20+8*k)}, {vr(104+4*k)}, {'0' if k==0 else 'v[8:11]'}")
    lg(12-4*k)
    a(f"{MF} v[12:15], {vr(24+8*k)}, {vr(120+4*k)}, {'0' if k==0 else 'v[12:15]'}")
a("v_pk_add_f32 v[20:21], v[8:9], v[12:13] neg_lo:[0,1] neg_hi:[0,1]\nv_pk_add_f32 v[22:23], v[10:11], v[14:15] neg_lo:[0,1] neg_hi:[0,1]\nv_pk_add_f32 v[24:25], v[8:9], v[12:13]\nv_pk_add_f32 v[26:27], v[10:11], v[14:15]")
a("v_cvt_pk_bf16_f32 v8, v20, v21\nv_cvt_pk_bf16_f32 v9, v22, v23\nv_cvt_pk_bf16_f32 v10, v24, v25\nv_cvt_pk_bf16_f32 v11, v26, v27")
a("global_store_dwordx4 v19, v[8:11], s[40:41] sc1")
a("s_branch L_p3prep")
a("L_ffnstage:\ns_waitcnt vmcnt(0)\ns_barrier")
if STAMP: a(f"s_memrealtime s[{64+2*(nst[0]-2)}:{65+2*(nst[0]-2)}]\ns_memrealtime s[{64+2*(nst[0]-1)}:{65+2*(nst[0]-1)}]")
a("s_cmp_ge_u32 s2, 216\ns_cbranch_scc1 L_st2\ns_cmp_ge_u32 s2, 214\ns_cbranch_scc1 L_p3prep")
a("s_sub_u32 s49, s2, 160\ns_and_b32 s50, s49, 7\ns_lshr_b32 s56, s49, 4\ns_lshl3_add_u32 s50, s56, s50\ns_bfe_u32 s56, s49, 0x10003\ns_lshl1_add_u32 s50, s50, s56\ns_cmp_ge_u32 s49, 48\ns_cselect_b32 s50, s49, s50")
a("s_lshl_b32 s56, s50, 6\nv_and_b32 v4, 3, v0\nv_lshl_add_u32 v4, v4, 4, s56\ns_movk_i32 s57, 1728")
a(f"s_mul_i32 s58, s3, 5120\ns_add_u32 s58, s58, {L_W}")
for i in range(5):
    a(f"v_mad_u32_u24 v5, v{104+i}, s57, v4\ns_add_u32 m0, s58, {1024*i}\nglobal_load_lds_dwordx4 v5, s[30:31]\ns_add_u32 m0, s58, {1024*i+40960}\nglobal_load_lds_dwordx4 v5, s[32:33]")
a("v_lshrrev_b32 v4, 2, v3\nv_lshl_add_u32 v4, v2, 3, v4\nv_lshlrev_b32 v4, 6, v4\nv_and_b32 v5, 1, v0\nv_lshl_add_u32 v4, v5, 3, v4\nv_bfe_u32 v5, v0, 1, 1\nv_mul_u32_u24 v5, 40960, v5")
a(f"s_and_b32 s56, s3, 3\ns_lshl_b32 s56, s56, 4\ns_add_u32 s56, s56, {L_W}\nv_add3_u32 v4, v4, v5, s56")
a("s_waitcnt vmcnt(0)\ns_barrier\ns_cmp_ge_u32 s3, 4\ns_cbranch_scc1 L_p3prep")
for k in range(20):
    a(f"ds_read_b64_tr_b16 v[{8+4*k}:{9+4*k}], v4 offset:{2048*k}\nds_read_b64_tr_b16 v[{10+4*k}:{11+4*k}], v4 offset:{2048*k+256}")
    if k%4==3: a("s_waitcnt lgkmcnt(0)")
a("s_branch L_p3prep")
a("L_st2:")
a("v_mov_b32 v56, v110\nv_mov_b32 v57, v111")
a("v_lshrrev_b32 v4, 1, v1\nv_mul_u32_u24 v4, 1280, v4\nv_and_b32 v5, 1, v0\nv_lshl_add_u32 v4, v5, 4, v4\ns_mul_i32 s56, s3, 81920\ns_add_u32 s56, s56, s51\nv_add_u32 v4, s56, v4")
a(f"s_lshl_b32 s58, s3, 13\ns_add_u32 s58, s58, {L_W}")
for i in range(4):
    if i==3: a("s_cmp_ge_u32 s3, 3\ns_cbranch_scc1 L_st2b")
    for b in range(2):
        a(f"s_add_u32 m0, s58, {2048*i+1024*b}\nv_add_u32 v5, {655360*i+40960*b}, v4\nglobal_load_lds_dwordx4 v5, s[34:35]")
a("L_st2b:")
a("v_lshrrev_b32 v4, 2, v3\nv_lshl_add_u32 v4, v2, 3, v4\nv_lshlrev_b32 v4, 5, v4\nv_and_b32 v5, 3, v0\nv_lshl_add_u32 v4, v5, 3, v4\nv_add_u32 v4, s58, v4\ns_waitcnt vmcnt(0)")
for k in range(8):
    a(f"ds_read_b64_tr_b16 v[{8+4*k}:{9+4*k}], v4 offset:{1024*k}\nds_read_b64_tr_b16 v[{10+4*k}:{11+4*k}], v4 offset:{1024*k+128}")
    if k%4==3: a("s_waitcnt lgkmcnt(0)")
a("L_p3prep:")
stamp()
a(f"s_mul_i32 s49, s3, 1280\ns_add_u32 s49, s49, {L_ROW}\nv_lshl_add_u32 v4, v1, 4, s49\nv_lshl_add_u32 v5, v1, 2, s49")
a(f"ds_write_b128 v4, v[88:91]\nds_write_b32 v5, v92 offset:1024\nds_write_b128 v4, v[94:97] offset:{L_WR-L_ROW}\nds_write_b32 v5, v93 offset:{L_WR-L_ROW+1024}")
for i in range(5):
    a(f"v_and_b32 v{104+2*i}, 0xffff, v{98+i}\nv_lshrrev_b32 v{105+2*i}, 16, v{98+i}\nv_add_u32 v{104+2*i}, s49, v{104+2*i}\nv_add_u32 v{105+2*i}, s49, v{105+2*i}")
for i in range(5):
    a(f"ds_read_u16 v{114+i}, v{104+2*i}\nds_read_u16 v{119+i}, v{104+2*i} offset:{L_WR-L_ROW}")
for i in range(5):
    a(f"ds_read_u16 v{140+i}, v{105+2*i}\nds_read_u16 v{145+i}, v{105+2*i} offset:{L_WR-L_ROW}")
a(f"s_lshl_b32 s56, s44, 7\ns_add_u32 s56, s56, s45\ns_mulk_i32 s56, 1280\ns_lshl3_add_u32 s56, s46, s56\ns_add_u32 s56, s56, {WS_Y}")
a("s_sub_u32 s57, 2048, s47\ns_and_b32 s57, s57, 2047\ns_and_b32 s58, s57, 7\ns_lshr_b32 s57, s57, 3\ns_sub_u32 s59, 255, s57\ns_cmp_ge_u32 s57, 128\ns_cselect_b32 s57, s59, s57\ns_cselect_b32 s59, 8, 0")
a(f"s_lshl_b32 s58, s58, 7\ns_add_u32 s57, s57, s58\ns_mulk_i32 s57, 1280\ns_add_u32 s57, s57, s59\ns_add_u32 s57, s57, {WS_Y}")
a("v_lshl_add_u32 v129, v1, 4, s56\ns_add_u32 s58, s56, 1024\ns_sub_u32 s59, s57, 256\nv_mov_b32 v130, s59\nv_mov_b32 v131, s58\nv_cmp_eq_u32 vcc, 0, v2\nv_cndmask_b32 v130, v130, v131, vcc\nv_lshl_add_u32 v130, v1, 4, v130")
a("v_lshrrev_b32 v131, 1, v1\nv_lshlrev_b32 v131, 4, v131\nv_and_b32 v132, 1, v0\nv_lshl_add_u32 v131, v132, 2, v131\ns_add_u32 s58, s57, 768\nv_add_u32 v131, s58, v131")
a("v_mov_b32 v132, 0xffff\nv_cmp_eq_u32 vcc, 22, v1\nv_cndmask_b32 v132, -1, v132, vcc")
a("s_mov_b32 s56, 0x3f803f80\nv_mov_b32 v134, 0\nv_mov_b32 v135, 0\nv_mov_b32 v136, 0\nv_mov_b32 v137, 0\nv_mov_b32 v138, 0")
a(f"s_lshl_b32 s57, s3, 4\nv_lshl_add_u32 v133, v2, 2, s57\nv_and_b32 v139, 7, v0\nv_lshlrev_b32 v155, 4, v139")
a("s_waitcnt lgkmcnt(0)")
for i in range(10): a(f"v_lshl_or_b32 v{114+i}, v{140+i}, 16, v{114+i}")
for i in range(5):
    a(f"v_dot2c_f32_bf16 v134, s56, v{114+i}\nv_dot2c_f32_bf16 v135, v{114+i}, v{119+i}\nv_dot2c_f32_bf16 v136, v{114+i}, v{114+i}\nv_dot2c_f32_bf16 v137, s56, v{119+i}")
a("s_waitcnt vmcnt(0)")
stamp()
if opt("pre2",0): a(f"s_sleep {opt('pre2',0)}")
poll(["global_load_dwordx2 v[124:125], v129, s[40:41] sc1","global_load_dwordx2 v[126:127], v130, s[40:41] sc1","global_load_dword v128, v131, s[40:41] sc1"],range(124,129),opt("sl2",3),162)
stamp()
a("v_and_b32 v127, v127, v132")
for i in (0,1,2,4,3):
    a(f"v_dot2c_f32_bf16 v134, s56, v{124+i}\nv_dot2c_f32_bf16 v135, v{124+i}, v{119+i}\nv_dot2c_f32_bf16 v136, v{124+i}, v{124+i}\nv_dot2c_f32_bf16 v138, v{124+i}, v{114+i}")
a("v_permlane32_swap_b32 v134, v135\nv_fmac_f32 v136, 2.0, v138\nv_add_f32 v134, v134, v135\nv_permlane32_swap_b32 v136, v137\nv_add_f32 v136, v136, v137")
a("v_permlane16_swap_b32 v134, v136\nv_add_f32 v134, v134, v136")
for s_ in (8,4,2,1): a(f"v_add_f32_dpp v134, v134, v134 row_ror:{s_} {DPPM}")
a(f"ds_write_b32 v133, v134 offset:{L_ST3}\ns_waitcnt lgkmcnt(0)\ns_barrier\nds_read_b128 v[134:137], v155 offset:{L_ST3}")
a(f"s_lshl_b32 s57, s2, 3\nv_add_u32 v139, s57, v139\nv_lshlrev_b32 v155, 2, v139\nv_add_u32 v155, {KEYS}, v155\nv_mov_b32 v138, {fhex(1e-5)}\ns_mov_b32 s58, {fhex(1/640)}\ns_movk_i32 s59, 0x7ff")
a("s_waitcnt lgkmcnt(0)")
a("v_mul_f32 v134, s58, v134\nv_fma_f32 v135, v135, s58, v138\nv_fma_f32 v135, -v134, v134, v135\nv_max_f32 v135, v135, v138\nv_rsq_f32 v135, v135\nv_fma_f32 v136, -v134, v137, v136\nv_mul_f32 v136, v136, v135")
a("v_ashrrev_i32 v137, 31, v136\nv_or_b32 v137, 0x80000000, v137\nv_xor_b32 v137, v137, v136\nv_bfi_b32 v137, s59, v139, v137\nv_min_u32 v137, -2, v137")
a("s_cmp_lg_u32 s3, 0\ns_cbranch_scc1 L_nokey\ns_mov_b64 exec, 0xff\nglobal_store_dword v155, v137, s[40:41] sc1\ns_mov_b64 exec, -1\nL_nokey:")
stamp()
a("v_readlane_b32 s56, v134, s3\nv_readlane_b32 s58, v135, s3\nv_readlane_b32 s60, v136, s3")
for i in range(8): a(f"v_readlane_b32 s{6+i}, v137, {i}")
a("v_mov_b32 v138, 0")
for i in range(8): a(f"v_cmp_gt_u32 vcc, s{6+i}, v137\nv_addc_co_u32 v138, vcc, 0, v138, vcc")
a("v_lshlrev_b32 v139, 2, v138\nds_permute_b32 v137, v139, v137\nv_readlane_b32 s14, v138, s3")
for i in range(5):
    a(f"v_lshlrev_b32 v{140+2*i}, 16, v{124+i}\nv_and_b32 v{141+2*i}, 0xffff0000, v{124+i}\nv_lshlrev_b32 v162, 16, v{114+i}\nv_and_b32 v163, 0xffff0000, v{114+i}")
    a(f"v_pk_add_f32 v[{140+2*i}:{141+2*i}], v[{140+2*i}:{141+2*i}], v[162:163]\nv_cvt_pk_bf16_f32 v{150+i}, v{140+2*i}, v{141+2*i}")
a("s_mov_b32 s57, s56\ns_mov_b32 s59, s58")
for i in range(5):
    a(f"v_lshlrev_b32 v{140+2*i}, 16, v{150+i}\nv_and_b32 v{141+2*i}, 0xffff0000, v{150+i}")
    a(f"v_pk_add_f32 v[162:163], v[{140+2*i}:{141+2*i}], s[56:57] neg_lo:[0,1] neg_hi:[0,1]\nv_pk_mul_f32 v[162:163], v[162:163], s[58:59]\nv_cvt_pk_bf16_f32 v{156+i}, v162, v163")
a("s_waitcnt lgkmcnt(0)")
for i in range(8): a(f"v_readlane_b32 s{6+i}, v137, {i}")
a(f"v_lshlrev_b32 v129, 4, v0\nv_add_u32 v129, {KEYS}, v129\nv_mov_b32 v130, {L_CNT}\ns_mov_b32 s61, 0\ns_mov_b32 s62, 0")
a("v_lshlrev_b32 v131, 4, v1\nv_lshlrev_b32 v132, 2, v1")
a("s_waitcnt vmcnt(0)\ns_barrier")
stamp()
if opt("pre3",0): a(f"s_sleep {opt('pre3',0)}")
poll(["global_load_dwordx4 v[124:127], v129, s[40:41] sc1"],range(124,128),opt("sl3",2),162)
stamp()
a("L_round:")
for i in range(4): a(f"v_cmp_gt_u32_e64 s[{16+2*i}:{17+2*i}], v{124+i}, s6")
for i in range(4): a(f"v_cmp_gt_u32_e64 s[{24+2*i}:{25+2*i}], v{124+i}, s7")
for i in range(8): a(f"s_bcnt1_i32_b64 s{16+2*i}, s[{16+2*i}:{17+2*i}]")
a("s_add_u32 s16, s16, s18\ns_add_u32 s20, s20, s22\ns_add_u32 s24, s24, s26\ns_add_u32 s28, s28, s30\ns_add_u32 s16, s16, s20\ns_add_u32 s24, s24, s28\ns_lshl_b32 s24, s24, 16\ns_add_u32 s16, s16, s24")
a("v_mov_b32 v162, s16\ns_mov_b64 exec, 1\nds_add_u32 v130, v162\ns_mov_b64 exec, -1\ns_waitcnt lgkmcnt(0)\ns_barrier\nds_read_b32 v162, v130\ns_sub_u32 s18, s14, s61\ns_lshl_b32 s19, s18, 4\ns_waitcnt lgkmcnt(0)")
a("v_readfirstlane_b32 s16, v162\ns_lshr_b32 s17, s16, s19\ns_and_b32 s17, s17, 0xffff\ns_cmp_lt_u32 s18, 2\ns_cselect_b32 s17, s17, 99\ns_cmp_ge_u32 s17, 8\ns_cbranch_scc1 L_nosel")
a(f"s_mul_i32 s18, s17, 1280\ns_add_u32 s18, s18, {HN}\nv_add_u32 v162, s18, v131\nv_add_u32 v163, s18, v132")
a("global_store_dwordx4 v162, v[156:159], s[40:41] sc1\nglobal_store_dword v163, v160, s[40:41] offset:1024 sc1")
a(f"v_add_u32 v162, {HH-HN}, v162\nv_add_u32 v163, {HH-HN}, v163")
a("global_store_dwordx4 v162, v[150:153], s[40:41] sc1\nglobal_store_dword v163, v154, s[40:41] offset:1024 sc1")
a(f"v_mov_b32 v165, s60\nv_mul_f32 v165, 0xbfb8aa3b, v165\nv_exp_f32 v165, v165\nv_mov_b32 v164, s47\nv_add_f32 v165, 1.0, v165\nv_rcp_f32 v165, v165\ns_lshl_b32 s18, s17, 6\ns_add_u32 s18, s18, {META}\nv_mov_b32 v162, s18")
a("v_cvt_pk_bf16_f32 v165, v165, v165\nv_and_b32 v165, 0xffff0000, v165\ns_mov_b64 exec, 1\nglobal_store_dwordx2 v162, v[164:165], s[40:41] sc1\ns_mov_b64 exec, -1\ns_mov_b32 s62, 1")
a("L_nosel:\ns_lshr_b32 s17, s16, 16\ns_cmp_ge_u32 s17, 7\ns_cbranch_scc1 L_rdone\ns_cmp_ge_u32 s61, 6\ns_cbranch_scc1 L_rdone")
a("s_add_u32 s61, s61, 2\ns_mov_b64 s[6:7], s[8:9]\ns_mov_b64 s[8:9], s[10:11]\ns_mov_b64 s[10:11], s[12:13]\nv_add_u32 v130, 4, v130\ns_branch L_round")
a("L_rdone:")
stamp()
a("s_cmp_lg_u32 s62, 0\ns_cbranch_scc1 L_noout")
for i in range(5):
    a(f"v_lshlrev_b32 v162, 16, v{156+i}\nv_and_b32 v163, 0xffff0000, v{156+i}\nv_pk_add_f32 v[162:163], v[162:163], v[{140+2*i}:{141+2*i}]\nv_cvt_pk_bf16_f32 v{124+i}, v162, v163")
    a(f"ds_write_b16 v{104+2*i}, v{124+i}\nds_write_b16_d16_hi v{105+2*i}, v{124+i}")
a("ds_read_b128 v[124:127], v4\nds_read_b32 v128, v5 offset:1024\nv_add_u32 v162, s48, v131\nv_add_u32 v163, s48, v132\ns_waitcnt lgkmcnt(0)")
a("global_store_dwordx4 v162, v[124:127], s[36:37]\nglobal_store_dword v163, v128, s[36:37] offset:1024")
a("L_noout:")
a("s_cmp_eq_u32 s2, 0\ns_cbranch_scc0 L_noep\ns_cmp_eq_u32 s3, 0\ns_cbranch_scc0 L_noep")
a("s_load_dword s16, s[40:41], 0\nv_mov_b32 v162, 0\ns_waitcnt lgkmcnt(0)\ns_add_u32 s16, s16, 1\nv_mov_b32 v163, s16\ns_mov_b64 exec, 1\nglobal_store_dword v162, v163, s[40:41]\ns_mov_b64 exec, -1\nL_noep:")
a("s_cmp_lt_u32 s2, 160\ns_cbranch_scc1 L_fin\ns_cmp_ge_u32 s2, 216\ns_cbranch_scc1 L_p5\ns_cmp_ge_u32 s2, 214\ns_cbranch_scc1 L_fin")
a(f"s_mul_i32 s16, s3, 1280\ns_add_u32 s16, s16, {HN}\nv_add_u32 v162, s16, v131\nv_add_u32 v163, s16, v132")
a(f"s_mul_i32 s16, s3, {XSS}\nv_add_u32 v131, s16, v131\nv_add_u32 v132, s16, v132")
a(f"v_and_b32 v164, 7, v0\nv_mul_u32_u24 v165, {XSS}, v164\nv_lshl_add_u32 v165, v2, 4, v165\nv_bfe_u32 v166, v0, 3, 1\nv_lshl_add_u32 v165, v166, 6, v165")
a(f"s_lshl2_add_u32 s16, s50, s3\ns_lshl_b32 s16, s16, 7\ns_add_u32 s16, s16, {ACT}\nv_lshl_add_u32 v164, v164, 4, s16\nv_and_b32 v166, 1, v2\nv_lshl_add_u32 v164, v166, 3, v164\nv_lshrrev_b32 v166, 1, v2\nv_lshl_add_u32 v164, v166, 2, v164")
a("s_mov_b32 s18, 0x00ff00ff\ns_mov_b32 s19, 0x00ff00ff")
a("s_waitcnt vmcnt(0)")
if opt("pre4",0): a(f"s_sleep {opt('pre4',0)}")
poll(["global_load_dwordx4 v[124:127], v162, s[40:41] sc1","global_load_dword v128, v163, s[40:41] offset:1024 sc1"],range(124,129),opt("sl4",2),166)
stamp()
a(f"ds_write_b128 v131, v[124:127] offset:{L_XS}\nds_write_b32 v132, v128 offset:{L_XS+1024}\ns_waitcnt lgkmcnt(0)\ns_barrier\ns_cmp_ge_u32 s3, 4\ns_cbranch_scc1 L_fin")
for i in range(10): a(f"ds_read_b128 {vr(104+4*i)}, v165 offset:{L_XS+128*i}")
for i in range(10):
    lg(9-i)
    a(f"{MF} v[144:147], {vr(8+8*i)}, {vr(104+4*i)}, {'0' if i==0 else 'v[144:147]'}\n{MF} v[148:151], {vr(12+8*i)}, {vr(104+4*i)}, {'0' if i==0 else 'v[148:151]'}")
for i in range(4): a(f"v_add_f32_dpp v{144+i}, v{148+i}, v{144+i} row_ror:8 {DPPM}")
a("v_permlane32_swap_b32 v144, v146\nv_permlane32_swap_b32 v145, v147")
a("v_mul_f32 v148, 0xbfb8aa3b, v144\nv_mul_f32 v149, 0xbfb8aa3b, v145\nv_exp_f32 v148, v148\nv_exp_f32 v149, v149\nv_mul_f32 v144, v144, v146\nv_mul_f32 v145, v145, v147")
a("v_add_f32 v148, 1.0, v148\nv_add_f32 v149, 1.0, v149\nv_rcp_f32 v148, v148\nv_rcp_f32 v149, v149\nv_mul_f32 v144, v144, v148\nv_mul_f32 v145, v145, v149\nv_cvt_pk_bf16_f32 v144, v144, v145")
a("s_mov_b64 exec, s[18:19]\nglobal_store_dword v164, v144, s[40:41] sc1\ns_mov_b64 exec, -1")
stamp()
a("s_branch L_fin")
a("L_p5:")
a(f"v_and_b32 v164, 7, v0\nv_bfe_u32 v165, v0, 3, 1\nv_lshlrev_b32 v162, 4, v164\nv_lshl_add_u32 v162, v2, 7, v162\nv_lshl_add_u32 v162, v165, 9, v162\ns_lshl_b32 s16, s3, 10\ns_add_u32 s16, s16, {ACT}\nv_add_u32 v162, s16, v162")
a("v_add_u32 v163, 0x2000, v162\nv_add_u32 v166, 0x4000, v162\nv_add_u32 v167, 0x6000, v162\ns_cmp_ge_u32 s3, 3\ns_cbranch_scc0 L_p5a\nv_mov_b32 v167, v162")
for i in range(8): a(f"v_mov_b32 v{32+i}, 0")
a("L_p5a:\ns_lshl_b32 s16, s3, 10\nv_lshl_add_u32 v129, v1, 4, s16")
a("s_cmp_lg_u32 s3, 0\ns_cbranch_scc1 L_p5b")
a(f"v_lshlrev_b32 v104, 6, v164\nv_add_u32 v104, {META}, v104\nv_mul_u32_u24 v105, 1280, v164\nv_add_u32 v105, {HN}, v105")
a("v_and_b32 v106, 0xffff, v56\nv_lshrrev_b32 v107, 16, v56\nv_and_b32 v108, 0xffff, v57\nv_lshrrev_b32 v109, 16, v57")
for i in range(4): a(f"v_add_u32 v{106+i}, v{106+i}, v105\nv_add_u32 v{110+i}, {HH-HN}, v{106+i}")
poll(["global_load_dwordx2 v[60:61], v104, s[40:41] sc1"],range(60,62),8,114)
poll([f"global_load_ushort v{64+i}, v{106+i}, s[40:41] sc1" for i in range(8)],range(64,72),4,114,cmp16=True)
for i in range(8): a(f"v_lshlrev_b32 v{64+i}, 16, v{64+i}")
a("v_and_b32 v60, 2047, v60\nv_mul_u32_u24 v60, 1280, v60\nv_lshl_add_u32 v60, v2, 3, v60\nv_add_u32 v60, s51, v60")
a("v_lshl_add_u32 v62, v2, 4, v164\nv_lshlrev_b32 v62, 4, v62\nv_lshl_add_u32 v62, v165, 12, v62")
a("L_p5b:\ns_waitcnt vmcnt(0)")
if opt("pre5",0): a(f"s_sleep {opt('pre5',0)}")
poll(["global_load_dwordx4 v[40:43], v162, s[40:41] sc1","global_load_dwordx4 v[44:47], v163, s[40:41] sc1","global_load_dwordx4 v[48:51], v166, s[40:41] sc1","global_load_dwordx4 v[52:55], v167, s[40:41] sc1"],range(40,56),opt("sl5",3),114)
if STAMP: a(f"s_memrealtime s[{64+2*(nst[0]-2)}:{65+2*(nst[0]-2)}]")
for i in range(4):
    a(f"{MF} v[72:75], {vr(8+8*i)}, {vr(40+4*i)}, {'0' if i==0 else 'v[72:75]'}\n{MF} v[76:79], {vr(12+8*i)}, {vr(40+4*i)}, {'0' if i==0 else 'v[76:79]'}")
for i in range(4): a(f"v_add_f32_dpp v{72+i}, v{76+i}, v{72+i} row_ror:8 {DPPM}")
a(f"ds_write_b128 v129, v[72:75] offset:{L_XS}\ns_waitcnt lgkmcnt(0)\ns_barrier\ns_cmp_lg_u32 s3, 0\ns_cbranch_scc1 L_fin")
for i in range(4): a(f"ds_read_b128 {vr(72+4*i)}, v62 offset:{L_XS+1024*i}")
a("s_mov_b32 s18, 0x00ff00ff\ns_mov_b32 s19, 0x00ff00ff\ns_waitcnt lgkmcnt(0)")
a("v_pk_add_f32 v[72:73], v[72:73], v[76:77]\nv_pk_add_f32 v[74:75], v[74:75], v[78:79]\nv_pk_add_f32 v[80:81], v[80:81], v[84:85]\nv_pk_add_f32 v[82:83], v[82:83], v[86:87]\nv_pk_add_f32 v[72:73], v[72:73], v[80:81]\nv_pk_add_f32 v[74:75], v[74:75], v[82:83]")
for i in range(4): a(f"v_add_f32_dpp v{72+i}, v{72+i}, v{72+i} row_ror:8 {DPPM}")
for i in range(4): a(f"v_fma_f32 v{72+i}, v{72+i}, v61, v{64+i}")
for i in range(4): a(f"v_add_f32 v{72+i}, v{72+i}, v{68+i}")
a("v_cvt_pk_bf16_f32 v72, v72, v73\nv_cvt_pk_bf16_f32 v73, v74, v75\ns_mov_b64 exec, s[18:19]\nglobal_store_dwordx2 v60, v[72:73], s[36:37]\ns_mov_b64 exec, -1")
if STAMP: a(f"s_memrealtime s[{64+2*(nst[0]-1)}:{65+2*(nst[0]-1)}]")
a("L_fin:")
if STAMP:
    a("s_waitcnt vmcnt(0)")
    stamp()
    NS=nst[0]
    if "probe" in kw:
        k=int(kw["probe"])
        a(f"s_waitcnt lgkmcnt(0)\ns_cmp_lg_u32 s3, 0\ns_cbranch_scc1 L_end")
        if k in (14,15): a(f"s_cmp_lt_u32 s2, {opt('plo',216)}\ns_cbranch_scc1 L_end\ns_cmp_ge_u32 s2, {opt('phi',256)}\ns_cbranch_scc1 L_end")
        a(f"s_add_u32 s16, s{64+2*k}, 4000\nL_spin:\ns_sleep 1\ns_memrealtime s[18:19]\ns_waitcnt lgkmcnt(0)\ns_sub_u32 s17, s18, s16\ns_cmp_lt_i32 s17, 0\ns_cbranch_scc1 L_spin\ns_endpgm")
    a(f"s_waitcnt lgkmcnt(0)\ns_mul_i32 s16, s2, 9\ns_add_u32 s16, s16, s3\ns_lshl_b32 s16, s16, 7\ns_add_u32 s16, s16, {WS_STAMP}\nv_mov_b32 v4, s16\ns_mov_b64 exec, 1")
    for k in range(NS): a(f"v_mov_b32 v5, s{64+2*k}\nglobal_store_dword v4, v5, s[40:41] offset:{4*k}")
    a(f"v_mov_b32 v5, s15\nglobal_store_dword v4, v5, s[40:41] offset:124")
a("L_end:\ns_endpgm")
a("L_helper:")
a("v_lshlrev_b32 v4, 7, v1\nv_min_u32 v5, T_end-L_pc-4, v4\nglobal_load_dword v8, v5, s[42:43]\nv_add_u32 v5, 0x2000, v4\nv_min_u32 v5, T_end-L_pc-4, v5\nglobal_load_dword v9, v5, s[42:43]")
a(f"s_mul_i32 s7, s5, 640\ns_add_u32 s7, s7, s4\ns_lshl_b32 s7, s7, 7\ns_add_u32 s7, s7, {WS_I}\nv_lshrrev_b32 v5, 3, v1\nv_mul_u32_u24 v5, 0x28000, v5\nv_and_b32 v6, 7, v0\nv_lshl_add_u32 v5, v6, 4, v5\nv_add_u32 v5, s7, v5")
a(f"s_mul_i32 s7, s2, 5120\ns_add_u32 s7, s7, {WS_Y+1024}\nv_lshl_add_u32 v6, v1, 4, s7\ns_lshl_b32 s7, s2, 8\ns_add_u32 s7, s7, {WS_SMALL}\nv_lshl_add_u32 v7, v1, 2, s7")
a("v_mov_b32 v12, -1\nv_mov_b32 v13, -1\nv_mov_b32 v14, -1\nv_mov_b32 v15, -1\ns_waitcnt lgkmcnt(0)\ns_load_dword s6, s[40:41], 0")
for i in range(5):
    a("global_store_dwordx4 v5, v[12:15], s[40:41] sc1")
    if i<4: a("v_add_u32 v5, 0x4000, v5")
for i in range(5): a(f"global_store_dwordx4 v6, v[12:15], s[40:41] offset:{1024*(i-1)} sc1")
a("global_store_dword v7, v12, s[40:41] sc1")
a(f"s_lshl_b32 s7, s2, 4\ns_add_u32 s7, s7, {WS_FLAGS}\nv_mov_b32 v5, s7\ns_mul_i32 s7, s2, {68*128}\nv_add_u32 v4, s7, v4\nv_add_u32 v6, 0x2000, v4\nv_min_u32 v4, {17279*128}, v4\nv_min_u32 v6, {17279*128}, v6")
a("s_waitcnt vmcnt(0) lgkmcnt(0)\ns_add_u32 s6, s6, 1\nv_mov_b32 v7, s6\ns_mov_b64 exec, 1\nglobal_store_dword v5, v7, s[40:41] sc1\ns_mov_b64 exec, -1")
if STAMP: a("s_memrealtime s[66:67]")
a("s_barrier")
if opt("wpf",1):
    a("global_load_dword v8, v4, s[30:31]\nglobal_load_dword v9, v4, s[32:33]\nglobal_load_dword v10, v4, s[34:35]\ns_mov_b64 exec, 15\nglobal_load_dword v11, v6, s[30:31]\nglobal_load_dword v12, v6, s[32:33]\nglobal_load_dword v13, v6, s[34:35]")
if STAMP:
    a(f"s_waitcnt lgkmcnt(0)\ns_mul_i32 s16, s2, 9\ns_add_u32 s16, s16, s3\ns_lshl_b32 s16, s16, 7\ns_add_u32 s16, s16, {WS_STAMP}\nv_mov_b32 v4, s16\ns_mov_b64 exec, 1")
    for k in range(2): a(f"v_mov_b32 v5, s{64+2*k}\nglobal_store_dword v4, v5, s[40:41] offset:{4*k}")
a("s_endpgm")
body=a.finish()
tab=".p2align 4\n.type T_ct,@object\nT_ct:\n"
for arr in (CT,INV):
    for i in range(0,640,16): tab+=".short "+", ".join(str(2*v) for v in arr[i:i+16])+"\n"
tab+="T_end:\n"
txt=f"""; FNet (hidden DFT 20x32, sequence DFT 8x256 with real/Hermitian folding) + LayerNorm + top-8 SwiGLU, one persistent launch.
; @launch grid=(256,1,1) block=(576,1,1) lds={LDS_BYTES}
.amdgcn_target "amdgcn-amd-amdhsa--gfx950"
.text
.globl {KN}
.p2align 8
.type {KN},@function
{body}
{tab}.section .rodata,"a"
.p2align 6
.amdhsa_kernel {KN}
  .amdhsa_next_free_vgpr 168
  .amdhsa_next_free_sgpr 102
  .amdhsa_accum_offset 168
  .amdhsa_group_segment_fixed_size 0
  .amdhsa_kernarg_size 104
  .amdhsa_user_sgpr_count 2
  .amdhsa_user_sgpr_kernarg_segment_ptr 1
  .amdhsa_system_sgpr_workgroup_id_x 1
.end_amdhsa_kernel
"""
open(outp,"w").write(txt)
print("nops inserted",a.nops,"stamps",nst[0],file=sys.stderr)
```

```python
import numpy as np
def bfbits(x):
    x=np.ascontiguousarray(x,dtype=np.float32); u=x.view(np.uint32)
    return (((u+0x7FFF+((u>>16)&1))>>16)&0xFFFF).astype(np.uint16)
def cosr(num,den):
    v=np.cos(2*np.pi*(np.asarray(num)%den)/den); v[np.abs(v)<1e-12]=0; return v
def sinr(num,den):
    v=np.sin(2*np.pi*(np.asarray(num)%den)/den); v[np.abs(v)<1e-12]=0; return v
def ecol(u,pos):
    if u>=1: return u+20*pos
    g,tau,i=pos>>3,(pos>>2)&1,pos&3
    n=4*g+i
    return 20*(n+1) if tau==0 else 10+20*n
colp=[0]*640
for p in range(320):
    e_=ecol(p>>5,p&31); colp[p]=e_; colp[320+p]=(640-e_) if e_!=320 else 0
def p_of_q(q):
    if q>=512: return q
    l,e8=q>>3,q&7
    return 4*l+e8 if e8<4 else 256+4*l+e8-4
CT=[colp[p_of_q(q)] for q in range(640)]
INV=[0]*640
for q,c in enumerate(CT): INV[c]=q
lane=np.arange(64); g=lane>>4; n=lane&15; jj=np.arange(8)
def t_r20():
    T=np.zeros((2,64,8))
    for half in range(2):
        for l in range(64):
            gp,r=(l&15)>>2,l&3; o=3*gp+r
            for i in range(5):
                d1=4*i+(l>>4)
                if r==3: v=1.0
                elif o>=10: v=0.0
                else:
                    u=5*half+(o>>1); c=o&1
                    if u==0: v=1.0 if c==0 else (-1.0)**d1
                    else: v=float(cosr([d1*u],20)[0]) if c==0 else -float(sinr([d1*u],20)[0])
                T[half,l,i]=v
    return bfbits(T)
def t_g():
    T=np.zeros((10,6,64,8))
    d2=(8*g)[:,None]+jj[None,:]
    for u in range(10):
        for tau in range(2):
            e=np.array([ecol(u,8*(x>>2)+4*tau+(x&3)) for x in n])[:,None]
            T[u,2*tau]=cosr(d2*e,640); T[u,2*tau+1]=-sinr(d2*e,640); T[u,4+tau]=sinr(d2*e,640)
    return bfbits(T)
def t_p2():
    T=np.zeros((8,8,64,8))
    for tt in range(8):
        row=(8*(16*tt+n)+4)[:,None]
        for k in range(4):
            j=(32*k+8*g)[:,None]+jj[None,:]
            T[tt,k]=cosr(row*j,2048)
            j2=np.where(j==0,128,j)
            T[tt,4+k]=-sinr(row*j2,2048)
    return bfbits(T)
def t_w():
    T=np.zeros((16,40),np.uint16)
    for gg in range(4):
        for r in range(4):
            for k in range(20):
                for h in range(2): T[4*gg+r,2*k+h]=64*CT[32*k+8*gg+r+4*h]
    return T
def emit(arr):
    u=np.ascontiguousarray(arr,dtype=np.uint16).reshape(-1).view(np.uint32)
    return "".join(".long "+",".join("0x%x"%v for v in u[i:i+16])+"\n" for i in range(0,len(u),16))
```

```python
import sys, struct
sys.path.insert(0,"gen")
from asmlib import Asm
import tables as T
import numpy as np
KN="sequential_preLN__spectral_fnet__moe_arch_mod__prompt_kernel"
kw=dict(a.split("=") for a in sys.argv[2:])
outp=sys.argv[1]
STAMP=int(kw.get("stamp",0))
def opt(n,d): return int(kw.get(n,d))
def fhex(f): return hex(struct.unpack("<I",struct.pack("<f",f))[0])
WS_FLAGS=0x1000; WS_SMALL=0x10000; KEYS=0x10000; HN=0x12000; HH=0x15000; META=0x17800; ACT=0x18000
WS_I=0x20000; WS_Y=0x160000; WS_STAMP=0x300000
TO_CT=0; TO_INV=1280; TO_W=2560; TO_R20=4096; TO_G=6144; TO_P2=TO_G+61440; TO_END=TO_P2+65536
L_BL=0; L_SUM=12288; L_SQ=12352; L_ST3=12416; L_CNT=12544; L_P2=16384; L_ROW=32768; L_WR=43008; L_XS=53248; XSS=1296
L_W=65536; LDS_BYTES=L_W+81920
LIMIT=3000
OUTF=kw.get("outf","").replace("+"," ")
a=Asm()
nst=[0]
def stamp(k=None):
    if STAMP:
        if k is None: k=nst[0]; nst[0]+=1
        a(f"s_memrealtime s[{64+2*k}:{65+2*k}]")
def lg(n): a(f"s_waitcnt lgkmcnt({0 if STAMP else n})")
pc=[0]
def poll(loads, regs, sleep, tmp, cmp16=False):
    k=pc[0]; pc[0]+=1
    a(f"LP{k}:")
    for l in loads: a(l)
    a("s_waitcnt vmcnt(0)")
    r=list(regs)
    if len(r)%2==1: a(f"v_max3_u32 v{tmp}, v{r[0]}, v{r[1]}, v{r[2]}"); r=r[3:]
    else: a(f"v_max_u32 v{tmp}, v{r[0]}, v{r[1]}"); r=r[2:]
    while r: a(f"v_max3_u32 v{tmp}, v{tmp}, v{r[0]}, v{r[1]}"); r=r[2:]
    a(f"v_cmp_eq_u32 vcc, {'0xffff' if cmp16 else '-1'}, v{tmp}")
    a(f"s_cbranch_vccz LD{k}")
    a(f"s_add_u32 s15, s15, 1\ns_cmp_lt_u32 s15, {LIMIT}\ns_cbranch_scc0 LD{k}\ns_mov_b64 exec, vcc")
    if sleep: a(f"s_sleep {sleep}")
    a(f"s_branch LP{k}\nLD{k}:\ns_mov_b64 exec, -1")
DPPM="row_mask:0xf bank_mask:0xf"
MF="v_mfma_f32_16x16x32_bf16"
def vr(b,n=4): return f"v[{b}:{b+n-1}]"
def dump_stamps(n):
    a(f"s_waitcnt lgkmcnt(0)\ns_mul_i32 s16, s2, 9\ns_add_u32 s16, s16, s3\ns_lshl_b32 s16, s16, 7\ns_add_u32 s16, s16, {WS_STAMP}\nv_mov_b32 v4, s16\ns_mov_b64 exec, 1")
    for k in range(n): a(f"v_mov_b32 v5, s{64+2*k}\nglobal_store_dword v4, v5, s[40:41] offset:{4*k}")
    a(f"v_mov_b32 v5, s15\nglobal_store_dword v4, v5, s[40:41] offset:124")

a(f"{KN}:")
stamp()
if STAMP:
    for k in range(1,19): a(f"s_mov_b32 s{64+2*k}, 0")
a("s_load_dwordx2 s[16:17], s[0:1], 0\ns_load_dwordx2 s[40:41], s[0:1], 96\ns_load_dwordx4 s[28:31], s[0:1], 48\ns_load_dwordx8 s[32:39], s[0:1], 64")
a("s_cmp_ge_u32 s2, 256\ns_cbranch_scc1 L_end")
a("v_lshrrev_b32 v4, 6, v0\nv_and_b32 v1, 63, v0\nv_readfirstlane_b32 s3, v4\nv_lshrrev_b32 v2, 4, v1\nv_and_b32 v3, 15, v0")
a("s_lshr_b32 s4, s2, 4\ns_lshl_b32 s4, s4, 3\ns_and_b32 s7, s2, 7\ns_or_b32 s4, s4, s7\ns_bfe_u32 s5, s2, 0x10003\ns_mov_b32 s15, 0")
a("s_getpc_b64 s[42:43]\nL_pc:")
a("s_cmp_lg_u32 s3, 8\ns_cbranch_scc1 L_main")
a(f"s_mul_i32 s7, s5, 640\ns_add_u32 s7, s7, s4\ns_lshl_b32 s7, s7, 7\ns_add_u32 s7, s7, {WS_I}\nv_lshrrev_b32 v5, 3, v1\nv_mul_u32_u24 v5, 0x28000, v5\nv_and_b32 v6, 7, v0\nv_lshl_add_u32 v5, v6, 4, v5\nv_add_u32 v5, s7, v5")
a(f"s_mul_i32 s7, s2, 5120\ns_add_u32 s7, s7, {WS_Y+1024}\nv_lshl_add_u32 v6, v1, 4, s7\ns_lshl_b32 s7, s2, 8\ns_add_u32 s7, s7, {WS_SMALL}\nv_lshl_add_u32 v7, v1, 2, s7")
a("s_lshr_b32 s8, s2, 3\ns_mulk_i32 s8, 5120\nv_lshl_add_u32 v4, v1, 7, s8\nv_min_u32 v4, T_end-L_pc-4, v4")
if opt("cpf",1): a("global_load_dword v8, v4, s[42:43]")
a("v_mov_b32 v12, -1\nv_mov_b32 v13, -1\nv_mov_b32 v14, -1\nv_mov_b32 v15, -1\ns_waitcnt lgkmcnt(0)\ns_load_dword s6, s[40:41], 0")
for i in range(5):
    a("global_store_dwordx4 v5, v[12:15], s[40:41] sc1")
    if i<4: a("v_add_u32 v5, 0x4000, v5")
for i in range(5): a(f"global_store_dwordx4 v6, v[12:15], s[40:41] offset:{1024*(i-1)} sc1")
a("global_store_dword v7, v12, s[40:41] sc1")
stamp(1)
a(f"s_lshl_b32 s7, s2, 4\ns_add_u32 s7, s7, {WS_FLAGS}\nv_mov_b32 v5, s7")
a("s_waitcnt vmcnt(0) lgkmcnt(0)\ns_add_u32 s6, s6, 1\nv_mov_b32 v7, s6\ns_mov_b64 exec, 1\nglobal_store_dword v5, v7, s[40:41] sc1")
stamp(2)
a("s_barrier")
if STAMP: dump_stamps(3)
a("s_endpgm")
a("L_main:")
a("s_sub_u32 s7, 256, s4\ns_cmp_eq_u32 s4, 0\ns_cselect_b32 s7, 128, s7")
a("s_cmp_ge_u32 s3, 4\ns_cselect_b32 s8, s7, s4\ns_and_b32 s9, s3, 3\ns_lshl_b32 s9, s9, 9\ns_add_u32 s9, s9, s8\ns_mulk_i32 s9, 1280")
a("v_lshrrev_b32 v5, 3, v3\nv_mul_u32_u24 v4, 0x50000, v5\nv_and_b32 v6, 7, v0\nv_lshl_add_u32 v4, v6, 3, v4\nv_lshl_add_u32 v4, v2, 6, v4\nv_add_u32 v4, s9, v4")
a("s_add_u32 s42, s42, T_0-L_pc\ns_addc_u32 s43, s43, 0")
a(f"s_lshl_b32 s12, s5, 10\ns_add_u32 s12, s12, {TO_R20}\nv_lshlrev_b32 v157, 4, v1\nv_add_u32 v7, s12, v157\nglobal_load_dwordx4 v[36:39], v7, s[42:43]")
a(f"s_min_u32 s10, s3, 4\ns_mul_i32 s11, s5, 5\ns_add_u32 s11, s11, s10\ns_mul_i32 s12, s11, 6144\ns_add_u32 s12, s12, {TO_G+2048}\nv_add_u32 v7, s12, v157")
a("s_waitcnt lgkmcnt(0)")
for i in range(5): a(f"global_load_dwordx2 v[{8+2*i}:{9+2*i}], v4, s[16:17] offset:{256*i}")
stamp()
NG=6
for i in range(6): a(f"global_load_dwordx4 {vr(64+4*i)}, v7, s[42:43] offset:{1024*i-2048}")
a("s_lshr_b32 s45, s2, 1\ns_and_b32 s44, s2, 1\ns_lshl_b32 s44, s44, 4\ns_and_b32 s46, s3, 3\ns_lshl2_add_u32 s44, s46, s44\ns_lshr_b32 s44, 0x04536271, s44\ns_and_b32 s44, s44, 15")
a("s_sub_u32 s47, 255, s45\ns_lshr_b32 s46, s3, 2\ns_cmp_eq_u32 s46, 0\ns_cselect_b32 s47, s45, s47\ns_lshl3_add_u32 s47, s47, s44\ns_mul_i32 s48, s47, 1280\nv_lshlrev_b32 v158, 2, v1")
def late_loads():
    a("v_add_u32 v103, s48, v157\nv_add_u32 v159, s48, v158")
    a("global_load_dwordx4 v[88:91], v103, s[16:17]\nglobal_load_dword v92, v159, s[16:17] offset:1024")
    a("global_load_dwordx4 v[94:97], v157, s[28:29]\nglobal_load_dword v93, v158, s[28:29] offset:1024")
    a("global_load_dwordx4 v[98:101], v157, s[42:43]\nglobal_load_dword v102, v158, s[42:43] offset:1024")
    a("s_cmp_ge_u32 s2, 160\ns_cbranch_scc1 L_ffnld")
    a(f"s_lshr_b32 s49, s3, 1\ns_lshl2_add_u32 s49, s5, s49\ns_lshl_b32 s49, s49, 13\ns_add_u32 s49, s49, {TO_P2+4096}\nv_add_u32 v103, s49, v157")
    for k in range(8): a(f"global_load_dwordx4 {vr(104+4*k)}, v103, s[42:43] offset:{1024*k-4096}")
    a("global_load_dword v159, v158, s[42:43]\nglobal_load_dword v159, v158, s[42:43]")
    a("s_branch L_lde\nL_ffnld:\ns_cmp_ge_u32 s2, 214\ns_cbranch_scc1 L_ld2")
    a("s_sub_u32 s49, s2, 160\ns_and_b32 s50, s49, 7\ns_lshr_b32 s56, s49, 4\ns_lshl3_add_u32 s50, s56, s50\ns_bfe_u32 s56, s49, 0x10003\ns_lshl1_add_u32 s50, s50, s56\ns_cmp_ge_u32 s49, 48\ns_cselect_b32 s50, s49, s50")
    a(f"s_mul_i32 s56, s3, {80*3456}\ns_lshl_b32 s57, s50, 6\ns_add_u32 s56, s56, s57\nv_lshrrev_b32 v103, 2, v1\nv_mul_u32_u24 v103, 3456, v103\nv_and_b32 v159, 3, v0\nv_lshl_add_u32 v103, v159, 4, v103\nv_add_u32 v103, s56, v103")
    a(f"s_mul_i32 s58, s3, 5120\ns_add_u32 s58, s58, {L_W}")
    for i in range(5):
        a(f"s_add_u32 m0, s58, {1024*i}\nglobal_load_lds_dwordx4 v103, s[30:31]\ns_add_u32 m0, s58, {1024*i+40960}\nglobal_load_lds_dwordx4 v103, s[32:33]")
        if i<4: a(f"v_add_u32 v103, {16*3456}, v103")
    a("s_branch L_lde\nL_ld2:")
    a("s_sub_u32 s50, s2, 216\ns_cmp_ge_u32 s2, 216\ns_cselect_b32 s50, s50, 0\ns_and_b32 s51, s50, 7\ns_mul_i32 s51, s51, 5\ns_lshr_b32 s50, s50, 3\ns_add_u32 s50, s50, s51\ns_lshl_b32 s51, s50, 5")
    a("v_lshrrev_b32 v103, 1, v1\nv_mul_u32_u24 v103, 1280, v103\nv_and_b32 v159, 1, v0\nv_lshl_add_u32 v103, v159, 4, v103\ns_mul_i32 s56, s3, 81920\ns_add_u32 s56, s56, s51\nv_add_u32 v103, s56, v103")
    a(f"s_lshl_b32 s58, s3, 13\ns_add_u32 s58, s58, {L_W}\ns_cmp_ge_u32 s3, 3\ns_cselect_b32 s57, 0, {655360*3}")
    for i in range(4):
        for b in range(2):
            if i<3: a(f"s_add_u32 m0, s58, {2048*i+1024*b}\nv_add_u32 v159, {655360*i+40960*b}, v103\nglobal_load_lds_dwordx4 v159, s[34:35]")
            else: a(f"s_add_u32 m0, s58, {2048*i+1024*b}\nv_add_u32 v159, s57, v103\ns_add_u32 s57, s57, 40960\nglobal_load_lds_dwordx4 v159, s[34:35]")
    a(f"v_lshl_add_u32 v103, v2, 3, s51\nglobal_load_dwordx2 v[134:135], v103, s[42:43] offset:{TO_INV}\nglobal_load_dword v159, v158, s[42:43]")
    a("L_lde:")
EARLY=opt("early",0)
if EARLY: late_loads()
a("s_cmp_ge_u32 s3, 5\ns_cbranch_scc1 L_nosm")
a("v_lshrrev_b32 v20, 1, v3\nv_and_b32 v21, 1, v0\nv_lshrrev_b32 v22, 1, v2\nv_and_b32 v23, 1, v2")
a("v_mov_b32 v24, s7\nv_mov_b32 v25, s4\nv_cmp_eq_u32 vcc, 1, v22\nv_cndmask_b32 v24, v25, v24, vcc\nv_lshl_add_u32 v24, v23, 10, v24")
a("v_subrev_u32 v25, 4, v20\nv_mul_i32_i24 v24, v24, v25\nv_lshl_add_u32 v24, v21, 9, v24")
a("v_cmp_gt_u32 vcc, v22, v21\ns_cmp_lg_u32 s4, 0\ns_cselect_b32 s49, 1024, 0\nv_mov_b32 v25, s49\nv_cndmask_b32 v25, 0, v25, vcc\nv_add_u32 v24, v24, v25\nv_and_b32 v24, 2047, v24")
a(f"v_cvt_f32_u32 v24, v24\nv_cvt_f32_u32 v25, v20\nv_mul_f32 v24, {fhex(1/2048)}, v24\nv_mul_f32 v25, {fhex(0.125)}, v25")
a("v_cmp_eq_u32 vcc, v22, v21\ns_cselect_b64 s[52:53], -1, 0\ns_or_b64 vcc, vcc, s[52:53]")
for i in range(4):
    a(f"v_cos_f32 v{56+i}, v24\nv_sin_f32 v{60+i}, v24")
    if i<3: a("v_add_f32 v24, v24, v25")
for i in range(8): a(f"v_cndmask_b32 v{56+i}, 0, v{56+i}, vcc")
a("s_lshl_b32 s49, s10, 11\ns_add_u32 s56, s49, 1024\ns_cmp_eq_u32 s11, 0\ns_cselect_b32 s57, 1024, s49\ns_cselect_b32 s56, 10240, s56")
a("v_lshlrev_b32 v163, 4, v2\nv_lshl_add_u32 v160, v3, 6, v163\nv_add_u32 v161, s56, v160\nv_add_u32 v162, s57, v160\nv_add_u32 v160, s49, v160")
a(f"s_lshl_b32 s49, s11, 7\ns_add_u32 s49, s49, s4\ns_lshl_b32 s49, s49, 7\ns_add_u32 s49, s49, {WS_I}")
a("v_mul_u32_u24 v164, 0x28000, v20\nv_lshl_add_u32 v164, v21, 6, v164\nv_add3_u32 v164, v164, v163, s49")
a(f"s_mov_b32 s60, {fhex(1/640)}\ns_mov_b32 s61, {fhex(1/640)}\nv_mov_b32 v166, {fhex(1e-5)}\nv_mov_b32 v167, {fhex(1e-5)}")
a("L_nosm:")
a("v_mov_b32 v23, 0\nv_mov_b32 v27, 0\nv_mov_b32 v31, 0\nv_mov_b32 v35, 0\ns_mov_b32 s52, 0x05040100\ns_mov_b32 s53, 0x07060302")
a("s_lshl_b32 s49, s3, 7\nv_mul_u32_u24 v4, 3072, v2\nv_lshl_add_u32 v4, v3, 3, v4\nv_add_u32 v4, s49, v4")
a("s_lshl_b32 s49, s3, 3\nv_lshl_add_u32 v7, v5, 2, s49")
a(f"ds_write_b32 v7, v23 offset:{L_SQ}\nds_write_b32 v7, v23 offset:{L_CNT}")
a(f"s_cmp_eq_u32 s5, 0\ns_cselect_b32 s49, {fhex(-1/32)}, 0\nv_mov_b32 v6, s49\nv_cmp_eq_u32 vcc, 0, v2\nv_cndmask_b32 v6, 0, v6, vcc")
a("v_mov_b32 v18, 0\nv_mov_b32 v19, 0\ns_mov_b32 s54, 0x01010101\ns_mov_b32 s55, 0x01010101")
stamp()
a(f"s_waitcnt vmcnt({NG+(16 if EARLY else 0)})")
stamp()
for low in range(4):
    c=low>>1; sel="s53" if low&1 else "s52"; o=20+4*low
    a(f"v_perm_b32 v{o}, v{10+c}, v{8+c}, {sel}\nv_perm_b32 v{o+1}, v{14+c}, v{12+c}, {sel}\nv_perm_b32 v{o+2}, v23, v{16+c}, {sel}")
    if low>0: a(f"{MF} {vr(40+4*(low-1))}, v[36:39], {vr(20+4*(low-1))}, 0")
a("v_dot2c_f32_bf16 v18, v8, v8\nv_dot2c_f32_bf16 v19, v9, v9")
a(f"{MF} {vr(52)}, v[36:39], {vr(32)}, 0")
for i in range(1,5): a(f"v_dot2c_f32_bf16 v18, v{8+2*i}, v{8+2*i}\nv_dot2c_f32_bf16 v19, v{9+2*i}, v{9+2*i}")
a("v_add_f32 v8, v43, v47\nv_add_f32 v9, v51, v55\nv_add_f32 v8, v8, v9\nv_add_f32 v18, v18, v19")
for m,r in (("quad_perm:[1,0,3,2]",1),("quad_perm:[2,3,0,1]",2),("row_half_mirror",0)):
    if r: a(f"v_cvt_pk_bf16_f32 v{10+2*r}, v{40+r}, v{44+r}")
    a(f"v_add_f32_dpp v8, v8, v8 {m} {DPPM}\nv_add_f32_dpp v18, v18, v18 {m} {DPPM}")
    if r: a(f"v_cvt_pk_bf16_f32 v{11+2*r}, v{48+r}, v{52+r}\nds_write_b64 v4, v[{10+2*r}:{11+2*r}] offset:{1024*r}")
for low in range(4): a(f"v_fmac_f32 v{40+4*low}, v8, v6")
a("v_cvt_pk_bf16_f32 v10, v40, v44\nv_cvt_pk_bf16_f32 v11, v48, v52\nds_write_b64 v4, v[10:11]")
a(f"s_mov_b64 exec, s[54:55]\nds_add_f32 v7, v18 offset:{L_SQ}\nds_write_b32 v7, v8 offset:{L_SUM}\ns_mov_b64 exec, -1")
a("s_waitcnt lgkmcnt(0)\ns_barrier")
stamp()
a("s_cmp_ge_u32 s3, 5\ns_cbranch_scc1 L_p1done")
a(f"ds_read_b128 v[8:11], v160\nds_read_b128 v[12:15], v162\nds_read_b128 v[20:23], v161\nds_read_b128 v[24:27], v163 offset:{L_SUM}\nds_read_b128 v[28:31], v163 offset:{L_SQ}")
a(f"s_waitcnt vmcnt({16 if EARLY else 0})")
lg(4)
a(f"{MF} v[40:43], v[8:11], v[64:67], 0\n{MF} v[44:47], v[8:11], v[68:71], 0")
lg(3)
a(f"{MF} v[48:51], v[12:15], v[72:75], 0\n{MF} v[52:55], v[12:15], v[76:79], 0")
lg(2)
a(f"{MF} v[40:43], v[20:23], v[80:83], v[40:43]\n{MF} v[44:47], v[20:23], v[64:67], v[44:47]")
lg(0)
a("v_pk_mul_f32 v[24:25], v[24:25], s[60:61]\nv_pk_mul_f32 v[26:27], v[26:27], s[60:61]")
a(f"{MF} v[48:51], v[20:23], v[84:87], v[48:51]")
a("v_pk_fma_f32 v[28:29], v[28:29], s[60:61], v[166:167]\nv_pk_fma_f32 v[30:31], v[30:31], s[60:61], v[166:167]")
a(f"{MF} v[52:55], v[20:23], v[72:75], v[52:55]")
a("v_pk_fma_f32 v[28:29], v[24:25], v[24:25], v[28:29] neg_lo:[1,0,0] neg_hi:[1,0,0]\nv_pk_fma_f32 v[30:31], v[26:27], v[26:27], v[30:31] neg_lo:[1,0,0] neg_hi:[1,0,0]")
for i in range(4): a(f"v_max_f32 v{28+i}, v{28+i}, v166")
for i in range(4): a(f"v_rsq_f32 v{28+i}, v{28+i}")
a("v_cvt_pk_bf16_f32 v8, v40, v41\nv_cvt_pk_bf16_f32 v9, v42, v43\nv_cvt_pk_bf16_f32 v10, v44, v45\nv_cvt_pk_bf16_f32 v11, v46, v47")
a("v_pk_mul_f32 v[56:57], v[56:57], v[28:29]\nv_pk_mul_f32 v[58:59], v[58:59], v[30:31]\nv_pk_mul_f32 v[60:61], v[60:61], v[28:29]\nv_pk_mul_f32 v[62:63], v[62:63], v[30:31]")
a("v_cvt_pk_bf16_f32 v24, v56, v57\nv_cvt_pk_bf16_f32 v25, v58, v59\nv_cvt_pk_bf16_f32 v26, v60, v61\nv_cvt_pk_bf16_f32 v27, v62, v63")
a("v_cvt_pk_bf16_f32 v12, v48, v49\nv_cvt_pk_bf16_f32 v13, v50, v51")
a(f"{MF} v[40:43], v[8:11], v[24:27], 0")
a("v_cvt_pk_bf16_f32 v14, v52, v53\nv_cvt_pk_bf16_f32 v15, v54, v55")
a(f"{MF} v[44:47], v[12:15], v[24:27], 0")
a("v_cvt_pk_bf16_f32 v8, v40, v41\nv_cvt_pk_bf16_f32 v9, v42, v43\nv_cvt_pk_bf16_f32 v10, v44, v45\nv_cvt_pk_bf16_f32 v11, v46, v47")
a("global_store_dwordx4 v164, v[8:11], s[40:41] sc1")
a("L_p1done:")
stamp()
if not EARLY: late_loads()
a(f"s_lshl_b32 s56, s44, 7\ns_add_u32 s56, s56, s45\ns_mulk_i32 s56, 1280\ns_lshl3_add_u32 s56, s46, s56\ns_add_u32 s56, s56, {WS_Y}")
a("s_sub_u32 s57, 2048, s47\ns_and_b32 s57, s57, 2047\ns_and_b32 s62, s57, 7\ns_lshr_b32 s57, s57, 3\ns_sub_u32 s59, 255, s57\ns_cmp_ge_u32 s57, 128\ns_cselect_b32 s57, s59, s57\ns_cselect_b32 s59, 8, 0")
a(f"s_lshl_b32 s62, s62, 7\ns_add_u32 s57, s57, s62\ns_mulk_i32 s57, 1280\ns_add_u32 s57, s57, s59\ns_add_u32 s57, s57, {WS_Y}")
a("v_add_u32 v146, s56, v157\ns_add_u32 s62, s56, 1024\ns_sub_u32 s59, s57, 256\nv_mov_b32 v147, s59\nv_mov_b32 v148, s62\nv_cmp_eq_u32 vcc, 0, v2\nv_cndmask_b32 v147, v147, v148, vcc\nv_add_u32 v147, v147, v157")
a("v_lshrrev_b32 v148, 1, v1\nv_lshlrev_b32 v148, 4, v148\nv_and_b32 v149, 1, v0\nv_lshl_add_u32 v148, v149, 2, v148\ns_add_u32 s62, s57, 768\nv_add_u32 v148, s62, v148")
a("v_mov_b32 v149, 0xffff\nv_cmp_eq_u32 vcc, 22, v1\nv_cndmask_b32 v149, -1, v149, vcc")
a("s_mov_b32 s63, 0x3f803f80\nv_mov_b32 v152, 0\nv_mov_b32 v153, 0\nv_mov_b32 v154, 0\nv_mov_b32 v155, 0\nv_mov_b32 v156, 0")
a(f"s_lshl_b32 s57, s3, 4\nv_lshl_add_u32 v150, v2, 2, s57\nv_and_b32 v151, 7, v0\nv_lshlrev_b32 v151, 4, v151")
a(f"s_mul_i32 s49, s3, 1280\ns_add_u32 s49, s49, {L_ROW}\nv_add_u32 v160, s49, v157\nv_add_u32 v161, s49, v158")
def p3prep_data(wait):
    a(wait)
    a(f"ds_write_b128 v160, v[88:91]\nds_write_b32 v161, v92 offset:1024\nds_write_b128 v160, v[94:97] offset:{L_WR-L_ROW}\nds_write_b32 v161, v93 offset:{L_WR-L_ROW+1024}")
    for i in range(5):
        a(f"v_and_b32 v{40+2*i}, 0xffff, v{98+i}\nv_lshrrev_b32 v{41+2*i}, 16, v{98+i}\nv_add_u32 v{40+2*i}, s49, v{40+2*i}\nv_add_u32 v{41+2*i}, s49, v{41+2*i}")
        a(f"ds_read_u16 v{136+i}, v{40+2*i}\nds_read_u16 v{141+i}, v{40+2*i} offset:{L_WR-L_ROW}")
        a(f"ds_read_u16 v{50+i}, v{41+2*i}\nds_read_u16 v{55+i}, v{41+2*i} offset:{L_WR-L_ROW}")
    a("s_waitcnt lgkmcnt(0)")
    for i in range(10): a(f"v_lshl_or_b32 v{136+i}, v{50+i}, 16, v{136+i}")
    for i in range(5):
        a(f"v_dot2c_f32_bf16 v152, s63, v{136+i}\nv_dot2c_f32_bf16 v153, v{136+i}, v{141+i}\nv_dot2c_f32_bf16 v154, v{136+i}, v{136+i}\nv_dot2c_f32_bf16 v155, s63, v{141+i}")
PREP1=opt("prep1",1)
if PREP1: p3prep_data("s_waitcnt vmcnt(10)")
a("s_cmp_lg_u32 s3, 7\ns_cbranch_scc1 L_fld")
a(f"s_load_dword s6, s[40:41], 0\nv_add_u32 v4, {WS_FLAGS}, v157\ns_waitcnt lgkmcnt(0)\ns_add_u32 s6, s6, 1")
a("L_fl:")
for i in range(4): a(f"global_load_dword v{8+i}, v4, s[40:41] offset:{1024*i} sc1")
a("s_waitcnt vmcnt(0)")
a("v_xor_b32 v8, s6, v8\nv_xor_b32 v9, s6, v9\nv_xor_b32 v10, s6, v10\nv_xor_b32 v11, s6, v11\nv_or3_b32 v8, v8, v9, v10\nv_or_b32 v8, v8, v11\nv_cmp_ne_u32 vcc, 0, v8\ns_cbranch_vccz L_fld")
a(f"s_add_u32 s15, s15, 1\ns_cmp_lt_u32 s15, {LIMIT}\ns_cbranch_scc0 L_fld\ns_sleep {opt('slf',8)}\ns_branch L_fl\nL_fld:")
a("s_cmp_ge_u32 s2, 160\ns_cbranch_scc1 L_ffnstage")
a(f"s_and_b32 s62, s2, 7\ns_lshr_b32 s56, s2, 4\ns_mul_i32 s57, s62, 10\ns_add_u32 s57, s57, s56\ns_lshl_b32 s57, s57, 14\ns_add_u32 s57, s57, {WS_I}")
a("v_lshl_add_u32 v4, v0, 4, s57\nv_add_u32 v5, 0x2000, v4")
a("v_lshlrev_b32 v6, 1, v0\nv_and_b32 v6, 32, v6\nv_and_b32 v7, 64, v0\nv_or_b32 v6, v6, v7\nv_lshlrev_b32 v7, 4, v0\nv_xor_b32 v6, v6, v7")
a("v_lshrrev_b32 v16, 2, v3\nv_lshl_add_u32 v17, v2, 3, v16\nv_lshlrev_b32 v17, 7, v17\nv_and_b32 v18, 3, v0\nv_lshl_add_u32 v17, v18, 3, v17")
a("v_lshrrev_b32 v16, 3, v1\nv_and_b32 v16, 3, v16\ns_and_b32 s58, s3, 1\nv_xor_b32 v16, s58, v16\nv_lshl_add_u32 v17, v16, 5, v17\nv_xor_b32 v18, 64, v17")
a(f"s_lshl_b32 s59, s62, 7\ns_lshr_b32 s60, s3, 1\ns_lshl2_add_u32 s60, s5, s60\ns_lshl4_add_u32 s59, s60, s59\ns_mulk_i32 s59, 1280\ns_lshl_b32 s56, s56, 7\ns_add_u32 s59, s59, s56\ns_lshl_b32 s58, s58, 6\ns_add_u32 s59, s59, s58\ns_add_u32 s59, s59, {WS_Y}")
a("v_mul_u32_u24 v19, 1280, v3\nv_lshl_add_u32 v19, v2, 4, v19\nv_add_u32 v19, s59, v19")
a("s_waitcnt vmcnt(0)\ns_barrier")
stamp()
if opt("pre1",0): a(f"s_sleep {opt('pre1',0)}")
poll(["global_load_dwordx4 v[8:11], v4, s[40:41] sc1","global_load_dwordx4 v[12:15], v5, s[40:41] sc1"],range(8,16),opt("sl1",2),16)
stamp()
a(f"ds_write_b128 v6, v[8:11] offset:{L_P2}\nds_write_b128 v6, v[12:15] offset:{L_P2+8192}\ns_waitcnt lgkmcnt(0)\ns_barrier")
for k in range(4):
    a(f"ds_read_b64_tr_b16 v[{20+8*k}:{21+8*k}], v17 offset:{L_P2+4096*k}\nds_read_b64_tr_b16 v[{22+8*k}:{23+8*k}], v17 offset:{L_P2+4096*k+512}")
    a(f"ds_read_b64_tr_b16 v[{24+8*k}:{25+8*k}], v18 offset:{L_P2+4096*k}\nds_read_b64_tr_b16 v[{26+8*k}:{27+8*k}], v18 offset:{L_P2+4096*k+512}")
for k in range(4):
    lg(14-4*k)
    a(f"{MF} v[8:11], {vr(20+8*k)}, {vr(104+4*k)}, {'0' if k==0 else 'v[8:11]'}")
    lg(12-4*k)
    a(f"{MF} v[12:15], {vr(24+8*k)}, {vr(120+4*k)}, {'0' if k==0 else 'v[12:15]'}")
a("v_pk_add_f32 v[20:21], v[8:9], v[12:13] neg_lo:[0,1] neg_hi:[0,1]\nv_pk_add_f32 v[22:23], v[10:11], v[14:15] neg_lo:[0,1] neg_hi:[0,1]\nv_pk_add_f32 v[24:25], v[8:9], v[12:13]\nv_pk_add_f32 v[26:27], v[10:11], v[14:15]")
a("v_cvt_pk_bf16_f32 v8, v20, v21\nv_cvt_pk_bf16_f32 v9, v22, v23\nv_cvt_pk_bf16_f32 v10, v24, v25\nv_cvt_pk_bf16_f32 v11, v26, v27")
a("global_store_dwordx4 v19, v[8:11], s[40:41] sc1")
if not PREP1: p3prep_data("")
a("s_branch L_p3")
a("L_ffnstage:")
if not PREP1: p3prep_data("s_waitcnt vmcnt(10)")
a(f"v_lshrrev_b32 v4, 2, v1\nv_mul_u32_u24 v4, 80, v4")
for i in range(5): a(f"global_load_dwordx4 {vr(104+4*i)}, v4, s[42:43] offset:{TO_W+16*i}")
a("s_waitcnt vmcnt(0)\ns_barrier")
stamp(nst[0]-2)
a("s_cmp_ge_u32 s2, 214\ns_cbranch_scc1 L_st2\ns_cmp_ge_u32 s3, 4\ns_cbranch_scc1 L_p3w")
a(f"v_and_b32 v4, 1, v0\nv_lshlrev_b32 v4, 3, v4\nv_bfe_u32 v5, v0, 1, 1\nv_mul_u32_u24 v5, 40960, v5\ns_lshl_b32 s56, s3, 4\ns_add_u32 s56, s56, {L_W}\nv_add3_u32 v4, v4, v5, s56")
for k in range(20):
    a(f"v_and_b32 v5, 0xffff, v{104+k}\nv_lshrrev_b32 v6, 16, v{104+k}\nv_add_u32 v5, v5, v4\nv_add_u32 v6, v6, v4")
    a(f"ds_read_b64_tr_b16 v[{8+4*k}:{9+4*k}], v5\nds_read_b64_tr_b16 v[{10+4*k}:{11+4*k}], v6")
a("s_branch L_p3w")
a("L_st2:")
a("v_lshrrev_b32 v4, 2, v3\nv_lshl_add_u32 v4, v2, 3, v4\nv_lshlrev_b32 v4, 5, v4\nv_and_b32 v5, 3, v0\nv_lshl_add_u32 v4, v5, 3, v4\nv_add_u32 v4, s58, v4")
for k in range(8):
    a(f"ds_read_b64_tr_b16 v[{8+4*k}:{9+4*k}], v4 offset:{1024*k}\nds_read_b64_tr_b16 v[{10+4*k}:{11+4*k}], v4 offset:{1024*k+128}")
a("L_p3w:\ns_waitcnt lgkmcnt(0)")
stamp(nst[0]-1)
if opt("probe2",1):
    a("s_mov_b64 exec, 1\nL_pb2:\nglobal_load_dword v108, v148, s[40:41] sc1\ns_waitcnt vmcnt(0)\nv_cmp_eq_u32 vcc, -1, v108\ns_cbranch_vccz L_pb2d")
    a(f"s_add_u32 s15, s15, 1\ns_cmp_lt_u32 s15, {LIMIT}\ns_cbranch_scc0 L_pb2d\ns_sleep {opt('slp2',2)}\ns_branch L_pb2\nL_pb2d:\ns_mov_b64 exec, -1")
a("L_p3:")
stamp()
a("s_waitcnt vmcnt(0)")
stamp()
if opt("pre2",0): a(f"s_sleep {opt('pre2',0)}")
poll(["global_load_dwordx2 v[104:105], v146, s[40:41] sc1","global_load_dwordx2 v[106:107], v147, s[40:41] sc1","global_load_dword v108, v148, s[40:41] sc1"],range(104,109),opt("sl2",2),162)
stamp()
a("v_and_b32 v107, v107, v149")
for i in (0,1,2,4,3):
    a(f"v_dot2c_f32_bf16 v152, s63, v{104+i}\nv_dot2c_f32_bf16 v153, v{104+i}, v{141+i}\nv_dot2c_f32_bf16 v156, v{104+i}, v{136+i}\nv_dot2c_f32_bf16 v154, v{104+i}, v{104+i}")
a("v_permlane32_swap_b32 v152, v153\nv_fmac_f32 v154, 2.0, v156\nv_add_f32 v152, v152, v153\nv_permlane32_swap_b32 v154, v155\nv_add_f32 v154, v154, v155")
a("v_permlane16_swap_b32 v152, v154\nv_add_f32 v152, v152, v154")
for s_ in (8,4,2,1): a(f"v_add_f32_dpp v152, v152, v152 row_ror:{s_} {DPPM}")
a(f"ds_write_b32 v150, v152 offset:{L_ST3}")
a(f"s_lshl_b32 s57, s2, 3\nv_and_b32 v162, 7, v0\nv_add_u32 v162, s57, v162\nv_lshlrev_b32 v163, 2, v162\nv_add_u32 v163, {KEYS}, v163\nv_mov_b32 v156, {fhex(1e-5)}\ns_mov_b32 s58, {fhex(1/640)}\ns_movk_i32 s59, 0x7ff")
a(f"s_waitcnt lgkmcnt(0)\ns_barrier\nds_read_b128 v[152:155], v151 offset:{L_ST3}\ns_waitcnt lgkmcnt(0)")
a("v_mul_f32 v152, s58, v152\nv_fma_f32 v153, v153, s58, v156\nv_fma_f32 v153, -v152, v152, v153\nv_max_f32 v153, v153, v156\nv_rsq_f32 v153, v153\nv_fma_f32 v154, -v152, v155, v154\nv_mul_f32 v154, v154, v153")
a("v_ashrrev_i32 v155, 31, v154\nv_or_b32 v155, 0x80000000, v155\nv_xor_b32 v155, v155, v154\nv_bfi_b32 v155, s59, v162, v155\nv_min_u32 v155, -2, v155")
a("s_cmp_lg_u32 s3, 0\ns_cbranch_scc1 L_nokey\ns_mov_b64 exec, 0xff\nglobal_store_dword v163, v155, s[40:41] sc1\ns_mov_b64 exec, -1\nL_nokey:")
stamp()
a("v_readlane_b32 s56, v152, s3\nv_readlane_b32 s58, v153, s3\nv_readlane_b32 s60, v154, s3")
for i in range(8): a(f"v_readlane_b32 s{6+i}, v155, {i}")
a("v_mov_b32 v156, 0")
for i in range(8): a(f"v_cmp_gt_u32 vcc, s{6+i}, v155\nv_addc_co_u32 v156, vcc, 0, v156, vcc")
a("v_lshlrev_b32 v152, 2, v156\nds_permute_b32 v155, v152, v155\nv_readlane_b32 s14, v156, s3")
for i in range(5):
    a(f"v_lshlrev_b32 v{110+2*i}, 16, v{104+i}\nv_and_b32 v{111+2*i}, 0xffff0000, v{104+i}\nv_lshlrev_b32 v162, 16, v{136+i}\nv_and_b32 v163, 0xffff0000, v{136+i}")
    a(f"v_pk_add_f32 v[{110+2*i}:{111+2*i}], v[{110+2*i}:{111+2*i}], v[162:163]\nv_cvt_pk_bf16_f32 v{120+i}, v{110+2*i}, v{111+2*i}")
a("s_mov_b32 s57, s56\ns_mov_b32 s59, s58")
for i in range(5):
    a(f"v_lshlrev_b32 v{110+2*i}, 16, v{120+i}\nv_and_b32 v{111+2*i}, 0xffff0000, v{120+i}")
    a(f"v_pk_add_f32 v[162:163], v[{110+2*i}:{111+2*i}], s[56:57] neg_lo:[0,1] neg_hi:[0,1]\nv_pk_mul_f32 v[162:163], v[162:163], s[58:59]\nv_cvt_pk_bf16_f32 v{126+i}, v162, v163")
a("s_waitcnt lgkmcnt(0)")
for i in range(8): a(f"v_readlane_b32 s{6+i}, v155, {i}")
a(f"v_lshlrev_b32 v146, 4, v0\nv_add_u32 v146, {KEYS}, v146\nv_mov_b32 v147, {L_CNT}\ns_mov_b32 s61, 0\ns_mov_b32 s62, 0")
a("s_waitcnt vmcnt(0)\ns_barrier")
stamp()
if opt("pre3",0): a(f"s_sleep {opt('pre3',0)}")
poll(["global_load_dwordx4 v[104:107], v146, s[40:41] sc1"],range(104,108),opt("sl3",2),162)
stamp()
a("L_round:")
for i in range(4): a(f"v_cmp_gt_u32_e64 s[{16+2*i}:{17+2*i}], v{104+i}, s6")
for i in range(4): a(f"v_cmp_gt_u32_e64 s[{24+2*i}:{25+2*i}], v{104+i}, s7")
for i in range(8): a(f"s_bcnt1_i32_b64 s{16+2*i}, s[{16+2*i}:{17+2*i}]")
a("s_add_u32 s16, s16, s18\ns_add_u32 s20, s20, s22\ns_add_u32 s24, s24, s26\ns_add_u32 s28, s28, s30\ns_add_u32 s16, s16, s20\ns_add_u32 s24, s24, s28\ns_lshl_b32 s24, s24, 16\ns_add_u32 s16, s16, s24")
a("v_mov_b32 v162, s16\ns_mov_b64 exec, 1\nds_add_u32 v147, v162\ns_mov_b64 exec, -1\ns_waitcnt lgkmcnt(0)\ns_barrier\nds_read_b32 v162, v147\ns_sub_u32 s18, s14, s61\ns_lshl_b32 s19, s18, 4\ns_waitcnt lgkmcnt(0)")
a("v_readfirstlane_b32 s16, v162\ns_lshr_b32 s17, s16, s19\ns_and_b32 s17, s17, 0xffff\ns_cmp_lt_u32 s18, 2\ns_cselect_b32 s17, s17, 99\ns_cmp_ge_u32 s17, 8\ns_cbranch_scc1 L_nosel")
a(f"s_mul_i32 s18, s17, 1280\ns_add_u32 s18, s18, {HN}\nv_add_u32 v162, s18, v157\nv_add_u32 v163, s18, v158")
a("global_store_dwordx4 v162, v[126:129], s[40:41] sc1\nglobal_store_dword v163, v130, s[40:41] offset:1024 sc1")
a(f"v_add_u32 v162, {HH-HN}, v162\nv_add_u32 v163, {HH-HN}, v163")
a("global_store_dwordx4 v162, v[120:123], s[40:41] sc1\nglobal_store_dword v163, v124, s[40:41] offset:1024 sc1")
a(f"v_mov_b32 v165, s60\nv_mul_f32 v165, 0xbfb8aa3b, v165\nv_exp_f32 v165, v165\nv_mov_b32 v164, s47\nv_add_f32 v165, 1.0, v165\nv_rcp_f32 v165, v165\ns_lshl_b32 s18, s17, 6\ns_add_u32 s18, s18, {META}\nv_mov_b32 v162, s18")
a("v_cvt_pk_bf16_f32 v165, v165, v165\nv_and_b32 v165, 0xffff0000, v165\ns_mov_b64 exec, 1\nglobal_store_dwordx2 v162, v[164:165], s[40:41] sc1\ns_mov_b64 exec, -1\ns_mov_b32 s62, 1")
a("L_nosel:\ns_lshr_b32 s17, s16, 16\ns_cmp_ge_u32 s17, 7\ns_cbranch_scc1 L_rdone\ns_cmp_ge_u32 s61, 6\ns_cbranch_scc1 L_rdone")
a("s_add_u32 s61, s61, 2\ns_mov_b64 s[6:7], s[8:9]\ns_mov_b64 s[8:9], s[10:11]\ns_mov_b64 s[10:11], s[12:13]\nv_add_u32 v147, 4, v147\ns_branch L_round")
a("L_rdone:")
stamp()
a("s_cmp_lg_u32 s62, 0\ns_cbranch_scc1 L_noout")
for i in range(5):
    a(f"v_lshlrev_b32 v162, 16, v{126+i}\nv_and_b32 v163, 0xffff0000, v{126+i}\nv_pk_add_f32 v[162:163], v[162:163], v[{110+2*i}:{111+2*i}]\nv_cvt_pk_bf16_f32 v{104+i}, v162, v163")
    a(f"v_and_b32 v164, 0xffff, v{98+i}\nv_lshrrev_b32 v165, 16, v{98+i}\nv_add_u32 v164, s49, v164\nv_add_u32 v165, s49, v165")
    a(f"ds_write_b16 v164, v{104+i}\nds_write_b16_d16_hi v165, v{104+i}")
a("ds_read_b128 v[104:107], v160\nds_read_b32 v108, v161 offset:1024\nv_add_u32 v162, s48, v157\nv_add_u32 v163, s48, v158\ns_waitcnt lgkmcnt(0)")
a(f"global_store_dwordx4 v162, v[104:107], s[36:37] {OUTF}\nglobal_store_dword v163, v108, s[36:37] offset:1024 {OUTF}")
a("L_noout:")
a("s_cmp_eq_u32 s2, 0\ns_cbranch_scc0 L_noep\ns_cmp_eq_u32 s3, 0\ns_cbranch_scc0 L_noep")
a("s_load_dword s16, s[40:41], 0\nv_mov_b32 v162, 0\ns_waitcnt lgkmcnt(0)\ns_add_u32 s16, s16, 1\nv_mov_b32 v163, s16\ns_mov_b64 exec, 1\nglobal_store_dword v162, v163, s[40:41]\ns_mov_b64 exec, -1\nL_noep:")
a("s_cmp_lt_u32 s2, 160\ns_cbranch_scc1 L_fin\ns_cmp_ge_u32 s2, 216\ns_cbranch_scc1 L_p5\ns_cmp_ge_u32 s2, 214\ns_cbranch_scc1 L_fin")
a(f"s_mul_i32 s16, s3, 1280\ns_add_u32 s16, s16, {HN}\nv_add_u32 v162, s16, v157\nv_add_u32 v163, s16, v158")
a(f"s_mul_i32 s16, s3, {XSS}\nv_add_u32 v157, s16, v157\nv_add_u32 v158, s16, v158")
a(f"v_and_b32 v164, 7, v0\nv_mul_u32_u24 v165, {XSS}, v164\nv_lshl_add_u32 v165, v2, 4, v165\nv_bfe_u32 v166, v0, 3, 1\nv_lshl_add_u32 v165, v166, 6, v165")
a(f"s_lshl2_add_u32 s16, s50, s3\ns_lshl_b32 s16, s16, 7\ns_add_u32 s16, s16, {ACT}\nv_lshl_add_u32 v164, v164, 4, s16\nv_and_b32 v166, 1, v2\nv_lshl_add_u32 v164, v166, 3, v164\nv_lshrrev_b32 v166, 1, v2\nv_lshl_add_u32 v164, v166, 2, v164")
a("s_mov_b32 s18, 0x00ff00ff\ns_mov_b32 s19, 0x00ff00ff")
a("s_waitcnt vmcnt(0)")
if opt("pre4",0): a(f"s_sleep {opt('pre4',0)}")
poll(["global_load_dwordx4 v[152:155], v162, s[40:41] sc1","global_load_dword v156, v163, s[40:41] offset:1024 sc1"],range(152,157),opt("sl4",2),166)
stamp()
a(f"ds_write_b128 v157, v[152:155] offset:{L_XS}\nds_write_b32 v158, v156 offset:{L_XS+1024}\ns_waitcnt lgkmcnt(0)\ns_barrier\ns_cmp_ge_u32 s3, 4\ns_cbranch_scc1 L_fin")
for i in range(10): a(f"ds_read_b128 {vr(104+4*i)}, v165 offset:{L_XS+128*i}")
for i in range(10):
    lg(9-i)
    a(f"{MF} v[144:147], {vr(8+8*i)}, {vr(104+4*i)}, {'0' if i==0 else 'v[144:147]'}\n{MF} v[148:151], {vr(12+8*i)}, {vr(104+4*i)}, {'0' if i==0 else 'v[148:151]'}")
for i in range(4): a(f"v_add_f32_dpp v{144+i}, v{148+i}, v{144+i} row_ror:8 {DPPM}")
a("v_permlane32_swap_b32 v144, v146\nv_permlane32_swap_b32 v145, v147")
a("v_mul_f32 v148, 0xbfb8aa3b, v144\nv_mul_f32 v149, 0xbfb8aa3b, v145\nv_exp_f32 v148, v148\nv_exp_f32 v149, v149\nv_mul_f32 v144, v144, v146\nv_mul_f32 v145, v145, v147")
a("v_add_f32 v148, 1.0, v148\nv_add_f32 v149, 1.0, v149\nv_rcp_f32 v148, v148\nv_rcp_f32 v149, v149\nv_mul_f32 v144, v144, v148\nv_mul_f32 v145, v145, v149\nv_cvt_pk_bf16_f32 v144, v144, v145")
a("s_mov_b64 exec, s[18:19]\nglobal_store_dword v164, v144, s[40:41] sc1\ns_mov_b64 exec, -1")
stamp()
a("s_branch L_fin")
a("L_p5:")
a(f"v_and_b32 v164, 7, v0\nv_bfe_u32 v165, v0, 3, 1\nv_lshlrev_b32 v162, 4, v164\nv_lshl_add_u32 v162, v2, 7, v162\nv_lshl_add_u32 v162, v165, 9, v162\ns_lshl_b32 s16, s3, 10\ns_add_u32 s16, s16, {ACT}\nv_add_u32 v162, s16, v162")
a("v_add_u32 v163, 0x2000, v162\nv_add_u32 v166, 0x4000, v162\nv_add_u32 v167, 0x6000, v162\ns_cmp_ge_u32 s3, 3\ns_cbranch_scc0 L_p5a\nv_mov_b32 v167, v162")
for i in range(8): a(f"v_mov_b32 v{32+i}, 0")
a("L_p5a:\ns_lshl_b32 s16, s3, 10\nv_add_u32 v157, s16, v157")
a("s_cmp_lg_u32 s3, 0\ns_cbranch_scc1 L_p5b")
a(f"v_lshlrev_b32 v104, 6, v164\nv_add_u32 v104, {META}, v104\nv_mul_u32_u24 v105, 1280, v164\nv_add_u32 v105, {HN}, v105")
a("v_and_b32 v106, 0xffff, v134\nv_lshrrev_b32 v107, 16, v134\nv_and_b32 v108, 0xffff, v135\nv_lshrrev_b32 v109, 16, v135")
for i in range(4): a(f"v_add_u32 v{106+i}, v{106+i}, v105\nv_add_u32 v{110+i}, {HH-HN}, v{106+i}")
poll(["global_load_dwordx2 v[60:61], v104, s[40:41] sc1"],range(60,62),8,114)
poll([f"global_load_ushort v{64+i}, v{106+i}, s[40:41] sc1" for i in range(8)],range(64,72),4,114,cmp16=True)
for i in range(8): a(f"v_lshlrev_b32 v{64+i}, 16, v{64+i}")
for i in range(4): a(f"v_add_f32 v{64+i}, v{64+i}, v{68+i}")
a("v_and_b32 v60, 2047, v60\nv_mul_u32_u24 v60, 1280, v60\nv_lshl_add_u32 v60, v2, 3, v60\nv_add_u32 v60, s51, v60")
a("v_lshl_add_u32 v62, v2, 4, v164\nv_lshlrev_b32 v62, 4, v62\nv_lshl_add_u32 v62, v165, 12, v62\ns_mov_b32 s18, 0x00ff00ff\ns_mov_b32 s19, 0x00ff00ff")
a("L_p5b:\ns_waitcnt vmcnt(0)")
if opt("probe5",1):
    a("s_mov_b64 exec, 1\nL_pb5:\nglobal_load_dword v40, v162, s[40:41] sc1\ns_waitcnt vmcnt(0)\nv_cmp_eq_u32 vcc, -1, v40\ns_cbranch_vccz L_pb5d")
    a(f"s_add_u32 s15, s15, 1\ns_cmp_lt_u32 s15, {LIMIT}\ns_cbranch_scc0 L_pb5d\ns_sleep {opt('slp5',2)}\ns_branch L_pb5\nL_pb5d:\ns_mov_b64 exec, -1")
if opt("pre5",0): a(f"s_sleep {opt('pre5',0)}")
poll(["global_load_dwordx4 v[40:43], v162, s[40:41] sc1","global_load_dwordx4 v[44:47], v163, s[40:41] sc1","global_load_dwordx4 v[48:51], v166, s[40:41] sc1","global_load_dwordx4 v[52:55], v167, s[40:41] sc1"],range(40,56),opt("sl5",2),114)
stamp(nst[0]-2)
for i in range(4):
    a(f"{MF} v[72:75], {vr(8+8*i)}, {vr(40+4*i)}, {'0' if i==0 else 'v[72:75]'}\n{MF} v[76:79], {vr(12+8*i)}, {vr(40+4*i)}, {'0' if i==0 else 'v[76:79]'}")
for i in range(4): a(f"v_add_f32_dpp v{72+i}, v{76+i}, v{72+i} row_ror:8 {DPPM}")
a(f"ds_write_b128 v157, v[72:75] offset:{L_XS}\ns_waitcnt lgkmcnt(0)\ns_barrier\ns_cmp_lg_u32 s3, 0\ns_cbranch_scc1 L_fin")
for i in range(4): a(f"ds_read_b128 {vr(72+4*i)}, v62 offset:{L_XS+1024*i}")
a("s_waitcnt lgkmcnt(0)")
a("v_pk_add_f32 v[72:73], v[72:73], v[76:77]\nv_pk_add_f32 v[74:75], v[74:75], v[78:79]\nv_pk_add_f32 v[80:81], v[80:81], v[84:85]\nv_pk_add_f32 v[82:83], v[82:83], v[86:87]\nv_pk_add_f32 v[72:73], v[72:73], v[80:81]\nv_pk_add_f32 v[74:75], v[74:75], v[82:83]")
for i in range(4): a(f"v_add_f32_dpp v{72+i}, v{72+i}, v{72+i} row_ror:8 {DPPM}")
for i in range(4): a(f"v_fma_f32 v{72+i}, v{72+i}, v61, v{64+i}")
a(f"v_cvt_pk_bf16_f32 v72, v72, v73\nv_cvt_pk_bf16_f32 v73, v74, v75\ns_mov_b64 exec, s[18:19]\nglobal_store_dwordx2 v60, v[72:73], s[36:37] {OUTF}\ns_mov_b64 exec, -1")
stamp(nst[0]-1)
a("L_fin:")
if STAMP:
    a("s_waitcnt vmcnt(0)")
    stamp()
    if "probe" in kw:
        k=int(kw["probe"])
        a(f"s_waitcnt lgkmcnt(0)\ns_cmp_eq_u32 s{64+2*k}, 0\ns_cbranch_scc1 L_end")
        a(f"s_add_u32 s16, s{64+2*k}, 4000\nL_spin:\ns_sleep 1\ns_memrealtime s[18:19]\ns_waitcnt lgkmcnt(0)\ns_sub_u32 s17, s18, s16\ns_cmp_lt_i32 s17, 0\ns_cbranch_scc1 L_spin\ns_endpgm")
    dump_stamps(nst[0])
a("L_end:\ns_endpgm")
body=a.finish()
small=np.zeros(2048,np.uint16)
small[0:640]=2*np.array(T.CT); small[640:1280]=2*np.array(T.INV); small[1280:1920]=T.t_w().reshape(-1)
tab=".p2align 7\n.type T_0,@object\nT_0:\n"+T.emit(small)+T.emit(T.t_r20())+T.emit(T.t_g())+T.emit(T.t_p2())+"T_end:\n"
txt=f"""; FNet (hidden DFT 20x32, sequence DFT 8x256 with real/Hermitian folding) + LayerNorm + top-8 SwiGLU, one persistent launch.
; @launch grid=(256,1,1) block=(576,1,1) lds={LDS_BYTES}
.amdgcn_target "amdgcn-amd-amdhsa--gfx950"
.text
.globl {KN}
.p2align 8
.type {KN},@function
{body}
{tab}.section .rodata,"a"
.p2align 6
.amdhsa_kernel {KN}
  .amdhsa_next_free_vgpr 168
  .amdhsa_next_free_sgpr 102
  .amdhsa_accum_offset 168
  .amdhsa_group_segment_fixed_size 0
  .amdhsa_kernarg_size 104
  .amdhsa_user_sgpr_count 2
  .amdhsa_user_sgpr_kernarg_segment_ptr 1
  .amdhsa_system_sgpr_workgroup_id_x 1
.end_amdhsa_kernel
"""
open(outp,"w").write(txt)
print("nops inserted",a.nops,"stamps",nst[0],"bytes",len(txt),file=sys.stderr)
```

```python
import numpy as np
def bfbits(x):
    x=np.ascontiguousarray(x,dtype=np.float32); u=x.view(np.uint32)
    return (((u+0x7FFF+((u>>16)&1))>>16)&0xFFFF).astype(np.uint16)
def cosr(num,den):
    v=np.cos(2*np.pi*(np.asarray(num)%den)/den); v[np.abs(v)<1e-12]=0; return v
def sinr(num,den):
    v=np.sin(2*np.pi*(np.asarray(num)%den)/den); v[np.abs(v)<1e-12]=0; return v
def ecol(u,pos):
    if u>=1: return u+20*pos
    g,tau,i=pos>>3,(pos>>2)&1,pos&3
    n=4*g+i
    return 20*(n+1) if tau==0 else 10+20*n
colp=[0]*640
for p in range(320):
    e_=ecol(p>>5,p&31); colp[p]=e_; colp[320+p]=(640-e_) if e_!=320 else 0
def p_of_q(q):
    if q>=512: return q
    l,e8=q>>3,q&7
    return 4*l+e8 if e8<4 else 256+4*l+e8-4
CT=[colp[p_of_q(q)] for q in range(640)]
INV=[0]*640
for q,c in enumerate(CT): INV[c]=q
lane=np.arange(64); g=lane>>4; n=lane&15; jj=np.arange(8)
def t_r20():
    T=np.zeros((2,64,8))
    for half in range(2):
        for l in range(64):
            gp,r=(l&15)>>2,l&3; o=3*gp+r
            for i in range(5):
                d1=4*i+(l>>4)
                if r==3: v=1.0
                elif o>=10: v=0.0
                else:
                    u=5*half+(o>>1); c=o&1
                    if u==0: v=1.0 if c==0 else (-1.0)**d1
                    else: v=float(cosr([d1*u],20)[0]) if c==0 else -float(sinr([d1*u],20)[0])
                T[half,l,i]=v
    return bfbits(T)
def t_g():
    T=np.zeros((10,6,64,8))
    d2=(8*g)[:,None]+jj[None,:]
    for u in range(10):
        for tau in range(2):
            e=np.array([ecol(u,8*(x>>2)+4*tau+(x&3)) for x in n])[:,None]
            T[u,2*tau]=cosr(d2*e,640); T[u,2*tau+1]=-sinr(d2*e,640); T[u,4+tau]=sinr(d2*e,640)
    return bfbits(T)
def t_p2():
    T=np.zeros((8,8,64,8))
    for tt in range(8):
        row=(8*(16*tt+n)+4)[:,None]
        for k in range(4):
            j=(32*k+8*g)[:,None]+jj[None,:]
            T[tt,k]=cosr(row*j,2048)
            j2=np.where(j==0,128,j)
            T[tt,4+k]=-sinr(row*j2,2048)
    return bfbits(T)
def t_w():
    T=np.zeros((16,40),np.uint16)
    for gg in range(4):
        for r in range(4):
            for k in range(20):
                for h in range(2): T[4*gg+r,2*k+h]=64*CT[32*k+8*gg+r+4*h]
    return T
def emit(arr):
    u=np.ascontiguousarray(arr,dtype=np.uint16).reshape(-1).view(np.uint32)
    return "".join(".long "+",".join("0x%x"%v for v in u[i:i+16])+"\n" for i in range(0,len(u),16))
INVP=[0]*640
for p,c in enumerate(colp): INVP[c]=p
def t_r20b():
    T=np.zeros((2,64,8))
    for tile in range(2):
        for l in range(64):
            gp,r=(l&15)>>2,l&3
            k=r if tile==0 else 3+r
            for i in range(5):
                d1=4*i+(l>>4)
                if tile==0 and r==3: v=1.0
                elif k>=5: v=0.0
                else:
                    o=5*gp+k; u=o>>1; c=o&1
                    if u==0: v=1.0 if c==0 else (-1.0)**d1
                    else: v=float(cosr([d1*u],20)[0]) if c==0 else -float(sinr([d1*u],20)[0])
                T[tile,l,i]=v
    return bfbits(T)
def t_pm():
    T=np.zeros((32,24),np.uint16)
    for gg in range(4):
        for q in range(8):
            for i in range(5):
                for low in range(4): T[8*gg+q,4*i+low]=2*INVP[32*(4*i+gg)+4*q+low]
    return T
def t_w3():
    T=np.zeros((16,40),np.uint16)
    for gg in range(4):
        for r in range(4):
            for k in range(20):
                for h in range(2): T[4*gg+r,2*k+h]=64*colp[32*k+8*gg+r+4*h]
    return T
```

```python
import sys, struct
sys.path.insert(0,"gen")
from asmlib import Asm
import tables as T
import numpy as np
KN="sequential_preLN__spectral_fnet__moe_arch_mod__prompt_kernel"
kw=dict(a.split("=") for a in sys.argv[2:])
outp=sys.argv[1]
STAMP=int(kw.get("stamp",0))
def opt(n,d): return int(kw.get(n,d))
def fhex(f): return hex(struct.unpack("<I",struct.pack("<f",f))[0])
WS_FLAGS=0x1000; WS_SMALL=0x10000; KEYS=0x10000; HN=0x12000; BASE=0x15000; META=0x17800; ACT=0x18000
WS_I=0x20000; WS_Y=0x160000; WS_STAMP=0x300000
TO_PM=0; TO_W=1536; TO_R20=3072; TO_P2=5120
L_ZERO=20480; L_SUM=21504; L_SQ=21568; L_ST3=21632; L_CNT=21952; L_SM=22528; L_WP=24576; L_XP=26624; L_P2=0
L_XS=81920; XSS=1296; LDS_BYTES=L_XS+10368
LIMIT=3000
OUTF=kw.get("outf","").replace("+"," ")
a=Asm()
NST=18
def stamp(k):
    if STAMP: a(f"s_memrealtime s[{64+2*k}:{65+2*k}]")
def lg(n): a(f"s_waitcnt lgkmcnt({0 if STAMP else n})")
pc=[0]
def poll(loads, regs, sleep, tmp, ex="-1", between=None):
    k=pc[0]; pc[0]+=1
    if between:
        for l in loads: a(l)
        between()
        a(f"s_branch LW{k}")
    a(f"LP{k}:")
    for l in loads: a(l)
    if between: a(f"LW{k}:")
    a("s_waitcnt vmcnt(0)")
    r=list(regs)
    if len(r)==1: tmp=r[0]; r=[]
    elif len(r)%2==1: a(f"v_max3_u32 v{tmp}, v{r[0]}, v{r[1]}, v{r[2]}"); r=r[3:]
    else: a(f"v_max_u32 v{tmp}, v{r[0]}, v{r[1]}"); r=r[2:]
    while r: a(f"v_max3_u32 v{tmp}, v{tmp}, v{r[0]}, v{r[1]}"); r=r[2:]
    a(f"v_cmp_eq_u32 vcc, -1, v{tmp}")
    a(f"s_cbranch_vccz LD{k}")
    a(f"s_add_u32 s15, s15, 1\ns_cmp_lt_u32 s15, {LIMIT}\ns_cbranch_scc0 LD{k}\ns_mov_b64 exec, vcc")
    if sleep: a(f"s_sleep {sleep}")
    a(f"s_branch LP{k}\nLD{k}:\ns_mov_b64 exec, {ex}")
def probe(load, reg, sleep):
    a("s_mov_b64 exec, 1")
    poll([load],[reg],sleep,reg)
DPPM="row_mask:0xf bank_mask:0xf"
MF="v_mfma_f32_16x16x32_bf16"
SD="dst_sel:DWORD dst_unused:UNUSED_PAD src0_sel:WORD_{} src1_sel:DWORD"
def vr(b,n=4): return f"v[{b}:{b+n-1}]"
def load_pm():
    a("v_and_b32 v154, 7, v0\nv_lshl_add_u32 v154, v2, 3, v154\nv_mul_u32_u24 v154, 48, v154")
    a(f"global_load_dwordx4 v[144:147], v154, s[42:43] offset:{TO_PM}\nglobal_load_dwordx4 v[148:151], v154, s[42:43] offset:{TO_PM+16}\nglobal_load_dwordx2 v[152:153], v154, s[42:43] offset:{TO_PM+32}")
def scatter(base):
    for i in range(10):
        t=4+2*(i&1)
        a(f"v_add_u32_sdwa v{t}, v{144+i}, v{base} {SD.format(0)}\nv_add_u32_sdwa v{t+1}, v{144+i}, v{base} {SD.format(1)}")
        a(f"ds_write_b16 v{t}, v{8+i}\nds_write_b16_d16_hi v{t+1}, v{8+i}")
def load_p2tab():
    a(f"s_lshr_b32 s49, s3, 1\ns_lshl2_add_u32 s49, s5, s49\ns_lshl_b32 s49, s49, 13\ns_add_u32 s49, s49, {TO_P2+4096}\nv_add_u32 v155, s49, v157")
    for k in range(8): a(f"global_load_dwordx4 {vr(112+4*k)}, v155, s[42:43] offset:{1024*k-4096}")

a(f"{KN}:")
stamp(0)
if STAMP:
    for k in range(1,NST): a(f"s_mov_b32 s{64+2*k}, 0")
a("s_load_dwordx2 s[16:17], s[0:1], 0\ns_load_dwordx2 s[40:41], s[0:1], 96\ns_load_dwordx4 s[28:31], s[0:1], 48\ns_load_dwordx8 s[32:39], s[0:1], 64")
a("s_cmp_ge_u32 s2, 256\ns_cbranch_scc1 L_end")
a("v_lshrrev_b32 v4, 6, v0\nv_and_b32 v1, 63, v0\nv_readfirstlane_b32 s3, v4\nv_lshrrev_b32 v2, 4, v1\nv_and_b32 v3, 15, v0\nv_lshlrev_b32 v157, 4, v1")
a("s_getpc_b64 s[42:43]\nL_pc:\ns_bfe_u32 s5, s2, 0x10003\ns_mov_b32 s15, 0")
a("s_cmp_ge_u32 s2, 128\ns_cbranch_scc1 L_bf")
a("s_add_u32 s42, s42, T_0-L_pc\ns_addc_u32 s43, s43, 0")
a("s_mov_b32 s44, s3\ns_sub_u32 s45, 15, s3\ns_lshl_b32 s46, s3, 8\ns_add_u32 s46, s46, s2\ns_lshl_b32 s48, s3, 1\ns_mov_b32 s50, 1\ns_cmp_lg_u32 s2, 0\ns_cbranch_scc1 L_rows")
a("s_add_u32 s44, s3, 8\ns_add_u32 s46, s46, 128\ns_cmp_lt_u32 s3, 4\ns_cbranch_scc1 L_rows")
a("s_sub_u32 s44, s3, 3\ns_sub_u32 s45, 11, s3\ns_lshl_b32 s46, s44, 8\ns_cmp_lt_u32 s3, 7\ns_cbranch_scc1 L_rows")
a("s_mov_b32 s44, 0\ns_mov_b32 s50, 0\ns_min_u32 s48, s48, 15\ns_movk_i32 s47, 1024\ns_cmp_eq_u32 s3, 7\ns_cselect_b32 s46, 0, s47\ns_branch L_rows2")
a("L_rows:\ns_sub_u32 s47, 2048, s46\nL_rows2:")
a("s_mul_i32 s8, s46, 1280\ns_mul_i32 s9, s47, 1280\nv_mov_b32 v4, s8\nv_mov_b32 v5, s9\nv_cmp_lt_u32 vcc, 7, v3\nv_and_b32 v6, 7, v0\nv_lshlrev_b32 v159, 3, v6\nv_lshl_add_u32 v159, v2, 6, v159\nv_cndmask_b32 v158, v4, v5, vcc\nv_add_u32 v158, v158, v159")
a("s_cmp_ge_u32 s3, 8\ns_cbranch_scc1 L_a89")
a(f"global_load_dwordx4 v[36:39], v157, s[42:43] offset:{TO_R20}\nv_add_u32 v7, 1024, v157\nglobal_load_dwordx4 v[40:43], v7, s[42:43] offset:{TO_R20}")
a("s_waitcnt lgkmcnt(0)")
for i in range(5): a(f"global_load_dwordx2 v[{8+2*i}:{9+2*i}], v158, s[16:17] offset:{256*i}")
stamp(1)
a("v_mov_b32 v4, s44\nv_mov_b32 v5, s45\nv_cndmask_b32 v161, v4, v5, vcc\nv_mul_u32_u24 v160, 5120, v2\nv_lshl_add_u32 v160, v6, 3, v160\nv_lshl_add_u32 v160, v161, 6, v160\nv_lshlrev_b32 v161, 2, v161")
a("v_mov_b32 v23, 0\nv_mov_b32 v27, 0\nv_mov_b32 v31, 0\nv_mov_b32 v35, 0\nv_mov_b32 v18, 0\nv_mov_b32 v19, 0\ns_mov_b32 s52, 0x05040100\ns_mov_b32 s53, 0x07060302\ns_mov_b32 s54, 0x01010101\ns_mov_b32 s55, 0x01010101")
a(f"ds_write_b32 v161, v23 offset:{L_SQ}\nds_write_b32 v161, v23 offset:{L_CNT}")
a(f"v_mov_b32 v162, {fhex(-1/32)}\nv_cmp_eq_u32 vcc, 0, v2\nv_cndmask_b32 v162, 0, v162, vcc")
a("s_branch L_gtrig")
a("L_a89:\ns_cmp_eq_u32 s3, 9\ns_cbranch_scc1 L_a9")
a(f"s_lshl_b32 s7, s2, 7\ns_add_u32 s7, s7, {WS_I}\nv_lshrrev_b32 v5, 3, v1\nv_mul_u32_u24 v5, 0x28000, v5\nv_lshl_add_u32 v5, v6, 4, v5\nv_add_u32 v5, s7, v5")
a("v_mov_b32 v12, -1\nv_mov_b32 v13, -1\nv_mov_b32 v14, -1\nv_mov_b32 v15, -1\ns_waitcnt lgkmcnt(0)\ns_load_dword s6, s[40:41], 0")
for i in range(10):
    a("global_store_dwordx4 v5, v[12:15], s[40:41] sc1")
    if i<9: a("v_add_u32 v5, 0x4000, v5")
stamp(1)
a("s_branch L_gtrig")
a("L_a9:\ns_waitcnt lgkmcnt(0)\ns_load_dword s6, s[40:41], 0")
for i in range(5): a(f"global_load_dwordx2 v[{8+2*i}:{9+2*i}], v159, s[28:29] offset:{256*i}")
a("s_sub_u32 s7, 256, s2\ns_cmp_eq_u32 s2, 0\ns_cselect_b32 s7, 128, s7")
a("v_lshrrev_b32 v20, 1, v3\nv_and_b32 v21, 1, v0\nv_lshrrev_b32 v22, 1, v2\nv_and_b32 v23, 1, v2")
a("v_mov_b32 v24, s7\nv_mov_b32 v25, s2\nv_cmp_eq_u32 vcc, 1, v22\nv_cndmask_b32 v24, v25, v24, vcc\nv_lshl_add_u32 v24, v23, 10, v24")
a("v_subrev_u32 v25, 4, v20\nv_mul_i32_i24 v24, v24, v25\nv_lshl_add_u32 v24, v21, 9, v24")
a("v_cmp_gt_u32 vcc, v22, v21\ns_cmp_lg_u32 s2, 0\ns_cselect_b32 s49, 1024, 0\nv_mov_b32 v25, s49\nv_cndmask_b32 v25, 0, v25, vcc\nv_add_u32 v24, v24, v25\nv_and_b32 v24, 2047, v24")
a(f"v_cvt_f32_u32 v24, v24\nv_cvt_f32_u32 v25, v20\nv_mul_f32 v24, {fhex(1/2048)}, v24\nv_mul_f32 v25, {fhex(0.125)}, v25")
a("v_cmp_eq_u32 vcc, v22, v21\ns_cselect_b64 s[52:53], -1, 0\ns_or_b64 vcc, vcc, s[52:53]")
for i in range(4):
    a(f"v_cos_f32 v{56+i}, v24\nv_sin_f32 v{60+i}, v24")
    if i<3: a("v_add_f32 v24, v24, v25")
for i in range(8): a(f"v_cndmask_b32 v{56+i}, 0, v{56+i}, vcc")
a(f"v_mov_b32 v20, 0\nv_mov_b32 v21, 0\nv_mov_b32 v22, 0\nv_mov_b32 v23, 0\nds_write_b128 v157, v[56:59] offset:{L_SM}\nds_write_b128 v157, v[60:63] offset:{L_SM+1024}\nds_write_b128 v157, v[20:23] offset:{L_ZERO}")
a("L_gtrig:")
a("s_add_u32 s12, s3, 80\ns_cmp_eq_u32 s3, 0\ns_cselect_b32 s13, 4, 8\ns_cselect_b32 s14, 20, s3\ns_cselect_b32 s12, 10, s12")
a("v_lshrrev_b32 v44, 2, v3\nv_and_b32 v45, 3, v0\nv_mad_u32_u24 v44, v44, s13, v45\nv_mul_u32_u24 v44, 20, v44\nv_add_u32 v45, s12, v44\nv_add_u32 v44, s14, v44\nv_lshlrev_b32 v46, 3, v2")
a(f"v_cvt_f32_u32 v44, v44\nv_cvt_f32_u32 v45, v45\nv_cvt_f32_u32 v46, v46\nv_mul_f32 v44, {fhex(1/640)}, v44\nv_mul_f32 v45, {fhex(1/640)}, v45\nv_mul_f32 v47, v46, v45\nv_mul_f32 v46, v46, v44")
for tau in range(2):
    for h in range(4):
        a(f"v_cos_f32 v48, v{46+tau}\nv_sin_f32 v50, v{46+tau}\nv_add_f32 v{46+tau}, v{46+tau}, v{44+tau}\nv_cos_f32 v49, v{46+tau}\nv_sin_f32 v51, v{46+tau}")
        a(f"v_add_f32 v{46+tau}, v{46+tau}, v{44+tau}\nv_cvt_pk_bf16_f32 v{88+8*tau+h}, v48, v49\nv_cvt_pk_bf16_f32 v{104+4*tau+h}, v50, v51\nv_xor_b32 v{92+8*tau+h}, 0x80008000, v{104+4*tau+h}")
    if tau==0:
        load_pm()
a(f"s_lshl_b32 s49, s3, 11\ns_add_u32 s56, s49, 1024\ns_cmp_eq_u32 s3, 0\ns_cselect_b32 s57, 1024, s49\ns_cselect_b32 s56, {L_ZERO}, s56")
a("v_lshlrev_b32 v166, 4, v2\nv_lshl_add_u32 v163, v3, 6, v166\nv_add_u32 v164, s56, v163\nv_add_u32 v165, s57, v163\nv_add_u32 v163, s49, v163")
a(f"s_lshl_b32 s49, s3, 7\ns_add_u32 s49, s49, s2\ns_lshl_b32 s49, s49, 7\ns_add_u32 s49, s49, {WS_I}")
a("v_lshrrev_b32 v4, 1, v3\nv_and_b32 v5, 1, v0\nv_mul_u32_u24 v167, 0x28000, v4\nv_lshl_add_u32 v167, v5, 6, v167\nv_add3_u32 v167, v167, v166, s49")
a(f"s_mov_b32 s60, {fhex(1/640)}\ns_mov_b32 s61, {fhex(1/640)}\nv_mov_b32 v86, {fhex(1e-5)}\nv_mov_b32 v87, {fhex(1e-5)}")
a("s_cmp_lt_u32 s3, 8\ns_cbranch_scc1 L_part1\ns_cmp_eq_u32 s3, 9\ns_cbranch_scc1 L_a9b")
a(f"s_lshl_b32 s7, s2, 4\ns_add_u32 s7, s7, {WS_FLAGS}\nv_mov_b32 v5, s7\ns_waitcnt vmcnt(3) lgkmcnt(0)\ns_add_u32 s6, s6, 1\nv_mov_b32 v7, s6\ns_mov_b64 exec, 1\nglobal_store_dword v5, v7, s[40:41] sc1\ns_mov_b64 exec, -1")
stamp(2)
a("s_branch L_b1")
a(f"L_a9b:\nv_mov_b32 v18, {L_WP}\ns_waitcnt vmcnt(0)")
scatter(18)
a("s_branch L_b1")
a("L_part1:")
load_p2tab()
stamp(2)
a("s_waitcnt vmcnt(11)")
stamp(3)
for low in range(4):
    c=low>>1; sel="s53" if low&1 else "s52"; o=20+4*low
    a(f"v_perm_b32 v{o}, v{10+c}, v{8+c}, {sel}\nv_perm_b32 v{o+1}, v{14+c}, v{12+c}, {sel}\nv_perm_b32 v{o+2}, v23, v{16+c}, {sel}")
    if low>0: a(f"{MF} {vr(44+4*(low-1))}, v[36:39], {vr(20+4*(low-1))}, 0")
a("v_dot2c_f32_bf16 v18, v8, v8\nv_dot2c_f32_bf16 v19, v9, v9")
a(f"{MF} {vr(56)}, v[36:39], {vr(32)}, 0")
for i in range(1,5):
    a(f"v_dot2c_f32_bf16 v18, v{8+2*i}, v{8+2*i}\nv_dot2c_f32_bf16 v19, v{9+2*i}, v{9+2*i}")
    a(f"{MF} {vr(60+4*(i-1))}, v[40:43], {vr(20+4*(i-1))}, 0")
a("v_add_f32 v4, v47, v51\nv_add_f32 v5, v55, v59\nv_add_f32 v4, v4, v5\nv_add_f32 v18, v18, v19")
for m,r in (("quad_perm:[1,0,3,2]",1),("quad_perm:[2,3,0,1]",2),("row_half_mirror",0)):
    if r: a(f"v_cvt_pk_bf16_f32 v{76+2*r}, v{44+r}, v{48+r}")
    else: a("v_cvt_pk_bf16_f32 v82, v60, v64")
    a(f"v_add_f32_dpp v4, v4, v4 {m} {DPPM}\nv_add_f32_dpp v18, v18, v18 {m} {DPPM}")
    if r: a(f"v_cvt_pk_bf16_f32 v{77+2*r}, v{52+r}, v{56+r}\nds_write_b64 v160, v[{76+2*r}:{77+2*r}] offset:{1024*r}")
a("v_cvt_pk_bf16_f32 v83, v68, v72\nds_write_b64 v160, v[82:83] offset:3072\nv_cvt_pk_bf16_f32 v84, v61, v65\nv_cvt_pk_bf16_f32 v85, v69, v73\nds_write_b64 v160, v[84:85] offset:4096")
for low in range(4): a(f"v_fmac_f32 v{44+4*low}, v4, v162")
a("v_cvt_pk_bf16_f32 v76, v44, v48\nv_cvt_pk_bf16_f32 v77, v52, v56\nds_write_b64 v160, v[76:77]")
a(f"s_mov_b64 exec, s[54:55]\nds_add_f32 v161, v18 offset:{L_SQ}\nds_write_b32 v161, v4 offset:{L_SUM}\ns_mov_b64 exec, -1")
a("L_b1:\ns_waitcnt lgkmcnt(0)\ns_barrier")
stamp(4)
a(f"ds_read_b128 v[20:23], v163\nds_read_b128 v[24:27], v165\nds_read_b128 v[28:31], v164\nds_read_b128 v[32:35], v166 offset:{L_SUM}\nds_read_b128 v[36:39], v166 offset:{L_SQ}\nds_read_b128 v[60:63], v157 offset:{L_SM}\nds_read_b128 v[64:67], v157 offset:{L_SM+1024}")
lg(6)
a(f"{MF} v[44:47], v[20:23], v[88:91], 0\n{MF} v[48:51], v[20:23], v[92:95], 0")
lg(5)
a(f"{MF} v[52:55], v[24:27], v[96:99], 0\n{MF} v[56:59], v[24:27], v[100:103], 0")
lg(4)
a(f"{MF} v[44:47], v[28:31], v[104:107], v[44:47]\n{MF} v[48:51], v[28:31], v[88:91], v[48:51]")
lg(2)
a("v_pk_mul_f32 v[32:33], v[32:33], s[60:61]\nv_pk_mul_f32 v[34:35], v[34:35], s[60:61]")
a(f"{MF} v[52:55], v[28:31], v[108:111], v[52:55]")
a("v_pk_fma_f32 v[36:37], v[36:37], s[60:61], v[86:87]\nv_pk_fma_f32 v[38:39], v[38:39], s[60:61], v[86:87]")
a(f"{MF} v[56:59], v[28:31], v[96:99], v[56:59]")
a("v_pk_fma_f32 v[36:37], v[32:33], v[32:33], v[36:37] neg_lo:[1,0,0] neg_hi:[1,0,0]\nv_pk_fma_f32 v[38:39], v[34:35], v[34:35], v[38:39] neg_lo:[1,0,0] neg_hi:[1,0,0]")
for i in range(4): a(f"v_max_f32 v{36+i}, v{36+i}, v86")
for i in range(4): a(f"v_rsq_f32 v{36+i}, v{36+i}")
a("v_cvt_pk_bf16_f32 v20, v44, v45\nv_cvt_pk_bf16_f32 v21, v46, v47\nv_cvt_pk_bf16_f32 v22, v48, v49\nv_cvt_pk_bf16_f32 v23, v50, v51")
lg(0)
a("v_pk_mul_f32 v[60:61], v[60:61], v[36:37]\nv_pk_mul_f32 v[62:63], v[62:63], v[38:39]\nv_pk_mul_f32 v[64:65], v[64:65], v[36:37]\nv_pk_mul_f32 v[66:67], v[66:67], v[38:39]")
a("v_cvt_pk_bf16_f32 v32, v60, v61\nv_cvt_pk_bf16_f32 v33, v62, v63\nv_cvt_pk_bf16_f32 v34, v64, v65\nv_cvt_pk_bf16_f32 v35, v66, v67")
a("v_cvt_pk_bf16_f32 v24, v52, v53\nv_cvt_pk_bf16_f32 v25, v54, v55")
a(f"{MF} v[44:47], v[20:23], v[32:35], 0")
a("v_cvt_pk_bf16_f32 v26, v56, v57\nv_cvt_pk_bf16_f32 v27, v58, v59")
a(f"{MF} v[48:51], v[24:27], v[32:35], 0")
a("v_cvt_pk_bf16_f32 v20, v44, v45\nv_cvt_pk_bf16_f32 v21, v46, v47\nv_cvt_pk_bf16_f32 v22, v48, v49\nv_cvt_pk_bf16_f32 v23, v50, v51")
a("global_store_dwordx4 v167, v[20:23], s[40:41] sc1")
stamp(5)
a(f"s_mul_i32 s51, s48, 1280\ns_add_u32 s51, s51, {L_XP}\nv_lshrrev_b32 v156, 3, v3\nv_mul_u32_u24 v156, 1280, v156\nv_add_u32 v156, s51, v156")
a("s_cmp_lt_u32 s3, 8\ns_cbranch_scc1 L_scat\ns_cmp_eq_u32 s3, 9\ns_cbranch_scc1 L_flagchk\ns_cmp_lg_u32 s2, 0\ns_cbranch_scc1 L_fin\ns_waitcnt vmcnt(0)\ns_barrier\ns_branch L_prep")
a("L_flagchk:")
a(f"v_add_u32 v4, {WS_FLAGS}, v157\ns_waitcnt lgkmcnt(0)\ns_add_u32 s6, s6, 1")
a("L_fl:")
for i in range(4): a(f"global_load_dword v{8+i}, v4, s[40:41] offset:{1024*i} sc1")
a("s_waitcnt vmcnt(0)")
a("v_xor_b32 v8, s6, v8\nv_xor_b32 v9, s6, v9\nv_xor_b32 v10, s6, v10\nv_xor_b32 v11, s6, v11\nv_or3_b32 v8, v8, v9, v10\nv_or_b32 v8, v8, v11\nv_cmp_ne_u32 vcc, 0, v8\ns_cbranch_vccz L_fld")
a(f"s_add_u32 s15, s15, 1\ns_cmp_lt_u32 s15, {LIMIT}\ns_cbranch_scc0 L_fld\ns_sleep {opt('slf',8)}\ns_branch L_fl\nL_fld:")
stamp(6)
a("s_barrier\ns_branch L_fin")
a("L_scat:\ns_waitcnt vmcnt(9)")
scatter(156)
a("L_prep:")
a("v_lshlrev_b32 v160, 3, v1\nv_add_u32 v161, 512, v160\nv_lshlrev_b32 v162, 2, v1\nv_add_u32 v165, 384, v162\nv_add_u32 v162, 1024, v162\nv_add_u32 v163, 640, v160")
a("v_add_u32 v164, 1152, v160\nv_subrev_u32 v4, 128, v160\nv_cmp_eq_u32 vcc, 0, v2\nv_cndmask_b32 v164, v4, v164, vcc")
a(f"ds_read_b64 v[98:99], v160 offset:{L_WP}\nds_read_b64 v[100:101], v161 offset:{L_WP}\nds_read_b32 v102, v162 offset:{L_WP}\nds_read_b64 v[104:105], v163 offset:{L_WP}\nds_read_b64 v[106:107], v164 offset:{L_WP}\nds_read_b32 v103, v165 offset:{L_WP}")
a("v_add_u32 v4, s51, v160\nv_add_u32 v5, s51, v162\nv_add_u32 v6, s51, v164\nv_add_u32 v7, s51, v165")
a("ds_read_b64 v[88:89], v4\nds_read_b64 v[90:91], v4 offset:512\nds_read_b32 v92, v5\nds_read_b64 v[94:95], v4 offset:1920\nds_read_b64 v[96:97], v6 offset:1280\nds_read_b32 v93, v7 offset:1280")
def yoff(dst,t):
    a(f"s_and_b32 s62, {t}, 7\ns_lshr_b32 {dst}, {t}, 3\ns_sub_u32 s59, 255, {dst}\ns_cmp_ge_u32 {dst}, 128\ns_cselect_b32 {dst}, s59, {dst}\ns_cselect_b32 s59, 8, 0")
    a(f"s_lshl_b32 s62, s62, 7\ns_add_u32 {dst}, {dst}, s62\ns_mulk_i32 {dst}, 1280\ns_add_u32 {dst}, {dst}, s59\ns_add_u32 {dst}, {dst}, {WS_Y}")
yoff("s56","s46")
a("s_sub_u32 s58, 2048, s46\ns_and_b32 s58, s58, 2047")
yoff("s57","s58")
a("v_add_u32 v108, s56, v157\ns_add_u32 s62, s56, 1024\ns_sub_u32 s59, s57, 256\nv_mov_b32 v109, s59\nv_mov_b32 v110, s62\nv_cndmask_b32 v109, v109, v110, vcc\nv_add_u32 v109, v109, v157")
a("v_lshrrev_b32 v110, 1, v1\nv_lshlrev_b32 v110, 4, v110\nv_and_b32 v111, 1, v0\nv_lshl_add_u32 v110, v111, 2, v110\ns_add_u32 s62, s57, 768\nv_add_u32 v110, s62, v110")
a("v_mov_b32 v154, 0xffff\nv_cmp_eq_u32 vcc, 22, v1\nv_cndmask_b32 v111, -1, v154, vcc\nv_cmp_eq_u32 vcc, 6, v1\nv_cndmask_b32 v154, -1, v154, vcc")
a("s_mov_b32 s63, 0x3f803f80")
for i in range(76,88): a(f"v_mov_b32 v{i}, 0")
a("s_lshl_b32 s57, s48, 4\nv_lshl_add_u32 v166, v2, 2, s57\ns_add_u32 s57, s57, 16\ns_cmp_eq_u32 s50, 0\ns_cselect_b32 s57, 272, s57\nv_lshl_add_u32 v167, v2, 2, s57")
a("s_waitcnt lgkmcnt(0)")
XA=[88,89,90,91,92]; XB=[94,95,96,97,93]; WA=[98,99,100,101,102]; WB=[104,105,106,107,103]
for i in range(5):
    a(f"v_dot2c_f32_bf16 v76, s63, v{XA[i]}\nv_dot2c_f32_bf16 v77, v{XA[i]}, v{WA[i]}\nv_dot2c_f32_bf16 v78, v{XA[i]}, v{XA[i]}\nv_dot2c_f32_bf16 v79, s63, v{WA[i]}")
    a(f"v_dot2c_f32_bf16 v80, s63, v{XB[i]}\nv_dot2c_f32_bf16 v81, v{XB[i]}, v{WB[i]}\nv_dot2c_f32_bf16 v82, v{XB[i]}, v{XB[i]}")
a("v_mov_b32 v83, v79")
a("s_cmp_lt_u32 s3, 8\ns_cbranch_scc1 L_p2addr\ns_barrier\ns_branch L_p3")
a("L_bf:\ns_sub_u32 s4, s2, 128\ns_cmp_lg_u32 s3, 9\ns_cbranch_scc1 L_bf1")
a("s_lshr_b32 s8, s4, 3\ns_mulk_i32 s8, 5120\nv_lshl_add_u32 v4, v1, 7, s8\nv_min_u32 v4, T_end-L_pc-4, v4\nglobal_load_dword v8, v4, s[42:43]")
a("L_bf1:\ns_add_u32 s42, s42, T_0-L_pc\ns_addc_u32 s43, s43, 0")
a(f"s_mul_i32 s7, s4, 10\ns_add_u32 s7, s7, s3\ns_lshl_b32 s7, s7, 10\ns_add_u32 s7, s7, {WS_Y}\nv_add_u32 v6, s7, v157\ns_lshl_b32 s7, s4, 9\ns_add_u32 s7, s7, {WS_SMALL}\nv_lshl_add_u32 v7, v1, 3, s7")
a("v_mov_b32 v12, -1\nv_mov_b32 v13, -1\nv_mov_b32 v14, -1\nv_mov_b32 v15, -1\ns_waitcnt lgkmcnt(0)\ns_load_dword s6, s[40:41], 0")
a("global_store_dwordx4 v6, v[12:15], s[40:41] sc1\ns_cmp_lg_u32 s3, 8\ns_cbranch_scc1 L_bf2\nglobal_store_dwordx2 v7, v[12:13], s[40:41] sc1\nL_bf2:")
stamp(1)
a("s_waitcnt vmcnt(0) lgkmcnt(0)\ns_barrier")
stamp(2)
a("s_cmp_lt_u32 s3, 8\ns_cbranch_scc1 L_bf3\ns_cmp_eq_u32 s3, 8\ns_cbranch_scc1 L_fin")
a(f"s_lshl_b32 s7, s2, 4\ns_add_u32 s7, s7, {WS_FLAGS}\nv_mov_b32 v5, s7\ns_add_u32 s7, s6, 1\nv_mov_b32 v7, s7\ns_mov_b64 exec, 1\nglobal_store_dword v5, v7, s[40:41] sc1\ns_mov_b64 exec, -1\ns_waitcnt vmcnt(0)")
a(f"s_sleep {opt('slb',12)}\ns_cmp_lt_u32 s2, 160\ns_cbranch_scc1 L_flagchk\ns_sleep 40\ns_branch L_flagchk")
a("L_bf3:\ns_cmp_ge_u32 s2, 160\ns_cbranch_scc1 L_f\nv_mov_b32 v108, 0\nv_mov_b32 v109, 0\nv_mov_b32 v110, 0\nv_mov_b32 v158, 0")
load_p2tab()
a("L_p2addr:")
a(f"s_and_b32 s62, s2, 7\ns_lshr_b32 s56, s2, 4\ns_mul_i32 s57, s62, 10\ns_add_u32 s57, s57, s56\ns_lshl_b32 s57, s57, 14\ns_add_u32 s57, s57, {WS_I}")
a("v_lshl_add_u32 v4, v0, 4, s57\nv_add_u32 v5, 0x2000, v4")
a("v_lshlrev_b32 v6, 1, v0\nv_and_b32 v6, 32, v6\nv_and_b32 v7, 64, v0\nv_or_b32 v6, v6, v7\nv_lshlrev_b32 v7, 4, v0\nv_xor_b32 v6, v6, v7")
a("v_lshrrev_b32 v16, 2, v3\nv_lshl_add_u32 v17, v2, 3, v16\nv_lshlrev_b32 v17, 7, v17\nv_and_b32 v18, 3, v0\nv_lshl_add_u32 v17, v18, 3, v17")
a("v_lshrrev_b32 v16, 3, v1\nv_and_b32 v16, 3, v16\ns_and_b32 s58, s3, 1\nv_xor_b32 v16, s58, v16\nv_lshl_add_u32 v17, v16, 5, v17\nv_xor_b32 v18, 64, v17")
a(f"s_lshl_b32 s59, s62, 7\ns_lshr_b32 s60, s3, 1\ns_lshl2_add_u32 s60, s5, s60\ns_lshl4_add_u32 s59, s60, s59\ns_mulk_i32 s59, 1280\ns_lshl_b32 s56, s56, 7\ns_add_u32 s59, s59, s56\ns_lshl_b32 s58, s58, 6\ns_add_u32 s59, s59, s58\ns_add_u32 s59, s59, {WS_Y}")
a("v_mul_u32_u24 v19, 1280, v3\nv_lshl_add_u32 v19, v2, 4, v19\nv_add_u32 v19, s59, v19")
stamp(6)
a("s_waitcnt vmcnt(0)\ns_barrier")
stamp(7)
if opt("probe1",1):
    a("s_cmp_lt_u32 s2, 128\ns_cbranch_scc1 L_np1")
    probe("global_load_dword v8, v4, s[40:41] sc1",8,opt("slp1",2))
    a("L_np1:")
if opt("pre1",0): a(f"s_sleep {opt('pre1',0)}")
poll(["global_load_dwordx4 v[8:11], v4, s[40:41] sc1","global_load_dwordx4 v[12:15], v5, s[40:41] sc1"],range(8,16),opt("sl1",2),16)
stamp(8)
a(f"ds_write_b128 v6, v[8:11] offset:{L_P2}\nds_write_b128 v6, v[12:15] offset:{L_P2+8192}\ns_waitcnt lgkmcnt(0)\ns_barrier")
for k in range(4):
    a(f"ds_read_b64_tr_b16 v[{20+8*k}:{21+8*k}], v17 offset:{L_P2+4096*k}\nds_read_b64_tr_b16 v[{22+8*k}:{23+8*k}], v17 offset:{L_P2+4096*k+512}")
    a(f"ds_read_b64_tr_b16 v[{24+8*k}:{25+8*k}], v18 offset:{L_P2+4096*k}\nds_read_b64_tr_b16 v[{26+8*k}:{27+8*k}], v18 offset:{L_P2+4096*k+512}")
for k in range(4):
    lg(14-4*k)
    a(f"{MF} v[8:11], {vr(20+8*k)}, {vr(112+4*k)}, {'0' if k==0 else 'v[8:11]'}")
    lg(12-4*k)
    a(f"{MF} v[12:15], {vr(24+8*k)}, {vr(128+4*k)}, {'0' if k==0 else 'v[12:15]'}")
a("v_pk_add_f32 v[20:21], v[8:9], v[12:13] neg_lo:[0,1] neg_hi:[0,1]\nv_pk_add_f32 v[22:23], v[10:11], v[14:15] neg_lo:[0,1] neg_hi:[0,1]\nv_pk_add_f32 v[24:25], v[8:9], v[12:13]\nv_pk_add_f32 v[26:27], v[10:11], v[14:15]")
a("v_cvt_pk_bf16_f32 v8, v20, v21\nv_cvt_pk_bf16_f32 v9, v22, v23\nv_cvt_pk_bf16_f32 v10, v24, v25\nv_cvt_pk_bf16_f32 v11, v26, v27")
a("global_store_dwordx4 v19, v[8:11], s[40:41] sc1")
stamp(9)
a("s_cmp_ge_u32 s2, 128\ns_cbranch_scc1 L_fin")
a("L_p3:")
a(f"s_lshl_b32 s57, s2, 4\nv_add_u32 v16, s57, v3\nv_lshlrev_b32 v17, 2, v16\nv_add_u32 v17, {KEYS}, v17\nv_mov_b32 v18, {fhex(1e-5)}\ns_mov_b32 s58, {fhex(1/640)}\ns_movk_i32 s59, 0x7ff\nv_lshlrev_b32 v19, 4, v3")
a("s_waitcnt vmcnt(0)")
stamp(10)
if opt("pre2",0): a(f"s_sleep {opt('pre2',0)}")
poll(["global_load_dwordx2 v[112:113], v108, s[40:41] sc1","global_load_dwordx2 v[114:115], v109, s[40:41] sc1","global_load_dword v116, v110, s[40:41] sc1"],range(112,117),opt("sl2",2),4)
stamp(11)
YA=[112,113,114,117,116]; YB=[112,118,114,115,116]
a("v_and_b32 v117, v115, v111\nv_and_b32 v118, v113, v154")
for i in (0,2,4,1,3):
    a(f"v_dot2c_f32_bf16 v84, s63, v{YA[i]}\nv_dot2c_f32_bf16 v85, v{YA[i]}, v{YA[i]}\nv_dot2c_f32_bf16 v86, v{YA[i]}, v{XA[i]}\nv_dot2c_f32_bf16 v87, v{YB[i]}, v{XB[i]}")
    a(f"v_dot2c_f32_bf16 v77, v{YA[i]}, v{WA[i]}\nv_dot2c_f32_bf16 v81, v{YB[i]}, v{WB[i]}")
a("v_add_f32 v76, v76, v84\nv_add_f32 v80, v80, v84\nv_add_f32 v78, v78, v85\nv_add_f32 v82, v82, v85\nv_fmac_f32 v78, 2.0, v86\nv_fmac_f32 v82, 2.0, v87")
a("v_permlane32_swap_b32 v76, v77\nv_permlane32_swap_b32 v80, v81\nv_permlane32_swap_b32 v78, v79\nv_permlane32_swap_b32 v82, v83")
a("v_add_f32 v76, v76, v77\nv_add_f32 v78, v78, v79\nv_add_f32 v80, v80, v81\nv_add_f32 v82, v82, v83")
a("v_permlane16_swap_b32 v76, v78\nv_permlane16_swap_b32 v80, v82\nv_add_f32 v76, v76, v78\nv_add_f32 v80, v80, v82")
for s_ in (8,4,2,1): a(f"v_add_f32_dpp v76, v76, v76 row_ror:{s_} {DPPM}\nv_add_f32_dpp v80, v80, v80 row_ror:{s_} {DPPM}")
a(f"ds_write_b32 v166, v76 offset:{L_ST3}\nds_write_b32 v167, v80 offset:{L_ST3}")
a(f"s_waitcnt lgkmcnt(0)\ns_barrier\nds_read_b128 v[76:79], v19 offset:{L_ST3}\ns_waitcnt lgkmcnt(0)")
a("v_mul_f32 v76, s58, v76\nv_fma_f32 v77, v77, s58, v18\nv_fma_f32 v77, -v76, v76, v77\nv_max_f32 v77, v77, v18\nv_rsq_f32 v77, v77\nv_fma_f32 v78, -v76, v79, v78\nv_mul_f32 v78, v78, v77")
a("v_ashrrev_i32 v79, 31, v78\nv_or_b32 v79, 0x80000000, v79\nv_xor_b32 v79, v79, v78\nv_bfi_b32 v79, s59, v16, v79\nv_min_u32 v79, -2, v79")
a("s_cmp_lg_u32 s3, 0\ns_cbranch_scc1 L_nokey\ns_mov_b64 exec, 0xffff\nglobal_store_dword v17, v79, s[40:41] sc1\ns_mov_b64 exec, -1\nL_nokey:")
stamp(12)
a("v_mul_f32 v76, v76, v77\ns_add_u32 s49, s48, 1\nv_readlane_b32 s8, v77, s48\nv_readlane_b32 s12, v77, s49\nv_readlane_b32 s10, v76, s48\nv_readlane_b32 s18, v76, s49")
a("v_readlane_b32 s20, v79, s48\nv_readlane_b32 s21, v79, s49\nv_readlane_b32 s22, v78, s48\nv_readlane_b32 s23, v78, s49")
a("s_cmp_eq_u32 s50, 0\ns_cselect_b32 s21, 0, s21\nv_mov_b32 v80, s10\nv_mov_b32 v82, s18")
def top2():
    a("v_mov_b32 v4, v79")
    for s_ in (8,4,2,1): a(f"v_max_u32_dpp v4, v4, v4 row_ror:{s_} {DPPM}")
    a("v_cmp_ne_u32 vcc, v4, v79\nv_readfirstlane_b32 s6, v4\nv_cndmask_b32 v79, 0, v79, vcc\nv_mov_b32 v4, v79")
    for s_ in (8,4,2,1): a(f"v_max_u32_dpp v4, v4, v4 row_ror:{s_} {DPPM}")
    a("v_cmp_ne_u32 vcc, v4, v79\nv_readfirstlane_b32 s7, v4\nv_cndmask_b32 v79, 0, v79, vcc")
top2()
for R,(Y,X,hb,nb,pk,sr,mv) in enumerate(((YA,XA,20,40,60,8,80),(YB,XB,30,50,66,12,82))):
    for i in range(5):
        a(f"v_lshlrev_b32 v{hb+2*i}, 16, v{Y[i]}\nv_and_b32 v{hb+1+2*i}, 0xffff0000, v{Y[i]}\nv_lshlrev_b32 v4, 16, v{X[i]}\nv_and_b32 v5, 0xffff0000, v{X[i]}")
        a(f"v_pk_add_f32 v[{hb+2*i}:{hb+1+2*i}], v[{hb+2*i}:{hb+1+2*i}], v[4:5]")
        a(f"v_pk_fma_f32 v[{nb+2*i}:{nb+1+2*i}], v[{hb+2*i}:{hb+1+2*i}], s[{sr}:{sr+1}], v[{mv}:{mv+1}] op_sel_hi:[1,0,0] neg_lo:[0,0,1] neg_hi:[0,0,1]")
        a(f"v_cvt_pk_bf16_f32 v{pk+i}, v{nb+2*i}, v{nb+1+2*i}")
a(f"v_lshlrev_b32 v16, 4, v0\nv_and_b32 v16, 0x1fff, v16\nv_add_u32 v16, {KEYS}, v16\nv_mov_b32 v17, {L_CNT}\ns_mov_b32 s61, 0\ns_movk_i32 s44, 99\ns_movk_i32 s45, 99\ns_cmp_lt_u32 s3, 8\ns_cselect_b64 s[62:63], 1, 0")
a("s_waitcnt vmcnt(0)\ns_barrier")
stamp(13)
if opt("pre3",0): a(f"s_sleep {opt('pre3',0)}")
poll(["global_load_dwordx4 v[72:75], v16, s[40:41] sc1"],range(72,76),opt("sl3",2),4)
stamp(14)
a("L_round:")
SP=[24,26,28,30,52,54,56,58]
for i in range(4): a(f"v_cmp_gt_u32_e64 s[{SP[i]}:{SP[i]+1}], v{72+i}, s6")
for i in range(4): a(f"v_cmp_gt_u32_e64 s[{SP[4+i]}:{SP[4+i]+1}], v{72+i}, s7")
for i in range(8): a(f"s_bcnt1_i32_b64 s{SP[i]}, s[{SP[i]}:{SP[i]+1}]")
a("s_add_u32 s24, s24, s26\ns_add_u32 s28, s28, s30\ns_add_u32 s52, s52, s54\ns_add_u32 s56, s56, s58\ns_add_u32 s24, s24, s28\ns_add_u32 s52, s52, s56\ns_lshl_b32 s52, s52, 16\ns_add_u32 s24, s24, s52")
a("v_mov_b32 v4, s24\ns_mov_b64 exec, s[62:63]\nds_add_u32 v17, v4\ns_mov_b64 exec, -1\ns_waitcnt lgkmcnt(0)\ns_barrier\nds_read_b32 v4, v17\ns_waitcnt lgkmcnt(0)")
a("v_readfirstlane_b32 s24, v4\ns_and_b32 s25, s24, 0xffff\ns_lshr_b32 s24, s24, 16\ns_cmp_ge_u32 s25, 8\ns_cbranch_scc1 L_rdone")
for R,(sk,srk,pk,o0) in enumerate(((20,44,60,160),(21,45,66,163))):
    a(f"s_cmp_eq_u32 s{sk}, s7\ns_cselect_b32 s26, s24, 99\ns_cmp_eq_u32 s{sk}, s6\ns_cselect_b32 s26, s25, s26\ns_cmp_ge_u32 s26, 8\ns_cbranch_scc1 L_ns{R}")
    a(f"s_mov_b32 s{srk}, s26\ns_mul_i32 s26, s26, 1280\ns_add_u32 s26, s26, {HN}\nv_add_u32 v4, s26, v{o0}\nv_add_u32 v5, s26, v{o0+1}\nv_add_u32 v6, s26, v{o0+2}")
    a(f"global_store_dwordx2 v4, v[{pk}:{pk+1}], s[40:41] sc1\nglobal_store_dwordx2 v5, v[{pk+2}:{pk+3}], s[40:41] sc1\nglobal_store_dword v6, v{pk+4}, s[40:41] sc1\nL_ns{R}:")
a("s_cmp_ge_u32 s24, 7\ns_cbranch_scc1 L_rdone\ns_cmp_ge_u32 s61, 3\ns_cbranch_scc1 L_rdone\ns_add_u32 s61, s61, 1\nv_add_u32 v17, 4, v17")
top2()
a("s_branch L_round\nL_rdone:")
stamp(15)
for R,(hb,nb,pk) in enumerate(((20,40,60),(30,50,66))):
    for i in range(5):
        a(f"v_pk_add_f32 v[4:5], v[{hb+2*i}:{hb+1+2*i}], v[{nb+2*i}:{nb+1+2*i}]\nv_cvt_pk_bf16_f32 v{pk+14+i}, v4, v5")
a("v_add_u32 v4, s51, v160\nv_add_u32 v5, s51, v162\nv_add_u32 v6, s51, v164\nv_add_u32 v7, s51, v165")
a("ds_write_b64 v4, v[74:75]\nds_write_b64 v4, v[76:77] offset:512\nds_write_b32 v5, v78\ns_cmp_eq_u32 s50, 0\ns_cbranch_scc1 L_nob")
a("ds_write_b64 v4, v[80:81] offset:1920\nds_write_b64 v6, v[82:83] offset:1280\nds_write_b32 v7, v84 offset:1280\nL_nob:")
for i in range(10):
    t=4+2*(i&1)
    a(f"v_add_u32_sdwa v{t}, v{144+i}, v156 {SD.format(0)}\nv_add_u32_sdwa v{t+1}, v{144+i}, v156 {SD.format(1)}")
    a(f"ds_read_u16 v{8+i}, v{t}\nds_read_u16 v{20+i}, v{t+1}")
a("s_mov_b32 s24, 0x00ff00ff\ns_cmp_lt_u32 s44, 8\ns_cselect_b32 s26, 0, s24\ns_cselect_b32 s28, s24, 0\ns_not_b32 s24, s24\ns_cmp_lt_u32 s45, 8\ns_cselect_b32 s27, 0, s24\ns_cselect_b32 s29, s24, 0")
a("s_cmp_eq_u32 s50, 0\ns_cselect_b32 s27, 0, s27\ns_or_b32 s26, s26, s27\ns_mov_b32 s27, s26\ns_or_b32 s28, s28, s29\ns_mov_b32 s29, s28\ns_waitcnt lgkmcnt(0)")
for i in range(10): a(f"v_lshl_or_b32 v{8+i}, v{20+i}, 16, v{8+i}")
a("s_cmp_eq_u32 s26, 0\ns_cbranch_scc1 L_noout\ns_mov_b64 exec, s[26:27]")
for i in range(5): a(f"global_store_dwordx2 v158, v[{8+2*i}:{9+2*i}], s[36:37] offset:{256*i} {OUTF}")
a("s_mov_b64 exec, -1\nL_noout:\ns_cmp_eq_u32 s28, 0\ns_cbranch_scc1 L_nosel")
a("v_cmp_lt_u32 vcc, 7, v3\nv_mov_b32 v4, s44\nv_mov_b32 v5, s45\nv_cndmask_b32 v20, v4, v5, vcc\nv_mov_b32 v4, s46\nv_mov_b32 v5, s47\nv_cndmask_b32 v22, v4, v5, vcc\nv_mov_b32 v4, s22\nv_mov_b32 v5, s23\nv_cndmask_b32 v23, v4, v5, vcc")
a(f"v_and_b32 v20, 7, v20\nv_mul_u32_u24 v21, 1280, v20\nv_add_u32 v21, {BASE}, v21\nv_add_u32 v21, v21, v159\nv_lshlrev_b32 v20, 6, v20\nv_add_u32 v20, {META}, v20")
a("v_mul_f32 v23, 0xbfb8aa3b, v23\nv_exp_f32 v23, v23\ns_mov_b64 exec, s[28:29]\nv_add_f32 v23, 1.0, v23\nv_rcp_f32 v23, v23")
for i in range(5): a(f"global_store_dwordx2 v21, v[{8+2*i}:{9+2*i}], s[40:41] offset:{256*i} sc1")
a("s_and_b32 exec_lo, s28, 0x0101\ns_mov_b32 exec_hi, 0\nglobal_store_dwordx2 v20, v[22:23], s[40:41] sc1\ns_mov_b64 exec, -1\nL_nosel:")
a("s_or_b32 s24, s2, s3\ns_cbranch_scc1 L_fin")
a("s_load_dword s16, s[40:41], 0\nv_mov_b32 v4, 0\ns_waitcnt lgkmcnt(0)\ns_add_u32 s16, s16, 1\nv_mov_b32 v5, s16\ns_mov_b64 exec, 1\nglobal_store_dword v4, v5, s[40:41]\ns_mov_b64 exec, -1\ns_branch L_fin")
a("L_f:\ns_cmp_ge_u32 s2, 216\ns_cbranch_scc1 L_f2\ns_cmp_ge_u32 s2, 214\ns_cbranch_scc1 L_fin")
a("s_sub_u32 s49, s2, 160\ns_and_b32 s50, s49, 7\ns_lshr_b32 s56, s49, 4\ns_lshl3_add_u32 s50, s56, s50\ns_lshl1_add_u32 s50, s50, s5\ns_cmp_ge_u32 s49, 48\ns_cselect_b32 s50, s49, s50")
a(f"s_mul_i32 s56, s3, {80*3456}\ns_lshl_b32 s57, s50, 6\ns_add_u32 s56, s56, s57\nv_lshrrev_b32 v4, 2, v1\nv_mul_u32_u24 v6, 80, v4\nv_mul_u32_u24 v4, 3456, v4\nv_and_b32 v5, 3, v0\nv_lshl_add_u32 v4, v5, 4, v4\nv_add_u32 v4, s56, v4")
for i in range(5): a(f"global_load_dwordx4 {vr(104+4*i)}, v6, s[42:43] offset:{TO_W+16*i}")
a("s_mul_i32 s58, s3, 5120\ns_add_u32 s59, s58, 40960\ns_bitcmp1_b32 s50, 0\ns_cselect_b64 s[8:9], s[32:33], s[30:31]\ns_cselect_b64 s[10:11], s[30:31], s[32:33]\ns_cselect_b32 s60, s59, s58\ns_cselect_b32 s61, s58, s59")
for h in range(2):
    for i in range(5):
        a(f"s_add_u32 m0, s{60+h}, {1024*i}\nv_add_u32 v5, {16*3456*i}, v4\nglobal_load_lds_dwordx4 v5, s[{8+2*h}:{9+2*h}]")
a(f"s_mul_i32 s16, s3, 1280\ns_add_u32 s16, s16, {HN}\nv_lshlrev_b32 v158, 2, v1\nv_add_u32 v162, s16, v157\nv_add_u32 v163, s16, v158")
a(f"s_mul_i32 s16, s3, {XSS}\ns_add_u32 s16, s16, {L_XS}\nv_add_u32 v157, s16, v157\nv_add_u32 v158, s16, v158")
a(f"v_and_b32 v164, 7, v0\nv_mul_u32_u24 v165, {XSS}, v164\nv_lshl_add_u32 v165, v2, 4, v165\nv_bfe_u32 v166, v0, 3, 1\nv_lshl_add_u32 v165, v166, 6, v165\nv_add_u32 v165, {L_XS}, v165")
a(f"s_lshl2_add_u32 s16, s50, s3\ns_lshl_b32 s16, s16, 7\ns_add_u32 s16, s16, {ACT}\nv_lshl_add_u32 v164, v164, 4, s16\nv_and_b32 v166, 1, v2\nv_lshl_add_u32 v164, v166, 3, v164\nv_lshrrev_b32 v166, 1, v2\nv_lshl_add_u32 v164, v166, 2, v164")
a("s_mov_b32 s18, 0x00ff00ff\ns_mov_b32 s19, 0x00ff00ff")
a(f"v_and_b32 v4, 1, v0\nv_lshlrev_b32 v4, 3, v4\nv_bfe_u32 v5, v0, 1, 1\nv_mul_u32_u24 v5, 40960, v5\ns_lshl_b32 s56, s3, 4\nv_add3_u32 v7, v4, v5, s56")
stamp(3)
a("s_waitcnt vmcnt(0)\ns_barrier")
stamp(4)
a("s_cmp_ge_u32 s3, 4\ns_cbranch_scc1 L_f1w")
for k in range(20):
    a(f"v_add_u32_sdwa v4, v{104+k}, v7 {SD.format(0)}\nv_add_u32_sdwa v5, v{104+k}, v7 {SD.format(1)}")
    a(f"ds_read_b64_tr_b16 v[{8+4*k}:{9+4*k}], v4\nds_read_b64_tr_b16 v[{10+4*k}:{11+4*k}], v5")
a("s_waitcnt lgkmcnt(0)\nL_f1w:")
stamp(5)
if opt("probe4",0): probe("global_load_dword v152, v162, s[40:41] sc1",152,opt("slp4",2))
poll(["global_load_dwordx4 v[152:155], v162, s[40:41] sc1","global_load_dword v156, v163, s[40:41] offset:1024 sc1"],range(152,157),opt("sl4",2),166)
stamp(15)
a(f"ds_write_b128 v157, v[152:155]\nds_write_b32 v158, v156 offset:1024\ns_waitcnt lgkmcnt(0)\ns_barrier\ns_cmp_ge_u32 s3, 4\ns_cbranch_scc1 L_fin")
for i in range(10): a(f"ds_read_b128 {vr(104+4*i)}, v165 offset:{128*i}")
for i in range(10):
    lg(9-i)
    a(f"{MF} v[144:147], {vr(8+8*i)}, {vr(104+4*i)}, {'0' if i==0 else 'v[144:147]'}\n{MF} v[148:151], {vr(12+8*i)}, {vr(104+4*i)}, {'0' if i==0 else 'v[148:151]'}")
for i in range(4): a(f"v_add_f32_dpp v{144+i}, v{148+i}, v{144+i} row_ror:8 {DPPM}")
a("v_permlane32_swap_b32 v144, v146\nv_permlane32_swap_b32 v145, v147")
a("v_mul_f32 v148, 0xbfb8aa3b, v144\nv_mul_f32 v149, 0xbfb8aa3b, v145\nv_exp_f32 v148, v148\nv_exp_f32 v149, v149\nv_mul_f32 v144, v144, v146\nv_mul_f32 v145, v145, v147")
a("v_add_f32 v148, 1.0, v148\nv_add_f32 v149, 1.0, v149\nv_rcp_f32 v148, v148\nv_rcp_f32 v149, v149\nv_mul_f32 v144, v144, v148\nv_mul_f32 v145, v145, v149\nv_cvt_pk_bf16_f32 v144, v144, v145")
a("s_mov_b64 exec, s[18:19]\nglobal_store_dword v164, v144, s[40:41] sc1\ns_mov_b64 exec, -1")
stamp(16)
a("s_branch L_fin")
a("L_f2:")
a("s_sub_u32 s50, s2, 216\ns_and_b32 s51, s50, 7\ns_mul_i32 s51, s51, 5\ns_lshr_b32 s50, s50, 3\ns_add_u32 s51, s50, s51\ns_lshl_b32 s51, s51, 5")
a("v_lshrrev_b32 v4, 1, v1\nv_mul_u32_u24 v4, 1280, v4\nv_and_b32 v5, 1, v0\nv_lshl_add_u32 v4, v5, 4, v4\ns_mul_i32 s56, s3, 81920\ns_add_u32 s56, s56, s51\nv_add_u32 v4, s56, v4\ns_lshl_b32 s58, s3, 13")
a("s_cmp_ge_u32 s3, 3\ns_cselect_b32 s61, 2, 3")
for i in range(4):
    a(f"s_add_u32 s59, s50, {i}\ns_and_b32 s59, s59, 3\ns_min_u32 s60, s59, s61\ns_mul_i32 s60, s60, 655360\ns_lshl_b32 s59, s59, 11\ns_add_u32 m0, s59, s58\nv_add_u32 v5, s60, v4\nglobal_load_lds_dwordx4 v5, s[34:35]")
    a(f"s_add_u32 m0, m0, 1024\nv_add_u32 v5, 40960, v5\nglobal_load_lds_dwordx4 v5, s[34:35]")
a(f"v_and_b32 v164, 7, v0\nv_bfe_u32 v165, v0, 3, 1\nv_lshlrev_b32 v162, 4, v164\nv_lshl_add_u32 v162, v2, 7, v162\nv_lshl_add_u32 v162, v165, 9, v162\ns_lshl_b32 s16, s3, 10\ns_add_u32 s17, s16, {ACT}\nv_add_u32 v162, s17, v162")
a(f"v_add_u32 v163, 0x2000, v162\nv_add_u32 v166, 0x4000, v162\ns_lshl_b32 s61, s61, 13\nv_add_u32 v167, s61, v162\ns_add_u32 s16, s16, {L_XS}\nv_add_u32 v157, s16, v157")
a(f"v_lshlrev_b32 v104, 6, v164\nv_add_u32 v104, {META}, v104\nv_mul_u32_u24 v105, 1280, v164\nv_lshl_add_u32 v106, v2, 3, s51\nv_add_u32 v105, v105, v106\nv_add_u32 v105, {BASE}, v105")
a(f"v_lshl_add_u32 v62, v2, 4, v164\nv_lshlrev_b32 v62, 4, v62\nv_lshl_add_u32 v62, v165, 12, v62\nv_add_u32 v62, {L_XS}, v62\ns_mov_b32 s18, 0x00ff00ff\ns_mov_b32 s19, 0x00ff00ff\nv_mov_b32 v60, 0")
a("v_lshrrev_b32 v4, 2, v3\nv_lshl_add_u32 v4, v2, 3, v4\nv_lshlrev_b32 v4, 5, v4\nv_and_b32 v5, 3, v0\nv_lshl_add_u32 v4, v5, 3, v4\nv_add_u32 v4, s58, v4")
stamp(3)
a("s_waitcnt vmcnt(0)")
stamp(4)
for k in range(8):
    a(f"ds_read_b64_tr_b16 v[{8+4*k}:{9+4*k}], v4 offset:{1024*k}\nds_read_b64_tr_b16 v[{10+4*k}:{11+4*k}], v4 offset:{1024*k+128}")
a("s_waitcnt lgkmcnt(0)\ns_cmp_lt_u32 s3, 3\ns_cbranch_scc1 L_p5a")
for i in range(8): a(f"v_mov_b32 v{32+i}, 0")
a("L_p5a:\ns_barrier")
stamp(5)
a("s_cmp_lg_u32 s3, 0\ns_cbranch_scc1 L_p5b")
poll(["global_load_dwordx2 v[60:61], v104, s[40:41] sc1","global_load_dwordx2 v[58:59], v105, s[40:41] sc1"],range(58,62),opt("slm",6),114)
a("v_lshlrev_b32 v64, 16, v58\nv_and_b32 v65, 0xffff0000, v58\nv_lshlrev_b32 v66, 16, v59\nv_and_b32 v67, 0xffff0000, v59")
a("v_and_b32 v60, 2047, v60\nv_mul_u32_u24 v60, 1280, v60\nv_add_u32 v60, v60, v106")
stamp(14)
a("L_p5b:")
if opt("probe5",1): probe("global_load_dword v40, v162, s[40:41] sc1",40,opt("slp5",2))
poll(["global_load_dwordx4 v[40:43], v162, s[40:41] sc1","global_load_dwordx4 v[44:47], v163, s[40:41] sc1","global_load_dwordx4 v[48:51], v166, s[40:41] sc1","global_load_dwordx4 v[52:55], v167, s[40:41] sc1"],range(40,56),opt("sl5",2),114)
stamp(15)
for i in range(4):
    a(f"{MF} v[72:75], {vr(8+8*i)}, {vr(40+4*i)}, {'0' if i==0 else 'v[72:75]'}\n{MF} v[76:79], {vr(12+8*i)}, {vr(40+4*i)}, {'0' if i==0 else 'v[76:79]'}")
for i in range(4): a(f"v_add_f32_dpp v{72+i}, v{76+i}, v{72+i} row_ror:8 {DPPM}")
a(f"ds_write_b128 v157, v[72:75]\ns_waitcnt lgkmcnt(0)\ns_barrier\ns_cmp_lg_u32 s3, 0\ns_cbranch_scc1 L_fin")
for i in range(4): a(f"ds_read_b128 {vr(72+4*i)}, v62 offset:{1024*i}")
a("s_waitcnt lgkmcnt(0)")
a("v_pk_add_f32 v[72:73], v[72:73], v[76:77]\nv_pk_add_f32 v[74:75], v[74:75], v[78:79]\nv_pk_add_f32 v[80:81], v[80:81], v[84:85]\nv_pk_add_f32 v[82:83], v[82:83], v[86:87]\nv_pk_add_f32 v[72:73], v[72:73], v[80:81]\nv_pk_add_f32 v[74:75], v[74:75], v[82:83]")
for i in range(4): a(f"v_add_f32_dpp v{72+i}, v{72+i}, v{72+i} row_ror:8 {DPPM}")
for i in range(4): a(f"v_fma_f32 v{72+i}, v{72+i}, v61, v{64+i}")
a(f"v_cvt_pk_bf16_f32 v72, v72, v73\nv_cvt_pk_bf16_f32 v73, v74, v75\ns_mov_b64 exec, s[18:19]\nglobal_store_dwordx2 v60, v[72:73], s[36:37] {OUTF}\ns_mov_b64 exec, -1")
stamp(16)
a("L_fin:")
if STAMP:
    a("s_waitcnt vmcnt(0)")
    stamp(17)
    if "probe" in kw:
        k=int(kw["probe"])
        a(f"s_waitcnt lgkmcnt(0)\ns_cmp_ge_u32 s3, {opt('pw',4)}\ns_cbranch_scc1 L_end\ns_cmp_lt_u32 s2, {opt('plo',0)}\ns_cbranch_scc1 L_end\ns_cmp_ge_u32 s2, {opt('phi',256)}\ns_cbranch_scc1 L_end\ns_cmp_eq_u32 s{64+2*k}, 0\ns_cbranch_scc1 L_end")
        a(f"s_add_u32 s16, s{64+2*k}, 4000\nL_spin:\ns_sleep 1\ns_memrealtime s[18:19]\ns_waitcnt lgkmcnt(0)\ns_sub_u32 s17, s18, s16\ns_cmp_lt_i32 s17, 0\ns_cbranch_scc1 L_spin\ns_endpgm")
    else:
        a(f"s_waitcnt lgkmcnt(0)")
        for k in range(NST): a(f"v_writelane_b32 v5, s{64+2*k}, {k}")
        a(f"v_writelane_b32 v5, s15, 31\ns_mul_i32 s16, s2, 10\ns_add_u32 s16, s16, s3\ns_lshl_b32 s16, s16, 7\ns_add_u32 s16, s16, {WS_STAMP}\nv_lshl_add_u32 v4, v1, 2, s16\ns_mov_b32 exec_hi, 0\nglobal_store_dword v4, v5, s[40:41]")
a("L_end:\ns_endpgm")
body=a.finish()
small=np.zeros(1536,np.uint16)
small[0:768]=T.t_pm().reshape(-1); small[768:768+640]=T.t_w3().reshape(-1)
tab=".p2align 7\n.type T_0,@object\nT_0:\n"+T.emit(small)+T.emit(T.t_r20b())+T.emit(T.t_p2())+"T_end:\n"
txt=f"""; FNet (hidden DFT 20x32, sequence DFT 8x256 with real/Hermitian folding) + LayerNorm + top-8 SwiGLU, one persistent launch.
; @launch grid=(256,1,1) block=(640,1,1) lds={LDS_BYTES}
.amdgcn_target "amdgcn-amd-amdhsa--gfx950"
.text
.globl {KN}
.p2align 8
.type {KN},@function
{body}
{tab}.section .rodata,"a"
.p2align 6
.amdhsa_kernel {KN}
  .amdhsa_next_free_vgpr 168
  .amdhsa_next_free_sgpr 102
  .amdhsa_accum_offset 168
  .amdhsa_group_segment_fixed_size 0
  .amdhsa_kernarg_size 104
  .amdhsa_user_sgpr_count 2
  .amdhsa_user_sgpr_kernarg_segment_ptr 1
  .amdhsa_system_sgpr_workgroup_id_x 1
.end_amdhsa_kernel
"""
open(outp,"w").write(txt)
print("nops inserted",a.nops,"bytes",len(txt),file=sys.stderr)
```

```python
import numpy as np
from tables import bfbits,cosr,sinr,ecol,emit,t_r20b,lane,g,n,jj
def m_of_y(y): return 16*((y>>2)&1)+4*(y>>3)+(y&3)
colp=[0]*640
for p in range(320):
    e_=ecol(p>>5,m_of_y(p&31)); colp[p]=e_; colp[320+p]=(640-e_) if e_!=320 else 0
assert sorted(colp)==list(range(640))
INVP=[0]*640
for p,c in enumerate(colp): INVP[c]=p
P320=INVP[320]
US=72; RS=20*US+16
def t_pm():
    T=np.zeros((32,24),np.uint16)
    for gg in range(4):
        for q in range(8):
            for i in range(5):
                for low in range(4):
                    p=INVP[32*(4*i+gg)+4*q+low]; T[8*gg+q,4*i+low]=(p>>5)*US+(p&31)*2
    return T
def t_w():
    T=np.zeros((16,40),np.uint16)
    for gg in range(4):
        for r in range(4):
            for k in range(20):
                for h in range(2):
                    c=colp[32*k+8*gg+r+4*h]; T[4*gg+r,2*k+h]=64*((c%20)*32+c//20)
    return T
def t_p2():
    T=np.zeros((8,8,64,8))
    for tt in range(8):
        t2=64*(tt>>2)+8*(tt&3)+(n&7)+32*(n>>3)
        row=(8*t2+4)[:,None]
        for k in range(4):
            j=(32*k+8*g)[:,None]+jj[None,:]
            T[tt,k]=cosr(row*j,2048)
            T[tt,4+k]=-sinr(row*np.where(j==0,128,j),2048)
    return bfbits(T)
if __name__=="__main__":
    print("P320",P320)
    def cost(US,RS):
        tot=0
        for i in range(5):
            for low in range(4):
                for half in range(2):
                    banks={}
                    for l in range(32*half,32*half+32):
                        gg=l>>4; rr=(l>>3)&1; q=l&7
                        p=INVP[32*(4*i+gg)+4*q+low]
                        ad=(p>>5)*US+(p&31)*2+rr*RS
                        banks.setdefault((ad>>2)%32,set()).add(ad>>2)
                    tot+=max(len(v) for v in banks.values())
        return tot
    res=sorted((cost(U,20*U+pad),U,pad) for U in range(64,129,8) for pad in range(0,129,8))
    print(res[:12])
    W=t_w()
    for UPO in (40960,40976,40992):
        tot=0
        for k in range(40):
            for half in range(2):
                banks={}
                for l in range(32*half,32*half+32):
                    ad=int(W[l>>2,k])+(l&1)*8+((l>>1)&1)*UPO
                    banks.setdefault((ad>>3)%32,set()).add(ad>>3)
                tot+=max(len(v) for v in banks.values())
        print(UPO,tot)
```

```python
import sys, struct
sys.path.insert(0,"gen")
from asmlib import Asm
import tables4 as T
import numpy as np
KN="sequential_preLN__spectral_fnet__moe_arch_mod__prompt_kernel"
kw=dict(a.split("=") for a in sys.argv[2:])
outp=sys.argv[1]
STAMP=int(kw.get("stamp",0))
def opt(n,d): return int(kw.get(n,d))
def fhex(f): return hex(struct.unpack("<I",struct.pack("<f",f))[0])
WS_GO=0x1000; WS_FA=0x8000; WS_SMALL=0x10000; KEYS=0x10000; HN=0x12000; H3=0x14800; BASE=0x15000; META=0x17800; ACT=0x18000; H4=0x1F000
WS_I=0x20000; WS_Y=0x160000; WS_STAMP=0x300000
TO_PM=0; TO_W=1536; TO_P2=3072
U=T.US; RS=T.RS
L_ZERO=20480; L_SUM=21504; L_SQ=21568; L_ST3=21632; L_CNT=21952; L_SM=22528; L_WP=23552; L_PM=25088; L_XP=27136; L_P2=0; L_TAB=52224
L_XS=82048; XSS=1296; UPO=40992; LDS_BYTES=L_XS+10368
assert L_XP+17*RS<=L_TAB and L_TAB+32768<=LDS_BYTES
LIMIT=3000; NW=11
OUTF=kw.get("outf","").replace("+"," ")
a=Asm()
NST=18
def stamp(k):
    if STAMP: a(f"s_memrealtime s[{64+2*k}:{65+2*k}]")
def lg(n): a(f"s_waitcnt lgkmcnt({0 if STAMP else n})")
pc=[0]; tail=[]
def poll(loads, regs, sleep, tmp, between=None, chk=None):
    k=pc[0]; pc[0]+=1
    for l in loads: a(l)
    if between: between()
    a(f"LW{k}:\ns_waitcnt vmcnt(0)")
    if chk: a(chk)
    else:
        r=list(regs)
        if len(r)==1: tmp=r[0]; r=[]
        elif len(r)%2==1: a(f"v_max3_u32 v{tmp}, v{r[0]}, v{r[1]}, v{r[2]}"); r=r[3:]
        else: a(f"v_max_u32 v{tmp}, v{r[0]}, v{r[1]}"); r=r[2:]
        while r: a(f"v_max3_u32 v{tmp}, v{tmp}, v{r[0]}, v{r[1]}"); r=r[2:]
        a(f"v_cmp_eq_u32 vcc, -1, v{tmp}")
    a(f"s_cbranch_vccnz LR{k}\nLD{k}:\ns_mov_b64 exec, -1")
    tail.append(f"LR{k}:\ns_add_u32 s15, s15, 1\ns_cmp_lt_u32 s15, {LIMIT}\ns_cbranch_scc0 LD{k}\ns_mov_b64 exec, vcc\n"+(f"s_sleep {sleep}\n" if sleep else "")+"\n".join(loads)+f"\ns_branch LW{k}")
def flush_tail():
    for t in tail: a(t)
    tail.clear()
DPPM="row_mask:0xf bank_mask:0xf"
MF="v_mfma_f32_16x16x32_bf16"
SD="dst_sel:DWORD dst_unused:UNUSED_PAD src0_sel:WORD_{} src1_sel:DWORD"
NEG="neg_lo:[0,1] neg_hi:[0,1]"
def vr(b,n=4): return f"v[{b}:{b+n-1}]"
def read_pm():
    a(f"ds_read_b128 v[144:147], v159 offset:{L_PM}\nds_read_b128 v[148:151], v159 offset:{L_PM+16}\nds_read_b64 v[152:153], v159 offset:{L_PM+32}")
def scatter(base):
    for i in range(10):
        t=4+2*(i&1)
        a(f"v_add_u32_sdwa v{t}, v{144+i}, v{base} {SD.format(0)}\nv_add_u32_sdwa v{t+1}, v{144+i}, v{base} {SD.format(1)}")
        a(f"ds_write_b16 v{t}, v{8+i}\nds_write_b16_d16_hi v{t+1}, v{8+i}")
def store1(addr,val):
    a(f"s_mov_b64 exec, 1\nglobal_store_dword v{addr}, v{val}, s[40:41] sc1\ns_mov_b64 exec, -1")

def p2addr():
    a(f"s_and_b32 s62, s2, 7\ns_lshr_b32 s56, s2, 4\ns_mul_i32 s57, s62, 10\ns_add_u32 s57, s57, s56\ns_lshl_b32 s57, s57, 14\ns_add_u32 s57, s57, {WS_I}")
    a("v_lshl_add_u32 v112, v0, 4, s57\nv_add_u32 v113, 0x2000, v112")
    a("v_lshlrev_b32 v6, 1, v0\nv_and_b32 v6, 32, v6\nv_and_b32 v7, 64, v0\nv_or_b32 v6, v6, v7\nv_lshlrev_b32 v7, 4, v0\nv_xor_b32 v114, v6, v7")
    a(f"s_lshl_b32 s56, s56, 7\ns_add_u32 s56, s56, {WS_Y}\ns_lshl_b32 s58, s3, 8\ns_add_u32 s58, s58, s5\ns_lshl2_add_u32 s59, s62, s58\ns_mulk_i32 s59, 1280\ns_add_u32 s59, s59, s56")
    a("s_lshl_b32 s60, s62, 2\ns_add_u32 s60, s60, 995\ns_sub_u32 s60, s60, s58\ns_mulk_i32 s60, 1280\ns_add_u32 s60, s60, s56\ns_add_u32 s60, s60, 64")
    a("v_and_b32 v4, 7, v0\nv_mul_u32_u24 v4, 40960, v4\nv_lshrrev_b32 v5, 3, v3\nv_lshl_add_u32 v4, v5, 6, v4\nv_lshlrev_b32 v5, 4, v2\nv_add3_u32 v120, v4, v5, s59\nv_sub_u32 v121, s60, v4\nv_add_u32 v121, v121, v5")
    a("v_lshrrev_b32 v5, 2, v3\nv_lshl_add_u32 v4, v2, 3, v5\nv_lshlrev_b32 v4, 7, v4\nv_and_b32 v5, 3, v0\nv_lshl_add_u32 v4, v5, 3, v4")
    a(f"v_bfe_u32 v5, v0, 3, 2\nv_lshl_add_u32 v116, v5, 5, v4\nv_xor_b32 v117, 64, v116\nv_xor_b32 v118, 32, v116\nv_xor_b32 v119, 96, v116")
def yoff(dst,t):
    a(f"s_and_b32 {dst}, {t}, 255\ns_lshr_b32 s59, {t}, 9\ns_lshl2_add_u32 {dst}, {dst}, s59\ns_mulk_i32 {dst}, 1280\ns_bfe_u32 s59, {t}, 0x10008\ns_lshl_b32 s59, s59, 6\ns_add_u32 {dst}, {dst}, s59\ns_add_u32 {dst}, {dst}, {WS_Y}")
def p3addrA():
    a(f"s_movk_i32 s62, {U}\nv_lshrrev_b32 v4, 3, v1\nv_and_b32 v5, 7, v0\nv_lshlrev_b32 v5, 3, v5\nv_mad_u32_u24 v122, v4, s62, v5")
    a(f"v_lshl_add_u32 v128, v4, 7, v5\nv_lshlrev_b32 v5, 2, v3\nv_mad_u32_u24 v123, v2, s62, v5\nv_lshl_add_u32 v130, v2, 7, v5")
    a(f"v_cmp_eq_u32 vcc, 0, v2\nv_add_u32 v124, {18*U}, v122\nv_subrev_u32 v4, {2*U}, v122\nv_cndmask_b32 v124, v4, v124, vcc")
    a("v_add_u32 v125, s51, v122\nv_add_u32 v126, s51, v123\nv_add_u32 v127, s51, v124")
def p3addrB():
    a("v_cmp_eq_u32 vcc, 0, v2\nv_lshlrev_b32 v138, 3, v1\nv_add_u32 v139, 512, v138\nv_lshlrev_b32 v140, 2, v1\nv_add_u32 v143, 384, v140\nv_add_u32 v140, 1024, v140\nv_add_u32 v141, 640, v138\nv_add_u32 v142, 1152, v138\nv_subrev_u32 v4, 128, v138\nv_cndmask_b32 v142, v4, v142, vcc")
    yoff("s56","s46")
    a("s_sub_u32 s58, 2048, s46\ns_and_b32 s58, s58, 2047")
    yoff("s57","s58")
    a("s_add_u32 s62, s56, 1024\ns_sub_u32 s59, s57, 256\nv_mov_b32 v129, s59\nv_mov_b32 v4, s62\nv_cndmask_b32 v129, v129, v4, vcc\nv_add_u32 v129, v129, v128\nv_add_u32 v128, s56, v128\ns_add_u32 s62, s57, 768\nv_add_u32 v130, s62, v130")
    a("v_cmp_eq_u32 vcc, 21, v1\nv_mov_b32 v132, 0xffff\nv_lshlrev_b32 v137, 4, v3\nv_cndmask_b32 v131, -1, v132, vcc\nv_cmp_eq_u32 vcc, 5, v1\ns_lshl_b32 s57, s2, 4\nv_add_u32 v135, s57, v3\nv_cndmask_b32 v132, -1, v132, vcc")
    a("s_lshl_b32 s57, s48, 4\nv_lshl_add_u32 v133, v2, 2, s57\ns_add_u32 s57, s57, 16\ns_cmp_eq_u32 s50, 0\ns_cselect_b32 s57, 272, s57\nv_lshl_add_u32 v134, v2, 2, s57\ns_mov_b32 s63, 0x3f803f80")
    a(f"v_lshlrev_b32 v136, 2, v135\nv_add_u32 v136, {KEYS}, v136")
    for i in AC: a(f"v_mov_b32 v{i}, 0")
AC=[108,109,110,111,160,161,162,163,164,165,166,167]
PMA="v_and_b32 v159, 7, v0\nv_lshl_add_u32 v159, v2, 3, v159\nv_mul_u32_u24 v159, 48, v159"
def gentab():
    a("s_lshl3_add_u32 s56, s5, s3\ns_lshl_b32 s56, s56, 4\ns_add_u32 s56, s56, 1\nv_and_b32 v16, 7, v0\nv_lshl_add_u32 v16, v16, 1, s56\nv_and_b32 v17, 8, v0\nv_lshl_add_u32 v16, v17, 3, v16")
    a(f"v_cvt_f32_u32 v16, v16\nv_lshlrev_b32 v17, 3, v2\nv_cvt_f32_u32 v17, v17\nv_mul_f32 v16, {fhex(-1/512)}, v16\nv_cos_f32 v18, v16\nv_mul_f32 v17, v17, v16\nv_mul_f32 v20, {fhex(31.0)}, v16\nv_add_f32 v18, v18, v18")
    for k in range(4):
        a("v_cos_f32 v24, v17\nv_sin_f32 v25, v17\nv_add_f32 v17, v17, v16\nv_cos_f32 v26, v17\nv_sin_f32 v27, v17\nv_add_f32 v17, v17, v20")
        for j in range(2,8): a(f"v_pk_fma_f32 v[{24+2*j}:{25+2*j}], v[{22+2*j}:{23+2*j}], v[18:19], v[{20+2*j}:{21+2*j}] op_sel_hi:[1,0,1] neg_lo:[0,0,1] neg_hi:[0,0,1]")
        if k==0: a("v_lshlrev_b32 v21, 31, v0\nv_xor_b32 v21, -1.0, v21\nv_cmp_eq_u32 vcc, 0, v2\nv_cndmask_b32 v25, v25, v21, vcc")
        for h in range(4): a(f"v_cvt_pk_bf16_f32 v{56+4*k+h}, v{24+4*h}, v{26+4*h}\nv_cvt_pk_bf16_f32 v{72+4*k+h}, v{25+4*h}, v{27+4*h}")
def read_w():
    a(f"ds_read_b64 v[98:99], v122 offset:{L_WP}\nds_read_b64 v[100:101], v122 offset:{L_WP+8*U}\nds_read_b32 v102, v123 offset:{L_WP+16*U}\nds_read_b64 v[104:105], v122 offset:{L_WP+10*U}\nds_read_b64 v[106:107], v124 offset:{L_WP}\nds_read_b32 v103, v123 offset:{L_WP+6*U}")

a(f"{KN}:")
stamp(0)
a("s_load_dwordx2 s[16:17], s[0:1], 0\ns_load_dwordx2 s[40:41], s[0:1], 96\ns_load_dwordx4 s[28:31], s[0:1], 48\ns_load_dwordx8 s[32:39], s[0:1], 64")
a("s_setprio 3\ns_cmp_ge_u32 s2, 256\ns_cbranch_scc1 L_end")
a("v_lshrrev_b32 v4, 6, v0\nv_and_b32 v1, 63, v0\nv_readfirstlane_b32 s3, v4\nv_lshrrev_b32 v2, 4, v1\nv_and_b32 v3, 15, v0\nv_and_b32 v6, 7, v0")
a("s_getpc_b64 s[42:43]\nL_pc:\ns_add_u32 s42, s42, T_0-L_pc\ns_addc_u32 s43, s43, 0\ns_cmp_ge_u32 s2, 128\ns_cbranch_scc1 L_bf")
a("s_lshl_b32 s46, s3, 8\ns_add_u32 s46, s46, s2\ns_sub_u32 s47, 2048, s46\ns_mov_b32 s44, s3\ns_sub_u32 s45, 15, s3\ns_lshl_b32 s48, s3, 1\ns_mov_b32 s50, 1\ns_cmp_eq_u32 s2, 0\ns_cbranch_scc1 L_rows0\nL_rows:")
a("s_mul_i32 s8, s46, 1280\ns_mul_i32 s9, s47, 1280\nv_mov_b32 v4, s8\nv_mov_b32 v5, s9\nv_cmp_lt_u32 vcc, 7, v3\nv_lshlrev_b32 v159, 3, v6\nv_lshl_add_u32 v159, v2, 6, v159\nv_cndmask_b32 v158, v4, v5, vcc\nv_add_u32 v158, v158, v159")
a("s_cmp_ge_u32 s3, 8\ns_cbranch_scc1 L_a8")
a("s_waitcnt lgkmcnt(0)")
for i in range(5): a(f"global_load_dwordx2 v[{8+2*i}:{9+2*i}], v158, s[16:17] offset:{256*i}")
a("s_setprio 0")
stamp(1)
a("v_mov_b32 v4, s44\nv_mov_b32 v5, s45\nv_cndmask_b32 v161, v4, v5, vcc\nv_mul_u32_u24 v160, 5120, v2\nv_lshl_add_u32 v160, v6, 3, v160\nv_lshl_add_u32 v160, v161, 6, v160\nv_lshlrev_b32 v161, 2, v161")
a("v_lshrrev_b32 v20, 2, v3\nv_and_b32 v21, 3, v0\nv_mad_u32_u24 v20, v20, 5, v21\nv_cvt_f32_u32 v28, v2")
for tile in range(2):
    if tile: a("v_add_u32 v20, 3, v20")
    a("v_lshrrev_b32 v22, 1, v20\nv_and_b32 v24, 1, v20")
    if tile==0:
        a("v_cmp_eq_u32 vcc, 1, v20\nv_cndmask_b32_e64 v22, v22, 10, vcc\nv_cndmask_b32_e64 v24, v24, 0, vcc\nv_cmp_eq_u32 vcc, 3, v21\nv_cndmask_b32_e64 v22, v22, 0, vcc\nv_cndmask_b32_e64 v24, v24, 0, vcc")
    a(f"v_cvt_f32_u32 v22, v22\nv_cvt_f32_u32 v24, v24\nv_mul_f32 v22, {fhex(0.05)}, v22\nv_mul_f32 v24, {fhex(0.25)}, v24\nv_fmac_f32 v24, v28, v22\nv_mul_f32 v22, 4.0, v22")
    for i in range(5):
        a(f"v_cos_f32 v{29+i}, v24")
        if i<4: a("v_add_f32 v24, v24, v22")
    a(f"v_cvt_pk_bf16_f32 v{36+4*tile}, v29, v30\nv_cvt_pk_bf16_f32 v{37+4*tile}, v31, v32\nv_cvt_pk_bf16_f32 v{38+4*tile}, v33, 0\nv_mov_b32 v{39+4*tile}, 0")
a("v_mov_b32 v23, 0\nv_mov_b32 v27, 0\nv_mov_b32 v31, 0\nv_mov_b32 v35, 0\nv_mov_b32 v18, 0\nv_mov_b32 v19, 0\ns_mov_b32 s52, 0x05040100\ns_mov_b32 s53, 0x07060302\ns_mov_b32 s54, 0x01010101\ns_mov_b32 s55, 0x01010101")
a(f"ds_write_b32 v161, v23 offset:{L_SQ}\nds_write_b32 v161, v23 offset:{L_CNT}")
a(f"v_mov_b32 v162, {fhex(-1/32)}\nv_cmp_eq_u32 vcc, 0, v2\nv_cndmask_b32 v162, 0, v162, vcc")
a("L_gtrig:\nv_lshlrev_b32 v157, 4, v1\ns_bfe_u32 s5, s2, 0x10003\ns_mov_b32 s15, 0")
a("s_add_u32 s12, s3, 80\ns_cmp_eq_u32 s3, 0\ns_cselect_b32 s13, 4, 8\ns_cselect_b32 s14, 20, s3\ns_cselect_b32 s12, 10, s12")
a("v_lshrrev_b32 v44, 2, v3\nv_and_b32 v45, 3, v0\nv_mad_u32_u24 v44, v44, s13, v45\nv_mul_u32_u24 v44, 20, v44\nv_add_u32 v45, s12, v44\nv_add_u32 v44, s14, v44\nv_lshlrev_b32 v46, 3, v2")
a(f"v_cvt_f32_u32 v44, v44\nv_cvt_f32_u32 v45, v45\nv_cvt_f32_u32 v46, v46\nv_mul_f32 v44, {fhex(1/640)}, v44\nv_mul_f32 v45, {fhex(1/640)}, v45\nv_mul_f32 v47, v46, v45\nv_mul_f32 v46, v46, v44")
for tau in range(2):
    a(f"v_cos_f32 v48, v{46+tau}\nv_sin_f32 v49, v{46+tau}\nv_add_f32 v{46+tau}, v{46+tau}, v{44+tau}\nv_cos_f32 v64, v{44+tau}\nv_cos_f32 v50, v{46+tau}\nv_sin_f32 v51, v{46+tau}\nv_add_f32 v64, v64, v64")
    for j in range(2,8): a(f"v_pk_fma_f32 v[{48+2*j}:{49+2*j}], v[{46+2*j}:{47+2*j}], v[64:65], v[{44+2*j}:{45+2*j}] op_sel_hi:[1,0,1] neg_lo:[0,0,1] neg_hi:[0,0,1]")
    for h in range(4):
        a(f"v_cvt_pk_bf16_f32 v{88+8*tau+h}, v{48+4*h}, v{50+4*h}\nv_cvt_pk_bf16_f32 v{104+4*tau+h}, v{49+4*h}, v{51+4*h}\nv_xor_b32 v{92+8*tau+h}, 0x80008000, v{104+4*tau+h}")
a(f"s_lshl_b32 s49, s3, 11\ns_add_u32 s56, s49, 1024\ns_cmp_eq_u32 s3, 0\ns_cselect_b32 s57, 1024, s49\ns_cselect_b32 s56, {L_ZERO}, s56")
a("v_lshlrev_b32 v166, 4, v2\nv_lshl_add_u32 v163, v3, 6, v166\nv_add_u32 v164, s56, v163\nv_add_u32 v165, s57, v163\nv_add_u32 v163, s49, v163")
a(f"s_lshl_b32 s49, s3, 7\ns_add_u32 s49, s49, s2\ns_lshl_b32 s49, s49, 7\ns_add_u32 s49, s49, {WS_I}")
a("v_lshrrev_b32 v4, 1, v3\nv_and_b32 v5, 1, v0\nv_mul_u32_u24 v167, 0x28000, v4\nv_lshl_add_u32 v167, v5, 6, v167\nv_add3_u32 v167, v167, v166, s49")
a(f"s_mul_i32 s51, s48, {RS}\ns_add_u32 s51, s51, {L_XP}\nv_lshrrev_b32 v156, 3, v3\nv_mul_u32_u24 v156, {RS}, v156\nv_add_u32 v156, s51, v156")
a(PMA)
a("s_cmp_ge_u32 s3, 8\ns_cbranch_scc1 L_a8b")
p2addr()
stamp(2)
a("s_waitcnt vmcnt(0)")
stamp(3)
for low in range(4):
    c=low>>1; sel="s53" if low&1 else "s52"; o=20+4*low
    a(f"v_perm_b32 v{o}, v{10+c}, v{8+c}, {sel}\nv_perm_b32 v{o+1}, v{14+c}, v{12+c}, {sel}\nv_perm_b32 v{o+2}, v23, v{16+c}, {sel}")
    if low>0: a(f"{MF} {vr(44+4*(low-1))}, v[36:39], {vr(20+4*(low-1))}, 0")
a("v_dot2c_f32_bf16 v18, v8, v8\nv_dot2c_f32_bf16 v19, v9, v9")
a(f"{MF} {vr(56)}, v[36:39], {vr(32)}, 0")
for i in range(1,5):
    a(f"v_dot2c_f32_bf16 v18, v{8+2*i}, v{8+2*i}\nv_dot2c_f32_bf16 v19, v{9+2*i}, v{9+2*i}")
    a(f"{MF} {vr(60+4*(i-1))}, v[40:43], {vr(20+4*(i-1))}, 0")
a("v_add_f32 v4, v47, v51\nv_add_f32 v5, v55, v59\nv_add_f32 v4, v4, v5\nv_add_f32 v18, v18, v19")
for m,r in (("quad_perm:[1,0,3,2]",1),("quad_perm:[2,3,0,1]",2),("row_half_mirror",0)):
    if r: a(f"v_cvt_pk_bf16_f32 v{76+2*r}, v{44+r}, v{48+r}")
    else: a("v_cvt_pk_bf16_f32 v82, v60, v64")
    a(f"v_add_f32_dpp v4, v4, v4 {m} {DPPM}\nv_add_f32_dpp v18, v18, v18 {m} {DPPM}")
    if r: a(f"v_cvt_pk_bf16_f32 v{77+2*r}, v{52+r}, v{56+r}\nds_write_b64 v160, v[{76+2*r}:{77+2*r}] offset:{1024*r}")
a("v_cvt_pk_bf16_f32 v83, v68, v72\nds_write_b64 v160, v[82:83] offset:3072\nv_cvt_pk_bf16_f32 v84, v61, v65\nv_cvt_pk_bf16_f32 v85, v69, v73\nds_write_b64 v160, v[84:85] offset:4096")
for low in range(4): a(f"v_fmac_f32 v{44+4*low}, v4, v162")
a("v_cvt_pk_bf16_f32 v76, v44, v48\nv_cvt_pk_bf16_f32 v77, v52, v56\nds_write_b64 v160, v[76:77]")
a(f"s_mov_b64 exec, s[54:55]\nds_add_f32 v161, v18 offset:{L_SQ}\nds_write_b32 v161, v4 offset:{L_SUM}\ns_mov_b64 exec, -1")
a("L_b1:\ns_waitcnt lgkmcnt(0)\ns_barrier")
stamp(4)
a(f"ds_read_b128 v[20:23], v163\nds_read_b128 v[28:31], v164\nds_read_b128 v[24:27], v165")
lg(2)
a(f"{MF} v[44:47], v[20:23], v[88:91], 0\n{MF} v[48:51], v[20:23], v[92:95], 0")
lg(1)
a(f"{MF} v[44:47], v[28:31], v[104:107], v[44:47]\n{MF} v[48:51], v[28:31], v[88:91], v[48:51]")
a(f"{MF} v[52:55], v[28:31], v[108:111], 0\n{MF} v[56:59], v[28:31], v[96:99], 0")
lg(0)
a(f"{MF} v[52:55], v[24:27], v[96:99], v[52:55]\n{MF} v[56:59], v[24:27], v[100:103], v[56:59]")
a(f"s_barrier\nds_read_b128 v[32:35], v157 offset:{L_SM}")
a("v_cvt_pk_bf16_f32 v20, v44, v45\nv_cvt_pk_bf16_f32 v21, v46, v47\nv_cvt_pk_bf16_f32 v22, v48, v49\nv_cvt_pk_bf16_f32 v23, v50, v51")
a("v_cvt_pk_bf16_f32 v24, v52, v53\nv_cvt_pk_bf16_f32 v25, v54, v55\nv_cvt_pk_bf16_f32 v26, v56, v57\nv_cvt_pk_bf16_f32 v27, v58, v59\ns_waitcnt lgkmcnt(0)")
a(f"{MF} v[44:47], v[20:23], v[32:35], 0\n{MF} v[48:51], v[24:27], v[32:35], 0")
a("v_cvt_pk_bf16_f32 v20, v44, v45\nv_cvt_pk_bf16_f32 v21, v46, v47\nv_cvt_pk_bf16_f32 v22, v48, v49\nv_cvt_pk_bf16_f32 v23, v50, v51")
a("global_store_dwordx4 v167, v[20:23], s[40:41] sc1")
stamp(5)
read_pm()
a("s_cmp_lg_u32 s3, 8\ns_cbranch_scc1 L_scat\ns_barrier\ns_cmp_lg_u32 s2, 0\ns_cbranch_scc1 L_fin\ns_branch L_prep")
a("L_scat:\ns_waitcnt vmcnt(1) lgkmcnt(0)")
scatter(156)
a("s_cmp_eq_u32 s3, 9\ns_cbranch_scc0 L_prep\ns_barrier\ns_waitcnt lgkmcnt(0)\ns_branch L_fin")
XA=[88,89,90,91,92]; XB=[94,95,96,97,93]; WA=[98,99,100,101,102]; WB=[104,105,106,107,103]
a("L_prep:")
p3addrA()
a(f"ds_read_b64 v[88:89], v125\nds_read_b64 v[90:91], v125 offset:{8*U}\nds_read_b32 v92, v126 offset:{16*U}\nds_read_b64 v[94:95], v125 offset:{RS+10*U}\nds_read_b64 v[96:97], v127 offset:{RS}\nds_read_b32 v93, v126 offset:{RS+6*U}")
a("s_cmp_lt_u32 s3, 8\ns_cbranch_scc1 L_b2")
a("s_barrier\ns_branch L_p2end\nL_b2:")
TABPOS=opt("tabpos",1)
if TABPOS==0:
    a("s_cmp_ge_u32 s3, 4\ns_cbranch_scc1 L_ntab")
    gentab()
    a("L_ntab:")
stamp(6)
a("s_waitcnt vmcnt(0) lgkmcnt(0)\ns_barrier" if opt("ack1",1) else "s_waitcnt lgkmcnt(0)\ns_barrier")
stamp(7)
if opt("pre1",0): a(f"s_sleep {opt('pre1',0)}")
def x1win():
    if TABPOS==1:
        a("s_cmp_ge_u32 s3, 4\ns_cbranch_scc1 L_ntab")
        gentab()
        a("L_ntab:")
poll(["global_load_dwordx4 v[8:11], v112, s[40:41] sc1","global_load_dwordx4 v[12:15], v113, s[40:41] sc1"],range(8,16),opt("sl1",2),16,between=x1win)
stamp(8)
a(f"ds_write_b128 v114, v[8:11] offset:{L_P2}\nds_write_b128 v114, v[12:15] offset:{L_P2+8192}\ns_waitcnt lgkmcnt(0)\ns_barrier")
a("s_cmp_ge_u32 s3, 4\ns_cbranch_scc1 L_p2end\ns_setprio 2")
def trg(i):
    k,c=i>>2,i&3; b=8+4*(i&7)
    a(f"ds_read_b64_tr_b16 v[{b}:{b+1}], v{116+c} offset:{L_P2+4096*k}\nds_read_b64_tr_b16 v[{b+2}:{b+3}], v{116+c} offset:{L_P2+4096*k+512}")
NPRE=7
for i in range(NPRE): trg(i)
for i in range(16):
    k,c=i>>2,i&3
    issued=min(16,NPRE+i)
    a(f"s_waitcnt lgkmcnt({2*(issued-i-1)})")
    a(f"{MF} {vr(40+4*c)}, {vr(8+4*(i&7))}, {vr(56+16*(c&1)+4*k)}, {'0' if k==0 else vr(40+4*c)}")
    if NPRE+i<16: trg(NPRE+i)
a(f"v_pk_add_f32 v[8:9], v[40:41], v[44:45] {NEG}\nv_pk_add_f32 v[10:11], v[42:43], v[46:47] {NEG}\nv_pk_add_f32 v[16:17], v[40:41], v[44:45]\nv_pk_add_f32 v[18:19], v[42:43], v[46:47]")
a("v_cvt_pk_bf16_f32 v24, v8, v9\nv_cvt_pk_bf16_f32 v25, v10, v11\nv_cvt_pk_bf16_f32 v28, v16, v17\nv_cvt_pk_bf16_f32 v29, v18, v19")
a(f"v_pk_add_f32 v[12:13], v[48:49], v[52:53] {NEG}\nv_pk_add_f32 v[14:15], v[50:51], v[54:55] {NEG}\nv_cvt_pk_bf16_f32 v26, v12, v13\nv_cvt_pk_bf16_f32 v27, v14, v15")
a("global_store_dwordx4 v120, v[24:27], s[40:41] sc1")
a("v_pk_add_f32 v[20:21], v[48:49], v[52:53]\nv_pk_add_f32 v[22:23], v[50:51], v[54:55]\nv_cvt_pk_bf16_f32 v30, v20, v21\nv_cvt_pk_bf16_f32 v31, v22, v23")
a("global_store_dwordx4 v121, v[28:31], s[40:41] sc1\ns_setprio 0")
stamp(9)
a("L_p2end:\ns_cmp_ge_u32 s2, 128\ns_cbranch_scc1 L_fin")
read_w()
p3addrB()
a("s_waitcnt lgkmcnt(0)")
for i in range(5):
    a(f"v_dot2c_f32_bf16 v{AC[0]}, s63, v{XA[i]}\nv_dot2c_f32_bf16 v{AC[1]}, v{XA[i]}, v{WA[i]}\nv_dot2c_f32_bf16 v{AC[2]}, v{XA[i]}, v{XA[i]}\nv_dot2c_f32_bf16 v{AC[3]}, s63, v{WA[i]}")
    a(f"v_dot2c_f32_bf16 v{AC[4]}, s63, v{XB[i]}\nv_dot2c_f32_bf16 v{AC[5]}, v{XB[i]}, v{WB[i]}\nv_dot2c_f32_bf16 v{AC[6]}, v{XB[i]}, v{XB[i]}")
if opt("w2",-1)<0: a("s_waitcnt vmcnt(0)\ns_barrier")
else: a(f"s_barrier\ns_sleep {opt('w2',0)}")
stamp(10)
if opt("pre2",0): a(f"s_sleep {opt('pre2',0)}")
def x2win():
    a(f"v_mov_b32 v{AC[7]}, v{AC[3]}\nv_mov_b32 v18, {fhex(1e-5)}\ns_mov_b32 s58, {fhex(1/640)}\ns_movk_i32 s59, 0x7ff")
    for X,hb in ((XA,32),(XB,42)):
        for i in range(5): a(f"v_lshlrev_b32 v{hb+2*i}, 16, v{X[i]}\nv_and_b32 v{hb+1+2*i}, 0xffff0000, v{X[i]}")
    a(f"v_lshlrev_b32 v154, 4, v0\nv_and_b32 v154, 0x1fff, v154\nv_add_u32 v154, {KEYS}, v154\nv_mov_b32 v119, {L_CNT}\ns_mov_b32 s61, 0\ns_movk_i32 s44, 99\ns_movk_i32 s45, 99\ns_cmp_lt_u32 s3, 8\ns_cselect_b64 s[56:57], 1, 0\ns_add_u32 s49, s48, 1")
    a(f"s_lshl_b32 s60, s2, 7\ns_add_u32 s60, s60, {H3}\nv_mov_b32 v155, s60")
poll(["global_load_dwordx2 v[112:113], v128, s[40:41] sc1","global_load_dwordx2 v[114:115], v129, s[40:41] sc1","global_load_dword v116, v130, s[40:41] sc1"],range(112,117),opt("sl2",2),4,between=x2win)
stamp(11)
YA=[112,113,114,117,116]; YB=[112,118,114,115,116]
a("v_and_b32 v117, v115, v131\nv_and_b32 v118, v113, v132")
A0,A1,A2,A3,B0,B1,B2_,B3,C0,C1,C2,C3=AC
for i in (0,2,4,1,3):
    a(f"v_dot2c_f32_bf16 v{C0}, s63, v{YA[i]}\nv_dot2c_f32_bf16 v{C1}, v{YA[i]}, v{YA[i]}\nv_dot2c_f32_bf16 v{C2}, v{YA[i]}, v{XA[i]}\nv_dot2c_f32_bf16 v{C3}, v{YB[i]}, v{XB[i]}")
    a(f"v_dot2c_f32_bf16 v{A1}, v{YA[i]}, v{WA[i]}\nv_dot2c_f32_bf16 v{B1}, v{YB[i]}, v{WB[i]}")
a(f"v_add_f32 v{A0}, v{A0}, v{C0}\nv_add_f32 v{B0}, v{B0}, v{C0}\nv_add_f32 v{A2}, v{A2}, v{C1}\nv_add_f32 v{B2_}, v{B2_}, v{C1}\nv_fmac_f32 v{A2}, 2.0, v{C2}\nv_fmac_f32 v{B2_}, 2.0, v{C3}")
a(f"v_permlane32_swap_b32 v{A0}, v{A1}\nv_permlane32_swap_b32 v{B0}, v{B1}\nv_permlane32_swap_b32 v{A2}, v{A3}\nv_permlane32_swap_b32 v{B2_}, v{B3}")
a(f"v_add_f32 v{A0}, v{A0}, v{A1}\nv_add_f32 v{A2}, v{A2}, v{A3}\nv_add_f32 v{B0}, v{B0}, v{B1}\nv_add_f32 v{B2_}, v{B2_}, v{B3}")
a(f"v_permlane16_swap_b32 v{A0}, v{A2}\nv_permlane16_swap_b32 v{B0}, v{B2_}\nv_add_f32 v{A0}, v{A0}, v{A2}\nv_add_f32 v{B0}, v{B0}, v{B2_}")
for s_ in (8,4,2,1): a(f"v_add_f32_dpp v{A0}, v{A0}, v{A0} row_ror:{s_} {DPPM}\nv_add_f32_dpp v{B0}, v{B0}, v{B0} row_ror:{s_} {DPPM}")
a(f"ds_write_b32 v133, v{A0} offset:{L_ST3}\nds_write_b32 v134, v{B0} offset:{L_ST3}")
a(f"s_waitcnt lgkmcnt(0)\ns_barrier\nds_read_b128 v[76:79], v137 offset:{L_ST3}\ns_waitcnt lgkmcnt(0)")
a("v_mul_f32 v76, s58, v76\nv_fma_f32 v77, v77, s58, v18\nv_fma_f32 v77, -v76, v76, v77\nv_max_f32 v77, v77, v18\nv_rsq_f32 v77, v77\nv_fma_f32 v78, -v76, v79, v78\nv_mul_f32 v78, v78, v77")
a("v_ashrrev_i32 v79, 31, v78\nv_or_b32 v79, 0x80000000, v79\nv_xor_b32 v79, v79, v78\nv_bfi_b32 v79, s59, v135, v79\nv_min_u32 v79, -2, v79")
a("s_cmp_lg_u32 s3, 0\ns_cbranch_scc1 L_nokey\ns_mov_b64 exec, 0xffff\nglobal_store_dword v136, v79, s[40:41] sc1\ns_mov_b64 exec, -1\nL_nokey:")
stamp(12)
a("v_mul_f32 v76, v76, v77\nv_readlane_b32 s8, v77, s48\nv_readlane_b32 s12, v77, s49\nv_readlane_b32 s10, v76, s48\nv_readlane_b32 s18, v76, s49")
a("v_readlane_b32 s20, v79, s48\nv_readlane_b32 s21, v79, s49\nv_readlane_b32 s22, v78, s48\nv_readlane_b32 s23, v78, s49")
a("s_cmp_eq_u32 s50, 0\ns_cselect_b32 s21, 0, s21\nv_mov_b32 v80, s10\nv_mov_b32 v82, s18")
def top2():
    a("v_mov_b32 v4, v79")
    for s_ in (8,4,2,1): a(f"v_max_u32_dpp v4, v4, v4 row_ror:{s_} {DPPM}")
    a("v_cmp_ne_u32 vcc, v4, v79\nv_readfirstlane_b32 s6, v4\nv_cndmask_b32 v79, 0, v79, vcc\nv_mov_b32 v4, v79")
    for s_ in (8,4,2,1): a(f"v_max_u32_dpp v4, v4, v4 row_ror:{s_} {DPPM}")
    a("v_cmp_ne_u32 vcc, v4, v79\nv_readfirstlane_b32 s7, v4\nv_cndmask_b32 v79, 0, v79, vcc")
def hrow(Y,hb,nb,pk,sr,mv):
    for i in range(5):
        a(f"v_lshlrev_b32 v4, 16, v{Y[i]}\nv_and_b32 v5, 0xffff0000, v{Y[i]}\nv_pk_add_f32 v[{hb+2*i}:{hb+1+2*i}], v[{hb+2*i}:{hb+1+2*i}], v[4:5]")
        a(f"v_pk_fma_f32 v[{nb+2*i}:{nb+1+2*i}], v[{hb+2*i}:{hb+1+2*i}], s[{sr}:{sr+1}], v[{mv}:{mv+1}] op_sel_hi:[1,0,0] neg_lo:[0,0,1] neg_hi:[0,0,1]")
        a(f"v_cvt_pk_bf16_f32 v{pk+i}, v{nb+2*i}, v{nb+1+2*i}")
top2()
hrow(YA,32,8,60,8,80)
if opt("b5",1): a("s_waitcnt vmcnt(0)\ns_barrier")
stamp(13)
NH3=opt("nh3",8); H3POS=opt("h3pos",1)
def h3():
    a(f"s_cmp_ge_u32 s2, {NH3}\ns_cbranch_scc1 L_h3\ns_cmp_lg_u32 s3, 7\ns_cbranch_scc1 L_h3")
    store1(155,155)
    a("L_h3:")
if opt("pre3",0): a(f"s_sleep {opt('pre3',0)}")
poll(["global_load_dwordx4 v[72:75], v154, s[40:41] sc1"],range(72,76),opt("sl3",2),4,between=lambda: (hrow(YB,42,20,66,12,82), h3() if H3POS==0 else None))
stamp(14)
if H3POS==1: h3()
a("L_round:")
SP=[24,26,28,30,52,54,16,58]
for i in range(4): a(f"v_cmp_gt_u32_e64 s[{SP[i]}:{SP[i]+1}], v{72+i}, s6")
for i in range(4): a(f"v_cmp_gt_u32_e64 s[{SP[4+i]}:{SP[4+i]+1}], v{72+i}, s7")
for i in range(8): a(f"s_bcnt1_i32_b64 s{SP[i]}, s[{SP[i]}:{SP[i]+1}]")
a("s_add_u32 s24, s24, s26\ns_add_u32 s28, s28, s30\ns_add_u32 s52, s52, s54\ns_add_u32 s16, s16, s58\ns_add_u32 s24, s24, s28\ns_add_u32 s52, s52, s16\ns_lshl_b32 s52, s52, 16\ns_add_u32 s24, s24, s52")
a("v_mov_b32 v4, s24\ns_mov_b64 exec, s[56:57]\nds_add_u32 v119, v4\ns_mov_b64 exec, -1\ns_waitcnt lgkmcnt(0)\ns_barrier\nds_read_b32 v4, v119\ns_waitcnt lgkmcnt(0)")
a("v_readfirstlane_b32 s24, v4\ns_and_b32 s25, s24, 0xffff\ns_lshr_b32 s24, s24, 16\ns_cmp_ge_u32 s25, 8\ns_cbranch_scc1 L_rdone")
for R,(sk,srk,pk,o0) in enumerate(((20,44,60,138),(21,45,66,141))):
    a(f"s_cmp_eq_u32 s{sk}, s7\ns_cselect_b32 s26, s24, 99\ns_cmp_eq_u32 s{sk}, s6\ns_cselect_b32 s26, s25, s26\ns_cmp_ge_u32 s26, 8\ns_cbranch_scc1 L_ns{R}")
    a(f"s_mov_b32 s{srk}, s26\ns_setprio 2\ns_mul_i32 s26, s26, 1280\ns_add_u32 s26, s26, {HN}\nv_add_u32 v4, s26, v{o0}\nv_add_u32 v5, s26, v{o0+1}\nv_add_u32 v6, s26, v{o0+2}")
    a(f"global_store_dwordx2 v4, v[{pk}:{pk+1}], s[40:41] sc1\nglobal_store_dwordx2 v5, v[{pk+2}:{pk+3}], s[40:41] sc1\nglobal_store_dword v6, v{pk+4}, s[40:41] sc1\nL_ns{R}:")
a("s_cmp_ge_u32 s24, 7\ns_cbranch_scc1 L_rdone\ns_cmp_ge_u32 s61, 3\ns_cbranch_scc1 L_rdone\ns_add_u32 s61, s61, 1\nv_add_u32 v119, 4, v119")
top2()
a("s_branch L_round\nL_rdone:")
stamp(15)
for R,(hb,nb,pk) in enumerate(((32,8,60),(42,20,66))):
    for i in range(5):
        a(f"v_pk_add_f32 v[4:5], v[{hb+2*i}:{hb+1+2*i}], v[{nb+2*i}:{nb+1+2*i}]\nv_cvt_pk_bf16_f32 v{pk+14+i}, v4, v5")
a(f"ds_write_b64 v125, v[74:75]\nds_write_b64 v125, v[76:77] offset:{8*U}\nds_write_b32 v126, v78 offset:{16*U}\ns_cmp_eq_u32 s50, 0\ns_cbranch_scc1 L_nob")
a(f"ds_write_b64 v125, v[80:81] offset:{RS+10*U}\nds_write_b64 v127, v[82:83] offset:{RS}\nds_write_b32 v126, v84 offset:{RS+6*U}\nL_nob:")
for i in range(10):
    t=4+2*(i&1)
    a(f"v_add_u32_sdwa v{t}, v{144+i}, v156 {SD.format(0)}\nv_add_u32_sdwa v{t+1}, v{144+i}, v156 {SD.format(1)}")
    a(f"ds_read_u16 v{8+i}, v{t}\nds_read_u16 v{20+i}, v{t+1}")
a("s_mov_b32 s24, 0x00ff00ff\ns_cmp_lt_u32 s44, 8\ns_cselect_b32 s26, 0, s24\ns_cselect_b32 s28, s24, 0\ns_not_b32 s24, s24\ns_cmp_lt_u32 s45, 8\ns_cselect_b32 s27, 0, s24\ns_cselect_b32 s29, s24, 0")
a("s_cmp_eq_u32 s50, 0\ns_cselect_b32 s27, 0, s27\ns_or_b32 s26, s26, s27\ns_mov_b32 s27, s26\ns_or_b32 s28, s28, s29\ns_mov_b32 s29, s28\ns_waitcnt lgkmcnt(0)")
for i in range(10): a(f"v_lshl_or_b32 v{8+i}, v{20+i}, 16, v{8+i}")
a("s_cmp_eq_u32 s28, 0\ns_cbranch_scc1 L_nosel")
a("v_cmp_lt_u32 vcc, 7, v3\nv_mov_b32 v4, s44\nv_mov_b32 v5, s45\nv_cndmask_b32 v20, v4, v5, vcc\nv_mov_b32 v4, s46\nv_mov_b32 v5, s47\nv_cndmask_b32 v22, v4, v5, vcc\nv_mov_b32 v4, s22\nv_mov_b32 v5, s23\nv_cndmask_b32 v23, v4, v5, vcc")
a(f"v_and_b32 v20, 7, v20\nv_mul_u32_u24 v21, 1280, v20\nv_add_u32 v21, {BASE}, v21\nv_lshl_add_u32 v21, v2, 6, v21\nv_and_b32 v4, 7, v0\nv_lshl_add_u32 v21, v4, 3, v21\nv_lshlrev_b32 v20, 6, v20\nv_add_u32 v20, {META}, v20")
a("v_mul_f32 v23, 0xbfb8aa3b, v23\nv_exp_f32 v23, v23\ns_mov_b64 exec, s[28:29]\nv_add_f32 v23, 1.0, v23\nv_rcp_f32 v23, v23")
for i in range(5): a(f"global_store_dwordx2 v21, v[{8+2*i}:{9+2*i}], s[40:41] offset:{256*i} sc1")
a("s_and_b32 exec_lo, s28, 0x0101\ns_mov_b32 exec_hi, 0\nglobal_store_dwordx2 v20, v[22:23], s[40:41] sc1\ns_mov_b64 exec, -1\nL_nosel:")
a("s_cmp_eq_u32 s26, 0\ns_cbranch_scc1 L_noout\ns_mov_b64 exec, s[26:27]")
for i in range(5): a(f"global_store_dwordx2 v158, v[{8+2*i}:{9+2*i}], s[36:37] offset:{256*i} {OUTF}")
a("s_mov_b64 exec, -1\nL_noout:")
a("s_or_b32 s24, s2, s3\ns_cbranch_scc1 L_fin")
a("s_load_dword s16, s[40:41], 0\nv_mov_b32 v4, 0\ns_waitcnt lgkmcnt(0)\ns_add_u32 s16, s16, 1\nv_mov_b32 v5, s16\ns_mov_b64 exec, 1\nglobal_store_dword v4, v5, s[40:41]\ns_mov_b64 exec, -1\ns_branch L_fin")
flush_tail()
a("L_rows0:\ns_add_u32 s44, s3, 8\ns_add_u32 s46, s46, 128\ns_sub_u32 s47, 2048, s46\ns_cmp_lt_u32 s3, 4\ns_cbranch_scc1 L_rows")
a("s_sub_u32 s44, s3, 3\ns_sub_u32 s45, 11, s3\ns_lshl_b32 s46, s44, 8\ns_sub_u32 s47, 2048, s46\ns_cmp_lt_u32 s3, 7\ns_cbranch_scc1 L_rows")
a("s_mov_b32 s44, 0\ns_mov_b32 s50, 0\ns_min_u32 s48, s48, 15\ns_movk_i32 s47, 1024\ns_cmp_eq_u32 s3, 7\ns_cselect_b32 s46, 0, s47\ns_branch L_rows")
a("L_a8b:\nv_mov_b32 v112, 0\nv_mov_b32 v113, 0\nv_mov_b32 v120, 0\nv_mov_b32 v121, 0")
a(f"s_cmp_eq_u32 s3, 8\ns_cbranch_scc1 L_b1\nv_mov_b32 v156, {L_WP}\nv_and_b32 v4, 7, v0\nv_lshlrev_b32 v4, 3, v4\nv_lshl_add_u32 v4, v2, 6, v4\ns_waitcnt lgkmcnt(0)")
for i in range(5): a(f"global_load_dwordx2 v[{8+2*i}:{9+2*i}], v4, s[28:29] offset:{256*i}")
stamp(2)
a("s_branch L_b1")
a("L_a8:\ns_cmp_eq_u32 s3, 10\ns_cbranch_scc1 L_a10\ns_setprio 0\ns_branch L_gtrig")
a("L_a10:\nv_lshlrev_b32 v157, 4, v1\ns_bfe_u32 s5, s2, 0x10003\ns_mov_b32 s15, 0")
a("s_setprio 1\ns_lshl_b32 s7, s2, 7\ns_waitcnt lgkmcnt(0)\ns_load_dword s6, s[40:41], 0")
LATE10=f"s_movk_i32 m0, {L_PM}\nglobal_load_lds_dwordx4 v157, s[42:43]\nglobal_load_lds_dwordx4 v157, s[42:43] offset:1024"
a(f"s_add_u32 s7, s7, {WS_FA}\nv_mov_b32 v18, s7\ns_sub_u32 s7, 256, s2\ns_cmp_eq_u32 s2, 0\ns_cselect_b32 s7, 128, s7")
a("v_lshrrev_b32 v20, 1, v3\nv_and_b32 v21, 1, v0\nv_lshrrev_b32 v22, 1, v2\nv_and_b32 v23, 1, v2")
a("v_mov_b32 v24, s7\nv_mov_b32 v25, s2\nv_cmp_eq_u32 vcc, 1, v22\nv_cndmask_b32 v24, v25, v24, vcc\nv_lshl_add_u32 v24, v23, 10, v24")
a("v_subrev_u32 v25, 4, v20\nv_mul_i32_i24 v24, v24, v25\nv_lshl_add_u32 v24, v21, 9, v24")
a("v_cmp_gt_u32 vcc, v22, v21\ns_cmp_lg_u32 s2, 0\ns_cselect_b32 s49, 1024, 0\nv_mov_b32 v25, s49\nv_cndmask_b32 v25, 0, v25, vcc\nv_add_u32 v24, v24, v25\nv_and_b32 v24, 2047, v24")
a(f"v_cvt_f32_u32 v24, v24\nv_cvt_f32_u32 v25, v20\nv_mul_f32 v24, {fhex(1/2048)}, v24\nv_mul_f32 v25, {fhex(0.125)}, v25")
a("v_cmp_eq_u32 vcc, v22, v21\ns_cselect_b64 s[52:53], -1, 0\ns_or_b64 vcc, vcc, s[52:53]")
for i in range(4):
    a(f"v_cos_f32 v{60+i}, v24\nv_sin_f32 v{64+i}, v24")
    if i<3: a("v_add_f32 v24, v24, v25")
for i in range(8): a(f"v_cndmask_b32 v{60+i}, 0, v{60+i}, vcc")
a(f"v_mov_b32 v20, 0\nv_mov_b32 v21, 0\nv_mov_b32 v22, 0\nv_mov_b32 v23, 0\nds_write_b128 v157, v[20:23] offset:{L_ZERO}")
a(f"s_mov_b32 s60, {fhex(1/640)}\ns_mov_b32 s61, {fhex(1/640)}\nv_mov_b32 v86, {fhex(1e-5)}\nv_mov_b32 v87, {fhex(1e-5)}\nv_lshlrev_b32 v166, 4, v2")
a(LATE10)
stamp(1)
a("s_waitcnt vmcnt(0) lgkmcnt(0)\ns_add_u32 s6, s6, 1")
def flagA(): a("s_mov_b64 exec, 0xff\nglobal_store_dwordx4 v18, v[12:15], s[40:41] sc1\ns_mov_b64 exec, -1")
stamp(2)
a("s_setprio 3\ns_barrier")
stamp(4)
def smat():
    a(f"ds_read_b128 v[32:35], v166 offset:{L_SUM}\nds_read_b128 v[36:39], v166 offset:{L_SQ}")
    a("s_waitcnt lgkmcnt(0)")
    a("v_pk_mul_f32 v[32:33], v[32:33], s[60:61]\nv_pk_mul_f32 v[34:35], v[34:35], s[60:61]\nv_pk_fma_f32 v[36:37], v[36:37], s[60:61], v[86:87]\nv_pk_fma_f32 v[38:39], v[38:39], s[60:61], v[86:87]")
    a("v_pk_fma_f32 v[36:37], v[32:33], v[32:33], v[36:37] neg_lo:[1,0,0] neg_hi:[1,0,0]\nv_pk_fma_f32 v[38:39], v[34:35], v[34:35], v[38:39] neg_lo:[1,0,0] neg_hi:[1,0,0]")
    for i in range(4): a(f"v_max_f32 v{36+i}, v{36+i}, v86")
    for i in range(4): a(f"v_rsq_f32 v{36+i}, v{36+i}")
    a("v_pk_mul_f32 v[60:61], v[60:61], v[36:37]\nv_pk_mul_f32 v[64:65], v[64:65], v[36:37]\nv_pk_mul_f32 v[62:63], v[62:63], v[38:39]\nv_pk_mul_f32 v[66:67], v[66:67], v[38:39]")
    a("v_cvt_pk_bf16_f32 v32, v60, v61\nv_cvt_pk_bf16_f32 v33, v62, v63\nv_cvt_pk_bf16_f32 v34, v64, v65\nv_cvt_pk_bf16_f32 v35, v66, v67")
    a(f"ds_write_b128 v157, v[32:35] offset:{L_SM}")
poll(["global_load_dword v20, v18, s[40:41] sc1"],None,opt("slf",1),None,chk="v_cmp_ne_u32 vcc, s6, v20",between=smat)
a("s_waitcnt lgkmcnt(0)\ns_barrier\ns_setprio 0")
stamp(5)
NGO=opt("ngo",8)
a("L_flagchk:")
a(f"s_and_b32 s7, s2, {NGO-1}\ns_lshl_b32 s7, s7, 7\ns_add_u32 s7, s7, {WS_GO}\nv_mov_b32 v4, s7\ns_mov_b64 exec, 1")
poll(["global_load_dword v20, v4, s[40:41] sc1"],None,opt("slf",1),None,chk="v_cmp_ne_u32 vcc, s6, v20")
stamp(6)
a("s_waitcnt lgkmcnt(0)\ns_barrier\ns_cmp_lt_u32 s2, 160\ns_cbranch_scc1 L_fin")
NH4=opt("nh4",8)
a(f"s_cmp_ge_u32 s2, 216\ns_cselect_b32 s7, {NH4-1}, {NH3-1}\ns_cselect_b32 s8, {H4-H3}, 0\ns_add_u32 s8, s8, {H3}\nv_min_u32 v4, s7, v1\nv_lshl_add_u32 v4, v4, 7, s8")
poll(["global_load_dword v20, v4, s[40:41] sc1"],[20],opt("slh",1),None)
stamp(14)
a("s_barrier\ns_branch L_fin")
a("L_bf:\nv_lshlrev_b32 v157, 4, v1\ns_bfe_u32 s5, s2, 0x10003\ns_mov_b32 s15, 0\ns_sub_u32 s4, s2, 128\ns_cmp_lg_u32 s3, 10\ns_cbranch_scc1 L_bf1")
a(f"s_sub_u32 s8, s42, T_0-{KN}\ns_subb_u32 s9, s43, 0\ns_lshr_b32 s10, s4, 3\ns_lshl_b32 s10, s10, 10\nv_lshl_add_u32 v4, v1, 7, s10\nv_min_u32 v4, T_end-{KN}-4, v4\ns_mov_b64 exec, 0xff\nglobal_load_dword v8, v4, s[8:9]\ns_mov_b64 exec, -1")
a("L_bf1:")
a(f"s_lshl_b32 s7, s3, 7\ns_add_u32 s7, s7, s4\ns_lshl_b32 s7, s7, 7\ns_add_u32 s7, s7, {WS_I}\nv_lshrrev_b32 v5, 3, v1\nv_mul_u32_u24 v5, 0x28000, v5\nv_lshl_add_u32 v5, v6, 4, v5\nv_add_u32 v5, s7, v5")
a(f"s_mul_i32 s7, s4, 10\ns_add_u32 s7, s7, s3\ns_lshl_b32 s7, s7, 10\ns_add_u32 s7, s7, {WS_Y}\ns_lshl_b32 s8, s4, 9\ns_add_u32 s8, s8, {WS_SMALL}\ns_cmp_eq_u32 s3, 10\ns_cselect_b32 s7, s8, s7\ns_cselect_b32 exec_hi, 0, -1\nv_add_u32 v7, s7, v157")
a("v_mov_b32 v12, -1\nv_mov_b32 v13, -1\nv_mov_b32 v14, -1\nv_mov_b32 v15, -1\ns_waitcnt lgkmcnt(0)\ns_load_dword s6, s[40:41], 0")
a("s_cbranch_scc1 L_bf2\nglobal_store_dwordx4 v5, v[12:15], s[40:41] sc1\nL_bf2:\nglobal_store_dwordx4 v7, v[12:15], s[40:41] sc1\ns_mov_b64 exec, -1")
stamp(1)
a("s_waitcnt vmcnt(0) lgkmcnt(0)\ns_barrier")
stamp(2)
a("s_setprio 0\ns_cmp_lt_u32 s3, 8\ns_cbranch_scc1 L_bf3\ns_cmp_eq_u32 s3, 8\ns_cbranch_scc1 L_bf8\ns_cmp_eq_u32 s3, 9\ns_cbranch_scc1 L_fin")
a(f"s_lshl_b32 s7, s4, 7\ns_add_u32 s7, s7, {WS_FA}\nv_add_u32 v18, s7, v157\ns_add_u32 s6, s6, 1\nv_mov_b32 v12, s6\nv_mov_b32 v13, s6\nv_mov_b32 v14, s6\nv_mov_b32 v15, s6")
flagA()
a("s_cmp_ge_u32 s2, 160\ns_cbranch_scc1 L_bf4")
a(f"s_waitcnt vmcnt(0)\ns_branch L_flagchk\nL_bf4:\ns_and_b32 s7, s2, 254\ns_cmp_eq_u32 s7, 214\ns_cbranch_scc1 L_fin\ns_sleep {opt('slb',60)}\ns_branch L_flagchk")
a("L_bf3:\ns_cmp_ge_u32 s2, 160\ns_cbranch_scc1 L_f\nv_mov_b32 v122, 0\nv_mov_b32 v123, 0\nv_mov_b32 v124, 0\nv_mov_b32 v158, 0")
p2addr()
a("s_branch L_b2")
a("L_f:")
if opt("fdel",2): a(f"s_sleep {opt('fdel',2)}")
a("s_cmp_ge_u32 s2, 216\ns_cbranch_scc1 L_f2\ns_cmp_lt_u32 s2, 214\ns_cbranch_scc1 L_f1")
a(f"s_cmp_lg_u32 s2, 214\ns_cbranch_scc1 L_fin\ns_cmp_ge_u32 s3, 2\ns_cbranch_scc1 L_fin\ns_add_u32 s6, s6, 1\nv_lshlrev_b32 v4, 7, v0\nv_add_u32 v4, {WS_FA}, v4\nv_add_u32 v5, {WS_GO}, v157")
a("v_mov_b32 v12, s6\nv_mov_b32 v13, s6\nv_mov_b32 v14, s6\nv_mov_b32 v15, s6")
poll(["global_load_dword v20, v4, s[40:41] sc1"],None,opt("sla",0),None,chk="v_cmp_ne_u32 vcc, s6, v20")
a("s_barrier")
stamp(6)
if opt("gdel",0): a(f"s_sleep {opt('gdel',0)}")
a("s_cmp_lg_u32 s3, 0\ns_cbranch_scc1 L_fin\nglobal_store_dwordx4 v5, v[12:15], s[40:41] sc1\ns_branch L_fin\nL_f1:")
a("s_sub_u32 s49, s2, 160\ns_and_b32 s50, s49, 7\ns_lshr_b32 s56, s49, 4\ns_lshl3_add_u32 s50, s56, s50\ns_lshl1_add_u32 s50, s50, s5\ns_cmp_ge_u32 s49, 48\ns_cselect_b32 s50, s49, s50")
a(f"s_mul_i32 s56, s3, 80\ns_lshl_b32 s57, s50, 6\nv_lshrrev_b32 v4, 2, v1\nv_mul_u32_u24 v6, 80, v4\nv_add_u32 v4, s56, v4\nv_and_b32 v5, 3, v0\nv_lshl_add_u32 v7, v5, 4, s57\ns_movk_i32 s56, 3456")
for i in range(5): a(f"v_add_u32 v5, {16*i}, v4\nv_lshrrev_b32 v13, 5, v5\nv_and_b32 v5, 31, v5\nv_mad_u32_u24 v5, v5, 20, v13\nv_mad_u32_u24 v{8+i}, v5, s56, v7")
a(f"s_mul_i32 s58, s3, 5120\ns_add_u32 s59, s58, {UPO}\ns_bitcmp1_b32 s50, 0\ns_cselect_b64 s[8:9], s[32:33], s[30:31]\ns_cselect_b64 s[10:11], s[30:31], s[32:33]\ns_cselect_b32 s60, s59, s58\ns_cselect_b32 s61, s58, s59")
for h in range(2):
    for i in range(5):
        a(f"s_add_u32 m0, s{60+h}, {1024*i}\nglobal_load_lds_dwordx4 v{8+i}, s[{8+2*h}:{9+2*h}]")
a("s_cmp_ge_u32 s3, 4\ns_cbranch_scc1 L_f1a")
for i in range(5): a(f"global_load_dwordx4 {vr(104+4*i)}, v6, s[42:43] offset:{TO_W+16*i}")
a("L_f1a:")
a(f"s_mul_i32 s16, s3, 1280\ns_add_u32 s16, s16, {HN}\nv_lshlrev_b32 v158, 2, v1\nv_add_u32 v162, s16, v157\nv_add_u32 v163, s16, v158")
a(f"s_mul_i32 s16, s3, {XSS}\ns_add_u32 s16, s16, {L_XS}\nv_add_u32 v157, s16, v157\nv_add_u32 v158, s16, v158")
a(f"v_and_b32 v164, 7, v0\nv_mul_u32_u24 v165, {XSS}, v164\nv_lshl_add_u32 v165, v2, 4, v165\nv_bfe_u32 v166, v0, 3, 1\nv_lshl_add_u32 v165, v166, 6, v165\nv_add_u32 v165, {L_XS}, v165")
a(f"s_lshl2_add_u32 s16, s50, s3\ns_lshl_b32 s16, s16, 7\ns_add_u32 s16, s16, {ACT}\nv_lshl_add_u32 v164, v164, 4, s16\nv_and_b32 v166, 1, v2\nv_lshl_add_u32 v164, v166, 3, v164\nv_lshrrev_b32 v166, 1, v2\nv_lshl_add_u32 v164, v166, 2, v164")
a(f"s_mov_b32 s18, 0x00ff00ff\ns_mov_b32 s19, 0x00ff00ff\ns_lshl_b32 s16, s49, 7\ns_add_u32 s16, s16, {H4}\nv_mov_b32 v167, s16")
a(f"v_and_b32 v4, 1, v0\nv_lshlrev_b32 v4, 3, v4\nv_bfe_u32 v5, v0, 1, 1\nv_mul_u32_u24 v5, {UPO}, v5\ns_lshl_b32 s56, s3, 4\nv_add3_u32 v7, v4, v5, s56")
stamp(3)
a("s_waitcnt vmcnt(0)\ns_barrier")
stamp(4)
a("s_cmp_ge_u32 s3, 4\ns_cbranch_scc1 L_f1w")
for k in range(20):
    a(f"v_add_u32_sdwa v4, v{104+k}, v7 {SD.format(0)}\nv_add_u32_sdwa v5, v{104+k}, v7 {SD.format(1)}")
    a(f"ds_read_b64_tr_b16 v[{8+4*k}:{9+4*k}], v4\nds_read_b64_tr_b16 v[{10+4*k}:{11+4*k}], v5")
a("s_waitcnt lgkmcnt(0)\nL_f1w:")
stamp(5)
a("s_barrier")
stamp(14)
if opt("pre4",0): a(f"s_sleep {opt('pre4',0)}")
def h4(lbl):
    a(f"s_cmp_lg_u32 s3, 7\ns_cbranch_scc1 {lbl}\ns_cmp_ge_u32 s49, {NH4}\ns_cbranch_scc1 {lbl}")
    store1(167,167)
H4POS=opt("h4pos",1)
poll(["global_load_dwordx4 v[152:155], v162, s[40:41] sc1","global_load_dword v156, v163, s[40:41] offset:1024 sc1"],range(152,157),opt("sl4",2),166)
stamp(15)
a(f"ds_write_b128 v157, v[152:155]\nds_write_b32 v158, v156 offset:1024")
if H4POS==0: h4("L_h4"); a("L_h4:")
a("s_waitcnt lgkmcnt(0)\ns_barrier\ns_cmp_lt_u32 s3, 4\ns_cbranch_scc1 L_p4")
if H4POS==1: h4("L_fin")
a("s_branch L_fin\nL_p4:")
for i in range(10): a(f"ds_read_b128 {vr(104+4*i)}, v165 offset:{128*i}")
for i in range(10):
    a(f"s_waitcnt lgkmcnt({9-i})")
    a(f"{MF} v[144:147], {vr(8+8*i)}, {vr(104+4*i)}, {'0' if i==0 else 'v[144:147]'}\n{MF} v[148:151], {vr(12+8*i)}, {vr(104+4*i)}, {'0' if i==0 else 'v[148:151]'}")
for i in range(4): a(f"v_add_f32_dpp v{144+i}, v{148+i}, v{144+i} row_ror:8 {DPPM}")
a("v_permlane32_swap_b32 v144, v146\nv_permlane32_swap_b32 v145, v147")
a("v_mul_f32 v148, 0xbfb8aa3b, v144\nv_mul_f32 v149, 0xbfb8aa3b, v145\nv_exp_f32 v148, v148\nv_exp_f32 v149, v149\nv_mul_f32 v144, v144, v146\nv_mul_f32 v145, v145, v147")
a("v_add_f32 v148, 1.0, v148\nv_add_f32 v149, 1.0, v149\nv_rcp_f32 v148, v148\nv_rcp_f32 v149, v149\ns_mov_b64 exec, s[18:19]\nv_mul_f32 v144, v144, v148\nv_mul_f32 v145, v145, v149\nv_cvt_pk_bf16_f32 v144, v144, v145")
a("global_store_dword v164, v144, s[40:41] sc1\ns_mov_b64 exec, -1")
stamp(16)
a("s_branch L_fin")
a("L_bf8:\ns_cmp_lt_u32 s2, 216\ns_cbranch_scc1 L_fin\nL_f2:")
a("s_sub_u32 s50, s2, 216\ns_and_b32 s51, s50, 7\ns_mul_i32 s51, s51, 5\ns_lshr_b32 s50, s50, 3\ns_add_u32 s51, s50, s51\ns_lshl_b32 s51, s51, 5\nv_and_b32 v164, 7, v0\nv_bfe_u32 v165, v0, 3, 1\ns_cmp_eq_u32 s3, 8\ns_cbranch_scc1 L_f2e")
a("v_lshrrev_b32 v4, 1, v1\nv_mul_u32_u24 v4, 1280, v4\nv_and_b32 v5, 1, v0\nv_lshl_add_u32 v4, v5, 4, v4\ns_mul_i32 s56, s3, 81920\ns_add_u32 s56, s56, s51\nv_add_u32 v4, s56, v4\ns_lshl_b32 s58, s3, 13")
a("s_cmp_ge_u32 s3, 3\ns_cselect_b32 s61, 2, 3")
for i in range(4):
    a(f"s_add_u32 s59, s50, {i}\ns_and_b32 s59, s59, 3\ns_min_u32 s60, s59, s61\ns_mul_i32 s60, s60, 655360\ns_lshl_b32 s59, s59, 11\ns_add_u32 m0, s59, s58\nv_add_u32 v5, s60, v4\nglobal_load_lds_dwordx4 v5, s[34:35]")
    a(f"s_add_u32 m0, m0, 1024\nv_add_u32 v5, 40960, v5\nglobal_load_lds_dwordx4 v5, s[34:35]")
a(f"v_lshlrev_b32 v162, 4, v164\nv_lshl_add_u32 v162, v2, 7, v162\nv_lshl_add_u32 v162, v165, 9, v162\ns_lshl_b32 s16, s3, 10\ns_add_u32 s17, s16, {ACT}\nv_add_u32 v162, s17, v162")
a(f"v_add_u32 v163, 0x2000, v162\nv_add_u32 v166, 0x4000, v162\ns_lshl_b32 s61, s61, 13\nv_add_u32 v167, s61, v162\ns_add_u32 s16, s16, {L_XS}\nv_add_u32 v157, s16, v157")
a("v_lshrrev_b32 v4, 2, v3\nv_lshl_add_u32 v4, v2, 3, v4\nv_lshlrev_b32 v4, 5, v4\nv_and_b32 v5, 3, v0\nv_lshl_add_u32 v4, v5, 3, v4\nv_add_u32 v4, s58, v4")
stamp(3)
a("s_waitcnt vmcnt(0)")
stamp(4)
for k in range(8):
    a(f"ds_read_b64_tr_b16 v[{8+4*k}:{9+4*k}], v4 offset:{1024*k}\nds_read_b64_tr_b16 v[{10+4*k}:{11+4*k}], v4 offset:{1024*k+128}")
a("s_waitcnt lgkmcnt(0)\ns_cmp_lt_u32 s3, 3\ns_cbranch_scc1 L_p5a")
for i in range(8): a(f"v_mov_b32 v{32+i}, 0")
a("L_p5a:\ns_barrier")
stamp(5)
a("s_barrier")
stamp(14)
if opt("pre5",0): a(f"s_sleep {opt('pre5',0)}")
poll(["global_load_dwordx4 v[40:43], v162, s[40:41] sc1","global_load_dwordx4 v[44:47], v163, s[40:41] sc1","global_load_dwordx4 v[48:51], v166, s[40:41] sc1","global_load_dwordx4 v[52:55], v167, s[40:41] sc1"],range(40,56),opt("sl5",2),114)
stamp(15)
for i in range(4):
    a(f"{MF} v[72:75], {vr(8+8*i)}, {vr(40+4*i)}, {'0' if i==0 else 'v[72:75]'}\n{MF} v[76:79], {vr(12+8*i)}, {vr(40+4*i)}, {'0' if i==0 else 'v[76:79]'}")
for i in range(4): a(f"v_add_f32_dpp v{72+i}, v{76+i}, v{72+i} row_ror:8 {DPPM}")
a(f"ds_write_b128 v157, v[72:75]\ns_waitcnt lgkmcnt(0)\ns_barrier\ns_branch L_fin\nL_f2e:")
a(f"v_lshlrev_b32 v104, 6, v164\nv_add_u32 v104, {META}, v104\nv_mul_u32_u24 v105, 1280, v164\nv_lshl_add_u32 v106, v2, 3, s51\nv_add_u32 v105, v105, v106\nv_add_u32 v105, {BASE}, v105")
a(f"v_lshl_add_u32 v62, v2, 4, v164\nv_lshlrev_b32 v62, 4, v62\nv_lshl_add_u32 v62, v165, 12, v62\nv_add_u32 v62, {L_XS}, v62\ns_mov_b32 s18, 0x00ff00ff\ns_mov_b32 s19, 0x00ff00ff")
a("s_barrier\ns_barrier")
poll(["global_load_dwordx2 v[60:61], v104, s[40:41] sc1","global_load_dwordx2 v[58:59], v105, s[40:41] sc1"],range(58,62),opt("slm",2),114)
a("v_lshlrev_b32 v64, 16, v58\nv_and_b32 v65, 0xffff0000, v58\nv_lshlrev_b32 v66, 16, v59\nv_and_b32 v67, 0xffff0000, v59")
a("v_and_b32 v60, 2047, v60\nv_mul_u32_u24 v60, 1280, v60\nv_add_u32 v60, v60, v106")
stamp(13)
a("s_barrier")
for i in range(4): a(f"ds_read_b128 {vr(72+4*i)}, v62 offset:{1024*i}")
a("s_waitcnt lgkmcnt(0)")
a("v_pk_add_f32 v[72:73], v[72:73], v[76:77]\nv_pk_add_f32 v[74:75], v[74:75], v[78:79]\nv_pk_add_f32 v[80:81], v[80:81], v[84:85]\nv_pk_add_f32 v[82:83], v[82:83], v[86:87]\nv_pk_add_f32 v[72:73], v[72:73], v[80:81]\nv_pk_add_f32 v[74:75], v[74:75], v[82:83]")
for i in range(4): a(f"v_add_f32_dpp v{72+i}, v{72+i}, v{72+i} row_ror:8 {DPPM}")
a("s_mov_b64 exec, s[18:19]")
for i in range(4): a(f"v_fma_f32 v{72+i}, v{72+i}, v61, v{64+i}")
a(f"v_cvt_pk_bf16_f32 v72, v72, v73\nv_cvt_pk_bf16_f32 v73, v74, v75\nglobal_store_dwordx2 v60, v[72:73], s[36:37] {OUTF}\ns_mov_b64 exec, -1")
stamp(16)
a("L_fin:")
if STAMP:
    a("s_waitcnt vmcnt(0)")
    stamp(17)
    if "probe" in kw:
        k=int(kw["probe"])
        a(f"s_waitcnt lgkmcnt(0)\ns_cmp_ge_u32 s3, {opt('pw',4)}\ns_cbranch_scc1 L_end\ns_cmp_lt_u32 s3, {opt('pw0',0)}\ns_cbranch_scc1 L_end\ns_cmp_lt_u32 s2, {opt('plo',0)}\ns_cbranch_scc1 L_end\ns_cmp_ge_u32 s2, {opt('phi',256)}\ns_cbranch_scc1 L_end")
        a(f"s_add_u32 s16, s{64+2*k}, 4000\nL_spin:\ns_sleep 1\ns_memrealtime s[18:19]\ns_waitcnt lgkmcnt(0)\ns_sub_u32 s17, s16, s18\ns_cmp_lt_u32 s17, 4001\ns_cbranch_scc1 L_spin\ns_endpgm")
    else:
        a(f"s_waitcnt lgkmcnt(0)")
        for k in range(NST): a(f"v_writelane_b32 v5, s{64+2*k}, {k}")
        a(f"v_writelane_b32 v5, s15, 31\ns_mul_i32 s16, s2, {NW}\ns_add_u32 s16, s16, s3\ns_lshl_b32 s16, s16, 7\ns_add_u32 s16, s16, {WS_STAMP}\nv_lshl_add_u32 v4, v1, 2, s16\ns_mov_b32 exec_hi, 0\nglobal_store_dword v4, v5, s[40:41]")
a("L_end:\ns_endpgm")
flush_tail()
if opt("now",0): a.L=[l for l in a.L if not ("global_load_lds" in l and "s[42:43]" not in l)]
if kw.get("wf"): a.L=[l+" "+kw["wf"] if ("global_load_lds" in l and "s[42:43]" not in l) else l for l in a.L]
body=a.finish()
small=np.zeros(1536,np.uint16)
small[0:768]=T.t_pm().reshape(-1); small[768:768+640]=T.t_w().reshape(-1)
tab=".p2align 7\n.type T_0,@object\nT_0:\n"+T.emit(small)+"T_end:\n"
txt=f"""; FNet (hidden DFT 20x32, sequence DFT 8x256 with real/Hermitian folding) + LayerNorm + top-8 SwiGLU, one persistent launch.
; @launch grid=(256,1,1) block=({64*NW},1,1) lds={LDS_BYTES}
.amdgcn_target "amdgcn-amd-amdhsa--gfx950"
.text
.globl {KN}
.p2align 8
.type {KN},@function
{body}
{tab}.section .rodata,"a"
.p2align 6
.amdhsa_kernel {KN}
  .amdhsa_next_free_vgpr 168
  .amdhsa_next_free_sgpr 102
  .amdhsa_accum_offset 168
  .amdhsa_group_segment_fixed_size 0
  .amdhsa_kernarg_size 104
  .amdhsa_user_sgpr_count 2
  .amdhsa_user_sgpr_kernarg_segment_ptr 1
  .amdhsa_system_sgpr_workgroup_id_x 1
.end_amdhsa_kernel
"""
open(outp,"w").write(txt)
print("nops inserted",a.nops,"bytes",len(txt),file=sys.stderr)
```

```python
import sys, struct
sys.path.insert(0,"gen")
from asmlib import Asm
import tables4 as T
import numpy as np
KN="sequential_preLN__spectral_fnet__moe_arch_mod__prompt_kernel"
kw=dict(a.split("=") for a in sys.argv[2:])
outp=sys.argv[1]
STAMP=int(kw.get("stamp",0))
def opt(n,d): return int(kw.get(n,d))
def fhex(f): return hex(struct.unpack("<I",struct.pack("<f",f))[0])
WS_GO=0x1000; WS_FA=0x8000; WS_SMALL=0x10000; KEYS=0x10000; HN=0x12000; H3=0x14800; BASE=0x15000; META=0x17800; ACT=0x18000; H4=0x1F000
WS_I=0x20000; WS_Y=0x160000; WS_STAMP=0x300000
TO_PM=0; TO_W=1536; TO_P2=3072
U=T.US; RS=T.RS
L_ZERO=20480; L_SUM=21504; L_SQ=21568; L_ST3=21632; L_CNT=21952; L_SM=22528; L_WP=23552; L_PM=25088; L_XP=27136; L_P2=0; L_TAB=52224
L_XS=82048; XSS=1296; UPO=40992; LDS_BYTES=L_XS+10368
assert L_XP+17*RS<=L_TAB and L_TAB+32768<=LDS_BYTES
LIMIT=3000; NW=11
OUTF=kw.get("outf","").replace("+"," ")
a=Asm()
NST=18
def stamp(k):
    if STAMP: a(f"s_memrealtime s[{64+2*k}:{65+2*k}]")
def lg(n): a(f"s_waitcnt lgkmcnt({0 if STAMP else n})")
pc=[0]; tail=[]
def poll(loads, regs, sleep, tmp, between=None, chk=None):
    k=pc[0]; pc[0]+=1
    for l in loads: a(l)
    if between: between()
    a(f"LW{k}:\ns_waitcnt vmcnt(0)")
    if chk: a(chk)
    else:
        r=list(regs)
        if len(r)==1: tmp=r[0]; r=[]
        elif len(r)%2==1: a(f"v_max3_u32 v{tmp}, v{r[0]}, v{r[1]}, v{r[2]}"); r=r[3:]
        else: a(f"v_max_u32 v{tmp}, v{r[0]}, v{r[1]}"); r=r[2:]
        while r: a(f"v_max3_u32 v{tmp}, v{tmp}, v{r[0]}, v{r[1]}"); r=r[2:]
        a(f"v_cmp_eq_u32 vcc, -1, v{tmp}")
    a(f"s_cbranch_vccnz LR{k}\nLD{k}:\ns_mov_b64 exec, -1")
    tail.append(f"LR{k}:\ns_add_u32 s15, s15, 1\ns_cmp_lt_u32 s15, {LIMIT}\ns_cbranch_scc0 LD{k}\ns_mov_b64 exec, vcc\n"+(f"s_sleep {sleep}\n" if sleep else "")+"\n".join(loads)+f"\ns_branch LW{k}")
def flush_tail():
    for t in tail: a(t)
    tail.clear()
DPPM="row_mask:0xf bank_mask:0xf"
MF="v_mfma_f32_16x16x32_bf16"
SD="dst_sel:DWORD dst_unused:UNUSED_PAD src0_sel:WORD_{} src1_sel:DWORD"
NEG="neg_lo:[0,1] neg_hi:[0,1]"
def vr(b,n=4): return f"v[{b}:{b+n-1}]"
def read_pm():
    a(f"ds_read_b128 v[144:147], v159 offset:{L_PM}\nds_read_b128 v[148:151], v159 offset:{L_PM+16}\nds_read_b64 v[152:153], v159 offset:{L_PM+32}")
def scatter(base):
    for i in range(10):
        t=4+2*(i&1)
        a(f"v_add_u32_sdwa v{t}, v{144+i}, v{base} {SD.format(0)}\nv_add_u32_sdwa v{t+1}, v{144+i}, v{base} {SD.format(1)}")
        a(f"ds_write_b16 v{t}, v{8+i}\nds_write_b16_d16_hi v{t+1}, v{8+i}")
def store1(addr,val):
    a(f"s_mov_b64 exec, 1\nglobal_store_dword v{addr}, v{val}, s[40:41] sc1\ns_mov_b64 exec, -1")

def p2addr():
    a(f"s_and_b32 s62, s2, 7\ns_lshr_b32 s56, s2, 4\ns_mul_i32 s57, s62, 10\ns_add_u32 s57, s57, s56\ns_lshl_b32 s57, s57, 14\ns_add_u32 s57, s57, {WS_I}")
    a("v_lshl_add_u32 v112, v0, 4, s57\nv_add_u32 v113, 0x2000, v112")
    a("v_lshlrev_b32 v6, 1, v0\nv_and_b32 v6, 32, v6\nv_and_b32 v7, 64, v0\nv_or_b32 v6, v6, v7\nv_lshlrev_b32 v7, 4, v0\nv_xor_b32 v114, v6, v7")
    a(f"s_lshl_b32 s56, s56, 7\ns_add_u32 s56, s56, {WS_Y}\ns_lshl_b32 s58, s3, 8\ns_add_u32 s58, s58, s5\ns_lshl2_add_u32 s59, s62, s58\ns_mulk_i32 s59, 1280\ns_add_u32 s59, s59, s56")
    a("s_lshl_b32 s60, s62, 2\ns_add_u32 s60, s60, 995\ns_sub_u32 s60, s60, s58\ns_mulk_i32 s60, 1280\ns_add_u32 s60, s60, s56\ns_add_u32 s60, s60, 64")
    a("v_and_b32 v4, 7, v0\nv_mul_u32_u24 v4, 40960, v4\nv_lshrrev_b32 v5, 3, v3\nv_lshl_add_u32 v4, v5, 6, v4\nv_lshlrev_b32 v5, 4, v2\nv_add3_u32 v120, v4, v5, s59\nv_sub_u32 v121, s60, v4\nv_add_u32 v121, v121, v5")
    a("v_lshrrev_b32 v5, 2, v3\nv_lshl_add_u32 v4, v2, 3, v5\nv_lshlrev_b32 v4, 7, v4\nv_and_b32 v5, 3, v0\nv_lshl_add_u32 v4, v5, 3, v4")
    a(f"v_bfe_u32 v5, v0, 3, 2\nv_lshl_add_u32 v116, v5, 5, v4\nv_xor_b32 v117, 64, v116\nv_xor_b32 v118, 32, v116\nv_xor_b32 v119, 96, v116")
def yoff(dst,t):
    a(f"s_and_b32 {dst}, {t}, 255\ns_lshr_b32 s59, {t}, 9\ns_lshl2_add_u32 {dst}, {dst}, s59\ns_mulk_i32 {dst}, 1280\ns_bfe_u32 s59, {t}, 0x10008\ns_lshl_b32 s59, s59, 6\ns_add_u32 {dst}, {dst}, s59\ns_add_u32 {dst}, {dst}, {WS_Y}")
def p3addrA():
    a(f"s_movk_i32 s62, {U}\nv_lshrrev_b32 v4, 3, v1\nv_and_b32 v5, 7, v0\nv_lshlrev_b32 v5, 3, v5\nv_mad_u32_u24 v122, v4, s62, v5")
    a(f"v_lshl_add_u32 v128, v4, 7, v5\nv_lshlrev_b32 v5, 2, v3\nv_mad_u32_u24 v123, v2, s62, v5\nv_lshl_add_u32 v130, v2, 7, v5")
    a(f"v_cmp_eq_u32 vcc, 0, v2\nv_add_u32 v124, {18*U}, v122\nv_subrev_u32 v4, {2*U}, v122\nv_cndmask_b32 v124, v4, v124, vcc")
    a("v_add_u32 v125, s51, v122\nv_add_u32 v126, s51, v123\nv_add_u32 v127, s51, v124")
def p3addrB():
    a("v_cmp_eq_u32 vcc, 0, v2\nv_lshlrev_b32 v138, 3, v1\nv_add_u32 v139, 512, v138\nv_lshlrev_b32 v140, 2, v1\nv_add_u32 v143, 384, v140\nv_add_u32 v140, 1024, v140\nv_add_u32 v141, 640, v138\nv_add_u32 v142, 1152, v138\nv_subrev_u32 v4, 128, v138\nv_cndmask_b32 v142, v4, v142, vcc")
    yoff("s56","s46")
    a("s_sub_u32 s58, 2048, s46\ns_and_b32 s58, s58, 2047")
    yoff("s57","s58")
    a("s_add_u32 s62, s56, 1024\ns_sub_u32 s59, s57, 256\nv_mov_b32 v129, s59\nv_mov_b32 v4, s62\nv_cndmask_b32 v129, v129, v4, vcc\nv_add_u32 v129, v129, v128\nv_add_u32 v128, s56, v128\ns_add_u32 s62, s57, 768\nv_add_u32 v130, s62, v130")
    a("v_cmp_eq_u32 vcc, 21, v1\nv_mov_b32 v132, 0xffff\nv_lshlrev_b32 v137, 4, v3\nv_cndmask_b32 v131, -1, v132, vcc\nv_cmp_eq_u32 vcc, 5, v1\ns_lshl_b32 s57, s2, 4\nv_add_u32 v135, s57, v3\nv_cndmask_b32 v132, -1, v132, vcc")
    a("s_lshl_b32 s57, s48, 4\nv_lshl_add_u32 v133, v2, 2, s57\ns_add_u32 s57, s57, 16\ns_cmp_eq_u32 s50, 0\ns_cselect_b32 s57, 272, s57\nv_lshl_add_u32 v134, v2, 2, s57\ns_mov_b32 s63, 0x3f803f80")
    a(f"v_lshlrev_b32 v136, 2, v135\nv_add_u32 v136, {KEYS}, v136")
    for i in AC: a(f"v_mov_b32 v{i}, 0")
AC=[108,109,110,111,160,161,162,163,164,165,166,167]
PMA="v_and_b32 v159, 7, v0\nv_lshl_add_u32 v159, v2, 3, v159\nv_mul_u32_u24 v159, 48, v159"
def gentab():
    a("s_lshl3_add_u32 s56, s5, s3\ns_lshl_b32 s56, s56, 4\ns_add_u32 s56, s56, 1\nv_and_b32 v16, 7, v0\nv_lshl_add_u32 v16, v16, 1, s56\nv_and_b32 v17, 8, v0\nv_lshl_add_u32 v16, v17, 3, v16")
    a(f"v_cvt_f32_u32 v16, v16\nv_lshlrev_b32 v17, 3, v2\nv_cvt_f32_u32 v17, v17\nv_mul_f32 v16, {fhex(-1/512)}, v16\nv_cos_f32 v18, v16\nv_mul_f32 v17, v17, v16\nv_mul_f32 v20, {fhex(31.0)}, v16\nv_add_f32 v18, v18, v18")
    for k in range(4):
        a("v_cos_f32 v24, v17\nv_sin_f32 v25, v17\nv_add_f32 v17, v17, v16\nv_cos_f32 v26, v17\nv_sin_f32 v27, v17\nv_add_f32 v17, v17, v20")
        for j in range(2,8): a(f"v_pk_fma_f32 v[{24+2*j}:{25+2*j}], v[{22+2*j}:{23+2*j}], v[18:19], v[{20+2*j}:{21+2*j}] op_sel_hi:[1,0,1] neg_lo:[0,0,1] neg_hi:[0,0,1]")
        if k==0: a("v_lshlrev_b32 v21, 31, v0\nv_xor_b32 v21, -1.0, v21\nv_cmp_eq_u32 vcc, 0, v2\nv_cndmask_b32 v25, v25, v21, vcc")
        for h in range(4): a(f"v_cvt_pk_bf16_f32 v{56+4*k+h}, v{24+4*h}, v{26+4*h}\nv_cvt_pk_bf16_f32 v{72+4*k+h}, v{25+4*h}, v{27+4*h}")
def read_w():
    a(f"ds_read_b64 v[98:99], v122 offset:{L_WP}\nds_read_b64 v[100:101], v122 offset:{L_WP+8*U}\nds_read_b32 v102, v123 offset:{L_WP+16*U}\nds_read_b64 v[104:105], v122 offset:{L_WP+10*U}\nds_read_b64 v[106:107], v124 offset:{L_WP}\nds_read_b32 v103, v123 offset:{L_WP+6*U}")

a(f"{KN}:")
stamp(0)
a("s_load_dwordx2 s[16:17], s[0:1], 0\ns_load_dwordx2 s[40:41], s[0:1], 96\ns_load_dwordx4 s[28:31], s[0:1], 48\ns_load_dwordx8 s[32:39], s[0:1], 64")
a("s_setprio 3\ns_cmp_ge_u32 s2, 256\ns_cbranch_scc1 L_end")
if opt("remap",0):
    a("s_and_b32 s4, s2, 3\ns_lshr_b32 s5, s2, 3\ns_lshl2_add_u32 s4, s5, s4\ns_and_b32 s2, s2, 4\ns_lshl_b32 s2, s2, 5\ns_or_b32 s2, s2, s4")
a("v_lshrrev_b32 v4, 6, v0\nv_and_b32 v1, 63, v0\nv_readfirstlane_b32 s3, v4\nv_lshrrev_b32 v2, 4, v1\nv_and_b32 v3, 15, v0\nv_and_b32 v6, 7, v0")
a("s_getpc_b64 s[42:43]\nL_pc:\ns_add_u32 s42, s42, T_0-L_pc\ns_addc_u32 s43, s43, 0\ns_cmp_ge_u32 s2, 128\ns_cbranch_scc1 L_bf")
a("s_lshl_b32 s46, s3, 8\ns_add_u32 s46, s46, s2\ns_sub_u32 s47, 2048, s46\ns_mov_b32 s44, s3\ns_sub_u32 s45, 15, s3\ns_lshl_b32 s48, s3, 1\ns_mov_b32 s50, 1\ns_cmp_eq_u32 s2, 0\ns_cbranch_scc1 L_rows0\nL_rows:")
a("s_mul_i32 s8, s46, 1280\ns_mul_i32 s9, s47, 1280\nv_mov_b32 v4, s8\nv_mov_b32 v5, s9\nv_cmp_lt_u32 vcc, 7, v3\nv_lshlrev_b32 v159, 3, v6\nv_lshl_add_u32 v159, v2, 6, v159\nv_cndmask_b32 v158, v4, v5, vcc\nv_add_u32 v158, v158, v159")
a("s_cmp_ge_u32 s3, 8\ns_cbranch_scc1 L_a8")
a("s_waitcnt lgkmcnt(0)")
for i in range(5): a(f"global_load_dwordx2 v[{8+2*i}:{9+2*i}], v158, s[16:17] offset:{256*i}")
a("s_setprio 0")
stamp(1)
a("v_mov_b32 v4, s44\nv_mov_b32 v5, s45\nv_cndmask_b32 v161, v4, v5, vcc\nv_mul_u32_u24 v160, 5120, v2\nv_lshl_add_u32 v160, v6, 3, v160\nv_lshl_add_u32 v160, v161, 6, v160\nv_lshlrev_b32 v161, 2, v161")
a("v_lshrrev_b32 v20, 2, v3\nv_and_b32 v21, 3, v0\nv_mad_u32_u24 v20, v20, 5, v21\nv_cvt_f32_u32 v28, v2")
for tile in range(2):
    if tile: a("v_add_u32 v20, 3, v20")
    a("v_lshrrev_b32 v22, 1, v20\nv_and_b32 v24, 1, v20")
    if tile==0:
        a("v_cmp_eq_u32 vcc, 1, v20\nv_cndmask_b32_e64 v22, v22, 10, vcc\nv_cndmask_b32_e64 v24, v24, 0, vcc\nv_cmp_eq_u32 vcc, 3, v21\nv_cndmask_b32_e64 v22, v22, 0, vcc\nv_cndmask_b32_e64 v24, v24, 0, vcc")
    a(f"v_cvt_f32_u32 v22, v22\nv_cvt_f32_u32 v24, v24\nv_mul_f32 v22, {fhex(0.05)}, v22\nv_mul_f32 v24, {fhex(0.25)}, v24\nv_fmac_f32 v24, v28, v22\nv_mul_f32 v22, 4.0, v22")
    for i in range(5):
        a(f"v_cos_f32 v{29+i}, v24")
        if i<4: a("v_add_f32 v24, v24, v22")
    a(f"v_cvt_pk_bf16_f32 v{36+4*tile}, v29, v30\nv_cvt_pk_bf16_f32 v{37+4*tile}, v31, v32\nv_cvt_pk_bf16_f32 v{38+4*tile}, v33, 0\nv_mov_b32 v{39+4*tile}, 0")
a("v_mov_b32 v23, 0\nv_mov_b32 v27, 0\nv_mov_b32 v31, 0\nv_mov_b32 v35, 0\nv_mov_b32 v18, 0\nv_mov_b32 v19, 0\ns_mov_b32 s52, 0x05040100\ns_mov_b32 s53, 0x07060302\ns_mov_b32 s54, 0x01010101\ns_mov_b32 s55, 0x01010101")
a(f"ds_write_b32 v161, v23 offset:{L_SQ}\nds_write_b32 v161, v23 offset:{L_CNT}")
a(f"v_mov_b32 v162, {fhex(-1/32)}\nv_cmp_eq_u32 vcc, 0, v2\nv_cndmask_b32 v162, 0, v162, vcc")
a("L_gtrig:\nv_lshlrev_b32 v157, 4, v1\ns_bfe_u32 s5, s2, 0x10003\ns_mov_b32 s15, 0")
a("s_add_u32 s12, s3, 80\ns_cmp_eq_u32 s3, 0\ns_cselect_b32 s13, 4, 8\ns_cselect_b32 s14, 20, s3\ns_cselect_b32 s12, 10, s12")
a("v_lshrrev_b32 v44, 2, v3\nv_and_b32 v45, 3, v0\nv_mad_u32_u24 v44, v44, s13, v45\nv_mul_u32_u24 v44, 20, v44\nv_add_u32 v45, s12, v44\nv_add_u32 v44, s14, v44\nv_lshlrev_b32 v46, 3, v2")
a(f"v_cvt_f32_u32 v44, v44\nv_cvt_f32_u32 v45, v45\nv_cvt_f32_u32 v46, v46\nv_mul_f32 v44, {fhex(1/640)}, v44\nv_mul_f32 v45, {fhex(1/640)}, v45\nv_mul_f32 v47, v46, v45\nv_mul_f32 v46, v46, v44")
for tau in range(2):
    a(f"v_cos_f32 v48, v{46+tau}\nv_sin_f32 v49, v{46+tau}\nv_add_f32 v{46+tau}, v{46+tau}, v{44+tau}\nv_cos_f32 v64, v{44+tau}\nv_cos_f32 v50, v{46+tau}\nv_sin_f32 v51, v{46+tau}\nv_add_f32 v64, v64, v64")
    for j in range(2,8): a(f"v_pk_fma_f32 v[{48+2*j}:{49+2*j}], v[{46+2*j}:{47+2*j}], v[64:65], v[{44+2*j}:{45+2*j}] op_sel_hi:[1,0,1] neg_lo:[0,0,1] neg_hi:[0,0,1]")
    for h in range(4):
        a(f"v_cvt_pk_bf16_f32 v{88+8*tau+h}, v{48+4*h}, v{50+4*h}\nv_cvt_pk_bf16_f32 v{104+4*tau+h}, v{49+4*h}, v{51+4*h}\nv_xor_b32 v{92+8*tau+h}, 0x80008000, v{104+4*tau+h}")
a(f"s_lshl_b32 s49, s3, 11\ns_add_u32 s56, s49, 1024\ns_cmp_eq_u32 s3, 0\ns_cselect_b32 s57, 1024, s49\ns_cselect_b32 s56, {L_ZERO}, s56")
a("v_lshlrev_b32 v166, 4, v2\nv_lshl_add_u32 v163, v3, 6, v166\nv_add_u32 v164, s56, v163\nv_add_u32 v165, s57, v163\nv_add_u32 v163, s49, v163")
a(f"s_lshl_b32 s49, s3, 7\ns_add_u32 s49, s49, s2\ns_lshl_b32 s49, s49, 7\ns_add_u32 s49, s49, {WS_I}")
a("v_lshrrev_b32 v4, 1, v3\nv_and_b32 v5, 1, v0\nv_mul_u32_u24 v167, 0x28000, v4\nv_lshl_add_u32 v167, v5, 6, v167\nv_add3_u32 v167, v167, v166, s49")
a(f"s_mul_i32 s51, s48, {RS}\ns_add_u32 s51, s51, {L_XP}\nv_lshrrev_b32 v156, 3, v3\nv_mul_u32_u24 v156, {RS}, v156\nv_add_u32 v156, s51, v156")
a(PMA)
a("s_cmp_ge_u32 s3, 8\ns_cbranch_scc1 L_a8b")
p2addr()
stamp(2)
a("s_waitcnt vmcnt(0)")
stamp(3)
for low in range(4):
    c=low>>1; sel="s53" if low&1 else "s52"; o=20+4*low
    a(f"v_perm_b32 v{o}, v{10+c}, v{8+c}, {sel}\nv_perm_b32 v{o+1}, v{14+c}, v{12+c}, {sel}\nv_perm_b32 v{o+2}, v23, v{16+c}, {sel}")
    if low>0: a(f"{MF} {vr(44+4*(low-1))}, v[36:39], {vr(20+4*(low-1))}, 0")
a("v_dot2c_f32_bf16 v18, v8, v8\nv_dot2c_f32_bf16 v19, v9, v9")
a(f"{MF} {vr(56)}, v[36:39], {vr(32)}, 0")
for i in range(1,5):
    a(f"v_dot2c_f32_bf16 v18, v{8+2*i}, v{8+2*i}\nv_dot2c_f32_bf16 v19, v{9+2*i}, v{9+2*i}")
    a(f"{MF} {vr(60+4*(i-1))}, v[40:43], {vr(20+4*(i-1))}, 0")
a("v_add_f32 v4, v47, v51\nv_add_f32 v5, v55, v59\nv_add_f32 v4, v4, v5\nv_add_f32 v18, v18, v19")
for m,r in (("quad_perm:[1,0,3,2]",1),("quad_perm:[2,3,0,1]",2),("row_half_mirror",0)):
    if r: a(f"v_cvt_pk_bf16_f32 v{76+2*r}, v{44+r}, v{48+r}")
    else: a("v_cvt_pk_bf16_f32 v82, v60, v64")
    a(f"v_add_f32_dpp v4, v4, v4 {m} {DPPM}\nv_add_f32_dpp v18, v18, v18 {m} {DPPM}")
    if r: a(f"v_cvt_pk_bf16_f32 v{77+2*r}, v{52+r}, v{56+r}\nds_write_b64 v160, v[{76+2*r}:{77+2*r}] offset:{1024*r}")
a("v_cvt_pk_bf16_f32 v83, v68, v72\nds_write_b64 v160, v[82:83] offset:3072\nv_cvt_pk_bf16_f32 v84, v61, v65\nv_cvt_pk_bf16_f32 v85, v69, v73\nds_write_b64 v160, v[84:85] offset:4096")
for low in range(4): a(f"v_fmac_f32 v{44+4*low}, v4, v162")
a("v_cvt_pk_bf16_f32 v76, v44, v48\nv_cvt_pk_bf16_f32 v77, v52, v56\nds_write_b64 v160, v[76:77]")
a(f"s_mov_b64 exec, s[54:55]\nds_add_f32 v161, v18 offset:{L_SQ}\nds_write_b32 v161, v4 offset:{L_SUM}\ns_mov_b64 exec, -1")
a("L_b1:\ns_waitcnt lgkmcnt(0)\ns_barrier")
stamp(4)
a(f"ds_read_b128 v[20:23], v163\nds_read_b128 v[28:31], v164\nds_read_b128 v[24:27], v165")
lg(2)
a(f"{MF} v[44:47], v[20:23], v[88:91], 0\n{MF} v[48:51], v[20:23], v[92:95], 0")
lg(1)
a(f"{MF} v[44:47], v[28:31], v[104:107], v[44:47]\n{MF} v[48:51], v[28:31], v[88:91], v[48:51]")
a(f"{MF} v[52:55], v[28:31], v[108:111], 0\n{MF} v[56:59], v[28:31], v[96:99], 0")
lg(0)
a(f"{MF} v[52:55], v[24:27], v[96:99], v[52:55]\n{MF} v[56:59], v[24:27], v[100:103], v[56:59]")
a(f"s_barrier\nds_read_b128 v[32:35], v157 offset:{L_SM}")
a("v_cvt_pk_bf16_f32 v20, v44, v45\nv_cvt_pk_bf16_f32 v21, v46, v47\nv_cvt_pk_bf16_f32 v22, v48, v49\nv_cvt_pk_bf16_f32 v23, v50, v51")
a("v_cvt_pk_bf16_f32 v24, v52, v53\nv_cvt_pk_bf16_f32 v25, v54, v55\nv_cvt_pk_bf16_f32 v26, v56, v57\nv_cvt_pk_bf16_f32 v27, v58, v59\ns_waitcnt lgkmcnt(0)")
a(f"{MF} v[44:47], v[20:23], v[32:35], 0\n{MF} v[48:51], v[24:27], v[32:35], 0")
a("v_cvt_pk_bf16_f32 v20, v44, v45\nv_cvt_pk_bf16_f32 v21, v46, v47\nv_cvt_pk_bf16_f32 v22, v48, v49\nv_cvt_pk_bf16_f32 v23, v50, v51")
a("global_store_dwordx4 v167, v[20:23], s[40:41] sc1")
stamp(5)
read_pm()
a("s_cmp_lg_u32 s3, 8\ns_cbranch_scc1 L_scat\ns_barrier\ns_cmp_lg_u32 s2, 0\ns_cbranch_scc1 L_fin\ns_branch L_prep")
a("L_scat:\ns_waitcnt vmcnt(1) lgkmcnt(0)")
scatter(156)
a("s_cmp_eq_u32 s3, 9\ns_cbranch_scc0 L_prep\ns_barrier\ns_waitcnt lgkmcnt(0)\ns_branch L_fin")
XA=[88,89,90,91,92]; XB=[94,95,96,97,93]; WA=[98,99,100,101,102]; WB=[104,105,106,107,103]
a("L_prep:")
p3addrA()
a(f"ds_read_b64 v[88:89], v125\nds_read_b64 v[90:91], v125 offset:{8*U}\nds_read_b32 v92, v126 offset:{16*U}\nds_read_b64 v[94:95], v125 offset:{RS+10*U}\nds_read_b64 v[96:97], v127 offset:{RS}\nds_read_b32 v93, v126 offset:{RS+6*U}")
a("s_cmp_lt_u32 s3, 8\ns_cbranch_scc1 L_b2")
a("s_barrier\ns_branch L_p2end\nL_b2:")
TABPOS=opt("tabpos",1)
if TABPOS==0:
    a("s_cmp_ge_u32 s3, 4\ns_cbranch_scc1 L_ntab")
    gentab()
    a("L_ntab:")
stamp(6)
a("s_waitcnt vmcnt(0) lgkmcnt(0)\ns_barrier" if opt("ack1",1) else "s_waitcnt lgkmcnt(0)\ns_barrier")
stamp(7)
if opt("pre1",0): a(f"s_sleep {opt('pre1',0)}")
def x1win():
    if TABPOS==1:
        a("s_cmp_ge_u32 s3, 4\ns_cbranch_scc1 L_ntab")
        gentab()
        a("L_ntab:")
poll(["global_load_dwordx4 v[8:11], v112, s[40:41] sc1","global_load_dwordx4 v[12:15], v113, s[40:41] sc1"],range(8,16),opt("sl1",2),16,between=x1win)
stamp(8)
a(f"ds_write_b128 v114, v[8:11] offset:{L_P2}\nds_write_b128 v114, v[12:15] offset:{L_P2+8192}\ns_waitcnt lgkmcnt(0)\ns_barrier")
a("s_cmp_ge_u32 s3, 4\ns_cbranch_scc1 L_p2end\ns_setprio 2")
def trg(i):
    k,c=i>>2,i&3; b=8+4*(i&7)
    a(f"ds_read_b64_tr_b16 v[{b}:{b+1}], v{116+c} offset:{L_P2+4096*k}\nds_read_b64_tr_b16 v[{b+2}:{b+3}], v{116+c} offset:{L_P2+4096*k+512}")
NPRE=7
for i in range(NPRE): trg(i)
for i in range(16):
    k,c=i>>2,i&3
    issued=min(16,NPRE+i)
    a(f"s_waitcnt lgkmcnt({2*(issued-i-1)})")
    a(f"{MF} {vr(40+4*c)}, {vr(8+4*(i&7))}, {vr(56+16*(c&1)+4*k)}, {'0' if k==0 else vr(40+4*c)}")
    if NPRE+i<16: trg(NPRE+i)
a(f"v_pk_add_f32 v[8:9], v[40:41], v[44:45] {NEG}\nv_pk_add_f32 v[10:11], v[42:43], v[46:47] {NEG}\nv_pk_add_f32 v[16:17], v[40:41], v[44:45]\nv_pk_add_f32 v[18:19], v[42:43], v[46:47]")
a("v_cvt_pk_bf16_f32 v24, v8, v9\nv_cvt_pk_bf16_f32 v25, v10, v11\nv_cvt_pk_bf16_f32 v28, v16, v17\nv_cvt_pk_bf16_f32 v29, v18, v19")
a(f"v_pk_add_f32 v[12:13], v[48:49], v[52:53] {NEG}\nv_pk_add_f32 v[14:15], v[50:51], v[54:55] {NEG}\nv_cvt_pk_bf16_f32 v26, v12, v13\nv_cvt_pk_bf16_f32 v27, v14, v15")
a("global_store_dwordx4 v120, v[24:27], s[40:41] sc1")
a("v_pk_add_f32 v[20:21], v[48:49], v[52:53]\nv_pk_add_f32 v[22:23], v[50:51], v[54:55]\nv_cvt_pk_bf16_f32 v30, v20, v21\nv_cvt_pk_bf16_f32 v31, v22, v23")
a("global_store_dwordx4 v121, v[28:31], s[40:41] sc1\ns_setprio 0")
stamp(9)
a("L_p2end:\ns_cmp_ge_u32 s2, 128\ns_cbranch_scc1 L_fin")
read_w()
p3addrB()
a("s_waitcnt lgkmcnt(0)")
for i in range(5):
    a(f"v_dot2c_f32_bf16 v{AC[0]}, s63, v{XA[i]}\nv_dot2c_f32_bf16 v{AC[1]}, v{XA[i]}, v{WA[i]}\nv_dot2c_f32_bf16 v{AC[2]}, v{XA[i]}, v{XA[i]}\nv_dot2c_f32_bf16 v{AC[3]}, s63, v{WA[i]}")
    a(f"v_dot2c_f32_bf16 v{AC[4]}, s63, v{XB[i]}\nv_dot2c_f32_bf16 v{AC[5]}, v{XB[i]}, v{WB[i]}\nv_dot2c_f32_bf16 v{AC[6]}, v{XB[i]}, v{XB[i]}")
if opt("w2",-1)<0: a("s_waitcnt vmcnt(0)\ns_barrier")
else: a(f"s_barrier\ns_sleep {opt('w2',0)}")
stamp(10)
if opt("pre2",0): a(f"s_sleep {opt('pre2',0)}")
def x2win():
    a(f"v_mov_b32 v{AC[7]}, v{AC[3]}\nv_mov_b32 v18, {fhex(1e-5)}\ns_mov_b32 s58, {fhex(1/640)}\ns_movk_i32 s59, 0x7ff")
    for X,hb in ((XA,32),(XB,42)):
        for i in range(5): a(f"v_lshlrev_b32 v{hb+2*i}, 16, v{X[i]}\nv_and_b32 v{hb+1+2*i}, 0xffff0000, v{X[i]}")
    a(f"v_lshlrev_b32 v154, 4, v0\nv_and_b32 v154, 0x1fff, v154\nv_add_u32 v154, {KEYS}, v154\nv_mov_b32 v119, {L_CNT}\ns_mov_b32 s61, 0\ns_movk_i32 s44, 99\ns_movk_i32 s45, 99\ns_cmp_lt_u32 s3, 8\ns_cselect_b64 s[56:57], 1, 0\ns_add_u32 s49, s48, 1")
    a(f"s_lshl_b32 s60, s2, 7\ns_add_u32 s60, s60, {H3}\nv_mov_b32 v155, s60")
poll(["global_load_dwordx2 v[112:113], v128, s[40:41] sc1","global_load_dwordx2 v[114:115], v129, s[40:41] sc1","global_load_dword v116, v130, s[40:41] sc1"],range(112,117),opt("sl2",2),4,between=x2win)
stamp(11)
YA=[112,113,114,117,116]; YB=[112,118,114,115,116]
a("v_and_b32 v117, v115, v131\nv_and_b32 v118, v113, v132")
A0,A1,A2,A3,B0,B1,B2_,B3,C0,C1,C2,C3=AC
for i in (0,2,4,1,3):
    a(f"v_dot2c_f32_bf16 v{C0}, s63, v{YA[i]}\nv_dot2c_f32_bf16 v{C1}, v{YA[i]}, v{YA[i]}\nv_dot2c_f32_bf16 v{C2}, v{YA[i]}, v{XA[i]}\nv_dot2c_f32_bf16 v{C3}, v{YB[i]}, v{XB[i]}")
    a(f"v_dot2c_f32_bf16 v{A1}, v{YA[i]}, v{WA[i]}\nv_dot2c_f32_bf16 v{B1}, v{YB[i]}, v{WB[i]}")
a(f"v_add_f32 v{A0}, v{A0}, v{C0}\nv_add_f32 v{B0}, v{B0}, v{C0}\nv_add_f32 v{A2}, v{A2}, v{C1}\nv_add_f32 v{B2_}, v{B2_}, v{C1}\nv_fmac_f32 v{A2}, 2.0, v{C2}\nv_fmac_f32 v{B2_}, 2.0, v{C3}")
a(f"v_permlane32_swap_b32 v{A0}, v{A1}\nv_permlane32_swap_b32 v{B0}, v{B1}\nv_permlane32_swap_b32 v{A2}, v{A3}\nv_permlane32_swap_b32 v{B2_}, v{B3}")
a(f"v_add_f32 v{A0}, v{A0}, v{A1}\nv_add_f32 v{A2}, v{A2}, v{A3}\nv_add_f32 v{B0}, v{B0}, v{B1}\nv_add_f32 v{B2_}, v{B2_}, v{B3}")
a(f"v_permlane16_swap_b32 v{A0}, v{A2}\nv_permlane16_swap_b32 v{B0}, v{B2_}\nv_add_f32 v{A0}, v{A0}, v{A2}\nv_add_f32 v{B0}, v{B0}, v{B2_}")
for s_ in (8,4,2,1): a(f"v_add_f32_dpp v{A0}, v{A0}, v{A0} row_ror:{s_} {DPPM}\nv_add_f32_dpp v{B0}, v{B0}, v{B0} row_ror:{s_} {DPPM}")
a(f"ds_write_b32 v133, v{A0} offset:{L_ST3}\nds_write_b32 v134, v{B0} offset:{L_ST3}")
a(f"s_waitcnt lgkmcnt(0)\ns_barrier\nds_read_b128 v[76:79], v137 offset:{L_ST3}\ns_waitcnt lgkmcnt(0)")
a("v_mul_f32 v76, s58, v76\nv_fma_f32 v77, v77, s58, v18\nv_fma_f32 v77, -v76, v76, v77\nv_max_f32 v77, v77, v18\nv_rsq_f32 v77, v77\nv_fma_f32 v78, -v76, v79, v78\nv_mul_f32 v78, v78, v77")
a("v_ashrrev_i32 v79, 31, v78\nv_or_b32 v79, 0x80000000, v79\nv_xor_b32 v79, v79, v78\nv_bfi_b32 v79, s59, v135, v79\nv_min_u32 v79, -2, v79")
a("s_cmp_lg_u32 s3, 0\ns_cbranch_scc1 L_nokey\ns_mov_b64 exec, 0xffff\nglobal_store_dword v136, v79, s[40:41] sc1\ns_mov_b64 exec, -1\nL_nokey:")
stamp(12)
a("v_mul_f32 v76, v76, v77\nv_readlane_b32 s8, v77, s48\nv_readlane_b32 s12, v77, s49\nv_readlane_b32 s10, v76, s48\nv_readlane_b32 s18, v76, s49")
a("v_readlane_b32 s20, v79, s48\nv_readlane_b32 s21, v79, s49\nv_readlane_b32 s22, v78, s48\nv_readlane_b32 s23, v78, s49")
a("s_cmp_eq_u32 s50, 0\ns_cselect_b32 s21, 0, s21\nv_mov_b32 v80, s10\nv_mov_b32 v82, s18")
def top2():
    a("v_mov_b32 v4, v79")
    for s_ in (8,4,2,1): a(f"v_max_u32_dpp v4, v4, v4 row_ror:{s_} {DPPM}")
    a("v_cmp_ne_u32 vcc, v4, v79\nv_readfirstlane_b32 s6, v4\nv_cndmask_b32 v79, 0, v79, vcc\nv_mov_b32 v4, v79")
    for s_ in (8,4,2,1): a(f"v_max_u32_dpp v4, v4, v4 row_ror:{s_} {DPPM}")
    a("v_cmp_ne_u32 vcc, v4, v79\nv_readfirstlane_b32 s7, v4\nv_cndmask_b32 v79, 0, v79, vcc")
def hrow(Y,hb,nb,pk,sr,mv):
    for i in range(5):
        a(f"v_lshlrev_b32 v4, 16, v{Y[i]}\nv_and_b32 v5, 0xffff0000, v{Y[i]}\nv_pk_add_f32 v[{hb+2*i}:{hb+1+2*i}], v[{hb+2*i}:{hb+1+2*i}], v[4:5]")
        a(f"v_pk_fma_f32 v[{nb+2*i}:{nb+1+2*i}], v[{hb+2*i}:{hb+1+2*i}], s[{sr}:{sr+1}], v[{mv}:{mv+1}] op_sel_hi:[1,0,0] neg_lo:[0,0,1] neg_hi:[0,0,1]")
        a(f"v_cvt_pk_bf16_f32 v{pk+i}, v{nb+2*i}, v{nb+1+2*i}")
top2()
hrow(YA,32,8,60,8,80)
if opt("b5",1): a("s_waitcnt vmcnt(0)\ns_barrier")
stamp(13)
NH3=opt("nh3",8); H3POS=opt("h3pos",0)
def h3():
    a(f"s_cmp_ge_u32 s2, {NH3}\ns_cbranch_scc1 L_h3\ns_cmp_lg_u32 s3, 7\ns_cbranch_scc1 L_h3")
    store1(155,155)
    a("L_h3:")
if opt("pre3",6): a(f"s_sleep {opt('pre3',6)}")
poll(["global_load_dwordx4 v[72:75], v154, s[40:41] sc1"],range(72,76),opt("sl3",2),4,between=lambda: (hrow(YB,42,20,66,12,82), h3() if H3POS==0 else None))
stamp(14)
if H3POS==1: h3()
a("L_round:")
SP=[24,26,28,30,52,54,16,58]
for i in range(4): a(f"v_cmp_gt_u32_e64 s[{SP[i]}:{SP[i]+1}], v{72+i}, s6")
for i in range(4): a(f"v_cmp_gt_u32_e64 s[{SP[4+i]}:{SP[4+i]+1}], v{72+i}, s7")
for i in range(8): a(f"s_bcnt1_i32_b64 s{SP[i]}, s[{SP[i]}:{SP[i]+1}]")
a("s_add_u32 s24, s24, s26\ns_add_u32 s28, s28, s30\ns_add_u32 s52, s52, s54\ns_add_u32 s16, s16, s58\ns_add_u32 s24, s24, s28\ns_add_u32 s52, s52, s16\ns_lshl_b32 s52, s52, 16\ns_add_u32 s24, s24, s52")
a("v_mov_b32 v4, s24\ns_mov_b64 exec, s[56:57]\nds_add_u32 v119, v4\ns_mov_b64 exec, -1\ns_waitcnt lgkmcnt(0)\ns_barrier\nds_read_b32 v4, v119\ns_waitcnt lgkmcnt(0)")
a("v_readfirstlane_b32 s24, v4\ns_and_b32 s25, s24, 0xffff\ns_lshr_b32 s24, s24, 16\ns_cmp_ge_u32 s25, 8\ns_cbranch_scc1 L_rdone")
for R,(sk,srk,pk,o0) in enumerate(((20,44,60,138),(21,45,66,141))):
    a(f"s_cmp_eq_u32 s{sk}, s7\ns_cselect_b32 s26, s24, 99\ns_cmp_eq_u32 s{sk}, s6\ns_cselect_b32 s26, s25, s26\ns_cmp_ge_u32 s26, 8\ns_cbranch_scc1 L_ns{R}")
    a(f"s_mov_b32 s{srk}, s26\ns_setprio 2\ns_mul_i32 s26, s26, 1280\ns_add_u32 s26, s26, {HN}\nv_add_u32 v4, s26, v{o0}\nv_add_u32 v5, s26, v{o0+1}\nv_add_u32 v6, s26, v{o0+2}")
    a(f"global_store_dwordx2 v4, v[{pk}:{pk+1}], s[40:41] sc1\nglobal_store_dwordx2 v5, v[{pk+2}:{pk+3}], s[40:41] sc1\nglobal_store_dword v6, v{pk+4}, s[40:41] sc1\nL_ns{R}:")
a("s_cmp_ge_u32 s24, 7\ns_cbranch_scc1 L_rdone\ns_cmp_ge_u32 s61, 3\ns_cbranch_scc1 L_rdone\ns_add_u32 s61, s61, 1\nv_add_u32 v119, 4, v119")
top2()
a("s_branch L_round\nL_rdone:")
stamp(15)
for R,(hb,nb,pk) in enumerate(((32,8,60),(42,20,66))):
    for i in range(5):
        a(f"v_pk_add_f32 v[4:5], v[{hb+2*i}:{hb+1+2*i}], v[{nb+2*i}:{nb+1+2*i}]\nv_cvt_pk_bf16_f32 v{pk+14+i}, v4, v5")
a(f"ds_write_b64 v125, v[74:75]\nds_write_b64 v125, v[76:77] offset:{8*U}\nds_write_b32 v126, v78 offset:{16*U}\ns_cmp_eq_u32 s50, 0\ns_cbranch_scc1 L_nob")
a(f"ds_write_b64 v125, v[80:81] offset:{RS+10*U}\nds_write_b64 v127, v[82:83] offset:{RS}\nds_write_b32 v126, v84 offset:{RS+6*U}\nL_nob:")
for i in range(10):
    t=4+2*(i&1)
    a(f"v_add_u32_sdwa v{t}, v{144+i}, v156 {SD.format(0)}\nv_add_u32_sdwa v{t+1}, v{144+i}, v156 {SD.format(1)}")
    a(f"ds_read_u16 v{8+i}, v{t}\nds_read_u16 v{20+i}, v{t+1}")
a("s_mov_b32 s24, 0x00ff00ff\ns_cmp_lt_u32 s44, 8\ns_cselect_b32 s26, 0, s24\ns_cselect_b32 s28, s24, 0\ns_not_b32 s24, s24\ns_cmp_lt_u32 s45, 8\ns_cselect_b32 s27, 0, s24\ns_cselect_b32 s29, s24, 0")
a("s_cmp_eq_u32 s50, 0\ns_cselect_b32 s27, 0, s27\ns_or_b32 s26, s26, s27\ns_mov_b32 s27, s26\ns_or_b32 s28, s28, s29\ns_mov_b32 s29, s28\ns_waitcnt lgkmcnt(0)")
for i in range(10): a(f"v_lshl_or_b32 v{8+i}, v{20+i}, 16, v{8+i}")
a("s_cmp_eq_u32 s28, 0\ns_cbranch_scc1 L_nosel")
a("v_cmp_lt_u32 vcc, 7, v3\nv_mov_b32 v4, s44\nv_mov_b32 v5, s45\nv_cndmask_b32 v20, v4, v5, vcc\nv_mov_b32 v4, s46\nv_mov_b32 v5, s47\nv_cndmask_b32 v22, v4, v5, vcc\nv_mov_b32 v4, s22\nv_mov_b32 v5, s23\nv_cndmask_b32 v23, v4, v5, vcc")
a(f"v_and_b32 v20, 7, v20\nv_mul_u32_u24 v21, 1280, v20\nv_add_u32 v21, {BASE}, v21\nv_lshl_add_u32 v21, v2, 6, v21\nv_and_b32 v4, 7, v0\nv_lshl_add_u32 v21, v4, 3, v21\nv_lshlrev_b32 v20, 6, v20\nv_add_u32 v20, {META}, v20")
a("v_mul_f32 v23, 0xbfb8aa3b, v23\nv_exp_f32 v23, v23\ns_mov_b64 exec, s[28:29]\nv_add_f32 v23, 1.0, v23\nv_rcp_f32 v23, v23")
for i in range(5): a(f"global_store_dwordx2 v21, v[{8+2*i}:{9+2*i}], s[40:41] offset:{256*i} sc1")
a("s_and_b32 exec_lo, s28, 0x0101\ns_mov_b32 exec_hi, 0\nglobal_store_dwordx2 v20, v[22:23], s[40:41] sc1\ns_mov_b64 exec, -1\nL_nosel:")
a("s_cmp_eq_u32 s26, 0\ns_cbranch_scc1 L_noout\ns_mov_b64 exec, s[26:27]")
for i in range(5): a(f"global_store_dwordx2 v158, v[{8+2*i}:{9+2*i}], s[36:37] offset:{256*i} {OUTF}")
a("s_mov_b64 exec, -1\nL_noout:")
a("s_or_b32 s24, s2, s3\ns_cbranch_scc1 L_fin")
a("s_load_dword s16, s[40:41], 0\nv_mov_b32 v4, 0\ns_waitcnt lgkmcnt(0)\ns_add_u32 s16, s16, 1\nv_mov_b32 v5, s16\ns_mov_b64 exec, 1\nglobal_store_dword v4, v5, s[40:41]\ns_mov_b64 exec, -1\ns_branch L_fin")
flush_tail()
a("L_rows0:\ns_add_u32 s44, s3, 8\ns_add_u32 s46, s46, 128\ns_sub_u32 s47, 2048, s46\ns_cmp_lt_u32 s3, 4\ns_cbranch_scc1 L_rows")
a("s_sub_u32 s44, s3, 3\ns_sub_u32 s45, 11, s3\ns_lshl_b32 s46, s44, 8\ns_sub_u32 s47, 2048, s46\ns_cmp_lt_u32 s3, 7\ns_cbranch_scc1 L_rows")
a("s_mov_b32 s44, 0\ns_mov_b32 s50, 0\ns_min_u32 s48, s48, 15\ns_movk_i32 s47, 1024\ns_cmp_eq_u32 s3, 7\ns_cselect_b32 s46, 0, s47\ns_branch L_rows")
a("L_a8b:\nv_mov_b32 v112, 0\nv_mov_b32 v113, 0\nv_mov_b32 v120, 0\nv_mov_b32 v121, 0")
a(f"s_cmp_eq_u32 s3, 8\ns_cbranch_scc1 L_b1\nv_mov_b32 v156, {L_WP}\nv_and_b32 v4, 7, v0\nv_lshlrev_b32 v4, 3, v4\nv_lshl_add_u32 v4, v2, 6, v4\ns_waitcnt lgkmcnt(0)")
for i in range(5): a(f"global_load_dwordx2 v[{8+2*i}:{9+2*i}], v4, s[28:29] offset:{256*i}")
stamp(2)
a("s_branch L_b1")
a("L_a8:\ns_cmp_eq_u32 s3, 10\ns_cbranch_scc1 L_a10\ns_setprio 0\ns_branch L_gtrig")
a("L_a10:\nv_lshlrev_b32 v157, 4, v1\ns_bfe_u32 s5, s2, 0x10003\ns_mov_b32 s15, 0")
a("s_setprio 1\ns_lshl_b32 s7, s2, 7\ns_waitcnt lgkmcnt(0)\ns_load_dword s6, s[40:41], 0")
LATE10=f"s_movk_i32 m0, {L_PM}\nglobal_load_lds_dwordx4 v157, s[42:43]\nglobal_load_lds_dwordx4 v157, s[42:43] offset:1024"
a(f"s_add_u32 s7, s7, {WS_FA}\nv_mov_b32 v18, s7\ns_sub_u32 s7, 256, s2\ns_cmp_eq_u32 s2, 0\ns_cselect_b32 s7, 128, s7")
a("v_lshrrev_b32 v20, 1, v3\nv_and_b32 v21, 1, v0\nv_lshrrev_b32 v22, 1, v2\nv_and_b32 v23, 1, v2")
a("v_mov_b32 v24, s7\nv_mov_b32 v25, s2\nv_cmp_eq_u32 vcc, 1, v22\nv_cndmask_b32 v24, v25, v24, vcc\nv_lshl_add_u32 v24, v23, 10, v24")
a("v_subrev_u32 v25, 4, v20\nv_mul_i32_i24 v24, v24, v25\nv_lshl_add_u32 v24, v21, 9, v24")
a("v_cmp_gt_u32 vcc, v22, v21\ns_cmp_lg_u32 s2, 0\ns_cselect_b32 s49, 1024, 0\nv_mov_b32 v25, s49\nv_cndmask_b32 v25, 0, v25, vcc\nv_add_u32 v24, v24, v25\nv_and_b32 v24, 2047, v24")
a(f"v_cvt_f32_u32 v24, v24\nv_cvt_f32_u32 v25, v20\nv_mul_f32 v24, {fhex(1/2048)}, v24\nv_mul_f32 v25, {fhex(0.125)}, v25")
a("v_cmp_eq_u32 vcc, v22, v21\ns_cselect_b64 s[52:53], -1, 0\ns_or_b64 vcc, vcc, s[52:53]")
for i in range(4):
    a(f"v_cos_f32 v{60+i}, v24\nv_sin_f32 v{64+i}, v24")
    if i<3: a("v_add_f32 v24, v24, v25")
for i in range(8): a(f"v_cndmask_b32 v{60+i}, 0, v{60+i}, vcc")
a(f"v_mov_b32 v20, 0\nv_mov_b32 v21, 0\nv_mov_b32 v22, 0\nv_mov_b32 v23, 0\nds_write_b128 v157, v[20:23] offset:{L_ZERO}")
a(f"s_mov_b32 s60, {fhex(1/640)}\ns_mov_b32 s61, {fhex(1/640)}\nv_mov_b32 v86, {fhex(1e-5)}\nv_mov_b32 v87, {fhex(1e-5)}\nv_lshlrev_b32 v166, 4, v2")
a(LATE10)
stamp(1)
a("s_waitcnt vmcnt(0) lgkmcnt(0)\ns_add_u32 s6, s6, 1")
def flagA(): a("s_mov_b64 exec, 0xff\nglobal_store_dwordx4 v18, v[12:15], s[40:41] sc1\ns_mov_b64 exec, -1")
stamp(2)
a("s_setprio 3\ns_barrier")
stamp(4)
def smat():
    a(f"ds_read_b128 v[32:35], v166 offset:{L_SUM}\nds_read_b128 v[36:39], v166 offset:{L_SQ}")
    a("s_waitcnt lgkmcnt(0)")
    a("v_pk_mul_f32 v[32:33], v[32:33], s[60:61]\nv_pk_mul_f32 v[34:35], v[34:35], s[60:61]\nv_pk_fma_f32 v[36:37], v[36:37], s[60:61], v[86:87]\nv_pk_fma_f32 v[38:39], v[38:39], s[60:61], v[86:87]")
    a("v_pk_fma_f32 v[36:37], v[32:33], v[32:33], v[36:37] neg_lo:[1,0,0] neg_hi:[1,0,0]\nv_pk_fma_f32 v[38:39], v[34:35], v[34:35], v[38:39] neg_lo:[1,0,0] neg_hi:[1,0,0]")
    for i in range(4): a(f"v_max_f32 v{36+i}, v{36+i}, v86")
    for i in range(4): a(f"v_rsq_f32 v{36+i}, v{36+i}")
    a("v_pk_mul_f32 v[60:61], v[60:61], v[36:37]\nv_pk_mul_f32 v[64:65], v[64:65], v[36:37]\nv_pk_mul_f32 v[62:63], v[62:63], v[38:39]\nv_pk_mul_f32 v[66:67], v[66:67], v[38:39]")
    a("v_cvt_pk_bf16_f32 v32, v60, v61\nv_cvt_pk_bf16_f32 v33, v62, v63\nv_cvt_pk_bf16_f32 v34, v64, v65\nv_cvt_pk_bf16_f32 v35, v66, v67")
    a(f"ds_write_b128 v157, v[32:35] offset:{L_SM}")
poll(["global_load_dword v20, v18, s[40:41] sc1"],None,opt("slf",1),None,chk="v_cmp_ne_u32 vcc, s6, v20",between=smat)
a("s_waitcnt lgkmcnt(0)\ns_barrier\ns_setprio 0")
stamp(5)
NGO=opt("ngo",8)
a("L_flagchk:")
a(f"s_and_b32 s7, s2, {NGO-1}\ns_lshl_b32 s7, s7, 7\ns_add_u32 s7, s7, {WS_GO}\nv_mov_b32 v4, s7\ns_cmp_ge_u32 s2, 160\ns_cbranch_scc1 L_go2\ns_mov_b64 exec, 1")
poll(["global_load_dword v20, v4, s[40:41] sc1"],None,opt("slf",1),None,chk="v_cmp_ne_u32 vcc, s6, v20")
stamp(6)
a("s_barrier\nL_go2:\ns_mov_b64 exec, 1")
poll(["global_load_dword v20, v4, s[40:41] offset:1024 sc1"],None,opt("slf",1),None,chk="v_cmp_ne_u32 vcc, s6, v20")
stamp(7)
a("s_barrier\ns_cmp_lt_u32 s2, 160\ns_cbranch_scc1 L_fin")
NH4=opt("nh4",8)
a(f"s_cmp_ge_u32 s2, 216\ns_cselect_b32 s7, {NH4-1}, {NH3-1}\ns_cselect_b32 s8, {H4-H3}, 0\ns_add_u32 s8, s8, {H3}\nv_min_u32 v4, s7, v1\nv_lshl_add_u32 v4, v4, 7, s8")
poll(["global_load_dword v20, v4, s[40:41] sc1"],[20],opt("slh",1),None)
stamp(14)
a("s_barrier\ns_branch L_fin")
a("L_bf:\nv_lshlrev_b32 v157, 4, v1\ns_bfe_u32 s5, s2, 0x10003\ns_mov_b32 s15, 0\ns_sub_u32 s4, s2, 128\ns_cmp_lg_u32 s3, 10\ns_cbranch_scc1 L_bf1")
a(f"s_sub_u32 s8, s42, T_0-{KN}\ns_subb_u32 s9, s43, 0\ns_lshr_b32 s10, s4, 3\ns_lshl_b32 s10, s10, 10\nv_lshl_add_u32 v4, v1, 7, s10\nv_min_u32 v4, T_end-{KN}-4, v4\ns_mov_b64 exec, 0xff\nglobal_load_dword v8, v4, s[8:9]\ns_mov_b64 exec, -1")
a("L_bf1:")
a(f"s_lshl_b32 s7, s3, 7\ns_add_u32 s7, s7, s4\ns_lshl_b32 s7, s7, 7\ns_add_u32 s7, s7, {WS_I}\nv_lshrrev_b32 v5, 3, v1\nv_mul_u32_u24 v5, 0x28000, v5\nv_lshl_add_u32 v5, v6, 4, v5\nv_add_u32 v5, s7, v5")
a(f"s_mul_i32 s7, s4, 10\ns_add_u32 s7, s7, s3\ns_lshl_b32 s7, s7, 10\ns_add_u32 s7, s7, {WS_Y}\ns_lshl_b32 s8, s4, 9\ns_add_u32 s8, s8, {WS_SMALL}\ns_cmp_eq_u32 s3, 10\ns_cselect_b32 s7, s8, s7\ns_cselect_b32 exec_hi, 0, -1\nv_add_u32 v7, s7, v157")
a("v_mov_b32 v12, -1\nv_mov_b32 v13, -1\nv_mov_b32 v14, -1\nv_mov_b32 v15, -1\ns_waitcnt lgkmcnt(0)\ns_load_dword s6, s[40:41], 0")
a("s_cbranch_scc1 L_bf2\nglobal_store_dwordx4 v5, v[12:15], s[40:41] sc1\nL_bf2:")
stamp(1)
a(f"s_lshl_b32 s7, s4, 7\ns_add_u32 s7, s7, {WS_FA}\nv_add_u32 v18, s7, v157\ns_waitcnt vmcnt(0) lgkmcnt(0)\ns_add_u32 s6, s6, 1\nv_mov_b32 v8, s6\nv_mov_b32 v9, s6\nv_mov_b32 v10, s6\nv_mov_b32 v11, s6\ns_barrier")
a("s_cmp_lg_u32 s3, 9\ns_cbranch_scc1 L_bf5\ns_mov_b64 exec, 0xff\nglobal_store_dwordx4 v18, v[8:11], s[40:41] sc1\ns_mov_b64 exec, -1\nL_bf5:")
a("s_cmp_eq_u32 s2, 214\ns_cbranch_scc1 L_agg\nL_bf6:\nglobal_store_dwordx4 v7, v[12:15], s[40:41] sc1\ns_mov_b64 exec, -1\ns_waitcnt vmcnt(0)\ns_barrier")
stamp(2)
a("s_setprio 0\ns_cmp_lt_u32 s3, 8\ns_cbranch_scc1 L_bf3\ns_cmp_eq_u32 s3, 8\ns_cbranch_scc1 L_bf8\ns_cmp_eq_u32 s3, 9\ns_cbranch_scc1 L_fin")
a("v_add_u32 v18, 0x4000, v18\ns_mov_b64 exec, 0xff\nglobal_store_dwordx4 v18, v[8:11], s[40:41] sc1\ns_mov_b64 exec, -1")
a("s_cmp_ge_u32 s2, 160\ns_cbranch_scc1 L_bf4")
a(f"s_waitcnt vmcnt(0)\ns_branch L_flagchk\nL_bf4:\ns_and_b32 s7, s2, 254\ns_cmp_eq_u32 s7, 214\ns_cbranch_scc1 L_fin\ns_sleep {opt('slb',60)}\ns_branch L_flagchk")
a("L_bf3:\ns_cmp_ge_u32 s2, 160\ns_cbranch_scc1 L_f\nv_mov_b32 v122, 0\nv_mov_b32 v123, 0\nv_mov_b32 v124, 0\nv_mov_b32 v158, 0")
p2addr()
a("s_branch L_b2")
a("L_f:")
if opt("fdel",2): a(f"s_sleep {opt('fdel',2)}")
a("s_cmp_ge_u32 s2, 216\ns_cbranch_scc1 L_f2\ns_cmp_lt_u32 s2, 214\ns_cbranch_scc1 L_f1")
def agg(fl,go,nxt,dl):
    a(f"v_lshlrev_b32 v4, 7, v1\nv_add_u32 v4, {fl}, v4\nv_add_u32 v6, 0x2000, v4\nv_add_u32 v5, {go}, v157")
    poll(["global_load_dword v20, v4, s[40:41] sc1","global_load_dword v21, v6, s[40:41] sc1"],None,opt("sla",0),None,chk="v_cmp_ne_u32 vcc, s6, v20\nv_cmp_ne_u32_e64 s[8:9], s6, v21\ns_or_b64 vcc, vcc, s[8:9]")
    stamp(6)
    if dl: a(f"s_sleep {dl}")
    a(f"global_store_dwordx4 v5, v[8:11], s[40:41] sc1\ns_branch {nxt}")
a(f"s_cmp_lg_u32 s2, 215\ns_cbranch_scc1 L_fin\ns_cmp_lg_u32 s3, 0\ns_cbranch_scc1 L_fin")
agg(WS_FA+0x4000,WS_GO+0x400,"L_fin",0)
a("L_agg:\ns_cmp_lg_u32 s3, 0\ns_cbranch_scc1 L_bf6\nglobal_store_dwordx4 v7, v[12:15], s[40:41] sc1\ns_waitcnt vmcnt(0)\ns_barrier")
agg(WS_FA,WS_GO,"L_fin",opt("gdel",0))
a("L_f1:")
a("s_sub_u32 s49, s2, 160\ns_and_b32 s50, s49, 7\ns_lshr_b32 s56, s49, 4\ns_lshl3_add_u32 s50, s56, s50\ns_lshl1_add_u32 s50, s50, s5\ns_cmp_ge_u32 s49, 48\ns_cselect_b32 s50, s49, s50")
a(f"s_mul_i32 s56, s3, 80\ns_lshl_b32 s57, s50, 6\nv_lshrrev_b32 v4, 2, v1\nv_mul_u32_u24 v6, 80, v4\nv_add_u32 v4, s56, v4\nv_and_b32 v5, 3, v0\nv_lshl_add_u32 v7, v5, 4, s57\ns_movk_i32 s56, 3456")
for i in range(5): a(f"v_add_u32 v5, {16*i}, v4\nv_lshrrev_b32 v13, 5, v5\nv_and_b32 v5, 31, v5\nv_mad_u32_u24 v5, v5, 20, v13\nv_mad_u32_u24 v{8+i}, v5, s56, v7")
a(f"s_mul_i32 s58, s3, 5120\ns_add_u32 s59, s58, {UPO}\ns_bitcmp1_b32 s50, 0\ns_cselect_b64 s[8:9], s[32:33], s[30:31]\ns_cselect_b64 s[10:11], s[30:31], s[32:33]\ns_cselect_b32 s60, s59, s58\ns_cselect_b32 s61, s58, s59")
for h in range(2):
    for i in range(5):
        a(f"s_add_u32 m0, s{60+h}, {1024*i}\nglobal_load_lds_dwordx4 v{8+i}, s[{8+2*h}:{9+2*h}]")
a("s_cmp_ge_u32 s3, 4\ns_cbranch_scc1 L_f1a")
for i in range(5): a(f"global_load_dwordx4 {vr(104+4*i)}, v6, s[42:43] offset:{TO_W+16*i}")
a("L_f1a:")
a(f"s_mul_i32 s16, s3, 1280\ns_add_u32 s16, s16, {HN}\nv_lshlrev_b32 v158, 2, v1\nv_add_u32 v162, s16, v157\nv_add_u32 v163, s16, v158")
a(f"s_mul_i32 s16, s3, {XSS}\ns_add_u32 s16, s16, {L_XS}\nv_add_u32 v157, s16, v157\nv_add_u32 v158, s16, v158")
a(f"v_and_b32 v164, 7, v0\nv_mul_u32_u24 v165, {XSS}, v164\nv_lshl_add_u32 v165, v2, 4, v165\nv_bfe_u32 v166, v0, 3, 1\nv_lshl_add_u32 v165, v166, 6, v165\nv_add_u32 v165, {L_XS}, v165")
a(f"s_lshl2_add_u32 s16, s50, s3\ns_lshl_b32 s16, s16, 7\ns_add_u32 s16, s16, {ACT}\nv_lshl_add_u32 v164, v164, 4, s16\nv_and_b32 v166, 1, v2\nv_lshl_add_u32 v164, v166, 3, v164\nv_lshrrev_b32 v166, 1, v2\nv_lshl_add_u32 v164, v166, 2, v164")
a(f"s_mov_b32 s18, 0x00ff00ff\ns_mov_b32 s19, 0x00ff00ff\ns_lshl_b32 s16, s49, 7\ns_add_u32 s16, s16, {H4}\nv_mov_b32 v167, s16")
a(f"v_and_b32 v4, 1, v0\nv_lshlrev_b32 v4, 3, v4\nv_bfe_u32 v5, v0, 1, 1\nv_mul_u32_u24 v5, {UPO}, v5\ns_lshl_b32 s56, s3, 4\nv_add3_u32 v7, v4, v5, s56")
stamp(3)
a("s_waitcnt vmcnt(0)\ns_barrier")
stamp(4)
a("s_cmp_ge_u32 s3, 4\ns_cbranch_scc1 L_f1w")
for k in range(20):
    a(f"v_add_u32_sdwa v4, v{104+k}, v7 {SD.format(0)}\nv_add_u32_sdwa v5, v{104+k}, v7 {SD.format(1)}")
    a(f"ds_read_b64_tr_b16 v[{8+4*k}:{9+4*k}], v4\nds_read_b64_tr_b16 v[{10+4*k}:{11+4*k}], v5")
a("s_waitcnt lgkmcnt(0)\nL_f1w:")
stamp(5)
a("s_barrier")
stamp(14)
if opt("pre4",0): a(f"s_sleep {opt('pre4',0)}")
def h4(lbl):
    a(f"s_cmp_lg_u32 s3, 7\ns_cbranch_scc1 {lbl}\ns_cmp_ge_u32 s49, {NH4}\ns_cbranch_scc1 {lbl}")
    store1(167,167)
H4POS=opt("h4pos",1)
poll(["global_load_dwordx4 v[152:155], v162, s[40:41] sc1","global_load_dword v156, v163, s[40:41] offset:1024 sc1"],range(152,157),opt("sl4",2),166)
stamp(15)
a(f"ds_write_b128 v157, v[152:155]\nds_write_b32 v158, v156 offset:1024")
if H4POS==0: h4("L_h4"); a("L_h4:")
a("s_waitcnt lgkmcnt(0)\ns_barrier\ns_cmp_lt_u32 s3, 4\ns_cbranch_scc1 L_p4")
if H4POS==1: h4("L_fin")
a("s_branch L_fin\nL_p4:")
for i in range(10): a(f"ds_read_b128 {vr(104+4*i)}, v165 offset:{128*i}")
for i in range(10):
    a(f"s_waitcnt lgkmcnt({9-i})")
    a(f"{MF} v[144:147], {vr(8+8*i)}, {vr(104+4*i)}, {'0' if i==0 else 'v[144:147]'}\n{MF} v[148:151], {vr(12+8*i)}, {vr(104+4*i)}, {'0' if i==0 else 'v[148:151]'}")
for i in range(4): a(f"v_add_f32_dpp v{144+i}, v{148+i}, v{144+i} row_ror:8 {DPPM}")
a("v_permlane32_swap_b32 v144, v146\nv_permlane32_swap_b32 v145, v147")
a("v_mul_f32 v148, 0xbfb8aa3b, v144\nv_mul_f32 v149, 0xbfb8aa3b, v145\nv_exp_f32 v148, v148\nv_exp_f32 v149, v149\nv_mul_f32 v144, v144, v146\nv_mul_f32 v145, v145, v147")
a("v_add_f32 v148, 1.0, v148\nv_add_f32 v149, 1.0, v149\nv_rcp_f32 v148, v148\nv_rcp_f32 v149, v149\ns_mov_b64 exec, s[18:19]\nv_mul_f32 v144, v144, v148\nv_mul_f32 v145, v145, v149\nv_cvt_pk_bf16_f32 v144, v144, v145")
a("global_store_dword v164, v144, s[40:41] sc1\ns_mov_b64 exec, -1")
stamp(16)
a("s_branch L_fin")
a("L_bf8:\ns_cmp_lt_u32 s2, 216\ns_cbranch_scc1 L_fin\nL_f2:")
a("s_sub_u32 s50, s2, 216\ns_and_b32 s51, s50, 7\ns_mul_i32 s51, s51, 5\ns_lshr_b32 s50, s50, 3\ns_add_u32 s51, s50, s51\ns_lshl_b32 s51, s51, 5\nv_and_b32 v164, 7, v0\nv_bfe_u32 v165, v0, 3, 1\ns_cmp_eq_u32 s3, 8\ns_cbranch_scc1 L_f2e")
a("v_lshrrev_b32 v4, 1, v1\nv_mul_u32_u24 v4, 1280, v4\nv_and_b32 v5, 1, v0\nv_lshl_add_u32 v4, v5, 4, v4\ns_mul_i32 s56, s3, 81920\ns_add_u32 s56, s56, s51\nv_add_u32 v4, s56, v4\ns_lshl_b32 s58, s3, 13")
a("s_cmp_ge_u32 s3, 3\ns_cselect_b32 s61, 2, 3")
for i in range(4):
    a(f"s_add_u32 s59, s50, {i}\ns_and_b32 s59, s59, 3\ns_min_u32 s60, s59, s61\ns_mul_i32 s60, s60, 655360\ns_lshl_b32 s59, s59, 11\ns_add_u32 m0, s59, s58\nv_add_u32 v5, s60, v4\nglobal_load_lds_dwordx4 v5, s[34:35]")
    a(f"s_add_u32 m0, m0, 1024\nv_add_u32 v5, 40960, v5\nglobal_load_lds_dwordx4 v5, s[34:35]")
a(f"v_lshlrev_b32 v162, 4, v164\nv_lshl_add_u32 v162, v2, 7, v162\nv_lshl_add_u32 v162, v165, 9, v162\ns_lshl_b32 s16, s3, 10\ns_add_u32 s17, s16, {ACT}\nv_add_u32 v162, s17, v162")
a(f"v_add_u32 v163, 0x2000, v162\nv_add_u32 v166, 0x4000, v162\ns_lshl_b32 s61, s61, 13\nv_add_u32 v167, s61, v162\ns_add_u32 s16, s16, {L_XS}\nv_add_u32 v157, s16, v157")
a("v_lshrrev_b32 v4, 2, v3\nv_lshl_add_u32 v4, v2, 3, v4\nv_lshlrev_b32 v4, 5, v4\nv_and_b32 v5, 3, v0\nv_lshl_add_u32 v4, v5, 3, v4\nv_add_u32 v4, s58, v4")
stamp(3)
a("s_waitcnt vmcnt(0)")
stamp(4)
for k in range(8):
    a(f"ds_read_b64_tr_b16 v[{8+4*k}:{9+4*k}], v4 offset:{1024*k}\nds_read_b64_tr_b16 v[{10+4*k}:{11+4*k}], v4 offset:{1024*k+128}")
a("s_waitcnt lgkmcnt(0)\ns_cmp_lt_u32 s3, 3\ns_cbranch_scc1 L_p5a")
for i in range(8): a(f"v_mov_b32 v{32+i}, 0")
a("L_p5a:\ns_barrier")
stamp(5)
a("s_barrier")
stamp(14)
if opt("pre5",0): a(f"s_sleep {opt('pre5',0)}")
poll(["global_load_dwordx4 v[40:43], v162, s[40:41] sc1","global_load_dwordx4 v[44:47], v163, s[40:41] sc1","global_load_dwordx4 v[48:51], v166, s[40:41] sc1","global_load_dwordx4 v[52:55], v167, s[40:41] sc1"],range(40,56),opt("sl5",2),114)
stamp(15)
for i in range(4):
    a(f"{MF} v[72:75], {vr(8+8*i)}, {vr(40+4*i)}, {'0' if i==0 else 'v[72:75]'}\n{MF} v[76:79], {vr(12+8*i)}, {vr(40+4*i)}, {'0' if i==0 else 'v[76:79]'}")
for i in range(4): a(f"v_add_f32_dpp v{72+i}, v{76+i}, v{72+i} row_ror:8 {DPPM}")
a(f"ds_write_b128 v157, v[72:75]\ns_waitcnt lgkmcnt(0)\ns_barrier\ns_branch L_fin\nL_f2e:")
a(f"v_lshlrev_b32 v104, 6, v164\nv_add_u32 v104, {META}, v104\nv_mul_u32_u24 v105, 1280, v164\nv_lshl_add_u32 v106, v2, 3, s51\nv_add_u32 v105, v105, v106\nv_add_u32 v105, {BASE}, v105")
a(f"v_lshl_add_u32 v62, v2, 4, v164\nv_lshlrev_b32 v62, 4, v62\nv_lshl_add_u32 v62, v165, 12, v62\nv_add_u32 v62, {L_XS}, v62\ns_mov_b32 s18, 0x00ff00ff\ns_mov_b32 s19, 0x00ff00ff")
a("s_barrier\ns_barrier")
poll(["global_load_dwordx2 v[60:61], v104, s[40:41] sc1","global_load_dwordx2 v[58:59], v105, s[40:41] sc1"],range(58,62),opt("slm",2),114)
a("v_lshlrev_b32 v64, 16, v58\nv_and_b32 v65, 0xffff0000, v58\nv_lshlrev_b32 v66, 16, v59\nv_and_b32 v67, 0xffff0000, v59")
a("v_and_b32 v60, 2047, v60\nv_mul_u32_u24 v60, 1280, v60\nv_add_u32 v60, v60, v106")
stamp(13)
a("s_barrier")
for i in range(4): a(f"ds_read_b128 {vr(72+4*i)}, v62 offset:{1024*i}")
a("s_waitcnt lgkmcnt(0)")
a("v_pk_add_f32 v[72:73], v[72:73], v[76:77]\nv_pk_add_f32 v[74:75], v[74:75], v[78:79]\nv_pk_add_f32 v[80:81], v[80:81], v[84:85]\nv_pk_add_f32 v[82:83], v[82:83], v[86:87]\nv_pk_add_f32 v[72:73], v[72:73], v[80:81]\nv_pk_add_f32 v[74:75], v[74:75], v[82:83]")
for i in range(4): a(f"v_add_f32_dpp v{72+i}, v{72+i}, v{72+i} row_ror:8 {DPPM}")
a("s_mov_b64 exec, s[18:19]")
for i in range(4): a(f"v_fma_f32 v{72+i}, v{72+i}, v61, v{64+i}")
a(f"v_cvt_pk_bf16_f32 v72, v72, v73\nv_cvt_pk_bf16_f32 v73, v74, v75\nglobal_store_dwordx2 v60, v[72:73], s[36:37] {OUTF}\ns_mov_b64 exec, -1")
stamp(16)
a("L_fin:")
if STAMP:
    a("s_waitcnt vmcnt(0)")
    stamp(17)
    if "probe" in kw:
        k=int(kw["probe"])
        a(f"s_waitcnt lgkmcnt(0)\ns_cmp_ge_u32 s3, {opt('pw',4)}\ns_cbranch_scc1 L_end\ns_cmp_lt_u32 s3, {opt('pw0',0)}\ns_cbranch_scc1 L_end\ns_cmp_lt_u32 s2, {opt('plo',0)}\ns_cbranch_scc1 L_end\ns_cmp_ge_u32 s2, {opt('phi',256)}\ns_cbranch_scc1 L_end")
        a(f"s_add_u32 s16, s{64+2*k}, 4000\nL_spin:\ns_sleep 1\ns_memrealtime s[18:19]\ns_waitcnt lgkmcnt(0)\ns_sub_u32 s17, s16, s18\ns_cmp_lt_u32 s17, 4001\ns_cbranch_scc1 L_spin\ns_endpgm")
    else:
        a(f"s_waitcnt lgkmcnt(0)")
        for k in range(NST): a(f"v_writelane_b32 v5, s{64+2*k}, {k}")
        a(f"v_writelane_b32 v5, s15, 31\ns_mul_i32 s16, s2, {NW}\ns_add_u32 s16, s16, s3\ns_lshl_b32 s16, s16, 7\ns_add_u32 s16, s16, {WS_STAMP}\nv_lshl_add_u32 v4, v1, 2, s16\ns_mov_b32 exec_hi, 0\nglobal_store_dword v4, v5, s[40:41]")
a("L_end:\ns_endpgm")
flush_tail()
if opt("now",0): a.L=[l for l in a.L if not ("global_load_lds" in l and "s[42:43]" not in l)]
if kw.get("wf"): a.L=[l+" "+kw["wf"] if ("global_load_lds" in l and "s[42:43]" not in l) else l for l in a.L]
body=a.finish()
small=np.zeros(1536,np.uint16)
small[0:768]=T.t_pm().reshape(-1); small[768:768+640]=T.t_w().reshape(-1)
tab=".p2align 7\n.type T_0,@object\nT_0:\n"+T.emit(small)+"T_end:\n"
txt=f"""; FNet (hidden DFT 20x32, sequence DFT 8x256 with real/Hermitian folding) + LayerNorm + top-8 SwiGLU, one persistent launch.
; @launch grid=(256,1,1) block=({64*NW},1,1) lds={LDS_BYTES}
.amdgcn_target "amdgcn-amd-amdhsa--gfx950"
.text
.globl {KN}
.p2align 8
.type {KN},@function
{body}
{tab}.section .rodata,"a"
.p2align 6
.amdhsa_kernel {KN}
  .amdhsa_next_free_vgpr 168
  .amdhsa_next_free_sgpr 102
  .amdhsa_accum_offset 168
  .amdhsa_group_segment_fixed_size 0
  .amdhsa_kernarg_size 104
  .amdhsa_user_sgpr_count 2
  .amdhsa_user_sgpr_kernarg_segment_ptr 1
  .amdhsa_system_sgpr_workgroup_id_x 1
.end_amdhsa_kernel
"""
open(outp,"w").write(txt)
print("nops inserted",a.nops,"bytes",len(txt),file=sys.stderr)
```

```python
import sys, struct
sys.path.insert(0,"gen")
from asmlib import Asm
import tables4 as T
import numpy as np
KN="sequential_preLN__spectral_fnet__moe_arch_mod__prompt_kernel"
kw=dict(a.split("=") for a in sys.argv[2:])
outp=sys.argv[1]
STAMP=int(kw.get("stamp",0))
def opt(n,d): return int(kw.get(n,d))
def fhex(f): return hex(struct.unpack("<I",struct.pack("<f",f))[0])
WS_GO=0x1000; WS_FA=0x8000; EXT=0x10000; WS_I=0x20000; WS_Y=0x160000; WS_STAMP=0x300000
WS_SMALL=0x2A0000; KEYS=WS_SMALL; HN=KEYS+0x2000; HN8=HN+0x5000; BASE=HN8+0x2800; META=BASE+0x2800; LIST=META+0x400; H3=LIST+0x400; H4=H3+0x800; ACT=H4+0x1000; ACT2=ACT+0xD800
assert ACT2+0xD800<=WS_SMALL+128*1536
TO_PM=0; TO_W=1536; TO_P2=3072
U=T.US; RS=T.RS
L_ZERO=20480; L_SUM=21504; L_SQ=21568; L_ST3=21632; L_CNT=21952; L_SM=22528; L_WP=23552; L_PM=25088; L_XP=27136; L_P2=0; L_TAB=52224
L_XS=82048; XSS=1296; UPO=40992; LDS_BYTES=L_XS+16*XSS+64; L_VD=L_XS+16*XSS; L_EX=51904; L_SQ4=22016
LIMIT=3000; NW=11
OUTF=kw.get("outf","").replace("+"," ")
a=Asm()
NST=18
def stamp(k):
    if STAMP: a(f"s_memrealtime s[{64+2*k}:{65+2*k}]")
def lg(n): a(f"s_waitcnt lgkmcnt({0 if STAMP else n})")
pc=[0]; tail=[]
def poll(loads, regs, sleep, tmp, between=None, chk=None, wait=None):
    k=pc[0]; pc[0]+=1
    for l in loads: a(l)
    if between: between()
    if wait: a(f"s_cmp_eq_u32 s62, 0\ns_cbranch_scc1 LW{k}\n{wait}\ns_branch LV{k}")
    a(f"LW{k}:\ns_waitcnt vmcnt(0)")
    if wait: a(f"LV{k}:")
    if chk: a(chk)
    else:
        r=list(regs)
        if len(r)==1: tmp=r[0]; r=[]
        elif len(r)%2==1: a(f"v_max3_u32 v{tmp}, v{r[0]}, v{r[1]}, v{r[2]}"); r=r[3:]
        else: a(f"v_max_u32 v{tmp}, v{r[0]}, v{r[1]}"); r=r[2:]
        while r: a(f"v_max3_u32 v{tmp}, v{tmp}, v{r[0]}, v{r[1]}"); r=r[2:]
        a(f"v_cmp_eq_u32 vcc, -1, v{tmp}")
    a(f"s_cbranch_vccnz LR{k}\nLD{k}:\ns_mov_b64 exec, -1")
    tail.append(f"LR{k}:\ns_add_u32 s15, s15, 1\ns_cmp_lt_u32 s15, {LIMIT}\ns_cbranch_scc0 LD{k}\ns_mov_b64 exec, vcc\n"+(f"s_sleep {sleep}\n" if sleep else "")+"\n".join(loads)+f"\ns_branch LW{k}")
def flush_tail():
    for t in tail: a(t)
    tail.clear()
DPPM="row_mask:0xf bank_mask:0xf"
MF="v_mfma_f32_16x16x32_bf16"
SD="dst_sel:DWORD dst_unused:UNUSED_PAD src0_sel:WORD_{} src1_sel:DWORD"
NEG="neg_lo:[0,1] neg_hi:[0,1]"
def vr(b,n=4): return f"v[{b}:{b+n-1}]"
def read_pm():
    a(f"ds_read_b128 v[144:147], v159 offset:{L_PM}\nds_read_b128 v[148:151], v159 offset:{L_PM+16}\nds_read_b64 v[152:153], v159 offset:{L_PM+32}")
def scatter(base):
    for i in range(10):
        t=4+2*(i&1)
        a(f"v_add_u32_sdwa v{t}, v{144+i}, v{base} {SD.format(0)}\nv_add_u32_sdwa v{t+1}, v{144+i}, v{base} {SD.format(1)}")
        a(f"ds_write_b16 v{t}, v{8+i}\nds_write_b16_d16_hi v{t+1}, v{8+i}")
def store1(addr,val):
    a(f"s_mov_b64 exec, 1\nglobal_store_dword v{addr}, v{val}, s[40:41] sc1\ns_mov_b64 exec, -1")

def p2addr():
    a(f"s_and_b32 s62, s2, 7\ns_lshr_b32 s56, s2, 4\ns_mul_i32 s57, s62, 10\ns_add_u32 s57, s57, s56\ns_lshl_b32 s57, s57, 14\ns_add_u32 s57, s57, {WS_I}")
    a("v_lshl_add_u32 v112, v0, 4, s57\nv_add_u32 v113, 0x2000, v112")
    a("v_lshlrev_b32 v6, 1, v0\nv_and_b32 v6, 32, v6\nv_and_b32 v7, 64, v0\nv_or_b32 v6, v6, v7\nv_lshlrev_b32 v7, 4, v0\nv_xor_b32 v114, v6, v7")
    a(f"s_lshl_b32 s56, s56, 7\ns_add_u32 s56, s56, {WS_Y}\ns_lshl_b32 s58, s3, 8\ns_add_u32 s58, s58, s5\ns_lshl2_add_u32 s59, s62, s58\ns_mulk_i32 s59, 1280\ns_add_u32 s59, s59, s56")
    a("s_lshl_b32 s60, s62, 2\ns_add_u32 s60, s60, 995\ns_sub_u32 s60, s60, s58\ns_mulk_i32 s60, 1280\ns_add_u32 s60, s60, s56\ns_add_u32 s60, s60, 64")
    a("v_and_b32 v4, 7, v0\nv_mul_u32_u24 v4, 40960, v4\nv_lshrrev_b32 v5, 3, v3\nv_lshl_add_u32 v4, v5, 6, v4\nv_lshlrev_b32 v5, 4, v2\nv_add3_u32 v120, v4, v5, s59\nv_sub_u32 v121, s60, v4\nv_add_u32 v121, v121, v5")
    a("v_lshrrev_b32 v5, 2, v3\nv_lshl_add_u32 v4, v2, 3, v5\nv_lshlrev_b32 v4, 7, v4\nv_and_b32 v5, 3, v0\nv_lshl_add_u32 v4, v5, 3, v4")
    a(f"v_bfe_u32 v5, v0, 3, 2\nv_lshl_add_u32 v116, v5, 5, v4\nv_xor_b32 v117, 64, v116\nv_xor_b32 v118, 32, v116\nv_xor_b32 v119, 96, v116")
def yoff(dst,t):
    a(f"s_and_b32 {dst}, {t}, 255\ns_lshr_b32 s59, {t}, 9\ns_lshl2_add_u32 {dst}, {dst}, s59\ns_mulk_i32 {dst}, 1280\ns_bfe_u32 s59, {t}, 0x10008\ns_lshl_b32 s59, s59, 6\ns_add_u32 {dst}, {dst}, s59\ns_add_u32 {dst}, {dst}, {WS_Y}")
def p3addrA():
    a(f"s_movk_i32 s62, {U}\nv_lshrrev_b32 v4, 3, v1\nv_and_b32 v5, 7, v0\nv_lshlrev_b32 v5, 3, v5\nv_mad_u32_u24 v122, v4, s62, v5")
    a(f"v_lshl_add_u32 v128, v4, 7, v5\nv_lshlrev_b32 v5, 2, v3\nv_mad_u32_u24 v123, v2, s62, v5\nv_lshl_add_u32 v130, v2, 7, v5")
    a(f"v_cmp_eq_u32 vcc, 0, v2\nv_add_u32 v124, {18*U}, v122\nv_subrev_u32 v4, {2*U}, v122\nv_cndmask_b32 v124, v4, v124, vcc")
    a("v_add_u32 v125, s51, v122\nv_add_u32 v126, s51, v123\nv_add_u32 v127, s51, v124")
def p3addrB():
    a("v_cmp_eq_u32 vcc, 0, v2\nv_lshlrev_b32 v138, 3, v1\nv_add_u32 v139, 512, v138\nv_lshlrev_b32 v140, 2, v1\nv_add_u32 v143, 384, v140\nv_add_u32 v140, 1024, v140\nv_add_u32 v141, 640, v138\nv_add_u32 v142, 1152, v138\nv_subrev_u32 v4, 128, v138\nv_cndmask_b32 v142, v4, v142, vcc")
    yoff("s56","s46")
    a("s_sub_u32 s58, 2048, s46\ns_and_b32 s58, s58, 2047")
    yoff("s57","s58")
    a("s_add_u32 s62, s56, 1024\ns_sub_u32 s59, s57, 256\nv_mov_b32 v129, s59\nv_mov_b32 v4, s62\nv_cndmask_b32 v129, v129, v4, vcc\nv_add_u32 v129, v129, v128\nv_add_u32 v128, s56, v128\ns_add_u32 s62, s57, 768\nv_add_u32 v130, s62, v130")
    a("v_cmp_eq_u32 vcc, 21, v1\nv_mov_b32 v132, 0xffff\nv_lshlrev_b32 v137, 4, v3\nv_cndmask_b32 v131, -1, v132, vcc\nv_cmp_eq_u32 vcc, 5, v1\ns_lshl_b32 s57, s2, 4\nv_add_u32 v135, s57, v3\nv_cndmask_b32 v132, -1, v132, vcc")
    a("s_lshl_b32 s57, s48, 4\nv_lshl_add_u32 v133, v2, 2, s57\ns_add_u32 s57, s57, 16\ns_cmp_eq_u32 s50, 0\ns_cselect_b32 s57, 272, s57\nv_lshl_add_u32 v134, v2, 2, s57\ns_mov_b32 s63, 0x3f803f80")
    a(f"v_lshlrev_b32 v136, 2, v135\nv_add_u32 v136, {KEYS}, v136")
    for i in AC: a(f"v_mov_b32 v{i}, 0")
AC=[108,109,110,111,160,161,162,163,164,165,166,167]
PMA="v_and_b32 v159, 7, v0\nv_lshl_add_u32 v159, v2, 3, v159\nv_mul_u32_u24 v159, 48, v159"
def gentab(first="s_lshl3_add_u32 s56, s5, s3",tb=56):
    a(first+"\ns_lshl_b32 s56, s56, 4\ns_add_u32 s56, s56, 1\nv_and_b32 v16, 7, v0\nv_lshl_add_u32 v16, v16, 1, s56\nv_and_b32 v17, 8, v0\nv_lshl_add_u32 v16, v17, 3, v16")
    a(f"v_cvt_f32_u32 v16, v16\nv_lshlrev_b32 v17, 3, v2\nv_cvt_f32_u32 v17, v17\nv_mul_f32 v16, {fhex(-1/512)}, v16\nv_cos_f32 v18, v16\nv_mul_f32 v17, v17, v16\nv_mul_f32 v20, {fhex(31.0)}, v16\nv_add_f32 v18, v18, v18")
    for k in range(4):
        a("v_cos_f32 v24, v17\nv_sin_f32 v25, v17\nv_add_f32 v17, v17, v16\nv_cos_f32 v26, v17\nv_sin_f32 v27, v17\nv_add_f32 v17, v17, v20")
        for j in range(2,8): a(f"v_pk_fma_f32 v[{24+2*j}:{25+2*j}], v[{22+2*j}:{23+2*j}], v[18:19], v[{20+2*j}:{21+2*j}] op_sel_hi:[1,0,1] neg_lo:[0,0,1] neg_hi:[0,0,1]")
        if k==0: a("v_lshlrev_b32 v21, 31, v0\nv_xor_b32 v21, -1.0, v21\nv_cmp_eq_u32 vcc, 0, v2\nv_cndmask_b32 v25, v25, v21, vcc")
        for h in range(4): a(f"v_cvt_pk_bf16_f32 v{tb+4*k+h}, v{24+4*h}, v{26+4*h}\nv_cvt_pk_bf16_f32 v{tb+16+4*k+h}, v{25+4*h}, v{27+4*h}")
def read_w():
    a(f"ds_read_b64 v[98:99], v122 offset:{L_WP}\nds_read_b64 v[100:101], v122 offset:{L_WP+8*U}\nds_read_b32 v102, v123 offset:{L_WP+16*U}\nds_read_b64 v[104:105], v122 offset:{L_WP+10*U}\nds_read_b64 v[106:107], v124 offset:{L_WP}\nds_read_b32 v103, v123 offset:{L_WP+6*U}")

a(f"{KN}:")
stamp(0)
a("s_load_dwordx2 s[16:17], s[0:1], 0\ns_load_dwordx2 s[40:41], s[0:1], 96\ns_load_dwordx4 s[28:31], s[0:1], 48\ns_load_dwordx8 s[32:39], s[0:1], 64")
a("s_setprio 3\ns_cmp_ge_u32 s2, 256\ns_cbranch_scc1 L_end")
if opt("remap",0):
    a("s_and_b32 s4, s2, 3\ns_lshr_b32 s5, s2, 3\ns_lshl2_add_u32 s4, s5, s4\ns_and_b32 s2, s2, 4\ns_lshl_b32 s2, s2, 5\ns_or_b32 s2, s2, s4")
a("v_lshrrev_b32 v4, 6, v0\nv_and_b32 v1, 63, v0\nv_readfirstlane_b32 s3, v4\nv_lshrrev_b32 v2, 4, v1\nv_and_b32 v3, 15, v0\nv_and_b32 v6, 7, v0")
a("s_getpc_b64 s[42:43]\nL_pc:\ns_add_u32 s42, s42, T_0-L_pc\ns_addc_u32 s43, s43, 0\ns_cmp_ge_u32 s2, 128\ns_cbranch_scc1 L_bf")
a("s_lshl_b32 s46, s3, 8\ns_add_u32 s46, s46, s2\ns_sub_u32 s47, 2048, s46\ns_mov_b32 s44, s3\ns_sub_u32 s45, 15, s3\ns_lshl_b32 s48, s3, 1\ns_mov_b32 s50, 1\ns_cmp_eq_u32 s2, 0\ns_cbranch_scc1 L_rows0\nL_rows:")
a("s_mul_i32 s8, s46, 1280\ns_mul_i32 s9, s47, 1280\nv_mov_b32 v4, s8\nv_mov_b32 v5, s9\nv_cmp_lt_u32 vcc, 7, v3\nv_lshlrev_b32 v159, 3, v6\nv_lshl_add_u32 v159, v2, 6, v159\nv_cndmask_b32 v158, v4, v5, vcc\nv_add_u32 v158, v158, v159")
a("s_cmp_ge_u32 s3, 8\ns_cbranch_scc1 L_a8")
a("s_waitcnt lgkmcnt(0)")
for i in range(5): a(f"global_load_dwordx2 v[{8+2*i}:{9+2*i}], v158, s[16:17] offset:{256*i}")
a("s_setprio 0")
stamp(1)
a("v_mov_b32 v4, s44\nv_mov_b32 v5, s45\nv_cndmask_b32 v161, v4, v5, vcc\nv_mul_u32_u24 v160, 5120, v2\nv_lshl_add_u32 v160, v6, 3, v160\nv_lshl_add_u32 v160, v161, 6, v160\nv_lshlrev_b32 v161, 2, v161")
a("v_lshrrev_b32 v20, 2, v3\nv_and_b32 v21, 3, v0\nv_mad_u32_u24 v20, v20, 5, v21\nv_cvt_f32_u32 v28, v2")
for tile in range(2):
    if tile: a("v_add_u32 v20, 3, v20")
    a("v_lshrrev_b32 v22, 1, v20\nv_and_b32 v24, 1, v20")
    if tile==0:
        a("v_cmp_eq_u32 vcc, 1, v20\nv_cndmask_b32_e64 v22, v22, 10, vcc\nv_cndmask_b32_e64 v24, v24, 0, vcc\nv_cmp_eq_u32 vcc, 3, v21\nv_cndmask_b32_e64 v22, v22, 0, vcc\nv_cndmask_b32_e64 v24, v24, 0, vcc")
    a(f"v_cvt_f32_u32 v22, v22\nv_cvt_f32_u32 v24, v24\nv_mul_f32 v22, {fhex(0.05)}, v22\nv_mul_f32 v24, {fhex(0.25)}, v24\nv_fmac_f32 v24, v28, v22\nv_mul_f32 v22, 4.0, v22")
    for i in range(5):
        a(f"v_cos_f32 v{29+i}, v24")
        if i<4: a("v_add_f32 v24, v24, v22")
    a(f"v_cvt_pk_bf16_f32 v{36+4*tile}, v29, v30\nv_cvt_pk_bf16_f32 v{37+4*tile}, v31, v32\nv_cvt_pk_bf16_f32 v{38+4*tile}, v33, 0\nv_mov_b32 v{39+4*tile}, 0")
a("v_mov_b32 v23, 0\nv_mov_b32 v27, 0\nv_mov_b32 v31, 0\nv_mov_b32 v35, 0\nv_mov_b32 v18, 0\nv_mov_b32 v19, 0\ns_mov_b32 s52, 0x05040100\ns_mov_b32 s53, 0x07060302")
a(f"ds_write_b32 v161, v23 offset:{L_CNT}\nv_lshl_add_u32 v86, v2, 6, v161")
a(f"v_mov_b32 v162, {fhex(-1/32)}\nv_cmp_eq_u32 vcc, 0, v2\nv_cndmask_b32 v162, 0, v162, vcc")
a("L_gtrig:\nv_lshlrev_b32 v157, 4, v1\ns_bfe_u32 s5, s2, 0x10003\ns_mov_b32 s15, 0")
a("s_add_u32 s12, s3, 80\ns_cmp_eq_u32 s3, 0\ns_cselect_b32 s13, 4, 8\ns_cselect_b32 s14, 20, s3\ns_cselect_b32 s12, 10, s12")
a("v_lshrrev_b32 v44, 2, v3\nv_and_b32 v45, 3, v0\nv_mad_u32_u24 v44, v44, s13, v45\nv_mul_u32_u24 v44, 20, v44\nv_add_u32 v45, s12, v44\nv_add_u32 v44, s14, v44\nv_lshlrev_b32 v46, 3, v2")
a(f"v_cvt_f32_u32 v44, v44\nv_cvt_f32_u32 v45, v45\nv_cvt_f32_u32 v46, v46\nv_mul_f32 v44, {fhex(1/640)}, v44\nv_mul_f32 v45, {fhex(1/640)}, v45\nv_mul_f32 v47, v46, v45\nv_mul_f32 v46, v46, v44")
for tau in range(2):
    a(f"v_cos_f32 v48, v{46+tau}\nv_sin_f32 v49, v{46+tau}\nv_add_f32 v{46+tau}, v{46+tau}, v{44+tau}\nv_cos_f32 v64, v{44+tau}\nv_cos_f32 v50, v{46+tau}\nv_sin_f32 v51, v{46+tau}\nv_add_f32 v64, v64, v64")
    for j in range(2,8): a(f"v_pk_fma_f32 v[{48+2*j}:{49+2*j}], v[{46+2*j}:{47+2*j}], v[64:65], v[{44+2*j}:{45+2*j}] op_sel_hi:[1,0,1] neg_lo:[0,0,1] neg_hi:[0,0,1]")
    for h in range(4):
        a(f"v_cvt_pk_bf16_f32 v{88+8*tau+h}, v{48+4*h}, v{50+4*h}\nv_cvt_pk_bf16_f32 v{104+4*tau+h}, v{49+4*h}, v{51+4*h}\nv_xor_b32 v{92+8*tau+h}, 0x80008000, v{104+4*tau+h}")
a(f"s_lshl_b32 s49, s3, 11\ns_add_u32 s56, s49, 1024\ns_cmp_eq_u32 s3, 0\ns_cselect_b32 s57, 1024, s49\ns_cselect_b32 s56, {L_ZERO}, s56")
a("v_lshlrev_b32 v166, 4, v2\nv_lshl_add_u32 v163, v3, 6, v166\nv_add_u32 v164, s56, v163\nv_add_u32 v165, s57, v163\nv_add_u32 v163, s49, v163")
a(f"s_lshl_b32 s49, s3, 7\ns_add_u32 s49, s49, s2\ns_lshl_b32 s49, s49, 7\ns_add_u32 s49, s49, {WS_I}")
a("v_lshrrev_b32 v4, 1, v3\nv_and_b32 v5, 1, v0\nv_mul_u32_u24 v167, 0x28000, v4\nv_lshl_add_u32 v167, v5, 6, v167\nv_add3_u32 v167, v167, v166, s49")
a(f"s_mul_i32 s51, s48, {RS}\ns_add_u32 s51, s51, {L_XP}\nv_lshrrev_b32 v156, 3, v3\nv_mul_u32_u24 v156, {RS}, v156\nv_add_u32 v156, s51, v156")
a(f"s_lshl_b32 s49, s3, 7\nv_lshl_add_u32 v155, v5, 5, s49\nv_lshl_add_u32 v155, v4, 2, v155\nv_lshrrev_b32 v4, 1, v2\nv_lshl_add_u32 v155, v4, 6, v155\nv_and_b32 v154, 1, v2\nv_lshl_add_u32 v154, v154, 2, v4\ns_mul_i32 s49, s3, {U}\nv_lshl_add_u32 v154, v154, 3, s49")
a(PMA)
a("s_cmp_ge_u32 s3, 8\ns_cbranch_scc1 L_a8b")
p2addr()
stamp(2)
a("s_waitcnt vmcnt(0)")
stamp(3)
for low in range(4):
    c=low>>1; sel="s53" if low&1 else "s52"; o=20+4*low
    a(f"v_perm_b32 v{o}, v{10+c}, v{8+c}, {sel}\nv_perm_b32 v{o+1}, v{14+c}, v{12+c}, {sel}\nv_perm_b32 v{o+2}, v23, v{16+c}, {sel}")
    if low>0: a(f"{MF} {vr(44+4*(low-1))}, v[36:39], {vr(20+4*(low-1))}, 0")
a("v_dot2c_f32_bf16 v18, v8, v8\nv_dot2c_f32_bf16 v19, v9, v9")
a(f"{MF} {vr(56)}, v[36:39], {vr(32)}, 0")
for i in range(1,5):
    a(f"v_dot2c_f32_bf16 v18, v{8+2*i}, v{8+2*i}\nv_dot2c_f32_bf16 v19, v{9+2*i}, v{9+2*i}")
    a(f"{MF} {vr(60+4*(i-1))}, v[40:43], {vr(20+4*(i-1))}, 0")
a("v_add_f32 v4, v47, v51\nv_add_f32 v5, v55, v59\nv_add_f32 v4, v4, v5\nv_add_f32 v18, v18, v19")
for m,r in (("quad_perm:[1,0,3,2]",1),("quad_perm:[2,3,0,1]",2),("row_half_mirror",0)):
    if r: a(f"v_cvt_pk_bf16_f32 v{76+2*r}, v{44+r}, v{48+r}")
    else: a("v_cvt_pk_bf16_f32 v82, v60, v64")
    a(f"v_add_f32_dpp v4, v4, v4 {m} {DPPM}\nv_add_f32_dpp v18, v18, v18 {m} {DPPM}")
    if r: a(f"v_cvt_pk_bf16_f32 v{77+2*r}, v{52+r}, v{56+r}\nds_write_b64 v160, v[{76+2*r}:{77+2*r}] offset:{1024*r}")
a("v_cvt_pk_bf16_f32 v83, v68, v72\nds_write_b64 v160, v[82:83] offset:3072\nv_cvt_pk_bf16_f32 v84, v61, v65\nv_cvt_pk_bf16_f32 v85, v69, v73\nds_write_b64 v160, v[84:85] offset:4096")
for low in range(4): a(f"v_fmac_f32 v{44+4*low}, v4, v162")
a("v_cvt_pk_bf16_f32 v76, v44, v48\nv_cvt_pk_bf16_f32 v77, v52, v56\nds_write_b64 v160, v[76:77]")
a(f"ds_write_b32 v86, v18 offset:{L_SQ4}\nds_write_b32 v161, v4 offset:{L_SUM}")
a("L_b1:\ns_waitcnt lgkmcnt(0)\ns_barrier")
stamp(4)
a(f"ds_read_b128 v[20:23], v163\nds_read_b128 v[28:31], v164\nds_read_b128 v[24:27], v165")
lg(2)
a(f"{MF} v[44:47], v[20:23], v[88:91], 0\n{MF} v[48:51], v[20:23], v[92:95], 0")
lg(1)
a(f"{MF} v[44:47], v[28:31], v[104:107], v[44:47]\n{MF} v[48:51], v[28:31], v[88:91], v[48:51]")
a(f"{MF} v[52:55], v[28:31], v[108:111], 0\n{MF} v[56:59], v[28:31], v[96:99], 0")
lg(0)
a(f"{MF} v[52:55], v[24:27], v[96:99], v[52:55]\n{MF} v[56:59], v[24:27], v[100:103], v[56:59]")
a(f"s_barrier\nds_read_b128 v[32:35], v157 offset:{L_SM}")
a("v_cvt_pk_bf16_f32 v20, v44, v45\nv_cvt_pk_bf16_f32 v21, v46, v47\nv_cvt_pk_bf16_f32 v22, v48, v49\nv_cvt_pk_bf16_f32 v23, v50, v51")
a("v_cvt_pk_bf16_f32 v24, v52, v53\nv_cvt_pk_bf16_f32 v25, v54, v55\nv_cvt_pk_bf16_f32 v26, v56, v57\nv_cvt_pk_bf16_f32 v27, v58, v59\ns_waitcnt lgkmcnt(0)")
a(f"{MF} v[44:47], v[20:23], v[32:35], 0\n{MF} v[48:51], v[24:27], v[32:35], 0")
a(f"ds_read_b64 v[60:61], v154 offset:{L_WP}\nds_read_b64 v[62:63], v154 offset:{L_WP+16}\nds_read_b64 v[64:65], v154 offset:{L_WP+10*U}\nds_read_b64 v[66:67], v154 offset:{L_WP+10*U+16}\nv_mov_b32 v68, 0\nv_mov_b32 v69, 0")
a("v_cvt_pk_bf16_f32 v20, v44, v45\nv_cvt_pk_bf16_f32 v21, v46, v47\nv_cvt_pk_bf16_f32 v22, v48, v49\nv_cvt_pk_bf16_f32 v23, v50, v51")
a("global_store_dwordx4 v167, v[20:23], s[40:41] sc1")
stamp(5)
a("s_waitcnt lgkmcnt(0)")
for i in range(4): a(f"v_dot2c_f32_bf16 v68, v{20+i}, v{60+i}\nv_dot2c_f32_bf16 v69, v{20+i}, v{64+i}")
a(f"v_permlane32_swap_b32 v68, v69\nv_add_f32 v68, v68, v69\nv_mov_b32 v69, v68\nv_permlane16_swap_b32 v68, v69\nv_add_f32 v68, v68, v69\nds_write_b32 v155, v68 offset:{L_EX}\ns_waitcnt lgkmcnt(0)\ns_barrier\ns_cmp_eq_u32 s3, 9\ns_cbranch_scc1 L_ext")
read_pm()
a("s_cmp_lt_u32 s3, 8\ns_cbranch_scc1 L_scat\ns_cmp_lg_u32 s2, 0\ns_cbranch_scc1 L_fin\ns_barrier\ns_barrier\ns_branch L_p2end")
a("L_ext:\ns_setprio 3")
for i in range(10): a(f"ds_read_b32 v{44+i}, v112 offset:{L_EX+128*i}")
a("s_waitcnt lgkmcnt(0)\nv_pk_add_f32 v[44:45], v[44:45], v[46:47]\nv_pk_add_f32 v[48:49], v[48:49], v[50:51]\nv_pk_add_f32 v[44:45], v[44:45], v[52:53]\nv_pk_add_f32 v[44:45], v[44:45], v[48:49]\nv_add_f32 v44, v44, v45\nv_mul_f32 v44, v44, v113\nv_mov_b32 v45, v44")
a(f"v_permlane32_swap_b32 v44, v45\nv_add_f32 v44, v44, v45\nv_mov_b32 v45, v44\nv_permlane16_swap_b32 v44, v45\nv_add_f32 v44, v44, v45\nv_mov_b32_dpp v45, v44 quad_perm:[1,0,3,2] {DPPM}\nv_cvt_pk_bf16_f32 v44, v44, v45")
a("s_mov_b64 exec, 0x5555\nglobal_store_dword v120, v44, s[40:41] sc1\ns_mov_b64 exec, -1")
stamp(3)
a("s_barrier\ns_branch L_fin")
XA=[88,89,90,91,92]; XB=[94,95,96,97,93]; WA=[98,99,100,101,102]; WB=[104,105,106,107,103]
a("L_scat:\ns_cmp_ge_u32 s3, 4\ns_cbranch_scc1 L_b2\ns_waitcnt lgkmcnt(0)")
scatter(156)
a("L_b2:")
TABPOS=opt("tabpos",1)
if TABPOS==0:
    a("s_cmp_ge_u32 s3, 4\ns_cbranch_scc1 L_ntab")
    gentab()
    a("L_ntab:")
stamp(6)
a("s_waitcnt vmcnt(0) lgkmcnt(0)\ns_barrier" if opt("ack1",1) else "s_waitcnt lgkmcnt(0)\ns_barrier")
stamp(7)
if opt("pre1",0): a(f"s_sleep {opt('pre1',0)}")
def x1win():
    if TABPOS==1:
        a("s_cmp_ge_u32 s3, 4\ns_cbranch_scc1 L_ntab")
        gentab()
        a("s_branch L_ntab2\nL_ntab:\ns_cmp_ge_u32 s2, 128\ns_cbranch_scc1 L_ntab2")
        scatter(156)
        a("L_ntab2:")
poll(["global_load_dwordx4 v[40:43], v112, s[40:41] sc1","global_load_dwordx4 v[44:47], v113, s[40:41] sc1"],range(40,48),opt("sl1",2),16,between=x1win)
stamp(8)
a(f"ds_write_b128 v114, v[40:43] offset:{L_P2}\nds_write_b128 v114, v[44:47] offset:{L_P2+8192}\ns_waitcnt lgkmcnt(0)\ns_barrier")
a("s_cmp_ge_u32 s3, 4\ns_cbranch_scc1 L_p2end\ns_setprio 2")
def trg(i):
    k,c=i>>2,i&3; b=8+4*(i&7)
    a(f"ds_read_b64_tr_b16 v[{b}:{b+1}], v{116+c} offset:{L_P2+4096*k}\nds_read_b64_tr_b16 v[{b+2}:{b+3}], v{116+c} offset:{L_P2+4096*k+512}")
NPRE=7
for i in range(NPRE): trg(i)
for i in range(16):
    k,c=i>>2,i&3
    issued=min(16,NPRE+i)
    a(f"s_waitcnt lgkmcnt({2*(issued-i-1)})")
    a(f"{MF} {vr(40+4*c)}, {vr(8+4*(i&7))}, {vr(56+16*(c&1)+4*k)}, {'0' if k==0 else vr(40+4*c)}")
    if NPRE+i<16: trg(NPRE+i)
a(f"v_pk_add_f32 v[8:9], v[40:41], v[44:45] {NEG}\nv_pk_add_f32 v[10:11], v[42:43], v[46:47] {NEG}\nv_pk_add_f32 v[16:17], v[40:41], v[44:45]\nv_pk_add_f32 v[18:19], v[42:43], v[46:47]")
a("v_cvt_pk_bf16_f32 v24, v8, v9\nv_cvt_pk_bf16_f32 v25, v10, v11\nv_cvt_pk_bf16_f32 v28, v16, v17\nv_cvt_pk_bf16_f32 v29, v18, v19")
a(f"v_pk_add_f32 v[12:13], v[48:49], v[52:53] {NEG}\nv_pk_add_f32 v[14:15], v[50:51], v[54:55] {NEG}\nv_cvt_pk_bf16_f32 v26, v12, v13\nv_cvt_pk_bf16_f32 v27, v14, v15")
a("global_store_dwordx4 v120, v[24:27], s[40:41] sc1")
a("v_pk_add_f32 v[20:21], v[48:49], v[52:53]\nv_pk_add_f32 v[22:23], v[50:51], v[54:55]\nv_cvt_pk_bf16_f32 v30, v20, v21\nv_cvt_pk_bf16_f32 v31, v22, v23")
a("global_store_dwordx4 v121, v[28:31], s[40:41] sc1\ns_setprio 0")
stamp(9)
a("L_p2end:\ns_cmp_ge_u32 s2, 128\ns_cbranch_scc1 L_fin")
p3addrA()
a(f"ds_read_b64 v[88:89], v125\nds_read_b64 v[90:91], v125 offset:{8*U}\nds_read_b32 v92, v126 offset:{16*U}\nds_read_b64 v[94:95], v125 offset:{RS+10*U}\nds_read_b64 v[96:97], v127 offset:{RS}\nds_read_b32 v93, v126 offset:{RS+6*U}")
read_w()
p3addrB()
if opt("w2",-1)<0: a("s_waitcnt vmcnt(0)\ns_barrier")
else: a(f"s_barrier\ns_sleep {opt('w2',0)}")
stamp(10)
if opt("pre2",0): a(f"s_sleep {opt('pre2',0)}")
def x2win():
    a("s_waitcnt lgkmcnt(0)")
    for i in range(5):
        a(f"v_dot2c_f32_bf16 v{AC[0]}, s63, v{XA[i]}\nv_dot2c_f32_bf16 v{AC[1]}, v{XA[i]}, v{WA[i]}\nv_dot2c_f32_bf16 v{AC[2]}, v{XA[i]}, v{XA[i]}\nv_dot2c_f32_bf16 v{AC[3]}, s63, v{WA[i]}")
        a(f"v_dot2c_f32_bf16 v{AC[4]}, s63, v{XB[i]}\nv_dot2c_f32_bf16 v{AC[5]}, v{XB[i]}, v{WB[i]}\nv_dot2c_f32_bf16 v{AC[6]}, v{XB[i]}, v{XB[i]}")
    a(f"v_mov_b32 v{AC[7]}, v{AC[3]}\nv_mov_b32 v18, {fhex(1e-5)}\ns_mov_b32 s58, {fhex(1/640)}\ns_movk_i32 s59, 0x7ff")
    for X,hb in ((XA,32),(XB,42)):
        for i in range(5): a(f"v_lshlrev_b32 v{hb+2*i}, 16, v{X[i]}\nv_and_b32 v{hb+1+2*i}, 0xffff0000, v{X[i]}")
    a(f"v_lshlrev_b32 v154, 4, v0\nv_and_b32 v154, 0x1fff, v154\nv_add_u32 v154, {KEYS}, v154\nv_mov_b32 v119, {L_CNT}\ns_mov_b32 s61, 0\ns_mov_b32 s62, 0\ns_movk_i32 s44, 99\ns_movk_i32 s45, 99\ns_cmp_lt_u32 s3, 8\ns_cselect_b64 s[56:57], 1, 0\ns_add_u32 s49, s48, 1")
    a(f"s_lshl_b32 s60, s2, 7\ns_add_u32 s60, s60, {H3}\nv_mov_b32 v155, s60\ns_and_b32 s60, s2, 7\ns_lshl_b32 s60, s60, 7\ns_add_u32 s60, s60, {LIST}\nv_lshl_add_u32 v120, v3, 2, s60")
    if H3POS==0: h3()
NH3=opt("nh3",8); H3POS=opt("h3pos",1)
def h3():
    a(f"s_cmp_ge_u32 s2, {NH3}\ns_cbranch_scc1 L_h3\ns_cmp_lg_u32 s3, 7\ns_cbranch_scc1 L_h3")
    store1(155,155)
    a("s_mov_b32 s62, 1\nL_h3:" if H3POS==1 else "L_h3:")
poll(["global_load_dwordx2 v[112:113], v128, s[40:41] sc1","global_load_dwordx2 v[114:115], v129, s[40:41] sc1","global_load_dword v116, v130, s[40:41] sc1"],range(112,117),opt("sl2",2),4,between=x2win)
stamp(11)
YA=[112,113,114,117,116]; YB=[112,118,114,115,116]
A0,A1,A2,A3,B0,B1,B2_,B3,C0,C1,C2,C3=AC
def p3main():
    if H3POS==1: h3()
    a("v_and_b32 v117, v115, v131\nv_and_b32 v118, v113, v132")
    for i in (0,2,4,1,3):
        a(f"v_dot2c_f32_bf16 v{C0}, s63, v{YA[i]}\nv_dot2c_f32_bf16 v{C1}, v{YA[i]}, v{YA[i]}\nv_dot2c_f32_bf16 v{C2}, v{YA[i]}, v{XA[i]}\nv_dot2c_f32_bf16 v{C3}, v{YB[i]}, v{XB[i]}")
        a(f"v_dot2c_f32_bf16 v{A1}, v{YA[i]}, v{WA[i]}\nv_dot2c_f32_bf16 v{B1}, v{YB[i]}, v{WB[i]}")
    a(f"v_add_f32 v{A0}, v{A0}, v{C0}\nv_add_f32 v{B0}, v{B0}, v{C0}\nv_add_f32 v{A2}, v{A2}, v{C1}\nv_add_f32 v{B2_}, v{B2_}, v{C1}\nv_fmac_f32 v{A2}, 2.0, v{C2}\nv_fmac_f32 v{B2_}, 2.0, v{C3}")
    a(f"v_permlane32_swap_b32 v{A0}, v{A1}\nv_permlane32_swap_b32 v{B0}, v{B1}\nv_permlane32_swap_b32 v{A2}, v{A3}\nv_permlane32_swap_b32 v{B2_}, v{B3}")
    a(f"v_add_f32 v{A0}, v{A0}, v{A1}\nv_add_f32 v{A2}, v{A2}, v{A3}\nv_add_f32 v{B0}, v{B0}, v{B1}\nv_add_f32 v{B2_}, v{B2_}, v{B3}")
    a(f"v_permlane16_swap_b32 v{A0}, v{A2}\nv_permlane16_swap_b32 v{B0}, v{B2_}\nv_add_f32 v{A0}, v{A0}, v{A2}\nv_add_f32 v{B0}, v{B0}, v{B2_}")
    for s_ in (8,4,2,1): a(f"v_add_f32_dpp v{A0}, v{A0}, v{A0} row_ror:{s_} {DPPM}\nv_add_f32_dpp v{B0}, v{B0}, v{B0} row_ror:{s_} {DPPM}")
    a(f"ds_write_b32 v133, v{A0} offset:{L_ST3}\nds_write_b32 v134, v{B0} offset:{L_ST3}")
def top2():
    a("v_mov_b32 v4, v79")
    for s_ in (8,4,2,1): a(f"v_max_u32_dpp v4, v4, v4 row_ror:{s_} {DPPM}")
    a("v_cmp_ne_u32 vcc, v4, v79\nv_readfirstlane_b32 s6, v4\nv_cndmask_b32 v79, 0, v79, vcc\nv_mov_b32 v4, v79")
    for s_ in (8,4,2,1): a(f"v_max_u32_dpp v4, v4, v4 row_ror:{s_} {DPPM}")
    a("v_cmp_ne_u32 vcc, v4, v79\nv_readfirstlane_b32 s7, v4\nv_cndmask_b32 v79, 0, v79, vcc")
def hrow(Y,hb,nb,pk,sr,mv):
    for i in range(5):
        a(f"v_lshlrev_b32 v4, 16, v{Y[i]}\nv_and_b32 v5, 0xffff0000, v{Y[i]}\nv_pk_add_f32 v[{hb+2*i}:{hb+1+2*i}], v[{hb+2*i}:{hb+1+2*i}], v[4:5]")
        a(f"v_pk_fma_f32 v[{nb+2*i}:{nb+1+2*i}], v[{hb+2*i}:{hb+1+2*i}], s[{sr}:{sr+1}], v[{mv}:{mv+1}] op_sel_hi:[1,0,0] neg_lo:[0,0,1] neg_hi:[0,0,1]")
        a(f"v_cvt_pk_bf16_f32 v{pk+i}, v{nb+2*i}, v{nb+1+2*i}")
def publish(base,sl,pk,o0):
    a(f"s_mul_i32 s26, s{sl}, 1280\ns_add_u32 s26, s26, {base}\nv_add_u32 v4, s26, v{o0}\nv_add_u32 v5, s26, v{o0+1}\nv_add_u32 v6, s26, v{o0+2}")
    a(f"global_store_dwordx2 v4, v[{pk}:{pk+1}], s[40:41] sc1\nglobal_store_dwordx2 v5, v[{pk+2}:{pk+3}], s[40:41] sc1\nglobal_store_dword v6, v{pk+4}, s[40:41] sc1")
a("global_load_dword v71, v120, s[40:41] sc1")
p3main()
a("s_cmp_eq_u32 s62, 0\ns_cbranch_scc1 L_lw0\ns_waitcnt vmcnt(1)\ns_branch L_lw1\nL_lw0:\ns_waitcnt vmcnt(0)\nL_lw1:\nv_cmp_eq_u32 vcc, -1, v71\ns_mov_b32 s55, 1\ns_cbranch_vccnz L_nc\ns_mov_b32 s55, 0")
a("v_cmp_eq_u32_e64 s[24:25], s46, v71\nv_cmp_eq_u32_e64 s[26:27], s47, v71\ns_ff1_i32_b64 s52, s[24:25]\ns_ff1_i32_b64 s53, s[26:27]\ns_cmp_eq_u32 s50, 0\ns_cselect_b32 s53, -1, s53\ns_and_b32 s54, s52, s53\ns_cmp_lt_i32 s54, 0\ns_cbranch_scc0 L_cand\nL_nc:")
a(f"s_waitcnt lgkmcnt(0)\ns_barrier\nds_read_b128 v[76:79], v137 offset:{L_ST3}\ns_waitcnt lgkmcnt(0)")
a("v_mul_f32 v76, s58, v76\nv_fma_f32 v77, v77, s58, v18\nv_fma_f32 v77, -v76, v76, v77\nv_max_f32 v77, v77, v18\nv_rsq_f32 v77, v77\nv_fma_f32 v78, -v76, v79, v78\nv_mul_f32 v78, v78, v77")
a("v_ashrrev_i32 v79, 31, v78\nv_or_b32 v79, 0x80000000, v79\nv_xor_b32 v79, v79, v78\nv_bfi_b32 v79, s59, v135, v79\nv_min_u32 v79, -2, v79")
a("s_cmp_lg_u32 s3, 0\ns_cbranch_scc1 L_nokey\ns_mov_b64 exec, 0xffff\nglobal_store_dword v136, v79, s[40:41] sc1\ns_mov_b64 exec, -1\nL_nokey:")
stamp(12)
a("v_mul_f32 v76, v76, v77\nv_readlane_b32 s8, v77, s48\nv_readlane_b32 s12, v77, s49\nv_readlane_b32 s10, v76, s48\nv_readlane_b32 s18, v76, s49")
a("v_readlane_b32 s20, v79, s48\nv_readlane_b32 s21, v79, s49\nv_readlane_b32 s22, v78, s48\nv_readlane_b32 s23, v78, s49")
a("s_cmp_eq_u32 s50, 0\ns_cselect_b32 s21, 0, s21\nv_mov_b32 v80, s10\nv_mov_b32 v82, s18")
a("s_cmp_eq_u32 s55, 0\ns_cbranch_scc1 L_nc2")
poll(["global_load_dword v71, v120, s[40:41] sc1"],[71],opt("sll",2),None)
a("v_cmp_eq_u32_e64 s[24:25], s46, v71\nv_cmp_eq_u32_e64 s[26:27], s47, v71\ns_ff1_i32_b64 s52, s[24:25]\ns_ff1_i32_b64 s53, s[26:27]\ns_cmp_eq_u32 s50, 0\ns_cselect_b32 s53, -1, s53\ns_and_b32 s54, s52, s53\ns_cmp_lt_i32 s54, 0\ns_cbranch_scc0 L_cand\nL_nc2:")
a("s_cmp_lt_i32 s52, 0\ns_cbranch_scc0 L_na")
hrow(YA,32,8,60,8,80)
a("L_na:\ns_cmp_lt_i32 s53, 0\ns_cbranch_scc0 L_nb2")
hrow(YB,42,20,66,12,82)
a("L_nb2:")
top2()
def cand():
    a("L_cand:\ns_setprio 3")
    for R,(sl,acc,Y,hb,nb,pk,sr,mv,o0) in enumerate(((52,A0,YA,32,8,60,8,80,138),(53,B0,YB,42,20,66,12,82,141))):
        a(f"s_cmp_lt_i32 s{sl}, 0\ns_cbranch_scc1 L_cs{R}\nv_readlane_b32 s24, v{acc}, 0\nv_readlane_b32 s25, v{acc}, 16\nv_mov_b32 v76, s58")
        a(f"v_mul_f32 v{mv}, s24, v76\nv_fma_f32 v77, s25, v76, v18\nv_fma_f32 v77, -v{mv}, v{mv}, v77\nv_max_f32 v77, v77, v18\nv_rsq_f32 v77, v77\nv_mul_f32 v{mv}, v{mv}, v77\nv_readfirstlane_b32 s{sr}, v77")
        hrow(Y,hb,nb,pk,sr,mv)
        publish(HN,sl,pk,o0)
        a(f"L_cs{R}:")
    stamp(16)
    a("s_setprio 0\ns_cmp_eq_u32 s55, 0\ns_cbranch_scc1 L_nc\ns_branch L_nc2")
def outprep1():
    for R,(hb,nb,ob) in enumerate(((32,8,88),(42,20,94))):
        for i in range(5):
            a(f"v_pk_add_f32 v[4:5], v[{hb+2*i}:{hb+1+2*i}], v[{nb+2*i}:{nb+1+2*i}]\nv_cvt_pk_bf16_f32 v{ob+i}, v4, v5")
    a(f"ds_write_b64 v125, v[88:89]\nds_write_b64 v125, v[90:91] offset:{8*U}\nds_write_b32 v126, v92 offset:{16*U}\ns_cmp_eq_u32 s50, 0\ns_cbranch_scc1 L_nob")
    a(f"ds_write_b64 v125, v[94:95] offset:{RS+10*U}\nds_write_b64 v127, v[96:97] offset:{RS}\nds_write_b32 v126, v98 offset:{RS+6*U}\nL_nob:")
def outprep2():
    for i in range(10):
        t=4+2*(i&1)
        a(f"v_add_u32_sdwa v{t}, v{144+i}, v156 {SD.format(0)}\nv_add_u32_sdwa v{t+1}, v{144+i}, v156 {SD.format(1)}")
        a(f"ds_read_u16 v{8+i}, v{t}\nds_read_u16 v{20+i}, v{t+1}")
    a("v_cmp_lt_u32 vcc, 7, v3\nv_mov_b32 v4, s46\nv_mov_b32 v5, s47\nv_cndmask_b32 v52, v4, v5, vcc\nv_mov_b32 v4, s22\nv_mov_b32 v5, s23\nv_cndmask_b32 v53, v4, v5, vcc\nv_mov_b32 v4, s52\nv_mov_b32 v5, s53\nv_cndmask_b32 v54, v4, v5, vcc")
    a("v_mul_f32 v53, 0xbfb8aa3b, v53\nv_exp_f32 v53, v53\nv_and_b32 v54, 255, v54\nv_add_f32 v53, 1.0, v53\nv_rcp_f32 v53, v53\nv_mov_b32 v55, 0\ns_waitcnt lgkmcnt(0)")
    for i in range(10): a(f"v_lshl_or_b32 v{8+i}, v{20+i}, 16, v{8+i}")
OP=opt("op",1)
if OP>=1: outprep1()
if OP>=2: outprep2()
stamp(13)
if opt("pre3",0): a(f"s_sleep {opt('pre3',0)}")
poll(["global_load_dwordx4 v[72:75], v154, s[40:41] sc1"],range(72,76),opt("sl3",2),4,between=lambda: (outprep1() if OP<1 else None, outprep2() if OP<2 else None))
stamp(14)
a("L_round:")
SP=[24,26,28,30,8,10,16,58]
for i in range(4): a(f"v_cmp_gt_u32_e64 s[{SP[i]}:{SP[i]+1}], v{72+i}, s6")
for i in range(4): a(f"v_cmp_gt_u32_e64 s[{SP[4+i]}:{SP[4+i]+1}], v{72+i}, s7")
for i in range(8): a(f"s_bcnt1_i32_b64 s{SP[i]}, s[{SP[i]}:{SP[i]+1}]")
a("s_add_u32 s24, s24, s26\ns_add_u32 s28, s28, s30\ns_add_u32 s8, s8, s10\ns_add_u32 s16, s16, s58\ns_add_u32 s24, s24, s28\ns_add_u32 s8, s8, s16\ns_lshl_b32 s8, s8, 16\ns_add_u32 s24, s24, s8")
a("v_mov_b32 v4, s24\ns_mov_b64 exec, s[56:57]\nds_add_u32 v119, v4\ns_mov_b64 exec, -1\ns_waitcnt lgkmcnt(0)\ns_barrier\nds_read_b32 v4, v119\ns_waitcnt lgkmcnt(0)")
a("v_readfirstlane_b32 s24, v4\ns_and_b32 s25, s24, 0xffff\ns_lshr_b32 s24, s24, 16\ns_cmp_ge_u32 s25, 8\ns_cbranch_scc1 L_rdone")
for sk,srk in ((20,44),(21,45)):
    a(f"s_cmp_eq_u32 s{sk}, s7\ns_cselect_b32 s{srk}, s24, s{srk}\ns_cmp_eq_u32 s{sk}, s6\ns_cselect_b32 s{srk}, s25, s{srk}")
a("s_cmp_ge_u32 s24, 7\ns_cbranch_scc1 L_rdone\ns_cmp_ge_u32 s61, 3\ns_cbranch_scc1 L_rdone\ns_add_u32 s61, s61, 1\nv_add_u32 v119, 4, v119")
top2()
a("s_branch L_round\nL_rdone:")
stamp(15)
a("s_mov_b32 s24, 0x00ff00ff\ns_cmp_lt_u32 s44, 8\ns_cselect_b32 s30, 0, s24\ns_cselect_b32 s28, s24, 0\ns_not_b32 s24, s24\ns_cmp_lt_u32 s45, 8\ns_cselect_b32 s31, 0, s24\ns_cselect_b32 s29, s24, 0")
a("s_cmp_eq_u32 s50, 0\ns_cselect_b32 s31, 0, s31\ns_or_b32 s30, s30, s31\ns_mov_b32 s31, s30\ns_or_b32 s28, s28, s29\ns_cbranch_scc0 L_nosel\ns_mov_b32 s29, s28")
a(f"v_cmp_lt_u32 vcc, 7, v3\nv_mov_b32 v4, s44\nv_mov_b32 v5, s45\nv_cndmask_b32 v20, v4, v5, vcc\nv_and_b32 v20, 7, v20\nv_lshlrev_b32 v22, 7, v20\nv_add_u32 v22, {META}, v22")
a("s_and_b32 exec_lo, s28, 0x0101\ns_mov_b32 exec_hi, 0\nglobal_store_dwordx4 v22, v[52:55], s[40:41] sc1\ns_mov_b64 exec, s[28:29]")
a(f"v_mul_u32_u24 v21, 1280, v20\nv_add_u32 v21, {BASE}, v21\nv_lshl_add_u32 v21, v2, 6, v21\nv_and_b32 v4, 7, v0\nv_lshl_add_u32 v21, v4, 3, v21")
for i in range(5): a(f"global_store_dwordx2 v21, v[{8+2*i}:{9+2*i}], s[40:41] offset:{256*i} sc1")
a("s_mov_b64 exec, -1\ns_cmp_ge_u32 s44, 8\ns_cbranch_scc1 L_ns0")
publish(HN8,44,60,138)
a("L_ns0:\ns_cmp_ge_u32 s45, 8\ns_cbranch_scc1 L_nosel")
publish(HN8,45,66,141)
a("L_nosel:")
a("s_cmp_eq_u32 s30, 0\ns_cbranch_scc1 L_noout\ns_mov_b64 exec, s[30:31]")
for i in range(5): a(f"global_store_dwordx2 v158, v[{8+2*i}:{9+2*i}], s[36:37] offset:{256*i} {OUTF}")
a("s_mov_b64 exec, -1\nL_noout:")
a("s_or_b32 s24, s2, s3\ns_cbranch_scc1 L_fin")
a("s_load_dword s16, s[40:41], 0\nv_mov_b32 v4, 0\ns_waitcnt lgkmcnt(0)\ns_add_u32 s16, s16, 1\nv_mov_b32 v5, s16\ns_mov_b64 exec, 1\nglobal_store_dword v4, v5, s[40:41]\ns_mov_b64 exec, -1\ns_branch L_fin")
cand()
flush_tail()
a("L_rows0:\ns_add_u32 s44, s3, 8\ns_add_u32 s46, s46, 128\ns_sub_u32 s47, 2048, s46\ns_cmp_lt_u32 s3, 4\ns_cbranch_scc1 L_rows")
a("s_sub_u32 s44, s3, 3\ns_sub_u32 s45, 11, s3\ns_lshl_b32 s46, s44, 8\ns_sub_u32 s47, 2048, s46\ns_cmp_lt_u32 s3, 7\ns_cbranch_scc1 L_rows")
a("s_mov_b32 s44, 0\ns_mov_b32 s50, 0\ns_min_u32 s48, s48, 15\ns_movk_i32 s47, 1024\ns_cmp_eq_u32 s3, 7\ns_cselect_b32 s46, 0, s47\ns_branch L_rows")
a("L_a8b:\nv_mov_b32 v112, 0\nv_mov_b32 v113, 0\nv_mov_b32 v120, 0\nv_mov_b32 v121, 0")
a(f"s_cmp_eq_u32 s3, 9\ns_cbranch_scc1 L_a9b\ns_waitcnt lgkmcnt(0)\ns_load_dword s6, s[40:41], 0\ns_mul_i32 s8, s2, 10240\ns_add_u32 s8, s8, {WS_Y+4096}\nv_add_u32 v16, s8, v157\nv_add_u32 v17, 0x1000, v16\nv_mov_b32 v12, -1\nv_mov_b32 v13, -1\nv_mov_b32 v14, -1\nv_mov_b32 v15, -1")
if opt("ydel",0): a(f"s_sleep {opt('ydel',0)}")
for i in range(8): a(f"global_store_dwordx4 v16, v[12:15], s[40:41] offset:{1024*i-4096} sc1")
a(f"global_store_dwordx4 v17, v[12:15], s[40:41] sc1\nglobal_store_dwordx4 v17, v[12:15], s[40:41] offset:1024 sc1\ns_lshl_b32 s8, s2, 7\ns_add_u32 s8, s8, {WS_FA+0x4000}\nv_add_u32 v19, s8, v157\ns_waitcnt lgkmcnt(0)\ns_add_u32 s6, s6, 1")
a("v_mov_b32 v8, s6\nv_mov_b32 v9, s6\nv_mov_b32 v10, s6\nv_mov_b32 v11, s6\ns_waitcnt vmcnt(0)\ns_mov_b64 exec, 0xff\nglobal_store_dwordx4 v19, v[8:11], s[40:41] sc1\ns_mov_b64 exec, -1")
stamp(1)
a(f"s_branch L_b1\nL_a9b:\nv_mov_b32 v156, {L_WP}")
a(f"v_cvt_f32_u32 v20, s2\nv_mul_f32 v20, {fhex(1/256)}, v20\nv_cos_f32 v21, v20\nv_sin_f32 v22, v20\nv_and_b32 v6, 7, v0\nv_and_b32 v23, 8, v0\nv_cmp_eq_u32 vcc, 0, v6")
a("v_cndmask_b32 v21, 1.0, v21, vcc\nv_cndmask_b32 v22, 0, v22, vcc\nv_lshlrev_b32 v24, 28, v23\ns_cmp_eq_u32 s2, 0\ns_cselect_b64 s[8:9], vcc, 0\nv_cndmask_b32_e64 v24, v24, 0, s[8:9]\nv_xor_b32 v21, v21, v24")
a("v_sub_u32 v24, 8, v6\nv_and_b32 v24, 7, v24\nv_add3_u32 v24, v24, v23, 16\nv_sub_u32 v25, 24, v23\nv_cmp_eq_u32 vcc, 1, v2\nv_cndmask_b32 v112, v3, v24, vcc\nv_cndmask_b32 v113, 1.0, v21, vcc")
a(f"v_cmp_eq_u32 vcc, 2, v2\nv_cndmask_b32 v112, v112, v25, vcc\nv_cndmask_b32 v113, v113, v22, vcc\nv_cmp_eq_u32 vcc, 3, v2\nv_cndmask_b32_e64 v113, v113, 0, vcc\nv_lshlrev_b32 v112, 2, v112\ns_lshl_b32 s8, s2, 7\ns_add_u32 s8, s8, {EXT}\nv_lshl_add_u32 v120, v3, 1, s8\ns_waitcnt vmcnt(0)")
scatter(156)
stamp(2)
a("s_branch L_b1")
a("L_a8:\ns_cmp_eq_u32 s3, 10\ns_cbranch_scc1 L_a10\ns_setprio 0\ns_cmp_eq_u32 s3, 8\ns_cbranch_scc1 L_gtrig\nv_lshl_add_u32 v4, v2, 3, v6\nv_mul_u32_u24 v4, 48, v4\ns_waitcnt lgkmcnt(0)")
for i in range(5): a(f"global_load_dwordx2 v[{8+2*i}:{9+2*i}], v159, s[28:29] offset:{256*i}")
a(f"global_load_dwordx4 v[144:147], v4, s[42:43]\nglobal_load_dwordx4 v[148:151], v4, s[42:43] offset:16\nglobal_load_dwordx2 v[152:153], v4, s[42:43] offset:32\ns_branch L_gtrig")
a("L_a10:\nv_lshlrev_b32 v157, 4, v1\ns_bfe_u32 s5, s2, 0x10003\ns_mov_b32 s15, 0")
a("s_setprio 1\ns_lshl_b32 s7, s2, 7\ns_waitcnt lgkmcnt(0)\ns_load_dword s6, s[40:41], 0")
LATE10=f"s_movk_i32 m0, {L_PM}\nglobal_load_lds_dwordx4 v157, s[42:43]\nglobal_load_lds_dwordx4 v157, s[42:43] offset:1024"
a(f"s_add_u32 s7, s7, {WS_FA}\nv_mov_b32 v18, s7\ns_sub_u32 s7, 256, s2\ns_cmp_eq_u32 s2, 0\ns_cselect_b32 s7, 128, s7")
a("v_lshrrev_b32 v20, 1, v3\nv_and_b32 v21, 1, v0\nv_lshrrev_b32 v22, 1, v2\nv_and_b32 v23, 1, v2")
a("v_mov_b32 v24, s7\nv_mov_b32 v25, s2\nv_cmp_eq_u32 vcc, 1, v22\nv_cndmask_b32 v24, v25, v24, vcc\nv_lshl_add_u32 v24, v23, 10, v24")
a("v_subrev_u32 v25, 4, v20\nv_mul_i32_i24 v24, v24, v25\nv_lshl_add_u32 v24, v21, 9, v24")
a("v_cmp_gt_u32 vcc, v22, v21\ns_cmp_lg_u32 s2, 0\ns_cselect_b32 s49, 1024, 0\nv_mov_b32 v25, s49\nv_cndmask_b32 v25, 0, v25, vcc\nv_add_u32 v24, v24, v25\nv_and_b32 v24, 2047, v24")
a(f"v_cvt_f32_u32 v24, v24\nv_cvt_f32_u32 v25, v20\nv_mul_f32 v24, {fhex(1/2048)}, v24\nv_mul_f32 v25, {fhex(0.125)}, v25")
a("v_cmp_eq_u32 vcc, v22, v21\ns_cselect_b64 s[52:53], -1, 0\ns_or_b64 vcc, vcc, s[52:53]")
for i in range(4):
    a(f"v_cos_f32 v{60+i}, v24\nv_sin_f32 v{64+i}, v24")
    if i<3: a("v_add_f32 v24, v24, v25")
for i in range(8): a(f"v_cndmask_b32 v{60+i}, 0, v{60+i}, vcc")
a(f"v_mov_b32 v20, 0\nv_mov_b32 v21, 0\nv_mov_b32 v22, 0\nv_mov_b32 v23, 0\nds_write_b128 v157, v[20:23] offset:{L_ZERO}")
a(f"s_mov_b32 s60, {fhex(1/640)}\ns_mov_b32 s61, {fhex(1/640)}\nv_mov_b32 v86, {fhex(1e-5)}\nv_mov_b32 v87, {fhex(1e-5)}\nv_lshlrev_b32 v166, 4, v2")
a(LATE10)
stamp(1)
a("s_waitcnt vmcnt(0) lgkmcnt(0)\ns_add_u32 s6, s6, 1")
def flagA(): a("s_mov_b64 exec, 0xff\nglobal_store_dwordx4 v18, v[12:15], s[40:41] sc1\ns_mov_b64 exec, -1")
stamp(2)
a("s_setprio 3\ns_barrier")
stamp(4)
def smat():
    a(f"ds_read_b128 v[32:35], v166 offset:{L_SUM}\nds_read_b128 v[36:39], v166 offset:{L_SQ4}\nds_read_b128 v[40:43], v166 offset:{L_SQ4+64}\nds_read_b128 v[44:47], v166 offset:{L_SQ4+128}\nds_read_b128 v[48:51], v166 offset:{L_SQ4+192}")
    a("s_waitcnt lgkmcnt(0)")
    a("v_pk_add_f32 v[36:37], v[36:37], v[40:41]\nv_pk_add_f32 v[38:39], v[38:39], v[42:43]\nv_pk_add_f32 v[44:45], v[44:45], v[48:49]\nv_pk_add_f32 v[46:47], v[46:47], v[50:51]\nv_pk_add_f32 v[36:37], v[36:37], v[44:45]\nv_pk_add_f32 v[38:39], v[38:39], v[46:47]")
    a("v_pk_mul_f32 v[32:33], v[32:33], s[60:61]\nv_pk_mul_f32 v[34:35], v[34:35], s[60:61]\nv_pk_fma_f32 v[36:37], v[36:37], s[60:61], v[86:87]\nv_pk_fma_f32 v[38:39], v[38:39], s[60:61], v[86:87]")
    a("v_pk_fma_f32 v[36:37], v[32:33], v[32:33], v[36:37] neg_lo:[1,0,0] neg_hi:[1,0,0]\nv_pk_fma_f32 v[38:39], v[34:35], v[34:35], v[38:39] neg_lo:[1,0,0] neg_hi:[1,0,0]")
    for i in range(4): a(f"v_max_f32 v{36+i}, v{36+i}, v86")
    for i in range(4): a(f"v_rsq_f32 v{36+i}, v{36+i}")
    a("v_pk_mul_f32 v[60:61], v[60:61], v[36:37]\nv_pk_mul_f32 v[64:65], v[64:65], v[36:37]\nv_pk_mul_f32 v[62:63], v[62:63], v[38:39]\nv_pk_mul_f32 v[66:67], v[66:67], v[38:39]")
    a("v_cvt_pk_bf16_f32 v32, v60, v61\nv_cvt_pk_bf16_f32 v33, v62, v63\nv_cvt_pk_bf16_f32 v34, v64, v65\nv_cvt_pk_bf16_f32 v35, v66, v67")
    a(f"ds_write_b128 v157, v[32:35] offset:{L_SM}")
poll(["global_load_dword v20, v18, s[40:41] sc1"],None,opt("slf",1),None,chk="v_cmp_ne_u32 vcc, s6, v20",between=smat)
a("s_waitcnt lgkmcnt(0)\ns_barrier")
stamp(5)
a("s_barrier\ns_setprio 0")
NGO=opt("ngo",8); NH4=opt("nh4",8)
GOA=f"s_and_b32 s7, s2, {NGO-1}\ns_lshl_b32 s7, s7, 7\ns_add_u32 s7, s7, {WS_GO}\nv_mov_b32 v4, s7\ns_mov_b64 exec, 1"
a("L_flagchk:\n"+GOA)
poll(["global_load_dword v20, v4, s[40:41] sc1"],None,opt("slf",1),None,chk="v_cmp_ne_u32 vcc, s6, v20")
stamp(6)
a("s_barrier\ns_mov_b64 exec, 1")
poll(["global_load_dword v20, v4, s[40:41] offset:1024 sc1"],None,opt("slf",1),None,chk="v_cmp_ne_u32 vcc, s6, v20")
stamp(7)
a("s_barrier\ns_branch L_fin")
a(f"L_fw:\ns_sleep {opt('slb',60)}\n"+GOA)
poll(["global_load_dword v20, v4, s[40:41] sc1"],None,opt("slf",1),None,chk="v_cmp_ne_u32 vcc, s6, v20")
a("s_barrier")
a(f"s_cmp_ge_u32 s2, 216\ns_cselect_b32 s7, {NH4-1}, {NH3-1}\ns_cselect_b32 s8, {H4-H3}, 0\ns_add_u32 s8, s8, {H3}\nv_min_u32 v4, s7, v1\nv_lshl_add_u32 v4, v4, 7, s8")
poll(["global_load_dword v20, v4, s[40:41] sc1"],[20],opt("slh",1),None)
stamp(14)
a(f"s_barrier\ns_cmp_ge_u32 s2, 216\ns_cbranch_scc1 L_fin\nv_lshlrev_b32 v4, 7, v6\nv_add_u32 v4, {META+8}, v4\nv_mov_b32 v5, {L_VD}\ns_barrier")
if opt("vdel",8): a(f"s_sleep {opt('vdel',8)}")
poll(["global_load_dword v20, v4, s[40:41] sc1"],[20],opt("slm",2),None)
a("v_cmp_lt_u32 vcc, 15, v20\nv_mov_b32 v6, vcc_lo\nds_write_b32 v5, v6\ns_waitcnt lgkmcnt(0)")
stamp(13)
a("s_barrier\ns_branch L_fin")
a("L_bf:\nv_lshlrev_b32 v157, 4, v1\ns_bfe_u32 s5, s2, 0x10003\ns_mov_b32 s15, 0\ns_sub_u32 s4, s2, 128\nv_mov_b32 v12, -1\nv_mov_b32 v13, -1\nv_mov_b32 v14, -1\nv_mov_b32 v15, -1\ns_cmp_lg_u32 s3, 10\ns_cbranch_scc1 L_bf1")
a(f"s_sub_u32 s8, s42, T_0-{KN}\ns_subb_u32 s9, s43, 0\ns_lshr_b32 s10, s4, 3\ns_mulk_i32 s10, 1536\nv_lshl_add_u32 v4, v1, 7, s10\nv_min_u32 v4, T_end-{KN}-4, v4\ns_mov_b64 exec, 0xfff\nglobal_load_dword v8, v4, s[8:9]\ns_mov_b64 exec, -1")
a(f"s_lshl_b32 s7, s4, 7\ns_add_u32 s7, s7, {EXT}\nv_add_u32 v5, s7, v157\ns_mul_i32 s7, s4, 1536\ns_add_u32 s7, s7, {WS_SMALL}\nv_add_u32 v7, s7, v157\ns_waitcnt lgkmcnt(0)\nglobal_store_dwordx4 v7, v[12:15], s[40:41] sc1\nglobal_store_dwordx4 v7, v[12:15], s[40:41] offset:512 sc1\ns_mov_b64 exec, 0xff\ns_branch L_bf2")
a("L_bf1:")
a(f"s_lshl_b32 s7, s3, 7\ns_add_u32 s7, s7, s4\ns_lshl_b32 s7, s7, 7\ns_add_u32 s7, s7, {WS_I}\nv_lshrrev_b32 v5, 3, v1\nv_mul_u32_u24 v5, 0x28000, v5\nv_lshl_add_u32 v5, v6, 4, v5\nv_add_u32 v5, s7, v5")
a("L_bf2:\ns_waitcnt lgkmcnt(0)\ns_load_dword s6, s[40:41], 0\nglobal_store_dwordx4 v5, v[12:15], s[40:41] sc1\ns_mov_b64 exec, -1")
stamp(1)
a(f"s_lshl_b32 s7, s4, 7\ns_add_u32 s7, s7, {WS_FA}\nv_add_u32 v18, s7, v157\ns_waitcnt vmcnt(0) lgkmcnt(0)\ns_add_u32 s6, s6, 1\nv_mov_b32 v8, s6\nv_mov_b32 v9, s6\nv_mov_b32 v10, s6\nv_mov_b32 v11, s6\ns_barrier")
stamp(2)
a("s_setprio 0\ns_cmp_lt_u32 s3, 8\ns_cbranch_scc1 L_bf3\ns_cmp_eq_u32 s3, 8\ns_cbranch_scc1 L_bf8\ns_cmp_eq_u32 s3, 9\ns_cbranch_scc1 L_fin")
a("s_mov_b64 exec, 0xff\nglobal_store_dwordx4 v18, v[8:11], s[40:41] sc1\ns_mov_b64 exec, -1")
a("s_cmp_lt_u32 s2, 160\ns_cbranch_scc1 L_flagchk\ns_and_b32 s7, s2, 254\ns_cmp_eq_u32 s7, 214\ns_cbranch_scc1 L_fin\ns_branch L_fw")
a("L_bf3:\ns_cmp_ge_u32 s2, 160\ns_cbranch_scc1 L_f\nv_mov_b32 v158, 0")
p2addr()
a("s_branch L_b2")
a("L_f:\ns_cmp_eq_u32 s2, 215\ns_cbranch_scc1 L_sel\ns_cmp_lg_u32 s2, 214\ns_cbranch_scc1 L_fx")
a(f"s_cmp_ge_u32 s3, 2\ns_cbranch_scc1 L_fin\ns_lshl_b32 s7, s3, 14\ns_add_u32 s7, s7, {WS_FA}\nv_lshl_add_u32 v4, v1, 7, s7\nv_add_u32 v6, 0x2000, v4\ns_lshl_b32 s7, s3, 10\ns_add_u32 s7, s7, {WS_GO}\nv_add_u32 v5, s7, v157\ns_sleep {opt('adel',8)}\ns_cmp_eq_u32 s3, 0\ns_cbranch_scc1 L_ag1\ns_sleep 32\nL_ag1:")
poll(["global_load_dword v20, v4, s[40:41] sc1","global_load_dword v21, v6, s[40:41] sc1"],None,opt("sla",0),None,chk="v_cmp_ne_u32 vcc, s6, v20\nv_cmp_ne_u32_e64 s[8:9], s6, v21\ns_or_b64 vcc, vcc, s[8:9]")
stamp(6)
a(f"s_cmp_lg_u32 s3, 0\ns_cbranch_scc1 L_ag2\ns_sleep {opt('gdel',16)}\nL_ag2:")
a(f"global_store_dwordx4 v5, v[8:11], s[40:41] sc1\ns_branch L_fin")
S_GM=8192; S_X=8448; S_C=8704
KTH=opt("kth",12)
a("L_sel:\ns_cmp_ge_u32 s3, 4\ns_cbranch_scc1 L_fin")
gentab("s_add_u32 s56, s3, 8",88)
gentab("s_mov_b32 s56, s3",56)
a(f"v_lshrrev_b32 v4, 1, v0\nv_and_b32 v5, 1, v0\nv_lshlrev_b32 v120, 7, v4\nv_lshl_add_u32 v120, v5, 4, v120\nv_add_u32 v120, {EXT}, v120\nv_lshlrev_b32 v121, 4, v0\nv_mov_b32 v136, {WS_GO+0x380}")
a("v_lshrrev_b32 v4, 2, v3\nv_lshl_add_u32 v4, v2, 3, v4\nv_lshlrev_b32 v122, 5, v4\nv_and_b32 v5, 3, v0\nv_lshl_add_u32 v122, v5, 3, v122")
a("s_lshl_b32 s56, s3, 6\nv_lshl_add_u32 v4, v6, 3, s56\nv_and_b32 v5, 8, v0\nv_lshl_add_u32 v4, v5, 5, v4\nv_sub_u32 v5, 2040, v4\nv_cmp_lt_u32 vcc, 31, v1\nv_bfe_u32 v7, v0, 4, 1\nv_cndmask_b32 v124, v4, v5, vcc\nv_lshl_add_u32 v124, v7, 2, v124")
a("v_cndmask_b32_e64 v123, -1.0, 1.0, vcc\ns_mov_b64 s[26:27], vcc\nv_xor_b32 v128, 512, v124")
for i_ in range(1,4): a(f"v_add_u32 v{124+i_}, {i_}, v124\nv_add_u32 v{128+i_}, {i_}, v128")
a(f"v_and_b32 v132, 0xf0, v0\ns_lshl_b32 s56, s3, 6\nv_lshl_add_u32 v133, v3, 2, s56\nv_lshlrev_b32 v134, 6, v2\nv_lshlrev_b32 v135, 7, v2\nv_add_u32 v135, {LIST}, v135\ns_movk_i32 s59, 0x7ff\nv_bfrev_b32 v140, 1\ns_mov_b64 exec, 1")
poll(["global_load_dword v20, v136, s[40:41] sc1"],None,opt("slf",1),None,chk="v_cmp_ne_u32 vcc, s6, v20")
stamp(7)
if opt("pres",0): a(f"s_sleep {opt('pres',0)}")
poll(["global_load_dwordx4 v[8:11], v120, s[40:41] sc1"],range(8,12),opt("sls",1),16)
stamp(8)
a("ds_write_b128 v121, v[8:11]\ns_waitcnt lgkmcnt(0)\ns_barrier")
for k in range(4): a(f"ds_read_b64_tr_b16 v[{8+4*k}:{9+4*k}], v122 offset:{1024*k}\nds_read_b64_tr_b16 v[{10+4*k}:{11+4*k}], v122 offset:{1024*k+128}")
for t_ in range(2):
    for k in range(4):
        if t_==0: a(f"s_waitcnt lgkmcnt({6-2*k})")
        for c in range(2): a(f"{MF} {vr(24+8*t_+4*c)}, {vr(8+4*k)}, {vr(56+32*t_+16*c+4*k)}, {'0' if k==0 else vr(24+8*t_+4*c)}")
for t_ in range(2):
    b=24+8*t_
    for r in range(4): a(f"v_cndmask_b32_e64 v{b+r}, v{b+r}, v{b+4+r}, s[26:27]")
    for r in range(4): a(f"v_mov_b32 v{b+4+r}, v{b+r}")
    for r in range(4): a(f"v_permlane32_swap_b32 v{b+r}, v{b+4+r}")
    for r in range(4): a(f"v_fmac_f32 v{b+r}, v{b+4+r}, v123")
    for r in range(4):
        if opt("forcemiss",0): a(f"v_xor_b32 v{b+r}, 0x80000000, v{b+r}")
        a(f"v_bfi_b32 v{40+4*t_+r}, s59, v{124+4*t_+r}, v{b+r}")
a("v_max3_i32 v8, v40, v41, v42\nv_med3_i32 v9, v40, v41, v42\nv_max3_i32 v10, v43, v44, v45\nv_med3_i32 v11, v43, v44, v45\nv_max_i32 v12, v46, v47\nv_min_i32 v13, v46, v47")
a("v_max3_i32 v48, v8, v10, v12\nv_med3_i32 v49, v8, v10, v12\nv_max3_i32 v9, v9, v11, v13\nv_max_i32 v49, v49, v9")
for it in range(4):
    a(f"v_max_i32_dpp v{52+it}, v48, v48 row_ror:8 {DPPM}")
    for s_ in (4,2,1): a(f"v_max_i32_dpp v{52+it}, v{52+it}, v{52+it} row_ror:{s_} {DPPM}")
    if it<3: a(f"v_cmp_eq_u32 vcc, v48, v{52+it}\nv_cndmask_b32 v48, v48, v49, vcc\nv_cndmask_b32 v49, v49, v140, vcc")
a(f"ds_write_b128 v132, v[52:55] offset:{S_GM}\ns_waitcnt lgkmcnt(0)\ns_barrier")
stamp(9)
a(f"ds_read_b32 v32, v133 offset:{S_GM}")
for q in range(4): a(f"ds_read_b128 {vr(8+4*q)}, v134 offset:{S_GM+16*q}")
a("v_mov_b32 v33, 0\nv_mov_b32 v34, 0")
for q in range(4):
    lg(3-q)
    for e_ in range(4): a(f"v_cmp_gt_i32_e64 s[{16+2*e_}:{17+2*e_}], v{8+4*q+e_}, v32")
    for e_ in range(4): a(f"v_addc_co_u32_e64 v{33+(e_&1)}, s[24:25], 0, v{33+(e_&1)}, s[{16+2*e_}:{17+2*e_}]")
a("v_add_u32 v33, v33, v34\nv_mov_b32 v34, v33\nv_and_b32 v32, 0x7ff, v32\nv_permlane32_swap_b32 v33, v34\nv_add_u32 v33, v33, v34\nv_mov_b32 v34, v33\nv_permlane16_swap_b32 v33, v34\nv_add_u32 v33, v33, v34")
a("v_cmp_gt_u32 vcc, 16, v33\nv_lshl_add_u32 v33, v33, 2, v135\ns_and_b64 exec, vcc, exec\ns_cbranch_execz L_se\nglobal_store_dword v33, v32, s[40:41] sc1\nglobal_store_dword v33, v32, s[40:41] offset:512 sc1\nL_se:\ns_mov_b64 exec, -1")
stamp(10)
a("s_branch L_fin")
a("L_fx:")
if opt("fdel",2): a(f"s_sleep {opt('fdel',2)}")
a("s_cmp_ge_u32 s2, 216\ns_cbranch_scc1 L_f2")
a("s_sub_u32 s49, s2, 160\ns_and_b32 s50, s49, 7\ns_lshr_b32 s56, s49, 4\ns_lshl3_add_u32 s50, s56, s50\ns_lshl1_add_u32 s50, s50, s5\ns_cmp_ge_u32 s49, 48\ns_cselect_b32 s50, s49, s50")
a(f"s_mul_i32 s56, s3, 80\ns_lshl_b32 s57, s50, 6\nv_lshrrev_b32 v4, 2, v1\nv_mul_u32_u24 v6, 80, v4\nv_add_u32 v4, s56, v4\nv_and_b32 v5, 3, v0\nv_lshl_add_u32 v7, v5, 4, s57\ns_movk_i32 s56, 3456")
for i_ in range(5): a(f"v_add_u32 v5, {16*i_}, v4\nv_lshrrev_b32 v13, 5, v5\nv_and_b32 v5, 31, v5\nv_mad_u32_u24 v5, v5, 20, v13\nv_mad_u32_u24 v{8+i_}, v5, s56, v7")
a(f"s_mul_i32 s58, s3, 5120\ns_add_u32 s59, s58, {UPO}\ns_bitcmp1_b32 s50, 0\ns_cselect_b64 s[8:9], s[32:33], s[30:31]\ns_cselect_b64 s[10:11], s[30:31], s[32:33]\ns_cselect_b32 s60, s59, s58\ns_cselect_b32 s61, s58, s59")
for h in range(2):
    for i_ in range(5):
        a(f"s_add_u32 m0, s{60+h}, {1024*i_}\nglobal_load_lds_dwordx4 v{8+i_}, s[{8+2*h}:{9+2*h}]")
a("s_cmp_ge_u32 s3, 4\ns_cbranch_scc1 L_f1a")
for i_ in range(5): a(f"global_load_dwordx4 {vr(104+4*i_)}, v6, s[42:43] offset:{TO_W+16*i_}")
a("L_f1a:")
a(f"s_mul_i32 s16, s3, 1280\ns_add_u32 s16, s16, {HN}\nv_lshlrev_b32 v158, 2, v1\nv_add_u32 v162, s16, v157\nv_add_u32 v163, s16, v158\nv_add_u32 v160, 10240, v162\nv_add_u32 v161, 10240, v163")
a(f"s_mul_i32 s16, s3, {XSS}\ns_add_u32 s16, s16, {L_XS}\nv_add_u32 v157, s16, v157\nv_add_u32 v158, s16, v158")
a(f"v_mul_u32_u24 v165, {XSS}, v3\nv_lshl_add_u32 v165, v2, 4, v165\nv_add_u32 v165, {L_XS}, v165")
a(f"s_lshl2_add_u32 s16, s50, s3\ns_lshl_b32 s16, s16, 8\ns_add_u32 s16, s16, {ACT}\nv_lshl_add_u32 v164, v3, 4, s16\nv_and_b32 v166, 1, v2\nv_lshl_add_u32 v164, v166, 3, v164\nv_lshrrev_b32 v166, 1, v2\nv_lshl_add_u32 v164, v166, 2, v164")
a(f"s_lshl_b32 s16, s49, 7\ns_add_u32 s16, s16, {H4}\nv_mov_b32 v167, s16\nv_mov_b32 v159, {L_VD}\ns_mov_b32 s62, 0")
a(f"v_and_b32 v4, 1, v0\nv_lshlrev_b32 v4, 3, v4\nv_bfe_u32 v5, v0, 1, 1\nv_mul_u32_u24 v5, {UPO}, v5\ns_lshl_b32 s56, s3, 4\nv_add3_u32 v7, v4, v5, s56")
stamp(3)
a("s_waitcnt vmcnt(0)\ns_barrier")
stamp(4)
a("s_cmp_ge_u32 s3, 4\ns_cbranch_scc1 L_f1w")
for k in range(20):
    a(f"v_add_u32_sdwa v4, v{104+k}, v7 {SD.format(0)}\nv_add_u32_sdwa v5, v{104+k}, v7 {SD.format(1)}")
    a(f"ds_read_b64_tr_b16 v[{8+4*k}:{9+4*k}], v4\nds_read_b64_tr_b16 v[{10+4*k}:{11+4*k}], v5")
a("s_waitcnt lgkmcnt(0)\nL_f1w:")
stamp(5)
a("s_barrier")
stamp(14)
if opt("pre4",0): a(f"s_sleep {opt('pre4',0)}")
a("L_f1p:")
poll(["global_load_dwordx4 v[144:147], v162, s[40:41] sc1","global_load_dwordx4 v[148:151], v160, s[40:41] sc1","global_load_dword v152, v163, s[40:41] offset:1024 sc1","global_load_dword v153, v161, s[40:41] offset:1024 sc1"],range(144,154),opt("sl4",2),166)
stamp(15)
a(f"ds_write_b128 v157, v[144:147]\nds_write_b128 v157, v[148:151] offset:{8*XSS}\nds_write_b32 v158, v152 offset:1024\nds_write_b32 v158, v153 offset:{8*XSS+1024}")
a(f"s_waitcnt lgkmcnt(0)\ns_barrier\ns_cmp_lt_u32 s3, 4\ns_cbranch_scc1 L_p4\ns_cmp_lg_u32 s3, 7\ns_cbranch_scc1 L_p4e\ns_cmp_ge_u32 s49, {NH4}\ns_cbranch_scc1 L_p4e")
store1(167,167)
a("s_branch L_p4e\nL_p4:")
NR=12
for i_ in range(NR): a(f"ds_read_b128 {vr(92+4*i_)}, v165 offset:{64*i_}")
for i_ in range(20):
    issued=min(20,NR+max(0,i_-1))
    a(f"s_waitcnt lgkmcnt({issued-i_-1})\n{MF} v[144:147], {vr(8+4*i_)}, {vr(92+4*(i_%(NR+1)))}, {'0' if i_==0 else 'v[144:147]'}")
    if i_>=1 and NR+i_-1<20: a(f"ds_read_b128 {vr(92+4*((NR+i_-1)%(NR+1)))}, v165 offset:{64*(NR+i_-1)}")
a("v_permlane32_swap_b32 v144, v146\nv_permlane32_swap_b32 v145, v147")
a("v_mul_f32 v148, 0xbfb8aa3b, v144\nv_mul_f32 v149, 0xbfb8aa3b, v145\nv_exp_f32 v148, v148\nv_exp_f32 v149, v149\nv_mul_f32 v144, v144, v146\nv_mul_f32 v145, v145, v147")
a("v_add_f32 v148, 1.0, v148\nv_add_f32 v149, 1.0, v149\nv_rcp_f32 v148, v148\nv_rcp_f32 v149, v149\nv_mul_f32 v144, v144, v148\nv_mul_f32 v145, v145, v149\nv_cvt_pk_bf16_f32 v144, v144, v145")
a("global_store_dword v164, v144, s[40:41] sc1")
stamp(16)
a("L_p4e:\ns_cmp_lg_u32 s62, 0\ns_cbranch_scc1 L_fin\ns_barrier\nds_read_b32 v4, v159\ns_waitcnt lgkmcnt(0)\nv_readfirstlane_b32 s62, v4\ns_cmp_eq_u32 s62, 0\ns_cbranch_scc1 L_fin")
a(f"v_add_u32 v162, {HN8-HN}, v162\nv_add_u32 v163, {HN8-HN}, v163\nv_mov_b32 v160, v162\nv_mov_b32 v161, v163\nv_add_u32 v164, {ACT2-ACT}, v164\ns_branch L_f1p")
a("L_bf8:\ns_cmp_lt_u32 s2, 216\ns_cbranch_scc1 L_fin\nL_f2:")
a(f"s_sub_u32 s50, s2, 216\ns_and_b32 s51, s50, 7\ns_mul_i32 s51, s51, 5\ns_lshr_b32 s50, s50, 3\ns_add_u32 s51, s50, s51\ns_lshl_b32 s51, s51, 5\nv_mov_b32 v159, {L_VD}\ns_cmp_eq_u32 s3, 8\ns_cbranch_scc1 L_f2e")
a("v_lshrrev_b32 v4, 1, v1\nv_mul_u32_u24 v4, 1280, v4\nv_and_b32 v5, 1, v0\nv_lshl_add_u32 v4, v5, 4, v4\ns_mul_i32 s56, s3, 40960\ns_add_u32 s56, s56, s51\nv_add_u32 v4, s56, v4\ns_lshl_b32 s58, s3, 13")
a("s_cmp_ge_u32 s3, 6\ns_cselect_b32 s61, 5, 6\ns_mul_i32 s59, s50, 3\ns_lshr_b32 s59, s59, 1\ns_mov_b32 s62, 0")
for i_ in range(7):
    a(f"s_min_u32 s60, s59, s61\ns_mul_i32 s60, s60, 327680\ns_lshl_b32 s57, s59, 10\ns_add_u32 m0, s57, s58\nv_add_u32 v5, s60, v4\nglobal_load_lds_dwordx4 v5, s[34:35]")
    if i_<6: a("s_add_u32 s59, s59, 1\ns_cmp_eq_u32 s59, 7\ns_cselect_b32 s59, 0, s59")
a(f"s_lshl_b32 s16, s3, 10\ns_add_u32 s17, s16, {ACT}\nv_add_u32 v104, s17, v157")
for i_ in range(1,6): a(f"v_add_u32 v{104+i_}, {8192*i_}, v104")
a(f"s_lshl_b32 s61, s61, 13\nv_add_u32 v110, s61, v104\ns_add_u32 s16, s16, {L_XS}\nv_add_u32 v157, s16, v157")
a("v_lshrrev_b32 v4, 2, v3\nv_lshl_add_u32 v4, v2, 3, v4\nv_lshlrev_b32 v4, 5, v4\nv_and_b32 v5, 3, v0\nv_lshl_add_u32 v4, v5, 3, v4\nv_add_u32 v4, s58, v4")
stamp(3)
a("s_waitcnt vmcnt(0)")
stamp(4)
for k in range(7):
    a(f"ds_read_b64_tr_b16 v[{8+4*k}:{9+4*k}], v4 offset:{1024*k}\nds_read_b64_tr_b16 v[{10+4*k}:{11+4*k}], v4 offset:{1024*k+128}")
a("s_waitcnt lgkmcnt(0)\ns_cmp_lt_u32 s3, 6\ns_cbranch_scc1 L_p5a")
for i_ in range(4): a(f"v_mov_b32 v{32+i_}, 0")
a("L_p5a:\ns_barrier")
stamp(5)
a("s_barrier")
stamp(14)
if opt("pre5",0): a(f"s_sleep {opt('pre5',0)}")
a("L_f2p:")
poll([f"global_load_dwordx4 {vr(40+4*i_)}, v{104+i_}, s[40:41] sc1" for i_ in range(7)],range(40,68),opt("sl5",2),114)
stamp(15)
for i_ in range(7):
    a(f"{MF} v[72:75], {vr(8+4*i_)}, {vr(40+4*i_)}, {'0' if i_==0 else 'v[72:75]'}")
a(f"ds_write_b128 v157, v[72:75]\ns_waitcnt lgkmcnt(0)\ns_barrier\ns_cmp_lg_u32 s62, 0\ns_cbranch_scc1 L_fin\nds_read_b32 v4, v159\ns_waitcnt lgkmcnt(0)\nv_readfirstlane_b32 s62, v4\ns_cmp_eq_u32 s62, 0\ns_cbranch_scc1 L_fin")
for i_ in range(7): a(f"v_add_u32 v{104+i_}, {ACT2-ACT}, v{104+i_}")
a("s_branch L_f2p\nL_f2e:")
a(f"v_lshlrev_b32 v104, 7, v6\nv_add_u32 v104, {META}, v104\nv_mul_u32_u24 v105, 1280, v6\nv_lshl_add_u32 v106, v2, 3, s51\nv_add_u32 v105, v105, v106\nv_add_u32 v105, {BASE}, v105")
a(f"v_bfe_u32 v4, v0, 3, 1\nv_lshlrev_b32 v107, 8, v2\nv_lshl_add_u32 v107, v4, 12, v107\nv_add_u32 v107, {L_XS}, v107\ns_mov_b32 s18, 0x00ff00ff\ns_mov_b32 s19, 0x00ff00ff")
a("s_setprio 3\ns_barrier\ns_barrier")
poll(["global_load_dwordx4 v[60:63], v104, s[40:41] sc1","global_load_dwordx2 v[58:59], v105, s[40:41] sc1"],range(58,64),opt("slm",2),114)
if "idp" in kw: a(f"v_readlane_b32 s100, v{opt('idr',60)}, {opt('idp',0)}\ns_add_u32 s64, s64, s100")
a("v_cmp_lt_u32 vcc, 15, v62\nv_lshlrev_b32 v64, 16, v58\nv_and_b32 v65, 0xffff0000, v58\nv_mov_b32 v4, vcc_lo\nds_write_b32 v159, v4\nv_lshlrev_b32 v66, 16, v59\nv_and_b32 v67, 0xffff0000, v59")
a("v_and_b32 v60, 2047, v60\nv_mul_u32_u24 v60, 1280, v60\nv_add_u32 v60, v60, v106\ns_waitcnt lgkmcnt(0)\ns_cbranch_vccz L_hit\nv_mov_b32 v62, v6\ns_barrier\nL_hit:\nv_lshl_add_u32 v62, v62, 4, v107")
stamp(13)
a("s_barrier")
for i_ in range(4): a(f"ds_read_b128 {vr(72+4*i_)}, v62 offset:{1024*i_}")
a("s_waitcnt lgkmcnt(0)")
a("v_pk_add_f32 v[72:73], v[72:73], v[76:77]\nv_pk_add_f32 v[74:75], v[74:75], v[78:79]\nv_pk_add_f32 v[80:81], v[80:81], v[84:85]\nv_pk_add_f32 v[82:83], v[82:83], v[86:87]\nv_pk_add_f32 v[72:73], v[72:73], v[80:81]\nv_pk_add_f32 v[74:75], v[74:75], v[82:83]")
for i_ in range(4): a(f"v_add_f32_dpp v{72+i_}, v{72+i_}, v{72+i_} row_ror:8 {DPPM}")
a("s_mov_b64 exec, s[18:19]")
for i_ in range(4): a(f"v_fma_f32 v{72+i_}, v{72+i_}, v61, v{64+i_}")
a(f"v_cvt_pk_bf16_f32 v72, v72, v73\nv_cvt_pk_bf16_f32 v73, v74, v75\nglobal_store_dwordx2 v60, v[72:73], s[36:37] {OUTF}\ns_mov_b64 exec, -1")
stamp(16)
a("L_fin:")
if STAMP:
    a("s_waitcnt vmcnt(0)")
    stamp(17)
    if "probe" in kw:
        k=int(kw["probe"])
        a(f"s_waitcnt lgkmcnt(0)\ns_cmp_ge_u32 s3, {opt('pw',4)}\ns_cbranch_scc1 L_end\ns_cmp_lt_u32 s3, {opt('pw0',0)}\ns_cbranch_scc1 L_end\ns_cmp_lt_u32 s2, {opt('plo',0)}\ns_cbranch_scc1 L_end\ns_cmp_ge_u32 s2, {opt('phi',256)}\ns_cbranch_scc1 L_end")
        a(f"s_add_u32 s16, s{64+2*k}, 4000\nL_spin:\ns_sleep 1\ns_memrealtime s[18:19]\ns_waitcnt lgkmcnt(0)\ns_sub_u32 s17, s16, s18\ns_cmp_lt_u32 s17, 4001\ns_cbranch_scc1 L_spin\ns_endpgm")
    else:
        a(f"s_waitcnt lgkmcnt(0)")
        for k in range(NST): a(f"v_writelane_b32 v5, s{64+2*k}, {k}")
        a(f"v_writelane_b32 v5, s15, 31\ns_mul_i32 s16, s2, {NW}\ns_add_u32 s16, s16, s3\ns_lshl_b32 s16, s16, 7\ns_add_u32 s16, s16, {WS_STAMP}\nv_lshl_add_u32 v4, v1, 2, s16\ns_mov_b32 exec_hi, 0\nglobal_store_dword v4, v5, s[40:41]")
a("L_end:\ns_endpgm")
flush_tail()
if opt("now",0): a.L=[l for l in a.L if not ("global_load_lds" in l and "s[42:43]" not in l)]
if kw.get("wf"): a.L=[l+" "+kw["wf"] if ("global_load_lds" in l and "s[42:43]" not in l) else l for l in a.L]
body=a.finish()
small=np.zeros(1536,np.uint16)
small[0:768]=T.t_pm().reshape(-1); small[768:768+640]=T.t_w().reshape(-1)
tab=".p2align 7\n.type T_0,@object\nT_0:\n"+T.emit(small)+"T_end:\n"
txt=f"""; FNet (hidden DFT 20x32, sequence DFT 8x256 with real/Hermitian folding) + LayerNorm + top-8 SwiGLU, one persistent launch.
; @launch grid=(256,1,1) block=({64*NW},1,1) lds={LDS_BYTES}
.amdgcn_target "amdgcn-amd-amdhsa--gfx950"
.text
.globl {KN}
.p2align 8
.type {KN},@function
{body}
{tab}.section .rodata,"a"
.p2align 6
.amdhsa_kernel {KN}
  .amdhsa_next_free_vgpr 168
  .amdhsa_next_free_sgpr 102
  .amdhsa_accum_offset 168
  .amdhsa_group_segment_fixed_size 0
  .amdhsa_kernarg_size 104
  .amdhsa_user_sgpr_count 2
  .amdhsa_user_sgpr_kernarg_segment_ptr 1
  .amdhsa_system_sgpr_workgroup_id_x 1
.end_amdhsa_kernel
"""
open(outp,"w").write(txt)
print("nops inserted",a.nops,"bytes",len(txt),file=sys.stderr)
```

```python
import sys, struct
sys.path.insert(0,"gen")
from asmlib import Asm
import tables4 as T
import numpy as np
KN="sequential_preLN__spectral_fnet__moe_arch_mod__prompt_kernel"
kw=dict(a.split("=") for a in sys.argv[2:])
outp=sys.argv[1]
STAMP=int(kw.get("stamp",0))
def opt(n,d): return int(kw.get(n,d))
def fhex(f): return hex(struct.unpack("<I",struct.pack("<f",f))[0])
WS_GO=0x1000; WS_FA=0x8000; EXT=0x10000; WS_I=0x20000; WS_Y=0x160000; WS_STAMP=0x300000
WS_SMALL=0x2A0000; KEYS=WS_SMALL; HN=KEYS+0x2000; HN8=HN+0x5000; BASE=HN8+0x2800; META=BASE+0x2800; LIST=META+0x400; H3=LIST+0x400; H4=H3+0x800; ACT=H4+0x1000; ACT2=ACT+0xD800
assert ACT2+0xD800<=WS_SMALL+128*1536
TO_PM=0; TO_W=1536; TO_P2=3072
U=T.US; RS=T.RS
L_ZERO=20480; L_SUM=21504; L_SQ=21568; L_ST3=21632; L_CNT=21952; L_SM=22528; L_WP=23552; L_PM=25088; L_XP=27136; L_P2=0; L_TAB=52224
L_XS=82048; XSS=1296; UPO=40992; LDS_BYTES=L_XS+16*XSS+64; L_VD=L_XS+16*XSS; L_EX=51904; L_SQ4=22016
LIMIT=3000; NW=11
OUTF=kw.get("outf","").replace("+"," ")
a=Asm()
NST=18
def stamp(k):
    if STAMP: a(f"s_memrealtime s[{64+2*k}:{65+2*k}]")
def lg(n): a(f"s_waitcnt lgkmcnt({0 if STAMP else n})")
pc=[0]; tail=[]
def poll(loads, regs, sleep, tmp, between=None, chk=None, wait=None):
    k=pc[0]; pc[0]+=1
    for l in loads: a(l)
    if between: between()
    if wait: a(f"s_cmp_eq_u32 s62, 0\ns_cbranch_scc1 LW{k}\n{wait}\ns_branch LV{k}")
    a(f"LW{k}:\ns_waitcnt vmcnt(0)")
    if wait: a(f"LV{k}:")
    if chk: a(chk)
    else:
        r=list(regs)
        if len(r)==1: tmp=r[0]; r=[]
        elif len(r)%2==1: a(f"v_max3_u32 v{tmp}, v{r[0]}, v{r[1]}, v{r[2]}"); r=r[3:]
        else: a(f"v_max_u32 v{tmp}, v{r[0]}, v{r[1]}"); r=r[2:]
        while r: a(f"v_max3_u32 v{tmp}, v{tmp}, v{r[0]}, v{r[1]}"); r=r[2:]
        a(f"v_cmp_eq_u32 vcc, -1, v{tmp}")
    a(f"s_cbranch_vccnz LR{k}\nLD{k}:\ns_mov_b64 exec, -1")
    tail.append(f"LR{k}:\ns_add_u32 s15, s15, 1\ns_cmp_lt_u32 s15, {LIMIT}\ns_cbranch_scc0 LD{k}\ns_mov_b64 exec, vcc\n"+(f"s_sleep {sleep}\n" if sleep else "")+"\n".join(loads)+f"\ns_branch LW{k}")
def flush_tail():
    for t in tail: a(t)
    tail.clear()
DPPM="row_mask:0xf bank_mask:0xf"
MF="v_mfma_f32_16x16x32_bf16"
SD="dst_sel:DWORD dst_unused:UNUSED_PAD src0_sel:WORD_{} src1_sel:DWORD"
NEG="neg_lo:[0,1] neg_hi:[0,1]"
def vr(b,n=4): return f"v[{b}:{b+n-1}]"
def read_pm():
    a(f"ds_read_b128 v[144:147], v159 offset:{L_PM}\nds_read_b128 v[148:151], v159 offset:{L_PM+16}\nds_read_b64 v[152:153], v159 offset:{L_PM+32}")
def scatter(base):
    for i in range(10):
        t=4+2*(i&1)
        a(f"v_add_u32_sdwa v{t}, v{144+i}, v{base} {SD.format(0)}\nv_add_u32_sdwa v{t+1}, v{144+i}, v{base} {SD.format(1)}")
        a(f"ds_write_b16 v{t}, v{8+i}\nds_write_b16_d16_hi v{t+1}, v{8+i}")
def store1(addr,val):
    a(f"s_mov_b64 exec, 1\nglobal_store_dword v{addr}, v{val}, s[40:41] sc1\ns_mov_b64 exec, -1")

def p2addr():
    a(f"s_and_b32 s62, s2, 7\ns_lshr_b32 s56, s2, 4\ns_mul_i32 s57, s62, 10\ns_add_u32 s57, s57, s56\ns_lshl_b32 s57, s57, 14\ns_add_u32 s57, s57, {WS_I}")
    a("v_lshl_add_u32 v112, v0, 4, s57\nv_add_u32 v113, 0x2000, v112")
    a("v_lshlrev_b32 v6, 1, v0\nv_and_b32 v6, 32, v6\nv_and_b32 v7, 64, v0\nv_or_b32 v6, v6, v7\nv_lshlrev_b32 v7, 4, v0\nv_xor_b32 v114, v6, v7")
    a(f"s_lshl_b32 s56, s56, 7\ns_add_u32 s56, s56, {WS_Y}\ns_lshl_b32 s58, s3, 8\ns_add_u32 s58, s58, s5\ns_lshl2_add_u32 s59, s62, s58\ns_mulk_i32 s59, 1280\ns_add_u32 s59, s59, s56")
    a("s_lshl_b32 s60, s62, 2\ns_add_u32 s60, s60, 995\ns_sub_u32 s60, s60, s58\ns_mulk_i32 s60, 1280\ns_add_u32 s60, s60, s56\ns_add_u32 s60, s60, 64")
    a("v_and_b32 v4, 7, v0\nv_mul_u32_u24 v4, 40960, v4\nv_lshrrev_b32 v5, 3, v3\nv_lshl_add_u32 v4, v5, 6, v4\nv_lshlrev_b32 v5, 4, v2\nv_add3_u32 v120, v4, v5, s59\nv_sub_u32 v121, s60, v4\nv_add_u32 v121, v121, v5")
    a("v_lshrrev_b32 v5, 2, v3\nv_lshl_add_u32 v4, v2, 3, v5\nv_lshlrev_b32 v4, 7, v4\nv_and_b32 v5, 3, v0\nv_lshl_add_u32 v4, v5, 3, v4")
    a(f"v_bfe_u32 v5, v0, 3, 2\nv_lshl_add_u32 v116, v5, 5, v4\nv_xor_b32 v117, 64, v116\nv_xor_b32 v118, 32, v116\nv_xor_b32 v119, 96, v116")
def yoff(dst,t):
    a(f"s_and_b32 {dst}, {t}, 255\ns_lshr_b32 s59, {t}, 9\ns_lshl2_add_u32 {dst}, {dst}, s59\ns_mulk_i32 {dst}, 1280\ns_bfe_u32 s59, {t}, 0x10008\ns_lshl_b32 s59, s59, 6\ns_add_u32 {dst}, {dst}, s59\ns_add_u32 {dst}, {dst}, {WS_Y}")
def p3addrA():
    a(f"s_movk_i32 s62, {U}\nv_lshrrev_b32 v4, 3, v1\nv_and_b32 v5, 7, v0\nv_lshlrev_b32 v5, 3, v5\nv_mad_u32_u24 v122, v4, s62, v5")
    a(f"v_lshl_add_u32 v128, v4, 7, v5\nv_lshlrev_b32 v5, 2, v3\nv_mad_u32_u24 v123, v2, s62, v5\nv_lshl_add_u32 v130, v2, 7, v5")
    a(f"v_cmp_eq_u32 vcc, 0, v2\nv_add_u32 v124, {18*U}, v122\nv_subrev_u32 v4, {2*U}, v122\nv_cndmask_b32 v124, v4, v124, vcc")
    a("v_add_u32 v125, s51, v122\nv_add_u32 v126, s51, v123\nv_add_u32 v127, s51, v124")
def p3addrB():
    a("v_cmp_eq_u32 vcc, 0, v2\nv_lshlrev_b32 v138, 3, v1\nv_add_u32 v139, 512, v138\nv_lshlrev_b32 v140, 2, v1\nv_add_u32 v143, 384, v140\nv_add_u32 v140, 1024, v140\nv_add_u32 v141, 640, v138\nv_add_u32 v142, 1152, v138\nv_subrev_u32 v4, 128, v138\nv_cndmask_b32 v142, v4, v142, vcc")
    yoff("s56","s46")
    a("s_sub_u32 s58, 2048, s46\ns_and_b32 s58, s58, 2047")
    yoff("s57","s58")
    a("s_add_u32 s62, s56, 1024\ns_sub_u32 s59, s57, 256\nv_mov_b32 v129, s59\nv_mov_b32 v4, s62\nv_cndmask_b32 v129, v129, v4, vcc\nv_add_u32 v129, v129, v128\nv_add_u32 v128, s56, v128\ns_add_u32 s62, s57, 768\nv_add_u32 v130, s62, v130")
    a("v_cmp_eq_u32 vcc, 21, v1\nv_mov_b32 v132, 0xffff\nv_lshlrev_b32 v137, 4, v3\nv_cndmask_b32 v131, -1, v132, vcc\nv_cmp_eq_u32 vcc, 5, v1\ns_lshl_b32 s57, s2, 4\nv_add_u32 v135, s57, v3\nv_cndmask_b32 v132, -1, v132, vcc")
    a("s_lshl_b32 s57, s48, 4\nv_lshl_add_u32 v133, v2, 2, s57\ns_add_u32 s57, s57, 16\ns_cmp_eq_u32 s50, 0\ns_cselect_b32 s57, 272, s57\nv_lshl_add_u32 v134, v2, 2, s57\ns_mov_b32 s63, 0x3f803f80")
    a(f"v_lshlrev_b32 v136, 2, v135\nv_add_u32 v136, {KEYS}, v136")
    for i in AC: a(f"v_mov_b32 v{i}, 0")
AC=[108,109,110,111,160,161,162,163,164,165,166,167]
PMA="v_and_b32 v159, 7, v0\nv_lshl_add_u32 v159, v2, 3, v159\nv_mul_u32_u24 v159, 48, v159"
def gentab(first="s_lshl3_add_u32 s56, s5, s3",tb=56):
    a(first+"\ns_lshl_b32 s56, s56, 4\ns_add_u32 s56, s56, 1\nv_and_b32 v16, 7, v0\nv_lshl_add_u32 v16, v16, 1, s56\nv_and_b32 v17, 8, v0\nv_lshl_add_u32 v16, v17, 3, v16")
    a(f"v_cvt_f32_u32 v16, v16\nv_lshlrev_b32 v17, 3, v2\nv_cvt_f32_u32 v17, v17\nv_mul_f32 v16, {fhex(-1/512)}, v16\nv_cos_f32 v18, v16\nv_mul_f32 v17, v17, v16\nv_mul_f32 v20, {fhex(31.0)}, v16\nv_add_f32 v18, v18, v18")
    for k in range(4):
        a("v_cos_f32 v24, v17\nv_sin_f32 v25, v17\nv_add_f32 v17, v17, v16\nv_cos_f32 v26, v17\nv_sin_f32 v27, v17\nv_add_f32 v17, v17, v20")
        for j in range(2,8): a(f"v_pk_fma_f32 v[{24+2*j}:{25+2*j}], v[{22+2*j}:{23+2*j}], v[18:19], v[{20+2*j}:{21+2*j}] op_sel_hi:[1,0,1] neg_lo:[0,0,1] neg_hi:[0,0,1]")
        if k==0: a("v_lshlrev_b32 v21, 31, v0\nv_xor_b32 v21, -1.0, v21\nv_cmp_eq_u32 vcc, 0, v2\nv_cndmask_b32 v25, v25, v21, vcc")
        for h in range(4): a(f"v_cvt_pk_bf16_f32 v{tb+4*k+h}, v{24+4*h}, v{26+4*h}\nv_cvt_pk_bf16_f32 v{tb+16+4*k+h}, v{25+4*h}, v{27+4*h}")
def read_w():
    a(f"ds_read_b64 v[98:99], v122 offset:{L_WP}\nds_read_b64 v[100:101], v122 offset:{L_WP+8*U}\nds_read_b32 v102, v123 offset:{L_WP+16*U}\nds_read_b64 v[104:105], v122 offset:{L_WP+10*U}\nds_read_b64 v[106:107], v124 offset:{L_WP}\nds_read_b32 v103, v123 offset:{L_WP+6*U}")

a(f"{KN}:")
stamp(0)
a("s_load_dwordx2 s[16:17], s[0:1], 0\ns_setprio 3\nv_lshrrev_b32 v4, 6, v0\nv_and_b32 v6, 7, v0\ns_getpc_b64 s[42:43]\nL_pc:\nv_readfirstlane_b32 s3, v4\ns_cmp_lt_u32 s2, 128\ns_cbranch_scc1 L_a\ns_cmp_ge_u32 s3, 3\ns_cbranch_scc1 L_bf\nv_lshlrev_b32 v4, 7, v0\nv_min_u32 v4, T_end-L_pc-4, v4\nglobal_load_dword v8, v4, s[42:43]\ns_branch L_bf\nL_a:")
a("s_cmp_eq_u32 s2, 0\ns_cselect_b32 s4, 7, 8\nv_lshlrev_b32 v4, s4, v4\nv_add_u32 v4, s2, v4\nv_sub_u32 v5, 2048, v4\nv_and_b32 v7, 8, v0\nv_cmp_ne_u32 vcc, 0, v7\nv_lshrrev_b32 v7, 11, v5\nv_lshrrev_b32 v5, v7, v5\nv_cndmask_b32 v159, v4, v5, vcc")
a("v_mul_u32_u24 v158, 1280, v159\nv_and_b32 v7, 48, v0\nv_lshl_add_u32 v158, v7, 2, v158\nv_lshl_add_u32 v158, v6, 3, v158\ns_cmp_ge_u32 s3, 8\ns_cbranch_scc1 L_nox\ns_waitcnt lgkmcnt(0)")
for i in range(5): a(f"global_load_dwordx2 v[{8+2*i}:{9+2*i}], v158, s[16:17] offset:{256*i}")
a("L_nox:\ns_setprio 0\ns_load_dwordx2 s[40:41], s[0:1], 96\ns_load_dwordx4 s[28:31], s[0:1], 48\ns_load_dwordx8 s[32:39], s[0:1], 64")
stamp(1)
a("v_and_b32 v1, 63, v0\nv_lshrrev_b32 v2, 4, v1\nv_and_b32 v3, 15, v0\nv_lshlrev_b32 v157, 4, v1\ns_bfe_u32 s5, s2, 0x10003\ns_mov_b32 s15, 0\ns_add_u32 s42, s42, T_0-L_pc\ns_addc_u32 s43, s43, 0\ns_cmp_eq_u32 s3, 10\ns_cbranch_scc1 L_a10")
a("v_readfirstlane_b32 s46, v4\nv_readfirstlane_b32 s47, v5\ns_lshl_b32 s48, s3, 1\ns_cmp_eq_u32 s3, 8\ns_cselect_b32 s48, 1, s48\ns_and_b32 s50, s46, 1023")
a(f"s_cmp_lg_u32 s3, 8\ns_cbranch_scc1 L_ny\ns_mul_i32 s8, s2, 10240\ns_add_u32 s8, s8, {WS_Y+4096}\nv_add_u32 v16, s8, v157\nv_add_u32 v17, 0x1000, v16\nv_mov_b32 v12, -1\nv_mov_b32 v13, -1\nv_mov_b32 v14, -1\nv_mov_b32 v15, -1\ns_waitcnt lgkmcnt(0)\ns_load_dword s6, s[40:41], 0")
if opt("ydel",0): a(f"s_sleep {opt('ydel',0)}")
for i in range(8): a(f"global_store_dwordx4 v16, v[12:15], s[40:41] offset:{1024*i-4096} sc1")
a(f"global_store_dwordx4 v17, v[12:15], s[40:41] sc1\nglobal_store_dwordx4 v17, v[12:15], s[40:41] offset:1024 sc1\nL_ny:")
a("v_bfe_u32 v20, v0, 2, 1\nv_bfe_u32 v21, v0, 3, 2\nv_and_b32 v22, 3, v0\nv_lshl_add_u32 v24, v21, 2, v22\nv_lshl_add_u32 v24, v20, 4, v24\nv_mul_u32_u24 v24, 20, v24\nv_add_u32 v24, s3, v24\ns_cmp_lg_u32 s3, 0\ns_cbranch_scc1 L_wg")
a("v_lshrrev_b32 v24, 1, v21\nv_lshl_add_u32 v24, v20, 1, v24\nv_lshl_add_u32 v24, v24, 2, v22\nv_and_b32 v21, 1, v21\nv_lshl_add_u32 v24, v24, 1, 2\nv_sub_u32 v24, v24, v21\nv_mul_u32_u24 v24, 10, v24\nL_wg:")
a(f"v_sub_u32 v25, 640, v24\nv_cmp_eq_u32 vcc, 320, v24\nv_lshrrev_b32 v20, 5, v1\nv_and_b32 v21, 31, v0\nv_cndmask_b32_e64 v25, v25, 0, vcc\nv_cmp_eq_u32 vcc, 1, v20\ns_mul_i32 s49, s3, {U}\nv_lshl_add_u32 v115, v21, 1, s49\nv_cndmask_b32 v24, v24, v25, vcc\nv_lshlrev_b32 v87, 1, v24\nv_mul_u32_u24 v20, {10*U}, v20\nv_add_u32 v115, v115, v20")
a("s_cmp_ge_u32 s3, 8\ns_cbranch_scc1 L_gtrig")
a("v_lshrrev_b32 v161, 8, v159\nv_bfe_u32 v4, v159, 7, 1\nv_lshl_add_u32 v161, v4, 3, v161\nv_mul_u32_u24 v160, 5120, v2\nv_lshl_add_u32 v160, v6, 3, v160\nv_lshl_add_u32 v160, v161, 6, v160\nv_lshlrev_b32 v161, 2, v161")
a("v_lshrrev_b32 v20, 2, v3\nv_and_b32 v21, 3, v0\nv_mad_u32_u24 v20, v20, 5, v21\nv_cvt_f32_u32 v28, v2")
for tile in range(2):
    if tile: a("v_add_u32 v20, 3, v20")
    a("v_lshrrev_b32 v22, 1, v20\nv_and_b32 v24, 1, v20")
    if tile==0:
        a("v_cmp_eq_u32 vcc, 1, v20\nv_cndmask_b32_e64 v22, v22, 10, vcc\nv_cndmask_b32_e64 v24, v24, 0, vcc\nv_cmp_eq_u32 vcc, 3, v21\nv_cndmask_b32_e64 v22, v22, 0, vcc\nv_cndmask_b32_e64 v24, v24, 0, vcc")
    a(f"v_cvt_f32_u32 v22, v22\nv_cvt_f32_u32 v24, v24\nv_mul_f32 v22, {fhex(0.05)}, v22\nv_mul_f32 v24, {fhex(0.25)}, v24\nv_fmac_f32 v24, v28, v22\nv_mul_f32 v22, 4.0, v22")
    for i in range(5):
        a(f"v_cos_f32 v{29+i}, v24")
        if i<4: a("v_add_f32 v24, v24, v22")
    a(f"v_cvt_pk_bf16_f32 v{36+4*tile}, v29, v30\nv_cvt_pk_bf16_f32 v{37+4*tile}, v31, v32\nv_cvt_pk_bf16_f32 v{38+4*tile}, v33, 0\nv_mov_b32 v{39+4*tile}, 0")
a("v_mov_b32 v23, 0\nv_mov_b32 v27, 0\nv_mov_b32 v31, 0\nv_mov_b32 v35, 0\nv_mov_b32 v18, 0\nv_mov_b32 v19, 0\ns_mov_b32 s52, 0x05040100\ns_mov_b32 s53, 0x07060302")
a(f"ds_write_b32 v161, v23 offset:{L_CNT}\nv_lshl_add_u32 v86, v2, 6, v161")
a(f"v_mov_b32 v162, {fhex(-1/32)}\nv_cmp_eq_u32 vcc, 0, v2\nv_cndmask_b32 v162, 0, v162, vcc")
a("L_gtrig:")
a("s_add_u32 s12, s3, 80\ns_cmp_eq_u32 s3, 0\ns_cselect_b32 s13, 4, 8\ns_cselect_b32 s14, 20, s3\ns_cselect_b32 s12, 10, s12")
a("v_lshrrev_b32 v44, 2, v3\nv_and_b32 v45, 3, v0\nv_mad_u32_u24 v44, v44, s13, v45\nv_mul_u32_u24 v44, 20, v44\nv_add_u32 v45, s12, v44\nv_add_u32 v44, s14, v44\nv_lshlrev_b32 v46, 3, v2")
a(f"v_cvt_f32_u32 v44, v44\nv_cvt_f32_u32 v45, v45\nv_cvt_f32_u32 v46, v46\nv_mul_f32 v44, {fhex(1/640)}, v44\nv_mul_f32 v45, {fhex(1/640)}, v45\nv_mul_f32 v47, v46, v45\nv_mul_f32 v46, v46, v44")
for tau in range(2):
    a(f"v_cos_f32 v48, v{46+tau}\nv_sin_f32 v49, v{46+tau}\nv_add_f32 v{46+tau}, v{46+tau}, v{44+tau}\nv_cos_f32 v64, v{44+tau}\nv_cos_f32 v50, v{46+tau}\nv_sin_f32 v51, v{46+tau}\nv_add_f32 v64, v64, v64")
    for j in range(2,8): a(f"v_pk_fma_f32 v[{48+2*j}:{49+2*j}], v[{46+2*j}:{47+2*j}], v[64:65], v[{44+2*j}:{45+2*j}] op_sel_hi:[1,0,1] neg_lo:[0,0,1] neg_hi:[0,0,1]")
    for h in range(4):
        a(f"v_cvt_pk_bf16_f32 v{88+8*tau+h}, v{48+4*h}, v{50+4*h}\nv_cvt_pk_bf16_f32 v{104+4*tau+h}, v{49+4*h}, v{51+4*h}\nv_xor_b32 v{92+8*tau+h}, 0x80008000, v{104+4*tau+h}")
a(f"s_lshl_b32 s49, s3, 11\ns_add_u32 s56, s49, 1024\ns_cmp_eq_u32 s3, 0\ns_cselect_b32 s57, 1024, s49\ns_cselect_b32 s56, {L_ZERO}, s56")
a("v_lshlrev_b32 v166, 4, v2\nv_lshl_add_u32 v163, v3, 6, v166\nv_add_u32 v164, s56, v163\nv_add_u32 v165, s57, v163\nv_add_u32 v163, s49, v163")
a(f"s_lshl_b32 s49, s3, 7\ns_add_u32 s49, s49, s2\ns_lshl_b32 s49, s49, 7\ns_add_u32 s49, s49, {WS_I}")
a("v_lshrrev_b32 v4, 1, v3\nv_and_b32 v5, 1, v0\nv_mul_u32_u24 v167, 0x28000, v4\nv_lshl_add_u32 v167, v5, 6, v167\nv_add3_u32 v167, v167, v166, s49")
a(f"s_mul_i32 s51, s48, {RS}\ns_add_u32 s51, s51, {L_XP}\nv_lshrrev_b32 v156, 3, v3\nv_mul_u32_u24 v156, {RS}, v156\nv_add_u32 v156, s51, v156")
a(f"s_lshl_b32 s49, s3, 7\nv_lshl_add_u32 v155, v5, 5, s49\nv_lshl_add_u32 v155, v4, 2, v155\nv_lshrrev_b32 v4, 1, v2\nv_lshl_add_u32 v155, v4, 6, v155\nv_and_b32 v154, 1, v2\nv_lshl_add_u32 v154, v154, 2, v4\ns_mul_i32 s49, s3, {U}\nv_lshl_add_u32 v154, v154, 3, s49")
a("v_lshrrev_b32 v4, 4, v0\nv_cmp_eq_u32 vcc, 3, v4\nv_mov_b32 v153, 0xffff\nv_cndmask_b32 v153, -1, v153, vcc")
a(PMA)
a("s_cmp_ge_u32 s3, 8\ns_cbranch_scc1 L_a8b")
p2addr()
stamp(2)
a("s_waitcnt vmcnt(0) lgkmcnt(0)\nglobal_load_ushort v87, v87, s[28:29]")
stamp(3)
for low in range(4):
    c=low>>1; sel="s53" if low&1 else "s52"; o=20+4*low
    a(f"v_perm_b32 v{o}, v{10+c}, v{8+c}, {sel}\nv_perm_b32 v{o+1}, v{14+c}, v{12+c}, {sel}\nv_perm_b32 v{o+2}, v23, v{16+c}, {sel}")
    if low>0: a(f"{MF} {vr(44+4*(low-1))}, v[36:39], {vr(20+4*(low-1))}, 0")
a("v_dot2c_f32_bf16 v18, v8, v8\nv_dot2c_f32_bf16 v19, v9, v9")
a(f"{MF} {vr(56)}, v[36:39], {vr(32)}, 0")
for i in range(1,5):
    a(f"v_dot2c_f32_bf16 v18, v{8+2*i}, v{8+2*i}\nv_dot2c_f32_bf16 v19, v{9+2*i}, v{9+2*i}")
    a(f"{MF} {vr(60+4*(i-1))}, v[40:43], {vr(20+4*(i-1))}, 0")
a("v_add_f32 v4, v47, v51\nv_add_f32 v5, v55, v59\nv_add_f32 v4, v4, v5\nv_add_f32 v18, v18, v19")
for m,r in (("quad_perm:[1,0,3,2]",1),("quad_perm:[2,3,0,1]",2),("row_half_mirror",0)):
    if r: a(f"v_cvt_pk_bf16_f32 v{76+2*r}, v{44+r}, v{48+r}")
    else: a("v_cvt_pk_bf16_f32 v82, v60, v64")
    a(f"v_add_f32_dpp v4, v4, v4 {m} {DPPM}\nv_add_f32_dpp v18, v18, v18 {m} {DPPM}")
    if r: a(f"v_cvt_pk_bf16_f32 v{77+2*r}, v{52+r}, v{56+r}\nds_write_b64 v160, v[{76+2*r}:{77+2*r}] offset:{1024*r}")
a("v_cvt_pk_bf16_f32 v83, v68, v72\nds_write_b64 v160, v[82:83] offset:3072\nv_cvt_pk_bf16_f32 v84, v61, v65\nv_cvt_pk_bf16_f32 v85, v69, v73\nds_write_b64 v160, v[84:85] offset:4096")
for low in range(4): a(f"v_fmac_f32 v{44+4*low}, v4, v162")
a("v_cvt_pk_bf16_f32 v76, v44, v48\nv_cvt_pk_bf16_f32 v77, v52, v56\nds_write_b64 v160, v[76:77]")
a(f"ds_write_b32 v86, v18 offset:{L_SQ4}\nds_write_b32 v161, v4 offset:{L_SUM}")
a("L_b1:\ns_waitcnt lgkmcnt(0)\ns_barrier")
stamp(4)
a(f"ds_read_b128 v[20:23], v163\nds_read_b128 v[28:31], v164\nds_read_b128 v[24:27], v165")
lg(2)
a(f"{MF} v[44:47], v[20:23], v[88:91], 0\n{MF} v[48:51], v[20:23], v[92:95], 0")
lg(1)
a(f"{MF} v[44:47], v[28:31], v[104:107], v[44:47]\n{MF} v[48:51], v[28:31], v[88:91], v[48:51]")
a(f"{MF} v[52:55], v[28:31], v[108:111], 0\n{MF} v[56:59], v[28:31], v[96:99], 0")
lg(0)
a(f"{MF} v[52:55], v[24:27], v[96:99], v[52:55]\n{MF} v[56:59], v[24:27], v[100:103], v[56:59]")
if opt("f2e",1): a(f"s_waitcnt vmcnt(1)\ns_cmp_eq_u32 s3, 8\ns_cbranch_scc1 L_nf2\ns_waitcnt vmcnt(0)\nL_nf2:\nds_write_b16 v115, v87 offset:{L_WP}")
else: a(f"s_waitcnt vmcnt(0)\nds_write_b16 v115, v87 offset:{L_WP}\ns_cmp_lg_u32 s3, 8\ns_cbranch_scc1 L_nf2\ns_mov_b64 exec, 0xff\nglobal_store_dwordx4 v19, v[8:11], s[40:41] sc1\ns_mov_b64 exec, -1\nL_nf2:")
a(f"s_barrier\nds_read_b128 v[32:35], v157 offset:{L_SM}")
a("v_cvt_pk_bf16_f32 v20, v44, v45\nv_cvt_pk_bf16_f32 v21, v46, v47\nv_cvt_pk_bf16_f32 v22, v48, v49\nv_cvt_pk_bf16_f32 v23, v50, v51")
a("v_cvt_pk_bf16_f32 v24, v52, v53\nv_cvt_pk_bf16_f32 v25, v54, v55\nv_cvt_pk_bf16_f32 v26, v56, v57\nv_cvt_pk_bf16_f32 v27, v58, v59\ns_waitcnt lgkmcnt(0)")
a(f"{MF} v[44:47], v[20:23], v[32:35], 0\n{MF} v[48:51], v[24:27], v[32:35], 0")
a(f"ds_read_b64 v[60:61], v154 offset:{L_WP}\nds_read_b64 v[62:63], v154 offset:{L_WP+16}\nds_read_b64 v[64:65], v154 offset:{L_WP+10*U}\nds_read_b64 v[66:67], v154 offset:{L_WP+10*U+16}\nv_mov_b32 v68, 0\nv_mov_b32 v69, 0")
a("v_cvt_pk_bf16_f32 v20, v44, v45\nv_cvt_pk_bf16_f32 v21, v46, v47\nv_cvt_pk_bf16_f32 v22, v48, v49\nv_cvt_pk_bf16_f32 v23, v50, v51")
a("global_store_dwordx4 v167, v[20:23], s[40:41] sc1")
stamp(5)
a("s_waitcnt lgkmcnt(0)\nv_and_b32 v65, v65, v153")
for i in range(4): a(f"v_dot2c_f32_bf16 v68, v{20+i}, v{60+i}\nv_dot2c_f32_bf16 v69, v{20+i}, v{64+i}")
a(f"v_permlane32_swap_b32 v68, v69\nv_add_f32 v68, v68, v69\nv_mov_b32 v69, v68\nv_permlane16_swap_b32 v68, v69\nv_add_f32 v68, v68, v69\nds_write_b32 v155, v68 offset:{L_EX}\ns_waitcnt lgkmcnt(0)\ns_barrier\ns_cmp_eq_u32 s3, 9\ns_cbranch_scc1 L_ext")
read_pm()
a("s_cmp_lt_u32 s3, 8\ns_cbranch_scc1 L_scat\ns_cmp_lg_u32 s2, 0\ns_cbranch_scc1 L_fin\ns_barrier\ns_barrier\ns_branch L_p2end")
a("L_ext:\ns_setprio 3")
for i in range(10): a(f"ds_read_b32 v{44+i}, v112 offset:{L_EX+128*i}")
a("s_waitcnt lgkmcnt(0)\nv_pk_add_f32 v[44:45], v[44:45], v[46:47]\nv_pk_add_f32 v[48:49], v[48:49], v[50:51]\nv_pk_add_f32 v[44:45], v[44:45], v[52:53]\nv_pk_add_f32 v[44:45], v[44:45], v[48:49]\nv_add_f32 v44, v44, v45\nv_mul_f32 v44, v44, v113\nv_mov_b32 v45, v44")
a(f"v_permlane32_swap_b32 v44, v45\nv_add_f32 v44, v44, v45\nv_mov_b32 v45, v44\nv_permlane16_swap_b32 v44, v45\nv_add_f32 v44, v44, v45\nv_mov_b32_dpp v45, v44 quad_perm:[1,0,3,2] {DPPM}\nv_cvt_pk_bf16_f32 v44, v44, v45")
a("s_mov_b64 exec, 0x5555\nglobal_store_dword v120, v44, s[40:41] sc1\ns_mov_b64 exec, -1")
stamp(3)
a("s_barrier\ns_branch L_fin")
XA=[88,89,90,91,92]; XB=[94,95,96,97,93]; WA=[98,99,100,101,102]; WB=[104,105,106,107,103]
a("L_scat:\ns_cmp_ge_u32 s3, 4\ns_cbranch_scc1 L_b2\ns_waitcnt lgkmcnt(0)")
scatter(156)
a("L_b2:")
TABPOS=opt("tabpos",1)
if TABPOS==0:
    a("s_cmp_ge_u32 s3, 4\ns_cbranch_scc1 L_ntab")
    gentab()
    a("L_ntab:")
stamp(6)
a("s_waitcnt vmcnt(0) lgkmcnt(0)\ns_barrier" if opt("ack1",1) else "s_waitcnt lgkmcnt(0)\ns_barrier")
stamp(7)
if opt("pre1",0): a(f"s_sleep {opt('pre1',0)}")
def x1win():
    if TABPOS==1:
        a("s_cmp_ge_u32 s3, 4\ns_cbranch_scc1 L_ntab")
        gentab()
        a("s_branch L_ntab2\nL_ntab:\ns_cmp_ge_u32 s2, 128\ns_cbranch_scc1 L_ntab2")
        scatter(156)
        a("L_ntab2:")
poll(["global_load_dwordx4 v[40:43], v112, s[40:41] sc1","global_load_dwordx4 v[44:47], v113, s[40:41] sc1"],range(40,48),opt("sl1",2),16,between=x1win)
stamp(8)
a(f"ds_write_b128 v114, v[40:43] offset:{L_P2}\nds_write_b128 v114, v[44:47] offset:{L_P2+8192}\ns_waitcnt lgkmcnt(0)\ns_barrier")
a("s_cmp_ge_u32 s3, 4\ns_cbranch_scc1 L_p2end\ns_setprio 2")
def trg(i):
    k,c=i>>2,i&3; b=8+4*(i&7)
    a(f"ds_read_b64_tr_b16 v[{b}:{b+1}], v{116+c} offset:{L_P2+4096*k}\nds_read_b64_tr_b16 v[{b+2}:{b+3}], v{116+c} offset:{L_P2+4096*k+512}")
NPRE=7
for i in range(NPRE): trg(i)
for i in range(16):
    k,c=i>>2,i&3
    issued=min(16,NPRE+i)
    a(f"s_waitcnt lgkmcnt({2*(issued-i-1)})")
    a(f"{MF} {vr(40+4*c)}, {vr(8+4*(i&7))}, {vr(56+16*(c&1)+4*k)}, {'0' if k==0 else vr(40+4*c)}")
    if NPRE+i<16: trg(NPRE+i)
a(f"v_pk_add_f32 v[8:9], v[40:41], v[44:45] {NEG}\nv_pk_add_f32 v[10:11], v[42:43], v[46:47] {NEG}\nv_pk_add_f32 v[16:17], v[40:41], v[44:45]\nv_pk_add_f32 v[18:19], v[42:43], v[46:47]")
a("v_cvt_pk_bf16_f32 v24, v8, v9\nv_cvt_pk_bf16_f32 v25, v10, v11\nv_cvt_pk_bf16_f32 v28, v16, v17\nv_cvt_pk_bf16_f32 v29, v18, v19")
a(f"v_pk_add_f32 v[12:13], v[48:49], v[52:53] {NEG}\nv_pk_add_f32 v[14:15], v[50:51], v[54:55] {NEG}\nv_cvt_pk_bf16_f32 v26, v12, v13\nv_cvt_pk_bf16_f32 v27, v14, v15")
a("global_store_dwordx4 v120, v[24:27], s[40:41] sc1")
a("v_pk_add_f32 v[20:21], v[48:49], v[52:53]\nv_pk_add_f32 v[22:23], v[50:51], v[54:55]\nv_cvt_pk_bf16_f32 v30, v20, v21\nv_cvt_pk_bf16_f32 v31, v22, v23")
a("global_store_dwordx4 v121, v[28:31], s[40:41] sc1\ns_setprio 0")
stamp(9)
a("L_p2end:\ns_cmp_ge_u32 s2, 128\ns_cbranch_scc1 L_fin")
p3addrA()
a(f"ds_read_b64 v[88:89], v125\nds_read_b64 v[90:91], v125 offset:{8*U}\nds_read_b32 v92, v126 offset:{16*U}\nds_read_b64 v[94:95], v125 offset:{RS+10*U}\nds_read_b64 v[96:97], v127 offset:{RS}\nds_read_b32 v93, v126 offset:{RS+6*U}")
read_w()
p3addrB()
if opt("w2",-1)<0: a("s_waitcnt vmcnt(0)\ns_barrier")
else: a(f"s_barrier\ns_sleep {opt('w2',0)}")
stamp(10)
if opt("pre2",0): a(f"s_sleep {opt('pre2',0)}")
def x2win():
    a("s_waitcnt lgkmcnt(0)")
    for i in range(5):
        a(f"v_dot2c_f32_bf16 v{AC[0]}, s63, v{XA[i]}\nv_dot2c_f32_bf16 v{AC[1]}, v{XA[i]}, v{WA[i]}\nv_dot2c_f32_bf16 v{AC[2]}, v{XA[i]}, v{XA[i]}\nv_dot2c_f32_bf16 v{AC[3]}, s63, v{WA[i]}")
        a(f"v_dot2c_f32_bf16 v{AC[4]}, s63, v{XB[i]}\nv_dot2c_f32_bf16 v{AC[5]}, v{XB[i]}, v{WB[i]}\nv_dot2c_f32_bf16 v{AC[6]}, v{XB[i]}, v{XB[i]}")
    a(f"v_mov_b32 v{AC[7]}, v{AC[3]}\nv_mov_b32 v18, {fhex(1e-5)}\ns_mov_b32 s58, {fhex(1/640)}\ns_movk_i32 s59, 0x7ff")
    for X,hb in ((XA,32),(XB,42)):
        for i in range(5): a(f"v_lshlrev_b32 v{hb+2*i}, 16, v{X[i]}\nv_and_b32 v{hb+1+2*i}, 0xffff0000, v{X[i]}")
    a(f"v_lshlrev_b32 v154, 4, v0\nv_and_b32 v154, 0x1fff, v154\nv_add_u32 v154, {KEYS}, v154\nv_mov_b32 v119, {L_CNT}\ns_mov_b32 s61, 0\ns_mov_b32 s62, 0\ns_movk_i32 s44, 99\ns_movk_i32 s45, 99\ns_cmp_lt_u32 s3, 8\ns_cselect_b64 s[56:57], 1, 0\ns_add_u32 s49, s48, 1")
    a(f"s_lshl_b32 s60, s2, 7\ns_add_u32 s60, s60, {H3}\nv_mov_b32 v155, s60\ns_and_b32 s60, s2, 7\ns_lshl_b32 s60, s60, 7\ns_add_u32 s60, s60, {LIST}\nv_lshl_add_u32 v120, v3, 2, s60")
    if H3POS==0: h3()
NH3=opt("nh3",8); H3POS=opt("h3pos",1)
def h3():
    a(f"s_cmp_ge_u32 s2, {NH3}\ns_cbranch_scc1 L_h3\ns_cmp_lg_u32 s3, 7\ns_cbranch_scc1 L_h3")
    store1(155,155)
    a("s_mov_b32 s62, 1\nL_h3:" if H3POS==1 else "L_h3:")
poll(["global_load_dwordx2 v[112:113], v128, s[40:41] sc1","global_load_dwordx2 v[114:115], v129, s[40:41] sc1","global_load_dword v116, v130, s[40:41] sc1"],range(112,117),opt("sl2",2),4,between=x2win)
stamp(11)
YA=[112,113,114,117,116]; YB=[112,118,114,115,116]
A0,A1,A2,A3,B0,B1,B2_,B3,C0,C1,C2,C3=AC
def p3main():
    if H3POS==1: h3()
    a("v_and_b32 v117, v115, v131\nv_and_b32 v118, v113, v132")
    for i in (0,2,4,1,3):
        a(f"v_dot2c_f32_bf16 v{C0}, s63, v{YA[i]}\nv_dot2c_f32_bf16 v{C1}, v{YA[i]}, v{YA[i]}\nv_dot2c_f32_bf16 v{C2}, v{YA[i]}, v{XA[i]}\nv_dot2c_f32_bf16 v{C3}, v{YB[i]}, v{XB[i]}")
        a(f"v_dot2c_f32_bf16 v{A1}, v{YA[i]}, v{WA[i]}\nv_dot2c_f32_bf16 v{B1}, v{YB[i]}, v{WB[i]}")
    a(f"v_add_f32 v{A0}, v{A0}, v{C0}\nv_add_f32 v{B0}, v{B0}, v{C0}\nv_add_f32 v{A2}, v{A2}, v{C1}\nv_add_f32 v{B2_}, v{B2_}, v{C1}\nv_fmac_f32 v{A2}, 2.0, v{C2}\nv_fmac_f32 v{B2_}, 2.0, v{C3}")
    a(f"v_permlane32_swap_b32 v{A0}, v{A1}\nv_permlane32_swap_b32 v{B0}, v{B1}\nv_permlane32_swap_b32 v{A2}, v{A3}\nv_permlane32_swap_b32 v{B2_}, v{B3}")
    a(f"v_add_f32 v{A0}, v{A0}, v{A1}\nv_add_f32 v{A2}, v{A2}, v{A3}\nv_add_f32 v{B0}, v{B0}, v{B1}\nv_add_f32 v{B2_}, v{B2_}, v{B3}")
    a(f"v_permlane16_swap_b32 v{A0}, v{A2}\nv_permlane16_swap_b32 v{B0}, v{B2_}\nv_add_f32 v{A0}, v{A0}, v{A2}\nv_add_f32 v{B0}, v{B0}, v{B2_}")
    for s_ in (8,4,2,1): a(f"v_add_f32_dpp v{A0}, v{A0}, v{A0} row_ror:{s_} {DPPM}\nv_add_f32_dpp v{B0}, v{B0}, v{B0} row_ror:{s_} {DPPM}")
    a(f"ds_write_b32 v133, v{A0} offset:{L_ST3}\nds_write_b32 v134, v{B0} offset:{L_ST3}")
def top2():
    a("v_mov_b32 v4, v79")
    for s_ in (8,4,2,1): a(f"v_max_u32_dpp v4, v4, v4 row_ror:{s_} {DPPM}")
    a("v_cmp_ne_u32 vcc, v4, v79\nv_readfirstlane_b32 s6, v4\nv_cndmask_b32 v79, 0, v79, vcc\nv_mov_b32 v4, v79")
    for s_ in (8,4,2,1): a(f"v_max_u32_dpp v4, v4, v4 row_ror:{s_} {DPPM}")
    a("v_cmp_ne_u32 vcc, v4, v79\nv_readfirstlane_b32 s7, v4\nv_cndmask_b32 v79, 0, v79, vcc")
def hrow(Y,hb,nb,pk,sr,mv):
    for i in range(5):
        a(f"v_lshlrev_b32 v4, 16, v{Y[i]}\nv_and_b32 v5, 0xffff0000, v{Y[i]}\nv_pk_add_f32 v[{hb+2*i}:{hb+1+2*i}], v[{hb+2*i}:{hb+1+2*i}], v[4:5]")
        a(f"v_pk_fma_f32 v[{nb+2*i}:{nb+1+2*i}], v[{hb+2*i}:{hb+1+2*i}], s[{sr}:{sr+1}], v[{mv}:{mv+1}] op_sel_hi:[1,0,0] neg_lo:[0,0,1] neg_hi:[0,0,1]")
        a(f"v_cvt_pk_bf16_f32 v{pk+i}, v{nb+2*i}, v{nb+1+2*i}")
def publish(base,sl,pk,o0):
    a(f"s_mul_i32 s26, s{sl}, 1280\ns_add_u32 s26, s26, {base}\nv_add_u32 v4, s26, v{o0}\nv_add_u32 v5, s26, v{o0+1}\nv_add_u32 v6, s26, v{o0+2}")
    a(f"global_store_dwordx2 v4, v[{pk}:{pk+1}], s[40:41] sc1\nglobal_store_dwordx2 v5, v[{pk+2}:{pk+3}], s[40:41] sc1\nglobal_store_dword v6, v{pk+4}, s[40:41] sc1")
a("global_load_dword v71, v120, s[40:41] sc1")
p3main()
a("s_cmp_eq_u32 s62, 0\ns_cbranch_scc1 L_lw0\ns_waitcnt vmcnt(1)\ns_branch L_lw1\nL_lw0:\ns_waitcnt vmcnt(0)\nL_lw1:\nv_cmp_eq_u32 vcc, -1, v71\ns_mov_b32 s55, 1\ns_cbranch_vccnz L_nc\ns_mov_b32 s55, 0")
a("v_cmp_eq_u32_e64 s[24:25], s46, v71\nv_cmp_eq_u32_e64 s[26:27], s47, v71\ns_ff1_i32_b64 s52, s[24:25]\ns_ff1_i32_b64 s53, s[26:27]\ns_cmp_eq_u32 s50, 0\ns_cselect_b32 s53, -1, s53\ns_and_b32 s54, s52, s53\ns_cmp_lt_i32 s54, 0\ns_cbranch_scc0 L_cand\nL_nc:")
a(f"s_waitcnt lgkmcnt(0)\ns_barrier\nds_read_b128 v[76:79], v137 offset:{L_ST3}\ns_waitcnt lgkmcnt(0)")
a("v_mul_f32 v76, s58, v76\nv_fma_f32 v77, v77, s58, v18\nv_fma_f32 v77, -v76, v76, v77\nv_max_f32 v77, v77, v18\nv_rsq_f32 v77, v77\nv_fma_f32 v78, -v76, v79, v78\nv_mul_f32 v78, v78, v77")
a("v_ashrrev_i32 v79, 31, v78\nv_or_b32 v79, 0x80000000, v79\nv_xor_b32 v79, v79, v78\nv_bfi_b32 v79, s59, v135, v79\nv_min_u32 v79, -2, v79")
a("s_cmp_lg_u32 s3, 0\ns_cbranch_scc1 L_nokey\ns_mov_b64 exec, 0xffff\nglobal_store_dword v136, v79, s[40:41] sc1\ns_mov_b64 exec, -1\nL_nokey:")
stamp(12)
a("v_mul_f32 v76, v76, v77\nv_readlane_b32 s8, v77, s48\nv_readlane_b32 s12, v77, s49\nv_readlane_b32 s10, v76, s48\nv_readlane_b32 s18, v76, s49")
a("v_readlane_b32 s20, v79, s48\nv_readlane_b32 s21, v79, s49\nv_readlane_b32 s22, v78, s48\nv_readlane_b32 s23, v78, s49")
a("s_cmp_eq_u32 s50, 0\ns_cselect_b32 s21, 0, s21\nv_mov_b32 v80, s10\nv_mov_b32 v82, s18")
a("s_cmp_eq_u32 s55, 0\ns_cbranch_scc1 L_nc2")
poll(["global_load_dword v71, v120, s[40:41] sc1"],[71],opt("sll",2),None)
a("v_cmp_eq_u32_e64 s[24:25], s46, v71\nv_cmp_eq_u32_e64 s[26:27], s47, v71\ns_ff1_i32_b64 s52, s[24:25]\ns_ff1_i32_b64 s53, s[26:27]\ns_cmp_eq_u32 s50, 0\ns_cselect_b32 s53, -1, s53\ns_and_b32 s54, s52, s53\ns_cmp_lt_i32 s54, 0\ns_cbranch_scc0 L_cand\nL_nc2:")
a("s_cmp_lt_i32 s52, 0\ns_cbranch_scc0 L_na")
hrow(YA,32,8,60,8,80)
a("L_na:\ns_cmp_lt_i32 s53, 0\ns_cbranch_scc0 L_nb2")
hrow(YB,42,20,66,12,82)
a("L_nb2:")
top2()
def cand():
    a("L_cand:\ns_setprio 3")
    for R,(sl,acc,Y,hb,nb,pk,sr,mv,o0) in enumerate(((52,A0,YA,32,8,60,8,80,138),(53,B0,YB,42,20,66,12,82,141))):
        a(f"s_cmp_lt_i32 s{sl}, 0\ns_cbranch_scc1 L_cs{R}\nv_readlane_b32 s24, v{acc}, 0\nv_readlane_b32 s25, v{acc}, 16\nv_mov_b32 v76, s58")
        a(f"v_mul_f32 v{mv}, s24, v76\nv_fma_f32 v77, s25, v76, v18\nv_fma_f32 v77, -v{mv}, v{mv}, v77\nv_max_f32 v77, v77, v18\nv_rsq_f32 v77, v77\nv_mul_f32 v{mv}, v{mv}, v77\nv_readfirstlane_b32 s{sr}, v77")
        hrow(Y,hb,nb,pk,sr,mv)
        publish(HN,sl,pk,o0)
        a(f"L_cs{R}:")
    stamp(16)
    a("s_setprio 0\ns_cmp_eq_u32 s55, 0\ns_cbranch_scc1 L_nc\ns_branch L_nc2")
def outprep1():
    for R,(hb,nb,ob) in enumerate(((32,8,88),(42,20,94))):
        for i in range(5):
            a(f"v_pk_add_f32 v[4:5], v[{hb+2*i}:{hb+1+2*i}], v[{nb+2*i}:{nb+1+2*i}]\nv_cvt_pk_bf16_f32 v{ob+i}, v4, v5")
    a(f"ds_write_b64 v125, v[88:89]\nds_write_b64 v125, v[90:91] offset:{8*U}\nds_write_b32 v126, v92 offset:{16*U}\ns_cmp_eq_u32 s50, 0\ns_cbranch_scc1 L_nob")
    a(f"ds_write_b64 v125, v[94:95] offset:{RS+10*U}\nds_write_b64 v127, v[96:97] offset:{RS}\nds_write_b32 v126, v98 offset:{RS+6*U}\nL_nob:")
def outprep2():
    for i in range(10):
        t=4+2*(i&1)
        a(f"v_add_u32_sdwa v{t}, v{144+i}, v156 {SD.format(0)}\nv_add_u32_sdwa v{t+1}, v{144+i}, v156 {SD.format(1)}")
        a(f"ds_read_u16 v{8+i}, v{t}\nds_read_u16 v{20+i}, v{t+1}")
    a("v_cmp_lt_u32 vcc, 7, v3\nv_mov_b32 v4, s46\nv_mov_b32 v5, s47\nv_cndmask_b32 v52, v4, v5, vcc\nv_mov_b32 v4, s22\nv_mov_b32 v5, s23\nv_cndmask_b32 v53, v4, v5, vcc\nv_mov_b32 v4, s52\nv_mov_b32 v5, s53\nv_cndmask_b32 v54, v4, v5, vcc")
    a("v_mul_f32 v53, 0xbfb8aa3b, v53\nv_exp_f32 v53, v53\nv_and_b32 v54, 255, v54\nv_add_f32 v53, 1.0, v53\nv_rcp_f32 v53, v53\nv_mov_b32 v55, 0\ns_waitcnt lgkmcnt(0)")
    for i in range(10): a(f"v_lshl_or_b32 v{8+i}, v{20+i}, 16, v{8+i}")
OP=opt("op",1)
if OP>=1: outprep1()
if OP>=2: outprep2()
stamp(13)
if opt("pre3",0): a(f"s_sleep {opt('pre3',0)}")
poll(["global_load_dwordx4 v[72:75], v154, s[40:41] sc1"],range(72,76),opt("sl3",2),4,between=lambda: (outprep1() if OP<1 else None, outprep2() if OP<2 else None))
stamp(14)
a("L_round:")
SP=[24,26,28,30,8,10,16,58]
for i in range(4): a(f"v_cmp_gt_u32_e64 s[{SP[i]}:{SP[i]+1}], v{72+i}, s6")
for i in range(4): a(f"v_cmp_gt_u32_e64 s[{SP[4+i]}:{SP[4+i]+1}], v{72+i}, s7")
for i in range(8): a(f"s_bcnt1_i32_b64 s{SP[i]}, s[{SP[i]}:{SP[i]+1}]")
a("s_add_u32 s24, s24, s26\ns_add_u32 s28, s28, s30\ns_add_u32 s8, s8, s10\ns_add_u32 s16, s16, s58\ns_add_u32 s24, s24, s28\ns_add_u32 s8, s8, s16\ns_lshl_b32 s8, s8, 16\ns_add_u32 s24, s24, s8")
a("v_mov_b32 v4, s24\ns_mov_b64 exec, s[56:57]\nds_add_u32 v119, v4\ns_mov_b64 exec, -1\ns_waitcnt lgkmcnt(0)\ns_barrier\nds_read_b32 v4, v119\ns_waitcnt lgkmcnt(0)")
a("v_readfirstlane_b32 s24, v4\ns_and_b32 s25, s24, 0xffff\ns_lshr_b32 s24, s24, 16\ns_cmp_ge_u32 s25, 8\ns_cbranch_scc1 L_rdone")
for sk,srk in ((20,44),(21,45)):
    a(f"s_cmp_eq_u32 s{sk}, s7\ns_cselect_b32 s{srk}, s24, s{srk}\ns_cmp_eq_u32 s{sk}, s6\ns_cselect_b32 s{srk}, s25, s{srk}")
a("s_cmp_ge_u32 s24, 7\ns_cbranch_scc1 L_rdone\ns_cmp_ge_u32 s61, 3\ns_cbranch_scc1 L_rdone\ns_add_u32 s61, s61, 1\nv_add_u32 v119, 4, v119")
top2()
a("s_branch L_round\nL_rdone:")
stamp(15)
a("s_mov_b32 s24, 0x00ff00ff\ns_cmp_lt_u32 s44, 8\ns_cselect_b32 s30, 0, s24\ns_cselect_b32 s28, s24, 0\ns_not_b32 s24, s24\ns_cmp_lt_u32 s45, 8\ns_cselect_b32 s31, 0, s24\ns_cselect_b32 s29, s24, 0")
a("s_cmp_eq_u32 s50, 0\ns_cselect_b32 s31, 0, s31\ns_or_b32 s30, s30, s31\ns_mov_b32 s31, s30\ns_or_b32 s28, s28, s29\ns_cbranch_scc0 L_nosel\ns_mov_b32 s29, s28")
a(f"v_cmp_lt_u32 vcc, 7, v3\nv_mov_b32 v4, s44\nv_mov_b32 v5, s45\nv_cndmask_b32 v20, v4, v5, vcc\nv_and_b32 v20, 7, v20\nv_lshlrev_b32 v22, 7, v20\nv_add_u32 v22, {META}, v22")
a("s_and_b32 exec_lo, s28, 0x0101\ns_mov_b32 exec_hi, 0\nglobal_store_dwordx4 v22, v[52:55], s[40:41] sc1\ns_mov_b64 exec, s[28:29]")
a(f"v_mul_u32_u24 v21, 1280, v20\nv_add_u32 v21, {BASE}, v21\nv_lshl_add_u32 v21, v2, 6, v21\nv_and_b32 v4, 7, v0\nv_lshl_add_u32 v21, v4, 3, v21")
for i in range(5): a(f"global_store_dwordx2 v21, v[{8+2*i}:{9+2*i}], s[40:41] offset:{256*i} sc1")
a("s_mov_b64 exec, -1\ns_cmp_ge_u32 s44, 8\ns_cbranch_scc1 L_ns0")
publish(HN8,44,60,138)
a("L_ns0:\ns_cmp_ge_u32 s45, 8\ns_cbranch_scc1 L_nosel")
publish(HN8,45,66,141)
a("L_nosel:")
a("s_cmp_eq_u32 s30, 0\ns_cbranch_scc1 L_noout\ns_mov_b64 exec, s[30:31]")
for i in range(5): a(f"global_store_dwordx2 v158, v[{8+2*i}:{9+2*i}], s[36:37] offset:{256*i} {OUTF}")
a("s_mov_b64 exec, -1\nL_noout:")
a("s_or_b32 s24, s2, s3\ns_cbranch_scc1 L_fin")
a("s_load_dword s16, s[40:41], 0\nv_mov_b32 v4, 0\ns_waitcnt lgkmcnt(0)\ns_add_u32 s16, s16, 1\nv_mov_b32 v5, s16\ns_mov_b64 exec, 1\nglobal_store_dword v4, v5, s[40:41]\ns_mov_b64 exec, -1\ns_branch L_fin")
cand()
flush_tail()
a("L_a8b:\nv_mov_b32 v19, 0\nv_mov_b32 v112, 0\nv_mov_b32 v113, 0\nv_mov_b32 v120, 0\nv_mov_b32 v121, 0")
a(f"s_waitcnt lgkmcnt(0)\nglobal_load_ushort v87, v87, s[28:29]\ns_cmp_eq_u32 s3, 9\ns_cbranch_scc1 L_a9b\ns_lshl_b32 s8, s2, 7\ns_add_u32 s8, s8, {WS_FA+0x4000}\nv_add_u32 v19, s8, v157\ns_add_u32 s6, s6, 1")
a("v_mov_b32 v8, s6\nv_mov_b32 v9, s6\nv_mov_b32 v10, s6\nv_mov_b32 v11, s6")
if opt("f2e",1): a("s_waitcnt vmcnt(1)\ns_mov_b64 exec, 0xff\nglobal_store_dwordx4 v19, v[8:11], s[40:41] sc1\ns_mov_b64 exec, -1")
stamp(2)
a(f"s_branch L_b1\nL_a9b:")
a(f"v_cvt_f32_u32 v20, s2\nv_mul_f32 v20, {fhex(1/256)}, v20\nv_cos_f32 v21, v20\nv_sin_f32 v22, v20\nv_and_b32 v6, 7, v0\nv_and_b32 v23, 8, v0\nv_cmp_eq_u32 vcc, 0, v6")
a("v_cndmask_b32 v21, 1.0, v21, vcc\nv_cndmask_b32 v22, 0, v22, vcc\nv_lshlrev_b32 v24, 28, v23\ns_cmp_eq_u32 s2, 0\ns_cselect_b64 s[8:9], vcc, 0\nv_cndmask_b32_e64 v24, v24, 0, s[8:9]\nv_xor_b32 v21, v21, v24")
a("v_sub_u32 v24, 8, v6\nv_and_b32 v24, 7, v24\nv_add3_u32 v24, v24, v23, 16\nv_sub_u32 v25, 24, v23\nv_cmp_eq_u32 vcc, 1, v2\nv_cndmask_b32 v112, v3, v24, vcc\nv_cndmask_b32 v113, 1.0, v21, vcc")
a(f"v_cmp_eq_u32 vcc, 2, v2\nv_cndmask_b32 v112, v112, v25, vcc\nv_cndmask_b32 v113, v113, v22, vcc\nv_cmp_eq_u32 vcc, 3, v2\nv_cndmask_b32_e64 v113, v113, 0, vcc\nv_lshlrev_b32 v112, 2, v112\ns_lshl_b32 s8, s2, 7\ns_add_u32 s8, s8, {EXT}\nv_lshl_add_u32 v120, v3, 1, s8")
stamp(2)
a("s_branch L_b1")
a("L_a10:")
a("s_setprio 1\ns_lshl_b32 s7, s2, 7\ns_waitcnt lgkmcnt(0)\ns_load_dword s6, s[40:41], 0")
LATE10=f"s_movk_i32 m0, {L_PM}\nglobal_load_lds_dwordx4 v157, s[42:43]\nglobal_load_lds_dwordx4 v157, s[42:43] offset:1024"
a(f"s_add_u32 s7, s7, {WS_FA}\nv_mov_b32 v18, s7\ns_sub_u32 s7, 256, s2\ns_cmp_eq_u32 s2, 0\ns_cselect_b32 s7, 128, s7")
a("v_lshrrev_b32 v20, 1, v3\nv_and_b32 v21, 1, v0\nv_lshrrev_b32 v22, 1, v2\nv_and_b32 v23, 1, v2")
a("v_mov_b32 v24, s7\nv_mov_b32 v25, s2\nv_cmp_eq_u32 vcc, 1, v22\nv_cndmask_b32 v24, v25, v24, vcc\nv_lshl_add_u32 v24, v23, 10, v24")
a("v_subrev_u32 v25, 4, v20\nv_mul_i32_i24 v24, v24, v25\nv_lshl_add_u32 v24, v21, 9, v24")
a("v_cmp_gt_u32 vcc, v22, v21\ns_cmp_lg_u32 s2, 0\ns_cselect_b32 s49, 1024, 0\nv_mov_b32 v25, s49\nv_cndmask_b32 v25, 0, v25, vcc\nv_add_u32 v24, v24, v25\nv_and_b32 v24, 2047, v24")
a(f"v_cvt_f32_u32 v24, v24\nv_cvt_f32_u32 v25, v20\nv_mul_f32 v24, {fhex(1/2048)}, v24\nv_mul_f32 v25, {fhex(0.125)}, v25")
a("v_cmp_eq_u32 vcc, v22, v21\ns_cselect_b64 s[52:53], -1, 0\ns_or_b64 vcc, vcc, s[52:53]")
for i in range(4):
    a(f"v_cos_f32 v{60+i}, v24\nv_sin_f32 v{64+i}, v24")
    if i<3: a("v_add_f32 v24, v24, v25")
for i in range(8): a(f"v_cndmask_b32 v{60+i}, 0, v{60+i}, vcc")
a(f"v_mov_b32 v20, 0\nv_mov_b32 v21, 0\nv_mov_b32 v22, 0\nv_mov_b32 v23, 0\nds_write_b128 v157, v[20:23] offset:{L_ZERO}")
a(f"s_mov_b32 s60, {fhex(1/640)}\ns_mov_b32 s61, {fhex(1/640)}\nv_mov_b32 v86, {fhex(1e-5)}\nv_mov_b32 v87, {fhex(1e-5)}\nv_lshlrev_b32 v166, 4, v2")
a(LATE10)
a("s_waitcnt lgkmcnt(0)\ns_add_u32 s6, s6, 1")
def flagA(): a("s_mov_b64 exec, 0xff\nglobal_store_dwordx4 v18, v[12:15], s[40:41] sc1\ns_mov_b64 exec, -1")
stamp(2)
a("s_setprio 3\ns_barrier")
stamp(4)
def smat():
    a(f"ds_read_b128 v[32:35], v166 offset:{L_SUM}\nds_read_b128 v[36:39], v166 offset:{L_SQ4}\nds_read_b128 v[40:43], v166 offset:{L_SQ4+64}\nds_read_b128 v[44:47], v166 offset:{L_SQ4+128}\nds_read_b128 v[48:51], v166 offset:{L_SQ4+192}")
    a("s_waitcnt lgkmcnt(0)")
    a("v_pk_add_f32 v[36:37], v[36:37], v[40:41]\nv_pk_add_f32 v[38:39], v[38:39], v[42:43]\nv_pk_add_f32 v[44:45], v[44:45], v[48:49]\nv_pk_add_f32 v[46:47], v[46:47], v[50:51]\nv_pk_add_f32 v[36:37], v[36:37], v[44:45]\nv_pk_add_f32 v[38:39], v[38:39], v[46:47]")
    a("v_pk_mul_f32 v[32:33], v[32:33], s[60:61]\nv_pk_mul_f32 v[34:35], v[34:35], s[60:61]\nv_pk_fma_f32 v[36:37], v[36:37], s[60:61], v[86:87]\nv_pk_fma_f32 v[38:39], v[38:39], s[60:61], v[86:87]")
    a("v_pk_fma_f32 v[36:37], v[32:33], v[32:33], v[36:37] neg_lo:[1,0,0] neg_hi:[1,0,0]\nv_pk_fma_f32 v[38:39], v[34:35], v[34:35], v[38:39] neg_lo:[1,0,0] neg_hi:[1,0,0]")
    for i in range(4): a(f"v_max_f32 v{36+i}, v{36+i}, v86")
    for i in range(4): a(f"v_rsq_f32 v{36+i}, v{36+i}")
    a("v_pk_mul_f32 v[60:61], v[60:61], v[36:37]\nv_pk_mul_f32 v[64:65], v[64:65], v[36:37]\nv_pk_mul_f32 v[62:63], v[62:63], v[38:39]\nv_pk_mul_f32 v[66:67], v[66:67], v[38:39]")
    a("v_cvt_pk_bf16_f32 v32, v60, v61\nv_cvt_pk_bf16_f32 v33, v62, v63\nv_cvt_pk_bf16_f32 v34, v64, v65\nv_cvt_pk_bf16_f32 v35, v66, v67")
    a(f"ds_write_b128 v157, v[32:35] offset:{L_SM}")
poll(["global_load_dword v20, v18, s[40:41] sc1"],None,opt("slf",1),None,chk="v_cmp_ne_u32 vcc, s6, v20",between=smat)
a("s_waitcnt lgkmcnt(0)\ns_barrier")
stamp(5)
a("s_barrier\ns_setprio 0")
NGO=opt("ngo",8); NH4=opt("nh4",8)
GOA=f"s_and_b32 s7, s2, {NGO-1}\ns_lshl_b32 s7, s7, 7\ns_add_u32 s7, s7, {WS_GO}\nv_mov_b32 v4, s7\ns_mov_b64 exec, 1"
a("L_flagchk:\n"+GOA)
poll(["global_load_dword v20, v4, s[40:41] sc1"],None,opt("slf",1),None,chk="v_cmp_ne_u32 vcc, s6, v20")
stamp(6)
a("s_barrier\ns_mov_b64 exec, 1")
poll(["global_load_dword v20, v4, s[40:41] offset:1024 sc1"],None,opt("slf",1),None,chk="v_cmp_ne_u32 vcc, s6, v20")
stamp(7)
a("s_barrier\ns_branch L_fin")
a(f"L_fw:\ns_sleep {opt('slb',60)}\n"+GOA)
poll(["global_load_dword v20, v4, s[40:41] sc1"],None,opt("slf",1),None,chk="v_cmp_ne_u32 vcc, s6, v20")
a("s_barrier")
a(f"s_cmp_ge_u32 s2, 216\ns_cselect_b32 s7, {NH4-1}, {NH3-1}\ns_cselect_b32 s8, {H4-H3}, 0\ns_add_u32 s8, s8, {H3}\nv_min_u32 v4, s7, v1\nv_lshl_add_u32 v4, v4, 7, s8")
poll(["global_load_dword v20, v4, s[40:41] sc1"],[20],opt("slh",1),None)
stamp(14)
a(f"s_barrier\ns_cmp_ge_u32 s2, 216\ns_cbranch_scc1 L_fin\nv_lshlrev_b32 v4, 7, v6\nv_add_u32 v4, {META+8}, v4\nv_mov_b32 v5, {L_VD}\ns_barrier")
if opt("vdel",8): a(f"s_sleep {opt('vdel',8)}")
poll(["global_load_dword v20, v4, s[40:41] sc1"],[20],opt("slm",2),None)
a("v_cmp_lt_u32 vcc, 15, v20\nv_mov_b32 v6, vcc_lo\nds_write_b32 v5, v6\ns_waitcnt lgkmcnt(0)")
stamp(13)
a("s_barrier\ns_branch L_fin")
a("L_bf:\ns_load_dwordx2 s[40:41], s[0:1], 96\ns_load_dwordx4 s[28:31], s[0:1], 48\ns_load_dwordx8 s[32:39], s[0:1], 64\ns_cmp_ge_u32 s2, 256\ns_cbranch_scc1 L_end")
a("v_and_b32 v1, 63, v0\nv_lshrrev_b32 v2, 4, v1\nv_and_b32 v3, 15, v0\nv_lshlrev_b32 v157, 4, v1\ns_bfe_u32 s5, s2, 0x10003\ns_mov_b32 s15, 0\ns_add_u32 s42, s42, T_0-L_pc\ns_addc_u32 s43, s43, 0\ns_sub_u32 s4, s2, 128\nv_mov_b32 v12, -1\nv_mov_b32 v13, -1\nv_mov_b32 v14, -1\nv_mov_b32 v15, -1\ns_cmp_lg_u32 s3, 10\ns_cbranch_scc1 L_bf1")
a(f"s_lshl_b32 s7, s4, 7\ns_add_u32 s7, s7, {EXT}\nv_add_u32 v5, s7, v157\ns_mul_i32 s7, s4, 1536\ns_add_u32 s7, s7, {WS_SMALL}\nv_add_u32 v7, s7, v157\ns_waitcnt lgkmcnt(0)\nglobal_store_dwordx4 v7, v[12:15], s[40:41] sc1\nglobal_store_dwordx4 v7, v[12:15], s[40:41] offset:512 sc1\ns_mov_b64 exec, 0xff\ns_branch L_bf2")
a("L_bf1:")
a(f"s_lshl_b32 s7, s3, 7\ns_add_u32 s7, s7, s4\ns_lshl_b32 s7, s7, 7\ns_add_u32 s7, s7, {WS_I}\nv_lshrrev_b32 v5, 3, v1\nv_mul_u32_u24 v5, 0x28000, v5\nv_lshl_add_u32 v5, v6, 4, v5\nv_add_u32 v5, s7, v5")
a("L_bf2:\ns_waitcnt lgkmcnt(0)\ns_load_dword s6, s[40:41], 0\nglobal_store_dwordx4 v5, v[12:15], s[40:41] sc1\ns_mov_b64 exec, -1")
stamp(1)
a(f"s_lshl_b32 s7, s4, 7\ns_add_u32 s7, s7, {WS_FA}\nv_add_u32 v18, s7, v157\ns_waitcnt vmcnt(0) lgkmcnt(0)\ns_add_u32 s6, s6, 1\nv_mov_b32 v8, s6\nv_mov_b32 v9, s6\nv_mov_b32 v10, s6\nv_mov_b32 v11, s6\ns_barrier")
stamp(2)
a("s_setprio 0\ns_cmp_lt_u32 s3, 8\ns_cbranch_scc1 L_bf3\ns_cmp_eq_u32 s3, 8\ns_cbranch_scc1 L_bf8\ns_cmp_eq_u32 s3, 9\ns_cbranch_scc1 L_fin")
a("s_mov_b64 exec, 0xff\nglobal_store_dwordx4 v18, v[8:11], s[40:41] sc1\ns_mov_b64 exec, -1")
a("s_cmp_lt_u32 s2, 160\ns_cbranch_scc1 L_flagchk\ns_and_b32 s7, s2, 254\ns_cmp_eq_u32 s7, 214\ns_cbranch_scc1 L_fin\ns_branch L_fw")
a("L_bf3:\ns_cmp_ge_u32 s2, 160\ns_cbranch_scc1 L_f\nv_mov_b32 v158, 0")
p2addr()
a("s_branch L_b2")
a("L_f:\ns_cmp_eq_u32 s2, 215\ns_cbranch_scc1 L_sel\ns_cmp_lg_u32 s2, 214\ns_cbranch_scc1 L_fx")
a(f"s_cmp_ge_u32 s3, 2\ns_cbranch_scc1 L_fin\ns_lshl_b32 s7, s3, 14\ns_add_u32 s7, s7, {WS_FA}\nv_lshl_add_u32 v4, v1, 7, s7\nv_add_u32 v6, 0x2000, v4\ns_lshl_b32 s7, s3, 10\ns_add_u32 s7, s7, {WS_GO}\nv_add_u32 v5, s7, v157\ns_sleep {opt('adel',8)}\ns_cmp_eq_u32 s3, 0\ns_cbranch_scc1 L_ag1\ns_sleep 32\nL_ag1:")
poll(["global_load_dword v20, v4, s[40:41] sc1","global_load_dword v21, v6, s[40:41] sc1"],None,opt("sla",0),None,chk="v_cmp_ne_u32 vcc, s6, v20\nv_cmp_ne_u32_e64 s[8:9], s6, v21\ns_or_b64 vcc, vcc, s[8:9]")
stamp(6)
a(f"s_cmp_lg_u32 s3, 0\ns_cbranch_scc1 L_ag2\ns_sleep {opt('gdel',16)}\nL_ag2:")
a(f"global_store_dwordx4 v5, v[8:11], s[40:41] sc1\ns_branch L_fin")
S_GM=8192; S_X=8448; S_C=8704
KTH=opt("kth",12)
a("L_sel:\ns_cmp_ge_u32 s3, 4\ns_cbranch_scc1 L_fin")
gentab("s_add_u32 s56, s3, 8",88)
gentab("s_mov_b32 s56, s3",56)
a(f"v_lshrrev_b32 v4, 1, v0\nv_and_b32 v5, 1, v0\nv_lshlrev_b32 v120, 7, v4\nv_lshl_add_u32 v120, v5, 4, v120\nv_add_u32 v120, {EXT}, v120\nv_lshlrev_b32 v121, 4, v0\nv_mov_b32 v136, {WS_GO+0x380}")
a("v_lshrrev_b32 v4, 2, v3\nv_lshl_add_u32 v4, v2, 3, v4\nv_lshlrev_b32 v122, 5, v4\nv_and_b32 v5, 3, v0\nv_lshl_add_u32 v122, v5, 3, v122")
a("s_lshl_b32 s56, s3, 6\nv_lshl_add_u32 v4, v6, 3, s56\nv_and_b32 v5, 8, v0\nv_lshl_add_u32 v4, v5, 5, v4\nv_sub_u32 v5, 2040, v4\nv_cmp_lt_u32 vcc, 31, v1\nv_bfe_u32 v7, v0, 4, 1\nv_cndmask_b32 v124, v4, v5, vcc\nv_lshl_add_u32 v124, v7, 2, v124")
a("v_cndmask_b32_e64 v123, -1.0, 1.0, vcc\ns_mov_b64 s[26:27], vcc\nv_xor_b32 v128, 512, v124")
for i_ in range(1,4): a(f"v_add_u32 v{124+i_}, {i_}, v124\nv_add_u32 v{128+i_}, {i_}, v128")
a(f"v_and_b32 v132, 0xf0, v0\ns_lshl_b32 s56, s3, 6\nv_lshl_add_u32 v133, v3, 2, s56\nv_lshlrev_b32 v134, 6, v2\nv_lshlrev_b32 v135, 7, v2\nv_add_u32 v135, {LIST}, v135\ns_movk_i32 s59, 0x7ff\nv_bfrev_b32 v140, 1\ns_mov_b64 exec, 1")
poll(["global_load_dword v20, v136, s[40:41] sc1"],None,opt("slf",1),None,chk="v_cmp_ne_u32 vcc, s6, v20")
stamp(7)
if opt("pres",0): a(f"s_sleep {opt('pres',0)}")
poll(["global_load_dwordx4 v[8:11], v120, s[40:41] sc1"],range(8,12),opt("sls",1),16)
stamp(8)
a("ds_write_b128 v121, v[8:11]\ns_waitcnt lgkmcnt(0)\ns_barrier")
for k in range(4): a(f"ds_read_b64_tr_b16 v[{8+4*k}:{9+4*k}], v122 offset:{1024*k}\nds_read_b64_tr_b16 v[{10+4*k}:{11+4*k}], v122 offset:{1024*k+128}")
for t_ in range(2):
    for k in range(4):
        if t_==0: a(f"s_waitcnt lgkmcnt({6-2*k})")
        for c in range(2): a(f"{MF} {vr(24+8*t_+4*c)}, {vr(8+4*k)}, {vr(56+32*t_+16*c+4*k)}, {'0' if k==0 else vr(24+8*t_+4*c)}")
for t_ in range(2):
    b=24+8*t_
    for r in range(4): a(f"v_cndmask_b32_e64 v{b+r}, v{b+r}, v{b+4+r}, s[26:27]")
    for r in range(4): a(f"v_mov_b32 v{b+4+r}, v{b+r}")
    for r in range(4): a(f"v_permlane32_swap_b32 v{b+r}, v{b+4+r}")
    for r in range(4): a(f"v_fmac_f32 v{b+r}, v{b+4+r}, v123")
    for r in range(4):
        if opt("forcemiss",0): a(f"v_xor_b32 v{b+r}, 0x80000000, v{b+r}")
        a(f"v_bfi_b32 v{40+4*t_+r}, s59, v{124+4*t_+r}, v{b+r}")
a("v_max3_i32 v8, v40, v41, v42\nv_med3_i32 v9, v40, v41, v42\nv_max3_i32 v10, v43, v44, v45\nv_med3_i32 v11, v43, v44, v45\nv_max_i32 v12, v46, v47\nv_min_i32 v13, v46, v47")
a("v_max3_i32 v48, v8, v10, v12\nv_med3_i32 v49, v8, v10, v12\nv_max3_i32 v9, v9, v11, v13\nv_max_i32 v49, v49, v9")
for it in range(4):
    a(f"v_max_i32_dpp v{52+it}, v48, v48 row_ror:8 {DPPM}")
    for s_ in (4,2,1): a(f"v_max_i32_dpp v{52+it}, v{52+it}, v{52+it} row_ror:{s_} {DPPM}")
    if it<3: a(f"v_cmp_eq_u32 vcc, v48, v{52+it}\nv_cndmask_b32 v48, v48, v49, vcc\nv_cndmask_b32 v49, v49, v140, vcc")
a(f"ds_write_b128 v132, v[52:55] offset:{S_GM}\ns_waitcnt lgkmcnt(0)\ns_barrier")
stamp(9)
a(f"ds_read_b32 v32, v133 offset:{S_GM}")
for q in range(4): a(f"ds_read_b128 {vr(8+4*q)}, v134 offset:{S_GM+16*q}")
a("v_mov_b32 v33, 0\nv_mov_b32 v34, 0")
for q in range(4):
    lg(3-q)
    for e_ in range(4): a(f"v_cmp_gt_i32_e64 s[{16+2*e_}:{17+2*e_}], v{8+4*q+e_}, v32")
    for e_ in range(4): a(f"v_addc_co_u32_e64 v{33+(e_&1)}, s[24:25], 0, v{33+(e_&1)}, s[{16+2*e_}:{17+2*e_}]")
a("v_add_u32 v33, v33, v34\nv_mov_b32 v34, v33\nv_and_b32 v32, 0x7ff, v32\nv_permlane32_swap_b32 v33, v34\nv_add_u32 v33, v33, v34\nv_mov_b32 v34, v33\nv_permlane16_swap_b32 v33, v34\nv_add_u32 v33, v33, v34")
a("v_cmp_gt_u32 vcc, 16, v33\nv_lshl_add_u32 v33, v33, 2, v135\ns_and_b64 exec, vcc, exec\ns_cbranch_execz L_se\nglobal_store_dword v33, v32, s[40:41] sc1\nglobal_store_dword v33, v32, s[40:41] offset:512 sc1\nL_se:\ns_mov_b64 exec, -1")
stamp(10)
a("s_branch L_fin")
a("L_fx:")
if opt("fdel",2): a(f"s_sleep {opt('fdel',2)}")
a("s_cmp_ge_u32 s2, 216\ns_cbranch_scc1 L_f2")
a("s_sub_u32 s49, s2, 160\ns_and_b32 s50, s49, 7\ns_lshr_b32 s56, s49, 4\ns_lshl3_add_u32 s50, s56, s50\ns_lshl1_add_u32 s50, s50, s5\ns_cmp_ge_u32 s49, 48\ns_cselect_b32 s50, s49, s50")
a(f"s_mul_i32 s56, s3, 80\ns_lshl_b32 s57, s50, 6\nv_lshrrev_b32 v4, 2, v1\nv_mul_u32_u24 v6, 80, v4\nv_add_u32 v4, s56, v4\nv_and_b32 v5, 3, v0\nv_lshl_add_u32 v7, v5, 4, s57\ns_movk_i32 s56, 3456")
for i_ in range(5): a(f"v_add_u32 v5, {16*i_}, v4\nv_lshrrev_b32 v13, 5, v5\nv_and_b32 v5, 31, v5\nv_mad_u32_u24 v5, v5, 20, v13\nv_mad_u32_u24 v{8+i_}, v5, s56, v7")
a(f"s_mul_i32 s58, s3, 5120\ns_add_u32 s59, s58, {UPO}\ns_bitcmp1_b32 s50, 0\ns_cselect_b64 s[8:9], s[32:33], s[30:31]\ns_cselect_b64 s[10:11], s[30:31], s[32:33]\ns_cselect_b32 s60, s59, s58\ns_cselect_b32 s61, s58, s59")
for h in range(2):
    for i_ in range(5):
        a(f"s_add_u32 m0, s{60+h}, {1024*i_}\nglobal_load_lds_dwordx4 v{8+i_}, s[{8+2*h}:{9+2*h}]")
a("s_cmp_ge_u32 s3, 4\ns_cbranch_scc1 L_f1a")
for i_ in range(5): a(f"global_load_dwordx4 {vr(104+4*i_)}, v6, s[42:43] offset:{TO_W+16*i_}")
a("L_f1a:")
a(f"s_mul_i32 s16, s3, 1280\ns_add_u32 s16, s16, {HN}\nv_lshlrev_b32 v158, 2, v1\nv_add_u32 v162, s16, v157\nv_add_u32 v163, s16, v158\nv_add_u32 v160, 10240, v162\nv_add_u32 v161, 10240, v163")
a(f"s_mul_i32 s16, s3, {XSS}\ns_add_u32 s16, s16, {L_XS}\nv_add_u32 v157, s16, v157\nv_add_u32 v158, s16, v158")
a(f"v_mul_u32_u24 v165, {XSS}, v3\nv_lshl_add_u32 v165, v2, 4, v165\nv_add_u32 v165, {L_XS}, v165")
a(f"s_lshl2_add_u32 s16, s50, s3\ns_lshl_b32 s16, s16, 8\ns_add_u32 s16, s16, {ACT}\nv_lshl_add_u32 v164, v3, 4, s16\nv_and_b32 v166, 1, v2\nv_lshl_add_u32 v164, v166, 3, v164\nv_lshrrev_b32 v166, 1, v2\nv_lshl_add_u32 v164, v166, 2, v164")
a(f"s_lshl_b32 s16, s49, 7\ns_add_u32 s16, s16, {H4}\nv_mov_b32 v167, s16\nv_mov_b32 v159, {L_VD}\ns_mov_b32 s62, 0")
a(f"v_and_b32 v4, 1, v0\nv_lshlrev_b32 v4, 3, v4\nv_bfe_u32 v5, v0, 1, 1\nv_mul_u32_u24 v5, {UPO}, v5\ns_lshl_b32 s56, s3, 4\nv_add3_u32 v7, v4, v5, s56")
stamp(3)
a("s_waitcnt vmcnt(0)\ns_barrier")
stamp(4)
a("s_cmp_ge_u32 s3, 4\ns_cbranch_scc1 L_f1w")
for k in range(20):
    a(f"v_add_u32_sdwa v4, v{104+k}, v7 {SD.format(0)}\nv_add_u32_sdwa v5, v{104+k}, v7 {SD.format(1)}")
    a(f"ds_read_b64_tr_b16 v[{8+4*k}:{9+4*k}], v4\nds_read_b64_tr_b16 v[{10+4*k}:{11+4*k}], v5")
a("s_waitcnt lgkmcnt(0)\nL_f1w:")
stamp(5)
a("s_barrier")
stamp(14)
if opt("pre4",0): a(f"s_sleep {opt('pre4',0)}")
a("L_f1p:")
poll(["global_load_dwordx4 v[144:147], v162, s[40:41] sc1","global_load_dwordx4 v[148:151], v160, s[40:41] sc1","global_load_dword v152, v163, s[40:41] offset:1024 sc1","global_load_dword v153, v161, s[40:41] offset:1024 sc1"],range(144,154),opt("sl4",2),166)
stamp(15)
a(f"ds_write_b128 v157, v[144:147]\nds_write_b128 v157, v[148:151] offset:{8*XSS}\nds_write_b32 v158, v152 offset:1024\nds_write_b32 v158, v153 offset:{8*XSS+1024}")
a(f"s_waitcnt lgkmcnt(0)\ns_barrier\ns_cmp_lt_u32 s3, 4\ns_cbranch_scc1 L_p4\ns_cmp_lg_u32 s3, 7\ns_cbranch_scc1 L_p4e\ns_cmp_ge_u32 s49, {NH4}\ns_cbranch_scc1 L_p4e")
store1(167,167)
a("s_branch L_p4e\nL_p4:")
NR=12
for i_ in range(NR): a(f"ds_read_b128 {vr(92+4*i_)}, v165 offset:{64*i_}")
for i_ in range(20):
    issued=min(20,NR+max(0,i_-1))
    a(f"s_waitcnt lgkmcnt({issued-i_-1})\n{MF} v[144:147], {vr(8+4*i_)}, {vr(92+4*(i_%(NR+1)))}, {'0' if i_==0 else 'v[144:147]'}")
    if i_>=1 and NR+i_-1<20: a(f"ds_read_b128 {vr(92+4*((NR+i_-1)%(NR+1)))}, v165 offset:{64*(NR+i_-1)}")
a("v_permlane32_swap_b32 v144, v146\nv_permlane32_swap_b32 v145, v147")
a("v_mul_f32 v148, 0xbfb8aa3b, v144\nv_mul_f32 v149, 0xbfb8aa3b, v145\nv_exp_f32 v148, v148\nv_exp_f32 v149, v149\nv_mul_f32 v144, v144, v146\nv_mul_f32 v145, v145, v147")
a("v_add_f32 v148, 1.0, v148\nv_add_f32 v149, 1.0, v149\nv_rcp_f32 v148, v148\nv_rcp_f32 v149, v149\nv_mul_f32 v144, v144, v148\nv_mul_f32 v145, v145, v149\nv_cvt_pk_bf16_f32 v144, v144, v145")
a("global_store_dword v164, v144, s[40:41] sc1")
stamp(16)
a("L_p4e:\ns_cmp_lg_u32 s62, 0\ns_cbranch_scc1 L_fin\ns_barrier\nds_read_b32 v4, v159\ns_waitcnt lgkmcnt(0)\nv_readfirstlane_b32 s62, v4\ns_cmp_eq_u32 s62, 0\ns_cbranch_scc1 L_fin")
a(f"v_add_u32 v162, {HN8-HN}, v162\nv_add_u32 v163, {HN8-HN}, v163\nv_mov_b32 v160, v162\nv_mov_b32 v161, v163\nv_add_u32 v164, {ACT2-ACT}, v164\ns_branch L_f1p")
a("L_bf8:\ns_cmp_lt_u32 s2, 216\ns_cbranch_scc1 L_fin\nL_f2:")
a(f"s_sub_u32 s50, s2, 216\ns_and_b32 s51, s50, 7\ns_mul_i32 s51, s51, 5\ns_lshr_b32 s50, s50, 3\ns_add_u32 s51, s50, s51\ns_lshl_b32 s51, s51, 5\nv_mov_b32 v159, {L_VD}\ns_cmp_eq_u32 s3, 8\ns_cbranch_scc1 L_f2e")
a("v_lshrrev_b32 v4, 1, v1\nv_mul_u32_u24 v4, 1280, v4\nv_and_b32 v5, 1, v0\nv_lshl_add_u32 v4, v5, 4, v4\ns_mul_i32 s56, s3, 40960\ns_add_u32 s56, s56, s51\nv_add_u32 v4, s56, v4\ns_lshl_b32 s58, s3, 13")
a("s_cmp_ge_u32 s3, 6\ns_cselect_b32 s61, 5, 6\ns_mul_i32 s59, s50, 3\ns_lshr_b32 s59, s59, 1\ns_mov_b32 s62, 0")
for i_ in range(7):
    a(f"s_min_u32 s60, s59, s61\ns_mul_i32 s60, s60, 327680\ns_lshl_b32 s57, s59, 10\ns_add_u32 m0, s57, s58\nv_add_u32 v5, s60, v4\nglobal_load_lds_dwordx4 v5, s[34:35]")
    if i_<6: a("s_add_u32 s59, s59, 1\ns_cmp_eq_u32 s59, 7\ns_cselect_b32 s59, 0, s59")
a(f"s_lshl_b32 s16, s3, 10\ns_add_u32 s17, s16, {ACT}\nv_add_u32 v104, s17, v157")
for i_ in range(1,6): a(f"v_add_u32 v{104+i_}, {8192*i_}, v104")
a(f"s_lshl_b32 s61, s61, 13\nv_add_u32 v110, s61, v104\ns_add_u32 s16, s16, {L_XS}\nv_add_u32 v157, s16, v157")
a("v_lshrrev_b32 v4, 2, v3\nv_lshl_add_u32 v4, v2, 3, v4\nv_lshlrev_b32 v4, 5, v4\nv_and_b32 v5, 3, v0\nv_lshl_add_u32 v4, v5, 3, v4\nv_add_u32 v4, s58, v4")
stamp(3)
a("s_waitcnt vmcnt(0)")
stamp(4)
for k in range(7):
    a(f"ds_read_b64_tr_b16 v[{8+4*k}:{9+4*k}], v4 offset:{1024*k}\nds_read_b64_tr_b16 v[{10+4*k}:{11+4*k}], v4 offset:{1024*k+128}")
a("s_waitcnt lgkmcnt(0)\ns_cmp_lt_u32 s3, 6\ns_cbranch_scc1 L_p5a")
for i_ in range(4): a(f"v_mov_b32 v{32+i_}, 0")
a("L_p5a:\ns_barrier")
stamp(5)
a("s_barrier")
stamp(14)
if opt("pre5",0): a(f"s_sleep {opt('pre5',0)}")
a("L_f2p:")
poll([f"global_load_dwordx4 {vr(40+4*i_)}, v{104+i_}, s[40:41] sc1" for i_ in range(7)],range(40,68),opt("sl5",2),114)
stamp(15)
for i_ in range(7):
    a(f"{MF} v[72:75], {vr(8+4*i_)}, {vr(40+4*i_)}, {'0' if i_==0 else 'v[72:75]'}")
a(f"ds_write_b128 v157, v[72:75]\ns_waitcnt lgkmcnt(0)\ns_barrier\ns_cmp_lg_u32 s62, 0\ns_cbranch_scc1 L_fin\nds_read_b32 v4, v159\ns_waitcnt lgkmcnt(0)\nv_readfirstlane_b32 s62, v4\ns_cmp_eq_u32 s62, 0\ns_cbranch_scc1 L_fin")
for i_ in range(7): a(f"v_add_u32 v{104+i_}, {ACT2-ACT}, v{104+i_}")
a("s_branch L_f2p\nL_f2e:")
a(f"v_lshlrev_b32 v104, 7, v6\nv_add_u32 v104, {META}, v104\nv_mul_u32_u24 v105, 1280, v6\nv_lshl_add_u32 v106, v2, 3, s51\nv_add_u32 v105, v105, v106\nv_add_u32 v105, {BASE}, v105")
a(f"v_bfe_u32 v4, v0, 3, 1\nv_lshlrev_b32 v107, 8, v2\nv_lshl_add_u32 v107, v4, 12, v107\nv_add_u32 v107, {L_XS}, v107\ns_mov_b32 s18, 0x00ff00ff\ns_mov_b32 s19, 0x00ff00ff")
a("s_setprio 3\ns_barrier\ns_barrier")
poll(["global_load_dwordx4 v[60:63], v104, s[40:41] sc1","global_load_dwordx2 v[58:59], v105, s[40:41] sc1"],range(58,64),opt("slm",2),114)
if "idp" in kw: a(f"v_readlane_b32 s100, v{opt('idr',60)}, {opt('idp',0)}\ns_add_u32 s64, s64, s100")
a("v_cmp_lt_u32 vcc, 15, v62\nv_lshlrev_b32 v64, 16, v58\nv_and_b32 v65, 0xffff0000, v58\nv_mov_b32 v4, vcc_lo\nds_write_b32 v159, v4\nv_lshlrev_b32 v66, 16, v59\nv_and_b32 v67, 0xffff0000, v59")
a("v_and_b32 v60, 2047, v60\nv_mul_u32_u24 v60, 1280, v60\nv_add_u32 v60, v60, v106\ns_waitcnt lgkmcnt(0)\ns_cbranch_vccz L_hit\nv_mov_b32 v62, v6\ns_barrier\nL_hit:\nv_lshl_add_u32 v62, v62, 4, v107")
stamp(13)
a("s_barrier")
for i_ in range(4): a(f"ds_read_b128 {vr(72+4*i_)}, v62 offset:{1024*i_}")
a("s_waitcnt lgkmcnt(0)")
a("v_pk_add_f32 v[72:73], v[72:73], v[76:77]\nv_pk_add_f32 v[74:75], v[74:75], v[78:79]\nv_pk_add_f32 v[80:81], v[80:81], v[84:85]\nv_pk_add_f32 v[82:83], v[82:83], v[86:87]\nv_pk_add_f32 v[72:73], v[72:73], v[80:81]\nv_pk_add_f32 v[74:75], v[74:75], v[82:83]")
for i_ in range(4): a(f"v_add_f32_dpp v{72+i_}, v{72+i_}, v{72+i_} row_ror:8 {DPPM}")
a("s_mov_b64 exec, s[18:19]")
for i_ in range(4): a(f"v_fma_f32 v{72+i_}, v{72+i_}, v61, v{64+i_}")
a(f"v_cvt_pk_bf16_f32 v72, v72, v73\nv_cvt_pk_bf16_f32 v73, v74, v75\nglobal_store_dwordx2 v60, v[72:73], s[36:37] {OUTF}\ns_mov_b64 exec, -1")
stamp(16)
a("L_fin:")
if STAMP:
    a("s_waitcnt vmcnt(0)")
    stamp(17)
    if "probe" in kw:
        k=int(kw["probe"])
        a(f"s_waitcnt lgkmcnt(0)\ns_cmp_ge_u32 s3, {opt('pw',4)}\ns_cbranch_scc1 L_end\ns_cmp_lt_u32 s3, {opt('pw0',0)}\ns_cbranch_scc1 L_end\ns_cmp_lt_u32 s2, {opt('plo',0)}\ns_cbranch_scc1 L_end\ns_cmp_ge_u32 s2, {opt('phi',256)}\ns_cbranch_scc1 L_end")
        a(f"s_add_u32 s16, s{64+2*k}, 4000\nL_spin:\ns_sleep 1\ns_memrealtime s[18:19]\ns_waitcnt lgkmcnt(0)\ns_sub_u32 s17, s16, s18\ns_cmp_lt_u32 s17, 4001\ns_cbranch_scc1 L_spin\ns_endpgm")
    else:
        a(f"s_waitcnt lgkmcnt(0)")
        for k in range(NST): a(f"v_writelane_b32 v5, s{64+2*k}, {k}")
        a(f"v_writelane_b32 v5, s15, 31\ns_mul_i32 s16, s2, {NW}\ns_add_u32 s16, s16, s3\ns_lshl_b32 s16, s16, 7\ns_add_u32 s16, s16, {WS_STAMP}\nv_lshl_add_u32 v4, v1, 2, s16\ns_mov_b32 exec_hi, 0\nglobal_store_dword v4, v5, s[40:41]")
a("L_end:\ns_endpgm")
flush_tail()
if opt("now",0): a.L=[l for l in a.L if not ("global_load_lds" in l and "s[42:43]" not in l)]
if kw.get("wf"): a.L=[l+" "+kw["wf"] if ("global_load_lds" in l and "s[42:43]" not in l) else l for l in a.L]
body=a.finish()
small=np.zeros(1536,np.uint16)
small[0:768]=T.t_pm().reshape(-1); small[768:768+640]=T.t_w().reshape(-1)
tab=".p2align 7\n.type T_0,@object\nT_0:\n"+T.emit(small)+"T_end:\n"
txt=f"""; FNet (hidden DFT 20x32, sequence DFT 8x256 with real/Hermitian folding) + LayerNorm + top-8 SwiGLU, one persistent launch.
; @launch grid=(256,1,1) block=({64*NW},1,1) lds={LDS_BYTES}
.amdgcn_target "amdgcn-amd-amdhsa--gfx950"
.text
.globl {KN}
.p2align 8
.type {KN},@function
{body}
{tab}.section .rodata,"a"
.p2align 6
.amdhsa_kernel {KN}
  .amdhsa_next_free_vgpr 168
  .amdhsa_next_free_sgpr 102
  .amdhsa_accum_offset 168
  .amdhsa_group_segment_fixed_size 0
  .amdhsa_kernarg_size 104
  .amdhsa_user_sgpr_count 2
  .amdhsa_user_sgpr_kernarg_segment_ptr 1
  .amdhsa_system_sgpr_workgroup_id_x 1
.end_amdhsa_kernel
"""
open(outp,"w").write(txt)
print("nops inserted",a.nops,"bytes",len(txt),file=sys.stderr)
```

```python
import sys, struct
sys.path.insert(0,"gen")
from asmlib import Asm
import tables4 as T
import numpy as np
KN="sequential_preLN__spectral_fnet__moe_arch_mod__prompt_kernel"
kw=dict(a.split("=") for a in sys.argv[2:])
outp=sys.argv[1]
STAMP=int(kw.get("stamp",0))
def opt(n,d): return int(kw.get(n,d))
def fhex(f): return hex(struct.unpack("<I",struct.pack("<f",f))[0])
WS_GO=0x14000; WS_FA=0x8000; EXT=0x10000; WS_I=0x20000; WS_Y=0x160000; WS_STAMP=0x300000
WS_SMALL=0x2A0000; KEYS=WS_SMALL; HN=KEYS+0x2000; HN8=HN+0x5400; BASE=HN8+0x5400; META=BASE+0x2800; LIST=META+0x400; H3=LIST+0x800; STAT=H3+0x800; STAT8=STAT+0x100; H4=STAT+0x200; ACT=H4+0x1000; ACT2=ACT+0xD800
assert ACT2+0xD800<=WS_SMALL+128*1536
TO_PM=0; TO_W=1536; TO_P2=3072
U=T.US; RS=T.RS
L_ZERO=20480; L_SUM=21504; L_SQ=21568; L_ST3=21632; L_CNT=21952; L_SM=22528; L_WP=23552; L_PM=25088; L_XP=27136; L_P2=0; L_TAB=52224
L_XS=82048; XSS=1296; UPO=40992; L_RED=131072; L_VD=L_RED+8192; LDS_BYTES=L_VD+64; L_EX=51904; L_SQ4=22016
LIMIT=3000; NW=11
OUTF=kw.get("outf","").replace("+"," ")
a=Asm()
NST=18
def stamp(k):
    if STAMP: a(f"s_memrealtime s[{64+2*k}:{65+2*k}]")
def lg(n): a(f"s_waitcnt lgkmcnt({0 if STAMP else n})")
pc=[0]; tail=[]
def poll(loads, regs, sleep, tmp, between=None, chk=None, wait=None):
    k=pc[0]; pc[0]+=1
    for l in loads: a(l)
    if between: between()
    a(f"LW{k}:" if wait else f"LW{k}:\ns_waitcnt vmcnt(0)\nLV{k}:")
    if chk: a(chk)
    else:
        r=list(regs)
        if len(r)==1: tmp=r[0]; r=[]
        elif len(r)%2==1: a(f"v_max3_u32 v{tmp}, v{r[0]}, v{r[1]}, v{r[2]}"); r=r[3:]
        else: a(f"v_max_u32 v{tmp}, v{r[0]}, v{r[1]}"); r=r[2:]
        while r: a(f"v_max3_u32 v{tmp}, v{tmp}, v{r[0]}, v{r[1]}"); r=r[2:]
        a(f"v_cmp_eq_u32 vcc, -1, v{tmp}")
    a(f"s_cbranch_vccnz LR{k}\nLD{k}:\ns_mov_b64 exec, -1")
    tail.append(f"LR{k}:\ns_add_u32 s15, s15, 1\ns_cmp_lt_u32 s15, {LIMIT}\ns_cbranch_scc0 LD{k}\ns_mov_b64 exec, vcc\n"+(f"s_sleep {sleep}\n" if sleep else "")+"\n".join(loads)+f"\ns_branch LW{k}")
def flush_tail():
    for t in tail: a(t)
    tail.clear()
DPPM="row_mask:0xf bank_mask:0xf"
MF="v_mfma_f32_16x16x32_bf16"
SD="dst_sel:DWORD dst_unused:UNUSED_PAD src0_sel:WORD_{} src1_sel:DWORD"
NEG="neg_lo:[0,1] neg_hi:[0,1]"
def vr(b,n=4): return f"v[{b}:{b+n-1}]"
def read_pm():
    a(f"ds_read_b128 v[144:147], v159 offset:{L_PM}\nds_read_b128 v[148:151], v159 offset:{L_PM+16}\nds_read_b64 v[152:153], v159 offset:{L_PM+32}")
def scatter(base):
    for i in range(10):
        t=4+2*(i&1)
        a(f"v_add_u32_sdwa v{t}, v{144+i}, v{base} {SD.format(0)}\nv_add_u32_sdwa v{t+1}, v{144+i}, v{base} {SD.format(1)}")
        a(f"ds_write_b16 v{t}, v{8+i}\nds_write_b16_d16_hi v{t+1}, v{8+i}")
def store1(addr,val):
    a(f"s_mov_b64 exec, 1\nglobal_store_dword v{addr}, v{val}, s[40:41] sc1\ns_mov_b64 exec, -1")

def p2addr():
    a(f"s_and_b32 s62, s2, 7\ns_lshr_b32 s56, s2, 4\ns_mul_i32 s57, s62, 10\ns_add_u32 s57, s57, s56\ns_lshl_b32 s57, s57, 14\ns_add_u32 s57, s57, {WS_I}")
    a("v_lshl_add_u32 v112, v0, 4, s57\nv_add_u32 v113, 0x2000, v112")
    a("v_lshlrev_b32 v6, 1, v0\nv_and_b32 v6, 32, v6\nv_and_b32 v7, 64, v0\nv_or_b32 v6, v6, v7\nv_lshlrev_b32 v7, 4, v0\nv_xor_b32 v114, v6, v7")
    a(f"s_lshl_b32 s56, s56, 7\ns_add_u32 s56, s56, {WS_Y}\ns_lshl_b32 s58, s3, 8\ns_add_u32 s58, s58, s5\ns_lshl2_add_u32 s59, s62, s58\ns_mulk_i32 s59, 1280\ns_add_u32 s59, s59, s56")
    a("s_lshl_b32 s60, s62, 2\ns_add_u32 s60, s60, 995\ns_sub_u32 s60, s60, s58\ns_mulk_i32 s60, 1280\ns_add_u32 s60, s60, s56\ns_add_u32 s60, s60, 64")
    a("v_and_b32 v4, 7, v0\nv_mul_u32_u24 v4, 40960, v4\nv_lshrrev_b32 v5, 3, v3\nv_lshl_add_u32 v4, v5, 6, v4\nv_lshlrev_b32 v5, 4, v2\nv_add3_u32 v120, v4, v5, s59\nv_sub_u32 v121, s60, v4\nv_add_u32 v121, v121, v5")
    a("v_lshrrev_b32 v5, 2, v3\nv_lshl_add_u32 v4, v2, 3, v5\nv_lshlrev_b32 v4, 7, v4\nv_and_b32 v5, 3, v0\nv_lshl_add_u32 v4, v5, 3, v4")
    a(f"v_bfe_u32 v5, v0, 3, 2\nv_lshl_add_u32 v116, v5, 5, v4\nv_xor_b32 v117, 64, v116\nv_xor_b32 v118, 32, v116\nv_xor_b32 v119, 96, v116")
def yoff(dst,t):
    a(f"s_and_b32 {dst}, {t}, 255\ns_lshr_b32 s59, {t}, 9\ns_lshl2_add_u32 {dst}, {dst}, s59\ns_mulk_i32 {dst}, 1280\ns_bfe_u32 s59, {t}, 0x10008\ns_lshl_b32 s59, s59, 6\ns_add_u32 {dst}, {dst}, s59\ns_add_u32 {dst}, {dst}, {WS_Y}")
def p3addrA():
    a(f"s_movk_i32 s62, {U}\nv_lshrrev_b32 v4, 3, v1\nv_and_b32 v5, 7, v0\nv_lshlrev_b32 v5, 3, v5\nv_mad_u32_u24 v122, v4, s62, v5")
    a(f"v_lshl_add_u32 v128, v4, 7, v5\nv_lshlrev_b32 v5, 2, v3\nv_mad_u32_u24 v123, v2, s62, v5\nv_lshl_add_u32 v130, v2, 7, v5")
    a(f"v_cmp_eq_u32 vcc, 0, v2\nv_add_u32 v124, {18*U}, v122\nv_subrev_u32 v4, {2*U}, v122\nv_cndmask_b32 v124, v4, v124, vcc")
    a("v_add_u32 v125, s51, v122\nv_add_u32 v126, s51, v123\nv_add_u32 v127, s51, v124")
def p3addrB():
    a("v_cmp_eq_u32 vcc, 0, v2\nv_lshlrev_b32 v138, 3, v1\nv_add_u32 v139, 512, v138\nv_lshlrev_b32 v140, 2, v1\nv_add_u32 v143, 384, v140\nv_add_u32 v140, 1024, v140\nv_add_u32 v141, 640, v138\nv_add_u32 v142, 1152, v138\nv_subrev_u32 v4, 128, v138\nv_cndmask_b32 v142, v4, v142, vcc")
    yoff("s56","s46")
    a("s_sub_u32 s58, 2048, s46\ns_and_b32 s58, s58, 2047")
    yoff("s57","s58")
    a("s_add_u32 s62, s56, 1024\ns_sub_u32 s59, s57, 256\nv_mov_b32 v129, s59\nv_mov_b32 v4, s62\nv_cndmask_b32 v129, v129, v4, vcc\nv_add_u32 v129, v129, v128\nv_add_u32 v128, s56, v128\ns_add_u32 s62, s57, 768\nv_add_u32 v130, s62, v130")
    a("v_cmp_eq_u32 vcc, 21, v1\nv_mov_b32 v132, 0xffff\nv_lshlrev_b32 v137, 4, v3\nv_cndmask_b32 v131, -1, v132, vcc\nv_cmp_eq_u32 vcc, 5, v1\ns_lshl_b32 s57, s2, 4\nv_add_u32 v135, s57, v3\nv_cndmask_b32 v132, -1, v132, vcc")
    a("s_lshl_b32 s57, s48, 4\nv_lshl_add_u32 v133, v2, 2, s57\ns_add_u32 s57, s57, 16\ns_cmp_eq_u32 s50, 0\ns_cselect_b32 s57, 272, s57\nv_lshl_add_u32 v134, v2, 2, s57\ns_mov_b32 s63, 0x3f803f80")
    a(f"v_lshlrev_b32 v136, 2, v135\nv_add_u32 v136, {KEYS}, v136")
    for i in AC: a(f"v_mov_b32 v{i}, 0")
AC=[108,109,110,111,160,161,162,163,164,165,166,167]
PMA="v_and_b32 v159, 7, v0\nv_lshl_add_u32 v159, v2, 3, v159\nv_mul_u32_u24 v159, 48, v159"
def gentab(first="s_lshl3_add_u32 s56, s5, s3",tb=56):
    a(first+"\ns_lshl_b32 s56, s56, 4\ns_add_u32 s56, s56, 1\nv_and_b32 v16, 7, v0\nv_lshl_add_u32 v16, v16, 1, s56\nv_and_b32 v17, 8, v0\nv_lshl_add_u32 v16, v17, 3, v16")
    a(f"v_cvt_f32_u32 v16, v16\nv_lshlrev_b32 v17, 3, v2\nv_cvt_f32_u32 v17, v17\nv_mul_f32 v16, {fhex(-1/512)}, v16\nv_cos_f32 v18, v16\nv_mul_f32 v17, v17, v16\nv_mul_f32 v20, {fhex(31.0)}, v16\nv_add_f32 v18, v18, v18")
    for k in range(4):
        a("v_cos_f32 v24, v17\nv_sin_f32 v25, v17\nv_add_f32 v17, v17, v16\nv_cos_f32 v26, v17\nv_sin_f32 v27, v17\nv_add_f32 v17, v17, v20")
        for j in range(2,8): a(f"v_pk_fma_f32 v[{24+2*j}:{25+2*j}], v[{22+2*j}:{23+2*j}], v[18:19], v[{20+2*j}:{21+2*j}] op_sel_hi:[1,0,1] neg_lo:[0,0,1] neg_hi:[0,0,1]")
        if k==0: a("v_lshlrev_b32 v21, 31, v0\nv_xor_b32 v21, -1.0, v21\nv_cmp_eq_u32 vcc, 0, v2\nv_cndmask_b32 v25, v25, v21, vcc")
        for h in range(4): a(f"v_cvt_pk_bf16_f32 v{tb+4*k+h}, v{24+4*h}, v{26+4*h}\nv_cvt_pk_bf16_f32 v{tb+16+4*k+h}, v{25+4*h}, v{27+4*h}")
def read_w():
    a(f"ds_read_b64 v[98:99], v122 offset:{L_WP}\nds_read_b64 v[100:101], v122 offset:{L_WP+8*U}\nds_read_b32 v102, v123 offset:{L_WP+16*U}\nds_read_b64 v[104:105], v122 offset:{L_WP+10*U}\nds_read_b64 v[106:107], v124 offset:{L_WP}\nds_read_b32 v103, v123 offset:{L_WP+6*U}")

a(f"{KN}:")
stamp(0)
a("s_load_dwordx2 s[16:17], s[0:1], 0\ns_setprio 3\nv_lshrrev_b32 v4, 6, v0\nv_and_b32 v6, 7, v0\ns_getpc_b64 s[42:43]\nL_pc:\nv_readfirstlane_b32 s3, v4\ns_cmp_lt_u32 s2, 128\ns_cbranch_scc1 L_a\ns_cmp_lg_u32 s3, 0\ns_cbranch_scc1 L_bf\ns_bfe_u32 s4, s2, 0x30003\ns_mulk_i32 s4, 3072\nv_lshrrev_b32 v4, 1, v0\nv_lshl_add_u32 v4, v4, 7, s4\nv_min_u32 v4, T_end-L_pc-4, v4\nglobal_load_dword v8, v4, s[42:43]\ns_branch L_bf\nL_a:")
a("s_cmp_eq_u32 s2, 0\ns_cselect_b32 s4, 7, 8\nv_lshlrev_b32 v4, s4, v4\nv_add_u32 v4, s2, v4\nv_sub_u32 v5, 2048, v4\nv_and_b32 v7, 8, v0\nv_cmp_ne_u32 vcc, 0, v7\nv_lshrrev_b32 v7, 11, v5\nv_lshrrev_b32 v5, v7, v5\nv_cndmask_b32 v159, v4, v5, vcc")
a("v_mul_u32_u24 v158, 1280, v159\nv_and_b32 v7, 48, v0\nv_lshl_add_u32 v158, v7, 2, v158\nv_lshl_add_u32 v158, v6, 3, v158\ns_cmp_ge_u32 s3, 8\ns_cbranch_scc1 L_nox\ns_waitcnt lgkmcnt(0)")
for i in range(5): a(f"global_load_dwordx2 v[{8+2*i}:{9+2*i}], v158, s[16:17] offset:{256*i}")
a(("s_setprio 0\nL_nox:\n" if opt("p8",0) else "L_nox:\ns_setprio 0\n")+"s_load_dwordx2 s[40:41], s[0:1], 96\ns_load_dwordx4 s[28:31], s[0:1], 48\ns_load_dwordx8 s[32:39], s[0:1], 64")
stamp(1)
a("v_and_b32 v1, 63, v0\nv_lshrrev_b32 v2, 4, v1\nv_and_b32 v3, 15, v0\nv_lshlrev_b32 v157, 4, v1\ns_bfe_u32 s5, s2, 0x10003\ns_mov_b32 s15, 0\ns_add_u32 s42, s42, T_0-L_pc\ns_addc_u32 s43, s43, 0\ns_cmp_eq_u32 s3, 10\ns_cbranch_scc1 L_a10")
a("v_readfirstlane_b32 s46, v4\nv_readfirstlane_b32 s47, v5\ns_lshl_b32 s48, s3, 1\ns_cmp_eq_u32 s3, 8\ns_cselect_b32 s48, 1, s48\ns_and_b32 s50, s46, 1023")
a("v_bfe_u32 v20, v0, 2, 1\nv_bfe_u32 v21, v0, 3, 2\nv_and_b32 v22, 3, v0\nv_lshl_add_u32 v24, v21, 2, v22\nv_lshl_add_u32 v24, v20, 4, v24\nv_mul_u32_u24 v24, 20, v24\nv_add_u32 v24, s3, v24\ns_cmp_lg_u32 s3, 0\ns_cbranch_scc1 L_wg")
a("v_lshrrev_b32 v24, 1, v21\nv_lshl_add_u32 v24, v20, 1, v24\nv_lshl_add_u32 v24, v24, 2, v22\nv_and_b32 v21, 1, v21\nv_lshl_add_u32 v24, v24, 1, 2\nv_sub_u32 v24, v24, v21\nv_mul_u32_u24 v24, 10, v24\nL_wg:")
a(f"v_sub_u32 v25, 640, v24\nv_cmp_eq_u32 vcc, 320, v24\nv_lshrrev_b32 v20, 5, v1\nv_and_b32 v21, 31, v0\nv_cndmask_b32_e64 v25, v25, 0, vcc\nv_cmp_eq_u32 vcc, 1, v20\ns_mul_i32 s49, s3, {U}\nv_lshl_add_u32 v115, v21, 1, s49\nv_cndmask_b32 v24, v24, v25, vcc\nv_lshlrev_b32 v87, 1, v24\nv_mul_u32_u24 v20, {10*U}, v20\nv_add_u32 v115, v115, v20")
a("s_cmp_ge_u32 s3, 8\ns_cbranch_scc1 L_gtrig")
a("v_lshrrev_b32 v161, 8, v159\nv_bfe_u32 v4, v159, 7, 1\nv_lshl_add_u32 v161, v4, 3, v161\nv_mul_u32_u24 v160, 5120, v2\nv_lshl_add_u32 v160, v6, 3, v160\nv_lshl_add_u32 v160, v161, 6, v160\nv_lshlrev_b32 v161, 2, v161")
a("v_lshrrev_b32 v20, 2, v3\nv_and_b32 v21, 3, v0\nv_mad_u32_u24 v20, v20, 5, v21\nv_cvt_f32_u32 v28, v2")
for tile in range(2):
    if tile: a("v_add_u32 v20, 3, v20")
    a("v_lshrrev_b32 v22, 1, v20\nv_and_b32 v24, 1, v20")
    if tile==0:
        a("v_cmp_eq_u32 vcc, 1, v20\nv_cndmask_b32_e64 v22, v22, 10, vcc\nv_cndmask_b32_e64 v24, v24, 0, vcc\nv_cmp_eq_u32 vcc, 3, v21\nv_cndmask_b32_e64 v22, v22, 0, vcc\nv_cndmask_b32_e64 v24, v24, 0, vcc")
    a(f"v_cvt_f32_u32 v22, v22\nv_cvt_f32_u32 v24, v24\nv_mul_f32 v22, {fhex(0.05)}, v22\nv_mul_f32 v24, {fhex(0.25)}, v24\nv_fmac_f32 v24, v28, v22\nv_mul_f32 v22, 4.0, v22")
    for i in range(5):
        a(f"v_cos_f32 v{29+i}, v24")
        if i<4: a("v_add_f32 v24, v24, v22")
    a(f"v_cvt_pk_bf16_f32 v{36+4*tile}, v29, v30\nv_cvt_pk_bf16_f32 v{37+4*tile}, v31, v32\nv_cvt_pk_bf16_f32 v{38+4*tile}, v33, 0\nv_mov_b32 v{39+4*tile}, 0")
a("v_mov_b32 v23, 0\nv_mov_b32 v27, 0\nv_mov_b32 v31, 0\nv_mov_b32 v35, 0\nv_mov_b32 v18, 0\nv_mov_b32 v19, 0\ns_mov_b32 s52, 0x05040100\ns_mov_b32 s53, 0x07060302")
a(f"ds_write_b32 v161, v23 offset:{L_CNT}\nv_lshl_add_u32 v86, v2, 6, v161")
a(f"v_mov_b32 v162, {fhex(-1/32)}\nv_cmp_eq_u32 vcc, 0, v2\nv_cndmask_b32 v162, 0, v162, vcc")
a("L_gtrig:")
a("s_add_u32 s12, s3, 80\ns_cmp_eq_u32 s3, 0\ns_cselect_b32 s13, 4, 8\ns_cselect_b32 s14, 20, s3\ns_cselect_b32 s12, 10, s12")
a("v_lshrrev_b32 v44, 2, v3\nv_and_b32 v45, 3, v0\nv_mad_u32_u24 v44, v44, s13, v45\nv_mul_u32_u24 v44, 20, v44\nv_add_u32 v45, s12, v44\nv_add_u32 v44, s14, v44\nv_lshlrev_b32 v46, 3, v2")
a(f"v_cvt_f32_u32 v44, v44\nv_cvt_f32_u32 v45, v45\nv_cvt_f32_u32 v46, v46\nv_mul_f32 v44, {fhex(1/640)}, v44\nv_mul_f32 v45, {fhex(1/640)}, v45\nv_mul_f32 v47, v46, v45\nv_mul_f32 v46, v46, v44")
for tau in range(2):
    a(f"v_cos_f32 v48, v{46+tau}\nv_sin_f32 v49, v{46+tau}\nv_add_f32 v{46+tau}, v{46+tau}, v{44+tau}\nv_cos_f32 v64, v{44+tau}\nv_cos_f32 v50, v{46+tau}\nv_sin_f32 v51, v{46+tau}\nv_add_f32 v64, v64, v64")
    for j in range(2,8): a(f"v_pk_fma_f32 v[{48+2*j}:{49+2*j}], v[{46+2*j}:{47+2*j}], v[64:65], v[{44+2*j}:{45+2*j}] op_sel_hi:[1,0,1] neg_lo:[0,0,1] neg_hi:[0,0,1]")
    for h in range(4):
        a(f"v_cvt_pk_bf16_f32 v{88+8*tau+h}, v{48+4*h}, v{50+4*h}\nv_cvt_pk_bf16_f32 v{104+4*tau+h}, v{49+4*h}, v{51+4*h}\nv_xor_b32 v{92+8*tau+h}, 0x80008000, v{104+4*tau+h}")
a(f"s_lshl_b32 s49, s3, 11\ns_add_u32 s56, s49, 1024\ns_cmp_eq_u32 s3, 0\ns_cselect_b32 s57, 1024, s49\ns_cselect_b32 s56, {L_ZERO}, s56")
a("v_lshlrev_b32 v166, 4, v2\nv_lshl_add_u32 v163, v3, 6, v166\nv_add_u32 v164, s56, v163\nv_add_u32 v165, s57, v163\nv_add_u32 v163, s49, v163")
a(f"s_lshl_b32 s49, s3, 7\ns_add_u32 s49, s49, s2\ns_lshl_b32 s49, s49, 7\ns_add_u32 s49, s49, {WS_I}")
a("v_lshrrev_b32 v4, 1, v3\nv_and_b32 v5, 1, v0\nv_mul_u32_u24 v167, 0x28000, v4\nv_lshl_add_u32 v167, v5, 6, v167\nv_add3_u32 v167, v167, v166, s49")
a(f"s_mul_i32 s51, s48, {RS}\ns_add_u32 s51, s51, {L_XP}\nv_lshrrev_b32 v156, 3, v3\nv_mul_u32_u24 v156, {RS}, v156\nv_add_u32 v156, s51, v156")
a(f"s_lshl_b32 s49, s3, 7\nv_lshl_add_u32 v155, v5, 5, s49\nv_lshl_add_u32 v155, v4, 2, v155\nv_lshrrev_b32 v4, 1, v2\nv_lshl_add_u32 v155, v4, 6, v155\nv_and_b32 v154, 1, v2\nv_lshl_add_u32 v154, v154, 2, v4\ns_mul_i32 s49, s3, {U}\nv_lshl_add_u32 v154, v154, 3, s49")
a("v_lshrrev_b32 v4, 4, v0\nv_cmp_eq_u32 vcc, 3, v4\nv_mov_b32 v153, 0xffff\nv_cndmask_b32 v153, -1, v153, vcc")
a(PMA+"\nv_mov_b32 v120, 0")
a("s_cmp_ge_u32 s3, 8\ns_cbranch_scc1 L_a8b")
stamp(2)
a("s_waitcnt vmcnt(0) lgkmcnt(0)\nglobal_load_ushort v87, v87, s[28:29]")
stamp(3)
for low in range(4):
    c=low>>1; sel="s53" if low&1 else "s52"; o=20+4*low
    a(f"v_perm_b32 v{o}, v{10+c}, v{8+c}, {sel}\nv_perm_b32 v{o+1}, v{14+c}, v{12+c}, {sel}\nv_perm_b32 v{o+2}, v23, v{16+c}, {sel}")
    if low>0: a(f"{MF} {vr(44+4*(low-1))}, v[36:39], {vr(20+4*(low-1))}, 0")
a("v_dot2c_f32_bf16 v18, v8, v8\nv_dot2c_f32_bf16 v19, v9, v9")
a(f"{MF} {vr(56)}, v[36:39], {vr(32)}, 0")
for i in range(1,5):
    a(f"v_dot2c_f32_bf16 v18, v{8+2*i}, v{8+2*i}\nv_dot2c_f32_bf16 v19, v{9+2*i}, v{9+2*i}")
    a(f"{MF} {vr(60+4*(i-1))}, v[40:43], {vr(20+4*(i-1))}, 0")
a("v_add_f32 v4, v47, v51\nv_add_f32 v5, v55, v59\nv_add_f32 v4, v4, v5\nv_add_f32 v18, v18, v19")
for m,r in (("quad_perm:[1,0,3,2]",1),("quad_perm:[2,3,0,1]",2),("row_half_mirror",0)):
    if r: a(f"v_cvt_pk_bf16_f32 v{76+2*r}, v{44+r}, v{48+r}")
    else: a("v_cvt_pk_bf16_f32 v82, v60, v64")
    a(f"v_add_f32_dpp v4, v4, v4 {m} {DPPM}\nv_add_f32_dpp v18, v18, v18 {m} {DPPM}")
    if r: a(f"v_cvt_pk_bf16_f32 v{77+2*r}, v{52+r}, v{56+r}\nds_write_b64 v160, v[{76+2*r}:{77+2*r}] offset:{1024*r}")
a("v_cvt_pk_bf16_f32 v83, v68, v72\nds_write_b64 v160, v[82:83] offset:3072\nv_cvt_pk_bf16_f32 v84, v61, v65\nv_cvt_pk_bf16_f32 v85, v69, v73\nds_write_b64 v160, v[84:85] offset:4096")
for low in range(4): a(f"v_fmac_f32 v{44+4*low}, v4, v162")
a("v_cvt_pk_bf16_f32 v76, v44, v48\nv_cvt_pk_bf16_f32 v77, v52, v56\nds_write_b64 v160, v[76:77]")
a(f"ds_write_b32 v86, v18 offset:{L_SQ4}\nds_write_b32 v161, v4 offset:{L_SUM}")
a("L_b1:\ns_waitcnt lgkmcnt(0)\ns_barrier")
stamp(4)
a(f"ds_read_b128 v[20:23], v163\nds_read_b128 v[28:31], v164\nds_read_b128 v[24:27], v165")
lg(2)
a(f"{MF} v[44:47], v[20:23], v[88:91], 0\n{MF} v[48:51], v[20:23], v[92:95], 0")
lg(1)
a(f"{MF} v[44:47], v[28:31], v[104:107], v[44:47]\n{MF} v[48:51], v[28:31], v[88:91], v[48:51]")
a(f"{MF} v[52:55], v[28:31], v[108:111], 0\n{MF} v[56:59], v[28:31], v[96:99], 0")
lg(0)
a(f"{MF} v[52:55], v[24:27], v[96:99], v[52:55]\n{MF} v[56:59], v[24:27], v[100:103], v[56:59]")
a(f"s_waitcnt vmcnt(0)\nds_write_b16 v115, v87 offset:{L_WP}")
a(f"s_barrier\nds_read_b128 v[32:35], v157 offset:{L_SM}")
a("v_cvt_pk_bf16_f32 v20, v44, v45\nv_cvt_pk_bf16_f32 v21, v46, v47\nv_cvt_pk_bf16_f32 v22, v48, v49\nv_cvt_pk_bf16_f32 v23, v50, v51")
a("v_cvt_pk_bf16_f32 v24, v52, v53\nv_cvt_pk_bf16_f32 v25, v54, v55\nv_cvt_pk_bf16_f32 v26, v56, v57\nv_cvt_pk_bf16_f32 v27, v58, v59\ns_waitcnt lgkmcnt(0)")
a(f"{MF} v[44:47], v[20:23], v[32:35], 0\n{MF} v[48:51], v[24:27], v[32:35], 0")
a(f"ds_read_b64 v[60:61], v154 offset:{L_WP}\nds_read_b64 v[62:63], v154 offset:{L_WP+16}\nds_read_b64 v[64:65], v154 offset:{L_WP+10*U}\nds_read_b64 v[66:67], v154 offset:{L_WP+10*U+16}\nv_mov_b32 v68, 0\nv_mov_b32 v69, 0")
a("v_cvt_pk_bf16_f32 v20, v44, v45\nv_cvt_pk_bf16_f32 v21, v46, v47\nv_cvt_pk_bf16_f32 v22, v48, v49\nv_cvt_pk_bf16_f32 v23, v50, v51")
a("global_store_dwordx4 v167, v[20:23], s[40:41] sc1")
stamp(5)
a("s_waitcnt lgkmcnt(0)\nv_and_b32 v65, v65, v153")
for i in range(4): a(f"v_dot2c_f32_bf16 v68, v{20+i}, v{60+i}\nv_dot2c_f32_bf16 v69, v{20+i}, v{64+i}")
a(f"v_permlane32_swap_b32 v68, v69\nv_add_f32 v68, v68, v69\nv_mov_b32 v69, v68\nv_permlane16_swap_b32 v68, v69\nv_add_f32 v68, v68, v69\nds_write_b32 v155, v68 offset:{L_EX}\ns_waitcnt lgkmcnt(0)\ns_barrier\ns_cmp_eq_u32 s3, 9\ns_cbranch_scc1 L_ext")
read_pm()
a("s_cmp_lt_u32 s3, 8\ns_cbranch_scc1 L_scat\ns_cmp_lg_u32 s2, 0\ns_cbranch_scc1 L_fin\ns_barrier\ns_barrier\ns_branch L_p2end")
a("L_ext:\ns_setprio 3")
for i in range(10): a(f"ds_read_b32 v{44+i}, v112 offset:{L_EX+128*i}")
a("s_waitcnt lgkmcnt(0)\nv_pk_add_f32 v[44:45], v[44:45], v[46:47]\nv_pk_add_f32 v[48:49], v[48:49], v[50:51]\nv_pk_add_f32 v[44:45], v[44:45], v[52:53]\nv_pk_add_f32 v[44:45], v[44:45], v[48:49]\nv_add_f32 v44, v44, v45\nv_mul_f32 v44, v44, v113\nv_mov_b32 v45, v44")
a(f"v_permlane32_swap_b32 v44, v45\nv_add_f32 v44, v44, v45\nv_mov_b32 v45, v44\nv_permlane16_swap_b32 v44, v45\nv_add_f32 v44, v44, v45\nv_mov_b32_dpp v45, v44 quad_perm:[1,0,3,2] {DPPM}\nv_cvt_pk_bf16_f32 v44, v44, v45")
a("s_mov_b64 exec, 0x5555\nglobal_store_dword v120, v44, s[40:41] sc1\ns_mov_b64 exec, -1")
stamp(3)
a("s_barrier\ns_branch L_fin")
XA=[88,89,90,91,92]; XB=[94,95,96,97,93]; WA=[98,99,100,101,102]; WB=[104,105,106,107,103]
a("L_scat:\ns_cmp_ge_u32 s3, 4\ns_cbranch_scc1 L_b2\ns_waitcnt lgkmcnt(0)")
scatter(156)
a("L_b2:")
p2addr()
TABPOS=opt("tabpos",1)
if TABPOS==0:
    a("s_cmp_ge_u32 s3, 4\ns_cbranch_scc1 L_ntab")
    gentab()
    a("L_ntab:")
stamp(6)
a("s_waitcnt vmcnt(0) lgkmcnt(0)\ns_barrier" if opt("ack1",1) else "s_waitcnt lgkmcnt(0)\ns_barrier")
stamp(7)
if opt("pre1",0): a(f"s_sleep {opt('pre1',0)}")
def x1win():
    if TABPOS==1:
        a("s_cmp_ge_u32 s3, 4\ns_cbranch_scc1 L_ntab")
        gentab()
        a("s_branch L_ntab2\nL_ntab:\ns_cmp_ge_u32 s2, 128\ns_cbranch_scc1 L_ntab2")
        scatter(156)
        a("L_ntab2:")
poll(["global_load_dwordx4 v[40:43], v112, s[40:41] sc1","global_load_dwordx4 v[44:47], v113, s[40:41] sc1"],range(40,48),opt("sl1",2),16,between=x1win)
stamp(8)
a(f"ds_write_b128 v114, v[40:43] offset:{L_P2}\nds_write_b128 v114, v[44:47] offset:{L_P2+8192}\ns_waitcnt lgkmcnt(0)\ns_barrier")
a("s_cmp_ge_u32 s3, 4\ns_cbranch_scc1 L_p2end\ns_setprio 2")
def trg(i):
    k,c=i>>2,i&3; b=8+4*(i&7)
    a(f"ds_read_b64_tr_b16 v[{b}:{b+1}], v{116+c} offset:{L_P2+4096*k}\nds_read_b64_tr_b16 v[{b+2}:{b+3}], v{116+c} offset:{L_P2+4096*k+512}")
NPRE=7
for i in range(NPRE): trg(i)
for i in range(16):
    k,c=i>>2,i&3
    issued=min(16,NPRE+i)
    a(f"s_waitcnt lgkmcnt({2*(issued-i-1)})")
    a(f"{MF} {vr(40+4*c)}, {vr(8+4*(i&7))}, {vr(56+16*(c&1)+4*k)}, {'0' if k==0 else vr(40+4*c)}")
    if NPRE+i<16: trg(NPRE+i)
a(f"v_pk_add_f32 v[8:9], v[40:41], v[44:45] {NEG}\nv_pk_add_f32 v[10:11], v[42:43], v[46:47] {NEG}\nv_pk_add_f32 v[16:17], v[40:41], v[44:45]\nv_pk_add_f32 v[18:19], v[42:43], v[46:47]")
a("v_cvt_pk_bf16_f32 v24, v8, v9\nv_cvt_pk_bf16_f32 v25, v10, v11\nv_cvt_pk_bf16_f32 v28, v16, v17\nv_cvt_pk_bf16_f32 v29, v18, v19")
a(f"v_pk_add_f32 v[12:13], v[48:49], v[52:53] {NEG}\nv_pk_add_f32 v[14:15], v[50:51], v[54:55] {NEG}\nv_cvt_pk_bf16_f32 v26, v12, v13\nv_cvt_pk_bf16_f32 v27, v14, v15")
a("global_store_dwordx4 v120, v[24:27], s[40:41] sc1")
a("v_pk_add_f32 v[20:21], v[48:49], v[52:53]\nv_pk_add_f32 v[22:23], v[50:51], v[54:55]\nv_cvt_pk_bf16_f32 v30, v20, v21\nv_cvt_pk_bf16_f32 v31, v22, v23")
a("global_store_dwordx4 v121, v[28:31], s[40:41] sc1\ns_setprio 0")
stamp(9)
a("L_p2end:\ns_cmp_ge_u32 s2, 128\ns_cbranch_scc1 L_fin")
p3addrA()
a(f"ds_read_b64 v[88:89], v125\nds_read_b64 v[90:91], v125 offset:{8*U}\nds_read_b32 v92, v126 offset:{16*U}\nds_read_b64 v[94:95], v125 offset:{RS+10*U}\nds_read_b64 v[96:97], v127 offset:{RS}\nds_read_b32 v93, v126 offset:{RS+6*U}")
read_w()
p3addrB()
a(f"s_and_b32 s60, s2, 7\ns_lshl_b32 s60, s60, 7\ns_add_u32 s60, s60, {LIST}\nv_lshl_add_u32 v19, v3, 2, s60\nv_lshlrev_b32 v155, 7, v3\nv_add_u32 v155, {H3}, v155")
if opt("w2",-1)<0: a("s_waitcnt vmcnt(0)\ns_barrier")
else: a(f"s_barrier\ns_sleep {opt('w2',0)}")
stamp(10)
if opt("pre2",0): a(f"s_sleep {opt('pre2',0)}")
def x2win():
    a("s_waitcnt lgkmcnt(0)")
    for i in range(5):
        a(f"v_dot2c_f32_bf16 v{AC[0]}, s63, v{XA[i]}\nv_dot2c_f32_bf16 v{AC[1]}, v{XA[i]}, v{WA[i]}\nv_dot2c_f32_bf16 v{AC[2]}, v{XA[i]}, v{XA[i]}\nv_dot2c_f32_bf16 v{AC[3]}, s63, v{WA[i]}")
        a(f"v_dot2c_f32_bf16 v{AC[4]}, s63, v{XB[i]}\nv_dot2c_f32_bf16 v{AC[5]}, v{XB[i]}, v{WB[i]}\nv_dot2c_f32_bf16 v{AC[6]}, v{XB[i]}, v{XB[i]}")
    a(f"v_mov_b32 v{AC[7]}, v{AC[3]}\nv_mov_b32 v18, {fhex(1e-5)}\ns_mov_b32 s58, {fhex(1/640)}\ns_movk_i32 s59, 0x7ff")
    for X,hb in ((XA,32),(XB,42)):
        for i in range(5): a(f"v_lshlrev_b32 v{hb+2*i}, 16, v{X[i]}\nv_and_b32 v{hb+1+2*i}, 0xffff0000, v{X[i]}")
    a(f"v_lshlrev_b32 v154, 4, v0\nv_and_b32 v154, 0x1fff, v154\nv_add_u32 v154, {KEYS}, v154\nv_mov_b32 v119, {L_CNT}\ns_mov_b32 s61, 0\ns_mov_b32 s62, 0\ns_movk_i32 s44, 99\ns_movk_i32 s45, 99\ns_cmp_lt_u32 s3, 8\ns_cselect_b64 s[56:57], 1, 0\ns_add_u32 s49, s48, 1")
    a("s_waitcnt vmcnt(3)\nv_cmp_eq_u32 vcc, -1, v71\ns_mov_b32 s55, 1\ns_mov_b32 s54, -1\ns_cbranch_vccnz L_l2\ns_mov_b32 s55, 0\nv_cmp_eq_u32_e64 s[24:25], s46, v71\nv_cmp_eq_u32_e64 s[26:27], s47, v71\ns_ff1_i32_b64 s52, s[24:25]\ns_ff1_i32_b64 s53, s[26:27]\ns_cmp_eq_u32 s50, 0\ns_cselect_b32 s53, -1, s53\ns_and_b32 s54, s52, s53\ns_cmp_lt_i32 s54, 0\ns_cbranch_scc1 L_nl\n"+HINT+("" if GEN else "\ns_waitcnt vmcnt(1)\ns_branch LV1")+"\nL_nl:")
    if GEN: a(f"s_cmp_lg_u32 s3, {opt('gw',7)}\ns_cbranch_scc1 L_gh\ns_sub_u32 s60, s2, {opt('gh0',112)}\ns_cmp_ge_u32 s60, 16\ns_cbranch_scc1 L_gh\ns_lshl_b64 exec, 1, s60\nglobal_store_dword v155, v155, s[40:41] sc1\ns_mov_b64 exec, -1\ns_waitcnt vmcnt(1)\ns_branch LV1\nL_gh:")
    tail.append("L_l2:\nglobal_load_dword v71, v19, s[40:41] offset:1024 sc1\ns_branch L_nl")
NH3=16; H3POS=opt("h3pos",0)
GEN=opt("gen",0)
HINT="" if GEN else "s_cmp_eq_u32 s50, 0\ns_cselect_b32 s26, 0, s26\ns_or_b32 s24, s24, s26\ns_and_b32 exec_lo, s24, 0xffff\ns_mov_b32 exec_hi, 0\nglobal_store_dword v155, v155, s[40:41] sc1\ns_mov_b64 exec, -1"
a("global_load_dword v71, v19, s[40:41] sc1")
assert pc[0]==1
poll(["global_load_dwordx2 v[112:113], v128, s[40:41] sc1","global_load_dwordx2 v[114:115], v129, s[40:41] sc1","global_load_dword v116, v130, s[40:41] sc1"],range(112,117),opt("sl2",2),4,between=x2win)
stamp(11)
YA=[112,113,114,117,116]; YB=[112,118,114,115,116]
A0,A1,A2,A3,B0,B1,B2_,B3,C0,C1,C2,C3=AC
def p3main():
    for i in (0,2,4,1,3):
        a(f"v_dot2c_f32_bf16 v{C0}, s63, v{YA[i]}\nv_dot2c_f32_bf16 v{C1}, v{YA[i]}, v{YA[i]}\nv_dot2c_f32_bf16 v{C2}, v{YA[i]}, v{XA[i]}\nv_dot2c_f32_bf16 v{C3}, v{YB[i]}, v{XB[i]}")
        a(f"v_dot2c_f32_bf16 v{A1}, v{YA[i]}, v{WA[i]}\nv_dot2c_f32_bf16 v{B1}, v{YB[i]}, v{WB[i]}")
    a(f"v_add_f32 v{A0}, v{A0}, v{C0}\nv_add_f32 v{B0}, v{B0}, v{C0}\nv_add_f32 v{A2}, v{A2}, v{C1}\nv_add_f32 v{B2_}, v{B2_}, v{C1}\nv_fmac_f32 v{A2}, 2.0, v{C2}\nv_fmac_f32 v{B2_}, 2.0, v{C3}")
    a(f"v_permlane32_swap_b32 v{A0}, v{A1}\nv_permlane32_swap_b32 v{B0}, v{B1}\nv_permlane32_swap_b32 v{A2}, v{A3}\nv_permlane32_swap_b32 v{B2_}, v{B3}")
    a(f"v_add_f32 v{A0}, v{A0}, v{A1}\nv_add_f32 v{A2}, v{A2}, v{A3}\nv_add_f32 v{B0}, v{B0}, v{B1}\nv_add_f32 v{B2_}, v{B2_}, v{B3}")
    a(f"v_permlane16_swap_b32 v{A0}, v{A2}\nv_permlane16_swap_b32 v{B0}, v{B2_}\nv_add_f32 v{A0}, v{A0}, v{A2}\nv_add_f32 v{B0}, v{B0}, v{B2_}")
    for s_ in (8,4,2,1): a(f"v_add_f32_dpp v{A0}, v{A0}, v{A0} row_ror:{s_} {DPPM}\nv_add_f32_dpp v{B0}, v{B0}, v{B0} row_ror:{s_} {DPPM}")
    a(f"ds_write_b32 v133, v{A0} offset:{L_ST3}\nds_write_b32 v134, v{B0} offset:{L_ST3}")
def top2():
    a("v_mov_b32 v4, v79")
    for s_ in (8,4,2,1): a(f"v_max_u32_dpp v4, v4, v4 row_ror:{s_} {DPPM}")
    a("v_cmp_ne_u32 vcc, v4, v79\nv_readfirstlane_b32 s6, v4\nv_cndmask_b32 v79, 0, v79, vcc\nv_mov_b32 v4, v79")
    for s_ in (8,4,2,1): a(f"v_max_u32_dpp v4, v4, v4 row_ror:{s_} {DPPM}")
    a("v_cmp_ne_u32 vcc, v4, v79\nv_readfirstlane_b32 s7, v4\nv_cndmask_b32 v79, 0, v79, vcc")
def hsum(Y,hb,pk):
    for i in range(5):
        a(f"v_lshlrev_b32 v4, 16, v{Y[i]}\nv_and_b32 v5, 0xffff0000, v{Y[i]}\nv_pk_add_f32 v[{hb+2*i}:{hb+1+2*i}], v[{hb+2*i}:{hb+1+2*i}], v[4:5]\nv_cvt_pk_bf16_f32 v{pk+i}, v{hb+2*i}, v{hb+1+2*i}")
def hnorm(hb,nb,sr,mv):
    for i in range(5):
        a(f"v_pk_fma_f32 v[{nb+2*i}:{nb+1+2*i}], v[{hb+2*i}:{hb+1+2*i}], s[{sr}:{sr+1}], v[{mv}:{mv+1}] op_sel_hi:[1,0,0] neg_lo:[0,0,1] neg_hi:[0,0,1]")
def pubstat(base,sl,acc):
    a(f"s_lshl_b32 s26, s{sl}, 4\ns_add_u32 s26, s26, {base}\nv_lshl_add_u32 v4, v2, 2, s26\ns_mov_b64 exec, 0x10001\nglobal_store_dword v4, v{acc}, s[40:41] sc1\ns_mov_b64 exec, -1")
def publish(base,sl,pk,o0):
    a(f"s_mul_i32 s26, s{sl}, {XSS}\ns_add_u32 s26, s26, {base}\nv_add_u32 v4, s26, v{o0}\nv_add_u32 v5, s26, v{o0+1}\nv_add_u32 v6, s26, v{o0+2}")
    a(f"global_store_dwordx2 v4, v[{pk}:{pk+1}], s[40:41] sc1\nglobal_store_dwordx2 v5, v[{pk+2}:{pk+3}], s[40:41] sc1\nglobal_store_dword v6, v{pk+4}, s[40:41] sc1")
a("v_and_b32 v117, v115, v131\nv_and_b32 v118, v113, v132\ns_cmp_lg_u32 s55, 0\ns_cbranch_scc1 L_l3\ns_cmp_lt_i32 s54, 0\ns_cbranch_scc0 L_cand\nL_nc:")
tail.append("L_l3:\nv_cmp_eq_u32 vcc, -1, v71\ns_cbranch_vccnz L_nc\ns_mov_b32 s55, 0\nv_cmp_eq_u32_e64 s[24:25], s46, v71\nv_cmp_eq_u32_e64 s[26:27], s47, v71\ns_ff1_i32_b64 s52, s[24:25]\ns_ff1_i32_b64 s53, s[26:27]\ns_cmp_eq_u32 s50, 0\ns_cselect_b32 s53, -1, s53\ns_and_b32 s54, s52, s53\ns_cmp_lt_i32 s54, 0\ns_cbranch_scc1 L_nc\n"+HINT+"\ns_branch L_cand")
p3main()
a("s_cmp_lt_i32 s54, 0\ns_cbranch_scc0 L_cst\nL_nc1:")
a(f"s_waitcnt lgkmcnt(0)\ns_barrier\nds_read_b128 v[76:79], v137 offset:{L_ST3}\ns_waitcnt lgkmcnt(0)")
a("v_mul_f32 v76, s58, v76\nv_fma_f32 v77, v77, s58, v18\nv_fma_f32 v77, -v76, v76, v77\nv_max_f32 v77, v77, v18\nv_rsq_f32 v77, v77\nv_fma_f32 v78, -v76, v79, v78\nv_mul_f32 v78, v78, v77")
a("v_ashrrev_i32 v79, 31, v78\nv_or_b32 v79, 0x80000000, v79\nv_xor_b32 v79, v79, v78\nv_bfi_b32 v79, s59, v135, v79\nv_min_u32 v79, -2, v79")
a("s_cmp_lg_u32 s3, 0\ns_cbranch_scc1 L_nokey\ns_mov_b64 exec, 0xffff\nglobal_store_dword v136, v79, s[40:41] sc1\ns_mov_b64 exec, -1\nL_nokey:")
stamp(12)
a("v_mul_f32 v76, v76, v77\nv_readlane_b32 s8, v77, s48\nv_readlane_b32 s12, v77, s49\nv_readlane_b32 s10, v76, s48\nv_readlane_b32 s18, v76, s49")
a("v_readlane_b32 s20, v79, s48\nv_readlane_b32 s21, v79, s49\nv_readlane_b32 s22, v78, s48\nv_readlane_b32 s23, v78, s49")
a("s_cmp_eq_u32 s50, 0\ns_cselect_b32 s21, 0, s21\nv_mov_b32 v80, s10\nv_mov_b32 v82, s18")
a("s_cmp_eq_u32 s55, 0\ns_cbranch_scc1 L_nc2")
poll(["global_load_dword v71, v19, s[40:41] sc1"],[71],opt("sll",2),None)
a("v_cmp_eq_u32_e64 s[24:25], s46, v71\nv_cmp_eq_u32_e64 s[26:27], s47, v71\ns_ff1_i32_b64 s52, s[24:25]\ns_ff1_i32_b64 s53, s[26:27]\ns_cmp_eq_u32 s50, 0\ns_cselect_b32 s53, -1, s53\ns_and_b32 s54, s52, s53\ns_cmp_lt_i32 s54, 0\ns_cbranch_scc1 L_nc2\n"+HINT+"\ns_branch L_cand\nL_nc2:")
a("s_cmp_lt_i32 s52, 0\ns_cbranch_scc0 L_na")
hsum(YA,32,60)
a("L_na:\ns_cmp_lt_i32 s53, 0\ns_cbranch_scc0 L_nb2")
hsum(YB,42,66)
a("L_nb2:")
hnorm(32,8,8,80)
hnorm(42,20,12,82)
top2()
def cand():
    a("L_cand:\ns_setprio 3")
    for R,(sl,Y,hb,pk,o0) in enumerate(((52,YA,32,60,138),(53,YB,42,66,141))):
        a(f"s_cmp_lt_i32 s{sl}, 0\ns_cbranch_scc1 L_cs{R}")
        hsum(Y,hb,pk)
        publish(HN,sl,pk,o0)
        a(f"L_cs{R}:")
    stamp(16)
    a("s_cmp_eq_u32 s55, 0\ns_cbranch_scc1 L_nc\nL_cst:")
    for R,(sl,acc) in enumerate(((52,A0),(53,B0))):
        a(f"s_cmp_lt_i32 s{sl}, 0\ns_cbranch_scc1 L_ct{R}")
        pubstat(STAT,sl,acc)
        a(f"L_ct{R}:")
    a("s_setprio 0\ns_cmp_eq_u32 s55, 0\ns_cbranch_scc1 L_nc1\ns_branch L_nc2")
def outprep1():
    for R,(hb,nb,ob) in enumerate(((32,8,88),(42,20,94))):
        for i in range(5):
            a(f"v_pk_add_f32 v[4:5], v[{hb+2*i}:{hb+1+2*i}], v[{nb+2*i}:{nb+1+2*i}]\nv_cvt_pk_bf16_f32 v{ob+i}, v4, v5")
    a(f"ds_write_b64 v125, v[88:89]\nds_write_b64 v125, v[90:91] offset:{8*U}\nds_write_b32 v126, v92 offset:{16*U}\ns_cmp_eq_u32 s50, 0\ns_cbranch_scc1 L_nob")
    a(f"ds_write_b64 v125, v[94:95] offset:{RS+10*U}\nds_write_b64 v127, v[96:97] offset:{RS}\nds_write_b32 v126, v98 offset:{RS+6*U}\nL_nob:")
def outprep2():
    for i in range(10):
        t=4+2*(i&1)
        a(f"v_add_u32_sdwa v{t}, v{144+i}, v156 {SD.format(0)}\nv_add_u32_sdwa v{t+1}, v{144+i}, v156 {SD.format(1)}")
        a(f"ds_read_u16 v{8+i}, v{t}\nds_read_u16 v{20+i}, v{t+1}")
    a("v_cmp_lt_u32 vcc, 7, v3\nv_mov_b32 v4, s46\nv_mov_b32 v5, s47\nv_cndmask_b32 v52, v4, v5, vcc\nv_mov_b32 v4, s22\nv_mov_b32 v5, s23\nv_cndmask_b32 v53, v4, v5, vcc\nv_mov_b32 v4, s52\nv_mov_b32 v5, s53\nv_cndmask_b32 v54, v4, v5, vcc")
    a("v_mul_f32 v53, 0xbfb8aa3b, v53\nv_exp_f32 v53, v53\nv_and_b32 v54, 255, v54\nv_add_f32 v53, 1.0, v53\nv_rcp_f32 v53, v53\nv_mov_b32 v55, 0\ns_waitcnt lgkmcnt(0)")
    for i in range(10): a(f"v_lshl_or_b32 v{8+i}, v{20+i}, 16, v{8+i}")
OP=opt("op",1)
if OP>=1: outprep1()
if OP>=2: outprep2()
stamp(13)
if opt("pre3",0): a(f"s_sleep {opt('pre3',0)}")
poll(["global_load_dwordx4 v[72:75], v154, s[40:41] sc1"],range(72,76),opt("sl3",2),4,between=lambda: (outprep1() if OP<1 else None, outprep2() if OP<2 else None))
stamp(14)
a("L_round:")
SP=[24,26,28,30,8,10,16,58]
for i in range(4): a(f"v_cmp_gt_u32_e64 s[{SP[i]}:{SP[i]+1}], v{72+i}, s6")
for i in range(4): a(f"v_cmp_gt_u32_e64 s[{SP[4+i]}:{SP[4+i]+1}], v{72+i}, s7")
for i in range(8): a(f"s_bcnt1_i32_b64 s{SP[i]}, s[{SP[i]}:{SP[i]+1}]")
a("s_add_u32 s24, s24, s26\ns_add_u32 s28, s28, s30\ns_add_u32 s8, s8, s10\ns_add_u32 s16, s16, s58\ns_add_u32 s24, s24, s28\ns_add_u32 s8, s8, s16\ns_lshl_b32 s8, s8, 16\ns_add_u32 s24, s24, s8")
a("v_mov_b32 v4, s24\ns_mov_b64 exec, s[56:57]\nds_add_u32 v119, v4\ns_mov_b64 exec, -1\ns_waitcnt lgkmcnt(0)\ns_barrier\nds_read_b32 v4, v119\ns_waitcnt lgkmcnt(0)")
a("v_readfirstlane_b32 s24, v4\ns_and_b32 s25, s24, 0xffff\ns_lshr_b32 s24, s24, 16\ns_cmp_ge_u32 s25, 8\ns_cbranch_scc1 L_rdone")
for sk,srk in ((20,44),(21,45)):
    a(f"s_cmp_eq_u32 s{sk}, s7\ns_cselect_b32 s{srk}, s24, s{srk}\ns_cmp_eq_u32 s{sk}, s6\ns_cselect_b32 s{srk}, s25, s{srk}")
a("s_cmp_ge_u32 s24, 7\ns_cbranch_scc1 L_rdone\ns_cmp_ge_u32 s61, 3\ns_cbranch_scc1 L_rdone\ns_add_u32 s61, s61, 1\nv_add_u32 v119, 4, v119")
top2()
a("s_branch L_round\nL_rdone:")
stamp(15)
a("s_mov_b32 s24, 0x00ff00ff\ns_cmp_lt_u32 s44, 8\ns_cselect_b32 s30, 0, s24\ns_cselect_b32 s28, s24, 0\ns_not_b32 s24, s24\ns_cmp_lt_u32 s45, 8\ns_cselect_b32 s31, 0, s24\ns_cselect_b32 s29, s24, 0")
a("s_cmp_eq_u32 s50, 0\ns_cselect_b32 s31, 0, s31\ns_or_b32 s30, s30, s31\ns_mov_b32 s31, s30\ns_or_b32 s28, s28, s29\ns_cbranch_scc0 L_nosel\ns_mov_b32 s29, s28")
a(f"v_cmp_lt_u32 vcc, 7, v3\nv_mov_b32 v4, s44\nv_mov_b32 v5, s45\nv_cndmask_b32 v20, v4, v5, vcc\nv_and_b32 v20, 7, v20\nv_lshlrev_b32 v22, 7, v20\nv_add_u32 v22, {META}, v22")
a("s_and_b32 exec_lo, s28, 0x0101\ns_mov_b32 exec_hi, 0\nglobal_store_dwordx4 v22, v[52:55], s[40:41] sc1\ns_mov_b64 exec, s[28:29]")
a(f"v_mul_u32_u24 v21, 1280, v20\nv_add_u32 v21, {BASE}, v21\nv_lshl_add_u32 v21, v2, 6, v21\nv_and_b32 v4, 7, v0\nv_lshl_add_u32 v21, v4, 3, v21")
for i in range(5): a(f"global_store_dwordx2 v21, v[{8+2*i}:{9+2*i}], s[40:41] offset:{256*i} sc1")
a("s_mov_b64 exec, -1\ns_cmp_ge_u32 s44, 8\ns_cbranch_scc1 L_ns0")
publish(HN8,44,60,138)
pubstat(STAT8,44,A0)
a("L_ns0:\ns_cmp_ge_u32 s45, 8\ns_cbranch_scc1 L_nosel")
publish(HN8,45,66,141)
pubstat(STAT8,45,B0)
a("L_nosel:")
a("s_cmp_eq_u32 s30, 0\ns_cbranch_scc1 L_noout\ns_mov_b64 exec, s[30:31]")
for i in range(5): a(f"global_store_dwordx2 v158, v[{8+2*i}:{9+2*i}], s[36:37] offset:{256*i} {OUTF}")
a("s_mov_b64 exec, -1\nL_noout:")
a("s_or_b32 s24, s2, s3\ns_cbranch_scc1 L_fin")
a("s_load_dword s16, s[40:41], 0\nv_mov_b32 v4, 0\ns_waitcnt lgkmcnt(0)\ns_add_u32 s16, s16, 1\nv_mov_b32 v5, s16\ns_mov_b64 exec, 1\nglobal_store_dword v4, v5, s[40:41]\ns_mov_b64 exec, -1\ns_branch L_fin")
cand()
flush_tail()
a("L_a8b:\ns_waitcnt lgkmcnt(0)\nglobal_load_ushort v87, v87, s[28:29]\ns_cmp_eq_u32 s3, 8\ns_cbranch_scc1 L_b1")
a(f"v_cvt_f32_u32 v20, s2\nv_mul_f32 v20, {fhex(1/256)}, v20\nv_cos_f32 v21, v20\nv_sin_f32 v22, v20\nv_and_b32 v6, 7, v0\nv_and_b32 v23, 8, v0\nv_cmp_eq_u32 vcc, 0, v6")
a("v_cndmask_b32 v21, 1.0, v21, vcc\nv_cndmask_b32 v22, 0, v22, vcc\nv_lshlrev_b32 v24, 28, v23\ns_cmp_eq_u32 s2, 0\ns_cselect_b64 s[8:9], vcc, 0\nv_cndmask_b32_e64 v24, v24, 0, s[8:9]\nv_xor_b32 v21, v21, v24")
a("v_sub_u32 v24, 8, v6\nv_and_b32 v24, 7, v24\nv_add3_u32 v24, v24, v23, 16\nv_sub_u32 v25, 24, v23\nv_cmp_eq_u32 vcc, 1, v2\nv_cndmask_b32 v112, v3, v24, vcc\nv_cndmask_b32 v113, 1.0, v21, vcc")
a(f"v_cmp_eq_u32 vcc, 2, v2\nv_cndmask_b32 v112, v112, v25, vcc\nv_cndmask_b32 v113, v113, v22, vcc\nv_cmp_eq_u32 vcc, 3, v2\nv_cndmask_b32_e64 v113, v113, 0, vcc\nv_lshlrev_b32 v112, 2, v112\ns_lshl_b32 s8, s2, 7\ns_add_u32 s8, s8, {EXT}\nv_lshl_add_u32 v120, v3, 1, s8")
stamp(2)
a("s_branch L_b1")
a("L_a10:")
a("s_setprio 1\ns_lshl_b32 s7, s2, 7\ns_waitcnt lgkmcnt(0)\ns_load_dword s6, s[40:41], 0")
LATE10=f"s_movk_i32 m0, {L_PM}\nglobal_load_lds_dwordx4 v157, s[42:43]\nglobal_load_lds_dwordx4 v157, s[42:43] offset:1024"
a(f"s_add_u32 s7, s7, {WS_FA}\nv_mov_b32 v18, s7\ns_sub_u32 s7, 256, s2\ns_cmp_eq_u32 s2, 0\ns_cselect_b32 s7, 128, s7")
a("v_lshrrev_b32 v20, 1, v3\nv_and_b32 v21, 1, v0\nv_lshrrev_b32 v22, 1, v2\nv_and_b32 v23, 1, v2")
a("v_mov_b32 v24, s7\nv_mov_b32 v25, s2\nv_cmp_eq_u32 vcc, 1, v22\nv_cndmask_b32 v24, v25, v24, vcc\nv_lshl_add_u32 v24, v23, 10, v24")
a("v_subrev_u32 v25, 4, v20\nv_mul_i32_i24 v24, v24, v25\nv_lshl_add_u32 v24, v21, 9, v24")
a("v_cmp_gt_u32 vcc, v22, v21\ns_cmp_lg_u32 s2, 0\ns_cselect_b32 s49, 1024, 0\nv_mov_b32 v25, s49\nv_cndmask_b32 v25, 0, v25, vcc\nv_add_u32 v24, v24, v25\nv_and_b32 v24, 2047, v24")
a(f"v_cvt_f32_u32 v24, v24\nv_cvt_f32_u32 v25, v20\nv_mul_f32 v24, {fhex(1/2048)}, v24\nv_mul_f32 v25, {fhex(0.125)}, v25")
a("v_cmp_eq_u32 vcc, v22, v21\ns_cselect_b64 s[52:53], -1, 0\ns_or_b64 vcc, vcc, s[52:53]")
for i in range(4):
    a(f"v_cos_f32 v{60+i}, v24\nv_sin_f32 v{64+i}, v24")
    if i<3: a("v_add_f32 v24, v24, v25")
for i in range(8): a(f"v_cndmask_b32 v{60+i}, 0, v{60+i}, vcc")
a(f"v_mov_b32 v20, 0\nv_mov_b32 v21, 0\nv_mov_b32 v22, 0\nv_mov_b32 v23, 0\nds_write_b128 v157, v[20:23] offset:{L_ZERO}")
a(f"s_mov_b32 s60, {fhex(1/640)}\ns_mov_b32 s61, {fhex(1/640)}\nv_mov_b32 v86, {fhex(1e-5)}\nv_mov_b32 v87, {fhex(1e-5)}\nv_lshlrev_b32 v166, 4, v2")
a(LATE10)
a("s_waitcnt lgkmcnt(0)\ns_add_u32 s6, s6, 1")
NH1=opt("nh1",8); H1POS=opt("h1pos",1); H10=128-NH1
a(f"s_sub_u32 s8, s2, {H10-8}\ns_and_b32 s8, s8, 31\ns_lshl_b32 s8, s8, 7\ns_add_u32 s8, s8, {WS_GO}\nv_lshrrev_b32 v5, 3, v1\nv_lshl_add_u32 v5, v5, 12, s8\nv_lshl_add_u32 v16, v6, 4, v5\nv_mov_b32 v8, s6\nv_mov_b32 v9, s6\nv_mov_b32 v10, s6\nv_mov_b32 v11, s6")
def h1(): a(f"s_cmp_lt_u32 s2, {H10}\ns_cbranch_scc1 L_h1\nglobal_store_dwordx4 v16, v[8:11], s[40:41] sc1\nL_h1:")
stamp(2)
a("s_setprio 3\ns_barrier")
stamp(4)
def smat():
    a(f"ds_read_b128 v[32:35], v166 offset:{L_SUM}\nds_read_b128 v[36:39], v166 offset:{L_SQ4}\nds_read_b128 v[40:43], v166 offset:{L_SQ4+64}\nds_read_b128 v[44:47], v166 offset:{L_SQ4+128}\nds_read_b128 v[48:51], v166 offset:{L_SQ4+192}")
    a("s_waitcnt lgkmcnt(0)")
    a("v_pk_add_f32 v[36:37], v[36:37], v[40:41]\nv_pk_add_f32 v[38:39], v[38:39], v[42:43]\nv_pk_add_f32 v[44:45], v[44:45], v[48:49]\nv_pk_add_f32 v[46:47], v[46:47], v[50:51]\nv_pk_add_f32 v[36:37], v[36:37], v[44:45]\nv_pk_add_f32 v[38:39], v[38:39], v[46:47]")
    a("v_pk_mul_f32 v[32:33], v[32:33], s[60:61]\nv_pk_mul_f32 v[34:35], v[34:35], s[60:61]\nv_pk_fma_f32 v[36:37], v[36:37], s[60:61], v[86:87]\nv_pk_fma_f32 v[38:39], v[38:39], s[60:61], v[86:87]")
    a("v_pk_fma_f32 v[36:37], v[32:33], v[32:33], v[36:37] neg_lo:[1,0,0] neg_hi:[1,0,0]\nv_pk_fma_f32 v[38:39], v[34:35], v[34:35], v[38:39] neg_lo:[1,0,0] neg_hi:[1,0,0]")
    for i in range(4): a(f"v_max_f32 v{36+i}, v{36+i}, v86")
    for i in range(4): a(f"v_rsq_f32 v{36+i}, v{36+i}")
    a("v_pk_mul_f32 v[60:61], v[60:61], v[36:37]\nv_pk_mul_f32 v[64:65], v[64:65], v[36:37]\nv_pk_mul_f32 v[62:63], v[62:63], v[38:39]\nv_pk_mul_f32 v[66:67], v[66:67], v[38:39]")
    a("v_cvt_pk_bf16_f32 v32, v60, v61\nv_cvt_pk_bf16_f32 v33, v62, v63\nv_cvt_pk_bf16_f32 v34, v64, v65\nv_cvt_pk_bf16_f32 v35, v66, v67")
    a(f"ds_write_b128 v157, v[32:35] offset:{L_SM}")
poll(["global_load_dword v20, v18, s[40:41] sc1"],None,opt("slf",1),None,chk="v_cmp_ne_u32 vcc, s6, v20",between=smat)
if H1POS==1 and NH1: h1()
a("s_waitcnt lgkmcnt(0)\ns_barrier")
stamp(5)
if H1POS==2 and NH1: h1()
a("s_barrier\ns_setprio 0")
NGO=opt("ngo",8); NH4=opt("nh4",8)
def gowait(n=8):
    a(f"s_and_b32 s7, s2, 7\ns_lshl_b32 s7, s7, 12\ns_add_u32 s7, s7, {WS_GO}\nv_lshl_add_u32 v4, v1, 7, s7\ns_mov_b64 exec, {hex((1<<n)-1)}")
    poll(["global_load_dword v20, v4, s[40:41] sc1"],None,opt("slf",1),None,chk="v_cmp_ne_u32 vcc, s6, v20")
a("L_flagchk:")
gowait(8+NH1)
stamp(6)
a("s_barrier\ns_branch L_fin")
a(f"L_agg:\ns_cmp_ge_u32 s4, 8\ns_cbranch_scc1 L_bf8\ns_lshl_b32 s7, s4, 7\ns_add_u32 s8, s7, {WS_FA}\nv_lshl_add_u32 v4, v1, 10, s8\ns_add_u32 s8, s7, {WS_GO}\nv_lshrrev_b32 v5, 3, v1\nv_lshl_add_u32 v5, v5, 12, s8\nv_lshl_add_u32 v5, v6, 4, v5\ns_mov_b64 exec, 0xffff")
poll(["global_load_dword v20, v4, s[40:41] sc1"],None,opt("sla",1),None,chk="v_cmp_ne_u32 vcc, s6, v20")
stamp(6)
if opt("gdel",0): a(f"s_sleep {opt('gdel',0)}")
a("global_store_dwordx4 v5, v[8:11], s[40:41] sc1\ns_barrier\ns_branch L_fin")
L_FT=L_XS+21504
a(f"L_fw:\ns_cmp_ge_u32 s14, 216\ns_cbranch_scc1 L_fw1\ns_mov_b32 m0, {L_FT}")
for o in range(1,3): a(f"global_load_lds_dwordx4 v157, s[42:43] offset:{1024*o}")
a(f"L_fw1:\ns_sleep {opt('slb',50)}")
gowait()
a("s_barrier")
a(f"s_cmp_ge_u32 s14, 216\ns_cselect_b32 s7, {NH4-1}, {NH3-1}\ns_cselect_b32 s8, {H4-H3}, 0\ns_add_u32 s8, s8, {H3}\nv_min_u32 v4, s7, v1\nv_lshl_add_u32 v4, v4, 7, s8")
poll(["global_load_dword v20, v4, s[40:41] sc1"],[20],opt("slh",1),None)
stamp(14)
a(f"s_barrier\ns_cmp_ge_u32 s14, 216\ns_cbranch_scc1 L_fin\nv_lshlrev_b32 v4, 7, v6\nv_add_u32 v4, {META+8}, v4\nv_mov_b32 v5, {L_VD}\ns_barrier")
a(f"v_min_u32 v7, {NH4-1}, v1\nv_lshlrev_b32 v7, 7, v7\nv_add_u32 v7, {H4}, v7")
poll(["global_load_dword v20, v7, s[40:41] sc1"],[20],opt("slh",1),None)
if opt("vdel",0): a(f"s_sleep {opt('vdel',0)}")
poll(["global_load_dword v20, v4, s[40:41] sc1"],[20],opt("slm",2),None)
a("v_cmp_lt_u32 vcc, 15, v20\nv_mov_b32 v6, vcc_lo\nds_write_b32 v5, v6\ns_waitcnt lgkmcnt(0)")
stamp(13)
a("s_barrier\ns_branch L_fin")
a("L_bf:\ns_load_dwordx2 s[40:41], s[0:1], 96\ns_load_dwordx4 s[28:31], s[0:1], 48\ns_load_dwordx8 s[32:39], s[0:1], 64\ns_cmp_ge_u32 s2, 256\ns_cbranch_scc1 L_end")
a("v_and_b32 v1, 63, v0\nv_lshrrev_b32 v2, 4, v1\nv_and_b32 v3, 15, v0\nv_lshlrev_b32 v157, 4, v1\ns_bfe_u32 s5, s2, 0x10003\ns_mov_b32 s15, 0\ns_add_u32 s42, s42, T_0-L_pc\ns_addc_u32 s43, s43, 0\ns_sub_u32 s4, s2, 128\nv_mov_b32 v12, -1\nv_mov_b32 v13, -1\nv_mov_b32 v14, -1\nv_mov_b32 v15, -1\ns_cmp_lg_u32 s3, 10\ns_cbranch_scc1 L_bf1")
a(f"s_lshl_b32 s7, s4, 7\ns_add_u32 s7, s7, {EXT}\nv_add_u32 v5, s7, v157\ns_mul_i32 s7, s4, 1536\ns_add_u32 s7, s7, {WS_SMALL}\nv_add_u32 v7, s7, v157\ns_waitcnt lgkmcnt(0)\nglobal_store_dwordx4 v7, v[12:15], s[40:41] sc1\nglobal_store_dwordx4 v7, v[12:15], s[40:41] offset:512 sc1\ns_mov_b64 exec, 0xff\ns_branch L_bf2")
a("L_bf1:")
a(f"s_lshl_b32 s7, s3, 7\ns_add_u32 s7, s7, s4\ns_lshl_b32 s7, s7, 7\ns_add_u32 s7, s7, {WS_I}\nv_lshrrev_b32 v5, 3, v1\nv_mul_u32_u24 v5, 0x28000, v5\nv_lshl_add_u32 v5, v6, 4, v5\nv_add_u32 v5, s7, v5")
a(f"s_mul_i32 s7, s4, 10\ns_add_u32 s7, s7, s3\ns_lshl_b32 s7, s7, 10\ns_add_u32 s7, s7, {WS_Y}\nv_add_u32 v7, s7, v157\ns_waitcnt lgkmcnt(0)\nglobal_store_dwordx4 v7, v[12:15], s[40:41] sc1")
a("L_bf2:\ns_waitcnt lgkmcnt(0)\ns_load_dword s6, s[40:41], 0\nglobal_store_dwordx4 v5, v[12:15], s[40:41] sc1\ns_mov_b64 exec, -1")
stamp(1)
a("s_and_b32 s7, s2, 7\ns_lshl1_add_u32 s7, s7, s5\ns_add_u32 s8, s7, 208\ns_add_u32 s9, s7, 242\ns_cmp_lt_u32 s7, 6\ns_cselect_b32 s8, s8, s9\ns_sub_u32 s9, 229, s7\ns_cmp_ge_u32 s7, 14\ns_cselect_b32 s8, s9, s8")
a("s_cmp_lt_u32 s2, 208\ns_cselect_b32 s14, s2, s8\ns_sub_u32 s9, s2, 8\ns_cmp_ge_u32 s2, 224\ns_cselect_b32 s14, s9, s14")
a(f"s_lshl_b32 s7, s4, 7\ns_add_u32 s7, s7, {WS_FA}\nv_add_u32 v18, s7, v157\ns_waitcnt vmcnt(0) lgkmcnt(0)\ns_add_u32 s6, s6, 1\nv_mov_b32 v8, s6\nv_mov_b32 v9, s6\nv_mov_b32 v10, s6\nv_mov_b32 v11, s6\ns_barrier")
stamp(2)
a("s_setprio 0\ns_cmp_lt_u32 s3, 8\ns_cbranch_scc1 L_bf3\ns_cmp_eq_u32 s3, 8\ns_cbranch_scc1 L_bf8\ns_cmp_eq_u32 s3, 9\ns_cbranch_scc1 L_agg")
a("s_mov_b64 exec, 0xff\nglobal_store_dwordx4 v18, v[8:11], s[40:41] sc1\ns_mov_b64 exec, -1")
a("s_cmp_lt_u32 s2, 160\ns_cbranch_scc1 L_flagchk\ns_and_b32 s7, s14, 254\ns_cmp_eq_u32 s7, 214\ns_cbranch_scc1 L_fin\ns_branch L_fw")
a("L_bf3:\ns_cmp_ge_u32 s2, 160\ns_cbranch_scc1 L_f\nv_mov_b32 v158, 0\ns_branch L_b2")
a("L_f:\ns_cmp_eq_u32 s14, 214\ns_cbranch_scc1 L_fin\ns_cmp_lg_u32 s14, 215\ns_cbranch_scc1 L_fx")
S_GM=8192; S_X=8448; S_C=8704
KTH=opt("kth",12)
a("L_sel:\ns_cmp_ge_u32 s3, 4\ns_cbranch_scc1 L_fin")
gentab("s_add_u32 s56, s3, 8",88)
gentab("s_mov_b32 s56, s3",56)
a(f"v_lshrrev_b32 v4, 1, v0\nv_and_b32 v5, 1, v0\nv_lshlrev_b32 v120, 7, v4\nv_lshl_add_u32 v120, v5, 4, v120\nv_add_u32 v120, {EXT}, v120\nv_lshlrev_b32 v121, 4, v0")
a("v_lshrrev_b32 v4, 2, v3\nv_lshl_add_u32 v4, v2, 3, v4\nv_lshlrev_b32 v122, 5, v4\nv_and_b32 v5, 3, v0\nv_lshl_add_u32 v122, v5, 3, v122")
a("s_lshl_b32 s56, s3, 6\nv_lshl_add_u32 v4, v6, 3, s56\nv_and_b32 v5, 8, v0\nv_lshl_add_u32 v4, v5, 5, v4\nv_sub_u32 v5, 2040, v4\nv_cmp_lt_u32 vcc, 31, v1\nv_bfe_u32 v7, v0, 4, 1\nv_cndmask_b32 v124, v4, v5, vcc\nv_lshl_add_u32 v124, v7, 2, v124")
a("v_cndmask_b32_e64 v123, -1.0, 1.0, vcc\ns_mov_b64 s[26:27], vcc\nv_xor_b32 v128, 512, v124")
for i_ in range(1,4): a(f"v_add_u32 v{124+i_}, {i_}, v124\nv_add_u32 v{128+i_}, {i_}, v128")
a(f"v_and_b32 v132, 0xf0, v0\ns_lshl_b32 s56, s3, 6\nv_lshl_add_u32 v133, v3, 2, s56\nv_lshlrev_b32 v134, 6, v2\nv_and_b32 v136, 3, v0\nv_lshlrev_b32 v136, 4, v136\nv_lshrrev_b32 v135, 2, v1\nv_lshl_add_u32 v135, v135, 7, v136\nv_add_u32 v135, {LIST}, v135\ns_movk_i32 s59, 0x7ff\nv_bfrev_b32 v140, 1")
gowait(8+NH1)
stamp(7)
if opt("pres",0): a(f"s_sleep {opt('pres',0)}")
poll(["global_load_dwordx4 v[8:11], v120, s[40:41] sc1"],range(8,12),opt("sls",1),16)
stamp(8)
a("ds_write_b128 v121, v[8:11]\ns_waitcnt lgkmcnt(0)\ns_barrier")
for k in range(4): a(f"ds_read_b64_tr_b16 v[{8+4*k}:{9+4*k}], v122 offset:{1024*k}\nds_read_b64_tr_b16 v[{10+4*k}:{11+4*k}], v122 offset:{1024*k+128}")
for t_ in range(2):
    for k in range(4):
        if t_==0: a(f"s_waitcnt lgkmcnt({6-2*k})")
        for c in range(2): a(f"{MF} {vr(24+8*t_+4*c)}, {vr(8+4*k)}, {vr(56+32*t_+16*c+4*k)}, {'0' if k==0 else vr(24+8*t_+4*c)}")
for t_ in range(2):
    b=24+8*t_
    for r in range(4): a(f"v_cndmask_b32_e64 v{b+r}, v{b+r}, v{b+4+r}, s[26:27]")
    for r in range(4): a(f"v_mov_b32 v{b+4+r}, v{b+r}")
    for r in range(4): a(f"v_permlane32_swap_b32 v{b+r}, v{b+4+r}")
    for r in range(4): a(f"v_fmac_f32 v{b+r}, v{b+4+r}, v123")
    for r in range(4):
        if opt("forcemiss",0): a(f"v_xor_b32 v{b+r}, 0x80000000, v{b+r}")
        a(f"v_bfi_b32 v{40+4*t_+r}, s59, v{124+4*t_+r}, v{b+r}")
a("v_max3_i32 v8, v40, v41, v42\nv_med3_i32 v9, v40, v41, v42\nv_max3_i32 v10, v43, v44, v45\nv_med3_i32 v11, v43, v44, v45\nv_max_i32 v12, v46, v47\nv_min_i32 v13, v46, v47")
a("v_max3_i32 v48, v8, v10, v12\nv_med3_i32 v49, v8, v10, v12\nv_max3_i32 v9, v9, v11, v13\nv_max_i32 v49, v49, v9")
for it in range(4):
    a(f"v_max_i32_dpp v{52+it}, v48, v48 row_ror:8 {DPPM}")
    for s_ in (4,2,1): a(f"v_max_i32_dpp v{52+it}, v{52+it}, v{52+it} row_ror:{s_} {DPPM}")
    if it<3: a(f"v_cmp_eq_u32 vcc, v48, v{52+it}\nv_cndmask_b32 v48, v48, v49, vcc\nv_cndmask_b32 v49, v49, v140, vcc")
a(f"ds_write_b128 v132, v[52:55] offset:{S_GM}\ns_waitcnt lgkmcnt(0)\ns_barrier")
stamp(9)
a(f"ds_read_b32 v32, v133 offset:{S_GM}")
for q in range(4): a(f"ds_read_b128 {vr(8+4*q)}, v134 offset:{S_GM+16*q}")
a("v_mov_b32 v33, 0\nv_mov_b32 v34, 0")
for q in range(4):
    lg(3-q)
    for e_ in range(4): a(f"v_cmp_gt_i32_e64 s[{16+2*e_}:{17+2*e_}], v{8+4*q+e_}, v32")
    for e_ in range(4): a(f"v_addc_co_u32_e64 v{33+(e_&1)}, s[24:25], 0, v{33+(e_&1)}, s[{16+2*e_}:{17+2*e_}]")
a("v_add_u32 v33, v33, v34\nv_mov_b32 v34, v33\nv_and_b32 v32, 0x7ff, v32\nv_permlane32_swap_b32 v33, v34\nv_add_u32 v33, v33, v34\nv_mov_b32 v34, v33\nv_permlane16_swap_b32 v33, v34\nv_add_u32 v33, v33, v34")
a(f"v_lshlrev_b32 v33, 2, v33\nds_write_b32 v33, v32 offset:{S_X}\ns_waitcnt lgkmcnt(0)\ns_barrier\ns_cmp_lg_u32 s3, 0\ns_cbranch_scc1 L_fin\nds_read_b128 v[8:11], v136 offset:{S_X}\ns_waitcnt lgkmcnt(0)\nglobal_store_dwordx4 v135, v[8:11], s[40:41] sc1")
stamp(10)
a("s_branch L_fin")
a("L_fx:")
if opt("fdel",2): a(f"s_sleep {opt('fdel',2)}")
a("s_cmp_ge_u32 s14, 216\ns_cbranch_scc1 L_f2")
a("s_sub_u32 s49, s14, 160\ns_and_b32 s50, s49, 7\ns_lshr_b32 s56, s49, 4\ns_lshl3_add_u32 s50, s56, s50\ns_lshl1_add_u32 s50, s50, s5\ns_cmp_ge_u32 s49, 48\ns_cselect_b32 s50, s49, s50")
a(f"s_mul_i32 s56, s3, 80\ns_lshl_b32 s57, s50, 6\nv_lshrrev_b32 v4, 2, v1\nv_mul_u32_u24 v6, 80, v4\nv_add_u32 v4, s56, v4\nv_and_b32 v5, 3, v0\nv_lshl_add_u32 v7, v5, 4, s57\ns_movk_i32 s56, 3456")
for i_ in range(5): a(f"v_add_u32 v5, {16*i_}, v4\nv_lshrrev_b32 v13, 5, v5\nv_and_b32 v5, 31, v5\nv_mad_u32_u24 v5, v5, 20, v13\nv_mad_u32_u24 v{8+i_}, v5, s56, v7")
a(f"s_mul_i32 s58, s3, 5120\ns_add_u32 s59, s58, {UPO}\ns_bitcmp1_b32 s50, 0\ns_cselect_b64 s[8:9], s[32:33], s[30:31]\ns_cselect_b64 s[10:11], s[30:31], s[32:33]\ns_cselect_b32 s60, s59, s58\ns_cselect_b32 s61, s58, s59")
for h in range(2):
    for i_ in range(5):
        a(f"s_add_u32 m0, s{60+h}, {1024*i_}\nglobal_load_lds_dwordx4 v{8+i_}, s[{8+2*h}:{9+2*h}]")
a(f"v_add_u32 v89, {L_FT+TO_W}, v6\nv_lshlrev_b32 v161, 4, v3\nv_add_u32 v161, {STAT}, v161\ns_mov_b32 s22, {fhex(1/640)}\nv_mov_b32 v158, {fhex(1e-5)}")
a(f"v_add_u32 v160, {HN}, v157\ns_mul_i32 s16, s3, 3072\nv_add_u32 v162, s16, v160\ns_add_u32 s17, s16, {L_XS}\ns_mov_b64 s[20:21], 0xffff")
a(f"v_mul_u32_u24 v165, {XSS}, v3\nv_lshl_add_u32 v165, v2, 4, v165\nv_add_u32 v165, {L_XS}, v165")
a(f"s_lshl2_add_u32 s16, s50, s3\ns_lshl_b32 s16, s16, 7\ns_add_u32 s16, s16, {ACT}\nv_and_b32 v164, 7, v0\nv_lshl_add_u32 v164, v164, 4, s16\nv_lshrrev_b32 v166, 3, v3\nv_mul_u32_u24 v166, 27648, v166\nv_add_u32 v164, v164, v166\nv_and_b32 v166, 1, v2\nv_lshl_add_u32 v164, v166, 3, v164\nv_lshrrev_b32 v166, 1, v2\nv_lshl_add_u32 v164, v166, 2, v164")
a(f"s_lshl_b32 s16, s49, 7\ns_add_u32 s16, s16, {H4}\nv_mov_b32 v167, s16\nv_mov_b32 v159, {L_VD}\ns_mov_b32 s62, 0")
a(f"v_and_b32 v4, 1, v0\nv_lshlrev_b32 v4, 3, v4\nv_bfe_u32 v5, v0, 1, 1\nv_mul_u32_u24 v5, {UPO}, v5\ns_lshl_b32 s56, s3, 4\nv_add3_u32 v7, v4, v5, s56")
stamp(3)
a("s_waitcnt vmcnt(0)\ns_barrier")
stamp(4)
a("s_cmp_ge_u32 s3, 4\ns_cbranch_scc1 L_f1w")
for i_ in range(5): a(f"ds_read_b128 {vr(104+4*i_)}, v89 offset:{16*i_}")
a("s_waitcnt lgkmcnt(0)")
for k in range(20):
    a(f"v_add_u32_sdwa v4, v{104+k}, v7 {SD.format(0)}\nv_add_u32_sdwa v5, v{104+k}, v7 {SD.format(1)}")
    a(f"ds_read_b64_tr_b16 v[{8+4*k}:{9+4*k}], v4\nds_read_b64_tr_b16 v[{10+4*k}:{11+4*k}], v5")
for i_ in range(4): a(f"v_mov_b32 v{88+i_}, 0x3f803f80")
a("s_waitcnt lgkmcnt(0)")
for k in range(20): a(f"{MF} v[152:155], {vr(8+4*k)}, v[88:91], {'0' if k==0 else 'v[152:155]'}")
a("L_f1w:")
stamp(5)
a("s_barrier")
stamp(14)
if opt("pre4",0): a(f"s_sleep {opt('pre4',0)}")
a("L_f1p:\ns_cmp_eq_u32 s3, 7\ns_cbranch_scc1 L_f1q\ns_mov_b32 m0, s17")
for o in range(3): a(f"global_load_lds_dwordx4 v162, s[40:41] offset:{1024*o} sc1")
a("s_waitcnt vmcnt(0)\nL_f1q:")
stamp(15)
a(f"s_barrier\ns_cmp_lt_u32 s3, 4\ns_cbranch_scc1 L_p4\ns_cmp_lg_u32 s3, 7\ns_cbranch_scc1 L_p4e\ns_cmp_ge_u32 s49, {NH4}\ns_cbranch_scc1 L_p4e")
store1(167,167)
a("s_branch L_p4e\nL_p4:")
NR=12
def p4mm():
    for i_ in range(NR): a(f"ds_read_b128 {vr(92+4*i_)}, v165 offset:{64*i_}")
    for i_ in range(20):
        issued=min(20,NR+max(0,i_-1))
        a(f"s_waitcnt lgkmcnt({issued-i_-1})\n{MF} v[144:147], {vr(8+4*i_)}, {vr(92+4*(i_%(NR+1)))}, {'0' if i_==0 else 'v[144:147]'}")
        if i_>=1 and NR+i_-1<20: a(f"ds_read_b128 {vr(92+4*((NR+i_-1)%(NR+1)))}, v165 offset:{64*(NR+i_-1)}")
poll(["global_load_dwordx2 v[88:89], v161, s[40:41] sc1"],[88,89],opt("sl4",2),90,between=p4mm)
a("v_mul_f32 v88, s22, v88\nv_fma_f32 v90, v89, s22, v158\nv_fma_f32 v90, -v88, v88, v90\nv_max_f32 v90, v90, v158\nv_rsq_f32 v90, v90")
a("v_pk_fma_f32 v[144:145], v[152:153], v[88:89], v[144:145] op_sel_hi:[1,0,1] neg_lo:[1,0,0] neg_hi:[1,0,0]\nv_pk_fma_f32 v[146:147], v[154:155], v[88:89], v[146:147] op_sel_hi:[1,0,1] neg_lo:[1,0,0] neg_hi:[1,0,0]")
a("v_pk_mul_f32 v[144:145], v[144:145], v[90:91] op_sel_hi:[1,0]\nv_pk_mul_f32 v[146:147], v[146:147], v[90:91] op_sel_hi:[1,0]")
a("v_permlane32_swap_b32 v144, v146\nv_permlane32_swap_b32 v145, v147")
a("v_mul_f32 v148, 0xbfb8aa3b, v144\nv_mul_f32 v149, 0xbfb8aa3b, v145\nv_exp_f32 v148, v148\nv_exp_f32 v149, v149\nv_cmp_u_f32 vcc, v144, v146\nv_mul_f32 v144, v144, v146\nv_mul_f32 v145, v145, v147")
a("v_add_f32 v148, 1.0, v148\nv_add_f32 v149, 1.0, v149\nv_rcp_f32 v148, v148\nv_rcp_f32 v149, v149\nv_mul_f32 v144, v144, v148\nv_mul_f32 v145, v145, v149\nv_cvt_pk_bf16_f32 v144, v144, v145")
a("s_and_b64 vcc, vcc, s[20:21]\ns_cbranch_vccnz L_p4r\nL_p4s:\nglobal_store_dword v164, v144, s[40:41] sc1")
tail.append(f"L_p4r:\ns_add_u32 s15, s15, 1\ns_cmp_lt_u32 s15, {LIMIT}\ns_cbranch_scc0 L_p4s\ns_and_b32 s16, vcc_lo, s20\nL_p4t:\ns_ff1_i32_b32 s18, s16\ns_bitset0_b32 s16, s18\ns_mulk_i32 s18, {XSS}\nv_add_u32 v4, s18, v160\ns_add_u32 m0, s18, {L_XS}\ns_nop 0\nglobal_load_lds_dwordx4 v4, s[40:41] sc1\nglobal_load_lds_dwordx4 v4, s[40:41] offset:256 sc1\ns_cmp_lg_u32 s16, 0\ns_cbranch_scc1 L_p4t\ns_waitcnt vmcnt(0)\ns_branch L_p4")
stamp(16)
a("L_p4e:\ns_cmp_lg_u32 s62, 0\ns_cbranch_scc1 L_fin\ns_barrier\nds_read_b32 v4, v159\ns_waitcnt lgkmcnt(0)\nv_readfirstlane_b32 s62, v4\ns_cmp_eq_u32 s62, 0\ns_cbranch_scc1 L_fin")
a(f"v_add_u32 v162, {HN8-HN}, v162\nv_add_u32 v160, {HN8-HN}, v160\nv_add_u32 v164, {ACT2-ACT}, v164\nv_and_b32 v4, 7, v0\nv_mul_u32_u24 v165, {XSS}, v4\nv_lshl_add_u32 v165, v2, 4, v165\nv_add_u32 v165, {L_XS}, v165\nv_lshlrev_b32 v161, 4, v4\nv_add_u32 v161, {STAT8}, v161\ns_movk_i32 s20, 0xff\ns_branch L_f1p")
a("L_bf8:\ns_cmp_lt_u32 s14, 216\ns_cbranch_scc1 L_fin\nL_f2:")
a(f"s_sub_u32 s49, s14, 216\ns_and_b32 s52, s49, 7\ns_lshr_b32 s50, s49, 3\ns_and_b32 s56, s49, 3\ns_lshr_b32 s57, s49, 2\ns_cmp_ge_u32 s49, 32\ns_cselect_b32 s50, s56, s50\ns_cselect_b32 s52, s57, s52")
a(f"s_lshr_b32 s51, s50, 1\ns_lshl1_add_u32 s51, s52, s51\ns_lshl_b32 s51, s51, 6\ns_and_b32 s53, s50, 1\nv_mov_b32 v159, {L_VD}\nv_bfe_u32 v7, v0, 3, 1\ns_cmp_ge_u32 s3, 8\ns_cbranch_scc1 L_f2e")
a("v_lshrrev_b32 v4, 2, v1\nv_mul_u32_u24 v4, 1280, v4\nv_and_b32 v5, 3, v0\nv_lshl_add_u32 v4, v5, 4, v4\ns_mul_i32 s56, s3, 81920\ns_add_u32 s56, s56, s51\nv_add_u32 v4, s56, v4\ns_lshl_b32 s58, s3, 14")
a("s_cmp_ge_u32 s3, 3\ns_cselect_b32 s61, 2, 3\ns_mov_b32 s62, 0")
for i_ in range(4):
    a(f"s_add_u32 s59, s50, {i_}\ns_and_b32 s59, s59, 3\ns_cmp_gt_u32 s59, s61\ns_cbranch_scc1 L_f2s{i_}\ns_mul_i32 s60, s59, 655360\ns_lshl_b32 s59, s59, 12\ns_add_u32 m0, s59, s58\nv_add_u32 v5, s60, v4\nglobal_load_lds_dwordx4 v5, s[34:35]")
    for q in range(3): a(f"s_add_u32 m0, m0, 1024\nv_add_u32 v5, 20480, v5\nglobal_load_lds_dwordx4 v5, s[34:35]")
    a(f"L_f2s{i_}:")
a(f"s_mul_i32 s17, s53, 27648\ns_lshl_b32 s16, s3, 10\ns_add_u32 s17, s17, s16\ns_add_u32 s17, s17, {ACT}\nv_lshl_add_u32 v104, v6, 4, s17\nv_lshl_add_u32 v104, v2, 7, v104\nv_lshl_add_u32 v104, v7, 9, v104")
a(f"v_add_u32 v105, 0x2000, v104\nv_add_u32 v106, 0x4000, v104\ns_lshl_b32 s61, s61, 13\nv_add_u32 v107, s61, v104\ns_add_u32 s16, s16, {L_RED}\nv_add_u32 v157, s16, v157\nv_cmp_eq_u32_e64 s[20:21], 1, v7")
a("v_lshrrev_b32 v4, 2, v3\nv_lshl_add_u32 v4, v2, 3, v4\nv_lshlrev_b32 v4, 6, v4\nv_and_b32 v5, 3, v0\nv_lshl_add_u32 v4, v5, 3, v4\nv_add_u32 v4, s58, v4")
stamp(3)
a("s_waitcnt vmcnt(0)")
stamp(4)
for k in range(8):
    for t_ in range(2):
        b=8+8*k+4*t_
        a(f"ds_read_b64_tr_b16 v[{b}:{b+1}], v4 offset:{2048*k+32*t_}\nds_read_b64_tr_b16 v[{b+2}:{b+3}], v4 offset:{2048*k+32*t_+256}")
a("s_waitcnt lgkmcnt(0)\ns_cmp_lt_u32 s3, 3\ns_cbranch_scc1 L_p5a")
for i_ in range(16): a(f"v_mov_b32 v{56+i_}, 0")
a("L_p5a:\ns_barrier")
stamp(5)
a("s_barrier")
stamp(14)
if opt("pre5",0): a(f"s_sleep {opt('pre5',0)}")
a("L_f2p:")
ck="s_mov_b64 exec, -1\n"
for i_ in range(4):
    b=72+4*i_
    ck+=f"s_waitcnt vmcnt({3-i_})\n"
    for h in range(2):
        for t_ in range(2):
            ac=88+8*t_+4*h
            ck+=f"{MF} {vr(ac)}, {vr(8+16*i_+8*h+4*t_)}, {vr(b)}, {'0' if i_==0 else vr(ac)}\n"
        if h==0: ck+=(f"v_max_u32 v114, v{b}, v{b+1}\n" if i_==0 else f"v_max3_u32 v114, v114, v{b}, v{b+1}\n")+f"v_max3_u32 v114, v114, v{b+2}, v{b+3}\n"
ck+="v_cmp_eq_u32 vcc, -1, v114"
poll([f"global_load_dwordx4 {vr(72+4*i_)}, v{104+i_}, s[40:41] sc1" for i_ in range(4)],None,opt("sl5",2),None,chk=ck,wait=1)
stamp(15)
for r in range(4): a(f"v_add_f32_dpp v{88+r}, v{92+r}, v{88+r} row_ror:8 row_mask:0xf bank_mask:0x3")
for r in range(4): a(f"v_add_f32_dpp v{88+r}, v{96+r}, v{100+r} row_ror:8 row_mask:0xf bank_mask:0xc")
a(f"ds_write_b128 v157, v[88:91]\ns_waitcnt lgkmcnt(0)\ns_barrier\ns_cmp_lg_u32 s62, 0\ns_cbranch_scc1 L_fin\nds_read_b32 v4, v159\ns_waitcnt lgkmcnt(0)\nv_readfirstlane_b32 s62, v4\ns_cmp_eq_u32 s62, 0\ns_cbranch_scc1 L_fin")
for i_ in range(4): a(f"v_add_u32 v{104+i_}, {ACT2-ACT}, v{104+i_}")
a("s_branch L_f2p\nL_f2e:")
a(f"s_and_b32 s56, s3, 1\ns_lshl_b32 s57, s56, 5\ns_add_u32 s51, s51, s57\nv_lshlrev_b32 v104, 7, v6\nv_add_u32 v104, {META}, v104\nv_mul_u32_u24 v105, 1280, v6\nv_lshl_add_u32 v106, v2, 3, s51\nv_add_u32 v105, v105, v106\nv_add_u32 v105, {BASE}, v105")
a(f"s_lshl_b32 s56, s56, 7\ns_add_u32 s56, s56, {L_RED}\nv_lshl_add_u32 v107, v2, 8, s56\nv_lshl_add_u32 v107, v7, 12, v107\ns_mov_b32 s18, 0x00ff00ff\ns_mov_b32 s19, 0x00ff00ff")
a("s_setprio 3\ns_barrier\ns_barrier")
poll(["global_load_dwordx4 v[60:63], v104, s[40:41] sc1","global_load_dwordx2 v[58:59], v105, s[40:41] sc1"],range(58,64),opt("slm",2),114)
a("v_cmp_lt_u32 vcc, 15, v62\nv_lshlrev_b32 v64, 16, v58\nv_and_b32 v65, 0xffff0000, v58\nv_mov_b32 v4, vcc_lo\nds_write_b32 v159, v4\nv_lshlrev_b32 v66, 16, v59\nv_and_b32 v67, 0xffff0000, v59")
a("v_and_b32 v60, 2047, v60\nv_mul_u32_u24 v60, 1280, v60\nv_add_u32 v60, v60, v106\ns_waitcnt lgkmcnt(0)\ns_cbranch_vccz L_hit\nv_mov_b32 v62, v6\ns_barrier\nL_hit:")
a("v_lshrrev_b32 v4, 3, v62\nv_cmp_eq_u32 vcc, s53, v4\nv_and_b32 v62, 7, v62\nv_lshl_add_u32 v62, v62, 4, v107\ns_and_b64 s[18:19], s[18:19], vcc")
stamp(13)
a("s_barrier")
for i_ in range(4): a(f"ds_read_b128 {vr(72+4*i_)}, v62 offset:{1024*i_}")
a("s_waitcnt lgkmcnt(0)")
a("v_pk_add_f32 v[72:73], v[72:73], v[76:77]\nv_pk_add_f32 v[74:75], v[74:75], v[78:79]\nv_pk_add_f32 v[80:81], v[80:81], v[84:85]\nv_pk_add_f32 v[82:83], v[82:83], v[86:87]\nv_pk_add_f32 v[72:73], v[72:73], v[80:81]\nv_pk_add_f32 v[74:75], v[74:75], v[82:83]")
for i_ in range(4): a(f"v_add_f32_dpp v{72+i_}, v{72+i_}, v{72+i_} row_ror:8 {DPPM}")
for i_ in range(4): a(f"v_fma_f32 v{72+i_}, v{72+i_}, v61, v{64+i_}")
a(f"v_cvt_pk_bf16_f32 v72, v72, v73\nv_cvt_pk_bf16_f32 v73, v74, v75\ns_mov_b64 exec, s[18:19]\ns_cbranch_execz L_f2z\nglobal_store_dwordx2 v60, v[72:73], s[36:37] {OUTF}\nL_f2z:\ns_mov_b64 exec, -1")
stamp(16)
a("L_fin:")
if STAMP:
    a("s_waitcnt vmcnt(0)")
    stamp(17)
    if "probe" in kw:
        k=int(kw["probe"])
        a(f"s_waitcnt lgkmcnt(0)\ns_cmp_ge_u32 s3, {opt('pw',4)}\ns_cbranch_scc1 L_end\ns_cmp_lt_u32 s3, {opt('pw0',0)}\ns_cbranch_scc1 L_end\ns_cmp_lt_u32 s2, {opt('plo',0)}\ns_cbranch_scc1 L_end\ns_cmp_ge_u32 s2, {opt('phi',256)}\ns_cbranch_scc1 L_end")
        a(f"s_add_u32 s16, s{64+2*k}, 4000\nL_spin:\ns_sleep 1\ns_memrealtime s[18:19]\ns_waitcnt lgkmcnt(0)\ns_sub_u32 s17, s16, s18\ns_cmp_lt_u32 s17, 4001\ns_cbranch_scc1 L_spin\ns_endpgm")
    else:
        a(f"s_waitcnt lgkmcnt(0)")
        for k in range(NST): a(f"v_writelane_b32 v5, s{64+2*k}, {k}")
        a(f"v_writelane_b32 v5, s15, 31\ns_mul_i32 s16, s2, {NW}\ns_add_u32 s16, s16, s3\ns_lshl_b32 s16, s16, 7\ns_add_u32 s16, s16, {WS_STAMP}\nv_lshl_add_u32 v4, v1, 2, s16\ns_mov_b32 exec_hi, 0\nglobal_store_dword v4, v5, s[40:41]")
a("L_end:\ns_endpgm")
flush_tail()
if opt("now",0): a.L=[l for l in a.L if not ("global_load_lds" in l and "s[4" not in l)]
if kw.get("wf"): a.L=[l+" "+kw["wf"] if ("global_load_lds" in l and "s[42:43]" not in l) else l for l in a.L]
body=a.finish()
small=np.zeros(1536,np.uint16)
small[0:768]=T.t_pm().reshape(-1); small[768:768+640]=T.t_w().reshape(-1)
tab=".p2align 7\n.type T_0,@object\nT_0:\n"+T.emit(small)+"T_end:\n"
txt=f"""; FNet (hidden DFT 20x32, sequence DFT 8x256 with real/Hermitian folding) + LayerNorm + top-8 SwiGLU, one persistent launch.
; @launch grid=(256,1,1) block=({64*NW},1,1) lds={LDS_BYTES}
.amdgcn_target "amdgcn-amd-amdhsa--gfx950"
.text
.globl {KN}
.p2align 8
.type {KN},@function
{body}
{tab}.section .rodata,"a"
.p2align 6
.amdhsa_kernel {KN}
  .amdhsa_next_free_vgpr 168
  .amdhsa_next_free_sgpr 102
  .amdhsa_accum_offset 168
  .amdhsa_group_segment_fixed_size 0
  .amdhsa_kernarg_size 104
  .amdhsa_user_sgpr_count 2
  .amdhsa_user_sgpr_kernarg_segment_ptr 1
  .amdhsa_system_sgpr_workgroup_id_x 1
.end_amdhsa_kernel
"""
open(outp,"w").write(txt)
print("nops inserted",a.nops,"bytes",len(txt),file=sys.stderr)
```

```python
import sys, struct
sys.path.insert(0,"gen")
from asmlib import Asm
import tables4 as T
import numpy as np
KN="sequential_preLN__spectral_fnet__moe_arch_mod__prompt_kernel"
kw=dict(a.split("=") for a in sys.argv[2:])
outp=sys.argv[1]
STAMP=int(kw.get("stamp",0))
def opt(n,d): return int(kw.get(n,d))
def fhex(f): return hex(struct.unpack("<I",struct.pack("<f",f))[0])
WS_GO=0x14000; WS_FA=0x8000; EXT=0x10000; WS_I=0x20000; WS_Y=0x160000; WS_STAMP=0x300000
WS_SMALL=0x2A0000; KEYS=WS_SMALL; HN=KEYS+0x2000; HN8=HN+0x5400; BASE=HN8+0x5400; META=BASE+0x2800; LIST=META+0x400; H3=LIST+0x800; STAT=H3+0x800; STAT8=STAT+0x100; H4=STAT+0x200; ACT=H4+0x1000; ACT2=ACT+0xD800
assert ACT2+0xD800<=WS_SMALL+128*1536
TO_PM=0; TO_W=1536; TO_P2=3072
U=T.US; RS=T.RS
L_ZERO=20480; L_SUM=21504; L_SQ=21568; L_ST3=21632; L_CNT=21952; L_SM=22528; L_WP=23552; L_PM=25088; L_XP=27136; L_P2=0; L_TAB=52224
L_XS=82048; XSS=1296; UPO=40992; L_RED=131072; L_VD=L_RED+8192; LDS_BYTES=L_VD+64; L_EX=51904; L_R20=53248; L_SQ4=22016
LIMIT=3000; NW=11
OUTF=kw.get("outf","").replace("+"," ")
a=Asm()
NST=18
def stamp(k):
    if STAMP: a(f"s_memrealtime s[{64+2*k}:{65+2*k}]")
def lg(n): a(f"s_waitcnt lgkmcnt({0 if STAMP else n})")
pc=[0]; tail=[]
def poll(loads, regs, sleep, tmp, between=None, chk=None, wait=None):
    k=pc[0]; pc[0]+=1
    for l in loads: a(l)
    if between: between()
    a(f"LW{k}:" if wait else f"LW{k}:\ns_waitcnt vmcnt(0)\nLV{k}:")
    if chk: a(chk)
    else:
        r=list(regs)
        if len(r)==1: tmp=r[0]; r=[]
        elif len(r)%2==1: a(f"v_max3_u32 v{tmp}, v{r[0]}, v{r[1]}, v{r[2]}"); r=r[3:]
        else: a(f"v_max_u32 v{tmp}, v{r[0]}, v{r[1]}"); r=r[2:]
        while r: a(f"v_max3_u32 v{tmp}, v{tmp}, v{r[0]}, v{r[1]}"); r=r[2:]
        a(f"v_cmp_eq_u32 vcc, -1, v{tmp}")
    a(f"s_cbranch_vccnz LR{k}\nLD{k}:\ns_mov_b64 exec, -1")
    tail.append(f"LR{k}:\ns_add_u32 s15, s15, 1\ns_cmp_lt_u32 s15, {LIMIT}\ns_cbranch_scc0 LD{k}\ns_mov_b64 exec, vcc\n"+(f"s_sleep {sleep}\n" if sleep else "")+"\n".join(loads)+f"\ns_branch LW{k}")
def flush_tail():
    for t in tail: a(t)
    tail.clear()
DPPM="row_mask:0xf bank_mask:0xf"
MF="v_mfma_f32_16x16x32_bf16"
SD="dst_sel:DWORD dst_unused:UNUSED_PAD src0_sel:WORD_{} src1_sel:DWORD"
NEG="neg_lo:[0,1] neg_hi:[0,1]"
def vr(b,n=4): return f"v[{b}:{b+n-1}]"
def read_pm():
    a(f"ds_read_b128 v[144:147], v159 offset:{L_PM}\nds_read_b128 v[148:151], v159 offset:{L_PM+16}\nds_read_b64 v[152:153], v159 offset:{L_PM+32}")
def scatter(base):
    for i in range(10):
        t=4+2*(i&1)
        a(f"v_add_u32_sdwa v{t}, v{144+i}, v{base} {SD.format(0)}\nv_add_u32_sdwa v{t+1}, v{144+i}, v{base} {SD.format(1)}")
        a(f"ds_write_b16 v{t}, v{8+i}\nds_write_b16_d16_hi v{t+1}, v{8+i}")
def store1(addr,val):
    a(f"s_mov_b64 exec, 1\nglobal_store_dword v{addr}, v{val}, s[40:41] sc1\ns_mov_b64 exec, -1")

def p2addr():
    a(f"s_and_b32 s62, s2, 7\ns_lshr_b32 s56, s2, 4\ns_mul_i32 s57, s62, 10\ns_add_u32 s57, s57, s56\ns_lshl_b32 s57, s57, 14\ns_add_u32 s57, s57, {WS_I}")
    a("v_lshl_add_u32 v112, v0, 4, s57\nv_add_u32 v113, 0x2000, v112")
    a("v_lshlrev_b32 v6, 1, v0\nv_and_b32 v6, 32, v6\nv_and_b32 v7, 64, v0\nv_or_b32 v6, v6, v7\nv_lshlrev_b32 v7, 4, v0\nv_xor_b32 v114, v6, v7")
    a(f"s_lshl_b32 s56, s56, 7\ns_add_u32 s56, s56, {WS_Y}\ns_lshl_b32 s58, s3, 8\ns_add_u32 s58, s58, s5\ns_lshl2_add_u32 s59, s62, s58\ns_mulk_i32 s59, 1280\ns_add_u32 s59, s59, s56")
    a("s_lshl_b32 s60, s62, 2\ns_add_u32 s60, s60, 995\ns_sub_u32 s60, s60, s58\ns_mulk_i32 s60, 1280\ns_add_u32 s60, s60, s56\ns_add_u32 s60, s60, 64")
    a("v_and_b32 v4, 7, v0\nv_mul_u32_u24 v4, 40960, v4\nv_lshrrev_b32 v5, 3, v3\nv_lshl_add_u32 v4, v5, 6, v4\nv_lshlrev_b32 v5, 4, v2\nv_add3_u32 v120, v4, v5, s59\nv_sub_u32 v121, s60, v4\nv_add_u32 v121, v121, v5")
    a("v_lshrrev_b32 v5, 2, v3\nv_lshl_add_u32 v4, v2, 3, v5\nv_lshlrev_b32 v4, 7, v4\nv_and_b32 v5, 3, v0\nv_lshl_add_u32 v4, v5, 3, v4")
    a(f"v_bfe_u32 v5, v0, 3, 2\nv_lshl_add_u32 v116, v5, 5, v4\nv_xor_b32 v117, 64, v116\nv_xor_b32 v118, 32, v116\nv_xor_b32 v119, 96, v116")
def yoff(dst,t):
    a(f"s_and_b32 {dst}, {t}, 255\ns_lshr_b32 s59, {t}, 9\ns_lshl2_add_u32 {dst}, {dst}, s59\ns_mulk_i32 {dst}, 1280\ns_bfe_u32 s59, {t}, 0x10008\ns_lshl_b32 s59, s59, 6\ns_add_u32 {dst}, {dst}, s59\ns_add_u32 {dst}, {dst}, {WS_Y}")
def p3addrA():
    a(f"s_movk_i32 s62, {U}\nv_lshrrev_b32 v4, 3, v1\nv_and_b32 v5, 7, v0\nv_lshlrev_b32 v5, 3, v5\nv_mad_u32_u24 v122, v4, s62, v5")
    a(f"v_lshl_add_u32 v128, v4, 7, v5\nv_lshlrev_b32 v5, 2, v3\nv_mad_u32_u24 v123, v2, s62, v5\nv_lshl_add_u32 v130, v2, 7, v5")
    a(f"v_cmp_eq_u32 vcc, 0, v2\nv_add_u32 v124, {18*U}, v122\nv_subrev_u32 v4, {2*U}, v122\nv_cndmask_b32 v124, v4, v124, vcc")
    a("v_add_u32 v125, s51, v122\nv_add_u32 v126, s51, v123\nv_add_u32 v127, s51, v124")
def p3addrB():
    a("v_cmp_eq_u32 vcc, 0, v2\nv_lshlrev_b32 v138, 3, v1\nv_add_u32 v139, 512, v138\nv_lshlrev_b32 v140, 2, v1\nv_add_u32 v143, 384, v140\nv_add_u32 v140, 1024, v140\nv_add_u32 v141, 640, v138\nv_add_u32 v142, 1152, v138\nv_subrev_u32 v4, 128, v138\nv_cndmask_b32 v142, v4, v142, vcc")
    yoff("s56","s46")
    a("s_sub_u32 s58, 2048, s46\ns_and_b32 s58, s58, 2047")
    yoff("s57","s58")
    a("s_add_u32 s62, s56, 1024\ns_sub_u32 s59, s57, 256\nv_mov_b32 v129, s59\nv_mov_b32 v4, s62\nv_cndmask_b32 v129, v129, v4, vcc\nv_add_u32 v129, v129, v128\nv_add_u32 v128, s56, v128\ns_add_u32 s62, s57, 768\nv_add_u32 v130, s62, v130")
    a("v_cmp_eq_u32 vcc, 21, v1\nv_mov_b32 v132, 0xffff\nv_lshlrev_b32 v137, 4, v3\nv_cndmask_b32 v131, -1, v132, vcc\nv_cmp_eq_u32 vcc, 5, v1\ns_lshl_b32 s57, s2, 4\nv_add_u32 v135, s57, v3\nv_cndmask_b32 v132, -1, v132, vcc")
    a("s_lshl_b32 s57, s48, 4\nv_lshl_add_u32 v133, v2, 2, s57\ns_add_u32 s57, s57, 16\ns_cmp_eq_u32 s50, 0\ns_cselect_b32 s57, 272, s57\nv_lshl_add_u32 v134, v2, 2, s57\ns_mov_b32 s63, 0x3f803f80")
    a(f"v_lshlrev_b32 v136, 2, v135\nv_add_u32 v136, {KEYS}, v136")
    for i in AC: a(f"v_mov_b32 v{i}, 0")
AC=[108,109,110,111,160,161,162,163,164,165,166,167]
PMA="v_and_b32 v159, 7, v0\nv_lshl_add_u32 v159, v2, 3, v159\nv_mul_u32_u24 v159, 48, v159"
def gentab(first="s_lshl3_add_u32 s56, s5, s3",tb=56):
    a(first+"\ns_lshl_b32 s56, s56, 4\ns_add_u32 s56, s56, 1\nv_and_b32 v16, 7, v0\nv_lshl_add_u32 v16, v16, 1, s56\nv_and_b32 v17, 8, v0\nv_lshl_add_u32 v16, v17, 3, v16")
    a(f"v_cvt_f32_u32 v16, v16\nv_lshlrev_b32 v17, 3, v2\nv_cvt_f32_u32 v17, v17\nv_mul_f32 v16, {fhex(-1/512)}, v16\nv_cos_f32 v18, v16\nv_mul_f32 v17, v17, v16\nv_mul_f32 v20, {fhex(31.0)}, v16\nv_add_f32 v18, v18, v18")
    for k in range(4):
        a("v_cos_f32 v24, v17\nv_sin_f32 v25, v17\nv_add_f32 v17, v17, v16\nv_cos_f32 v26, v17\nv_sin_f32 v27, v17\nv_add_f32 v17, v17, v20")
        for j in range(2,8): a(f"v_pk_fma_f32 v[{24+2*j}:{25+2*j}], v[{22+2*j}:{23+2*j}], v[18:19], v[{20+2*j}:{21+2*j}] op_sel_hi:[1,0,1] neg_lo:[0,0,1] neg_hi:[0,0,1]")
        if k==0: a("v_lshlrev_b32 v21, 31, v0\nv_xor_b32 v21, -1.0, v21\nv_cmp_eq_u32 vcc, 0, v2\nv_cndmask_b32 v25, v25, v21, vcc")
        for h in range(4): a(f"v_cvt_pk_bf16_f32 v{tb+4*k+h}, v{24+4*h}, v{26+4*h}\nv_cvt_pk_bf16_f32 v{tb+16+4*k+h}, v{25+4*h}, v{27+4*h}")
def read_w():
    a(f"ds_read_b64 v[98:99], v122 offset:{L_WP}\nds_read_b64 v[100:101], v122 offset:{L_WP+8*U}\nds_read_b32 v102, v123 offset:{L_WP+16*U}\nds_read_b64 v[104:105], v122 offset:{L_WP+10*U}\nds_read_b64 v[106:107], v124 offset:{L_WP}\nds_read_b32 v103, v123 offset:{L_WP+6*U}")

a(f"{KN}:")
stamp(0)
a("s_load_dwordx2 s[16:17], s[0:1], 0\ns_setprio 3\nv_lshrrev_b32 v4, 6, v0\nv_and_b32 v6, 7, v0\ns_getpc_b64 s[42:43]\nL_pc:\nv_readfirstlane_b32 s3, v4\ns_cmp_lt_u32 s2, 128\ns_cbranch_scc1 L_a\ns_cmp_lg_u32 s3, 0\ns_cbranch_scc1 L_bf\ns_bfe_u32 s4, s2, 0x30003\ns_mulk_i32 s4, 3072\nv_lshrrev_b32 v4, 1, v0\nv_lshl_add_u32 v4, v4, 7, s4\nv_min_u32 v4, T_end-L_pc-4, v4\nglobal_load_dword v8, v4, s[42:43]\ns_branch L_bf\nL_a:")
a("s_cmp_eq_u32 s2, 0\ns_cselect_b32 s4, 7, 8\nv_lshlrev_b32 v4, s4, v4\nv_add_u32 v4, s2, v4\nv_sub_u32 v5, 2048, v4\nv_and_b32 v7, 8, v0\nv_cmp_ne_u32 vcc, 0, v7\nv_lshrrev_b32 v7, 11, v5\nv_lshrrev_b32 v5, v7, v5\nv_cndmask_b32 v159, v4, v5, vcc")
a("v_mul_u32_u24 v158, 1280, v159\nv_and_b32 v7, 48, v0\nv_lshl_add_u32 v158, v7, 2, v158\nv_lshl_add_u32 v158, v6, 3, v158\ns_cmp_ge_u32 s3, 8\ns_cbranch_scc1 L_nox\ns_waitcnt lgkmcnt(0)")
for i in range(5): a(f"global_load_dwordx2 v[{8+2*i}:{9+2*i}], v158, s[16:17] offset:{256*i}")
a(("s_setprio 0\nL_nox:\n" if opt("p8",0) else "L_nox:\ns_setprio 0\n")+"s_load_dwordx2 s[40:41], s[0:1], 96\ns_load_dwordx4 s[28:31], s[0:1], 48\ns_load_dwordx8 s[32:39], s[0:1], 64")
stamp(1)
a("v_and_b32 v1, 63, v0\nv_lshrrev_b32 v2, 4, v1\nv_and_b32 v3, 15, v0\nv_lshlrev_b32 v157, 4, v1\ns_bfe_u32 s5, s2, 0x10003\ns_mov_b32 s15, 0\ns_add_u32 s42, s42, T_0-L_pc\ns_addc_u32 s43, s43, 0\ns_cmp_eq_u32 s3, 10\ns_cbranch_scc1 L_a10")
a("v_readfirstlane_b32 s46, v4\nv_readfirstlane_b32 s47, v5\ns_lshl_b32 s48, s3, 1\ns_cmp_eq_u32 s3, 8\ns_cselect_b32 s48, 1, s48\ns_and_b32 s50, s46, 1023")
a("v_bfe_u32 v20, v0, 2, 1\nv_bfe_u32 v21, v0, 3, 2\nv_and_b32 v22, 3, v0\nv_lshl_add_u32 v24, v21, 2, v22\nv_lshl_add_u32 v24, v20, 4, v24\nv_mul_u32_u24 v24, 20, v24\nv_add_u32 v24, s3, v24\ns_cmp_lg_u32 s3, 0\ns_cbranch_scc1 L_wg")
a("v_lshrrev_b32 v24, 1, v21\nv_lshl_add_u32 v24, v20, 1, v24\nv_lshl_add_u32 v24, v24, 2, v22\nv_and_b32 v21, 1, v21\nv_lshl_add_u32 v24, v24, 1, 2\nv_sub_u32 v24, v24, v21\nv_mul_u32_u24 v24, 10, v24\nL_wg:")
a(f"v_sub_u32 v25, 640, v24\nv_cmp_eq_u32 vcc, 320, v24\nv_lshrrev_b32 v20, 5, v1\nv_and_b32 v21, 31, v0\nv_cndmask_b32_e64 v25, v25, 0, vcc\nv_cmp_eq_u32 vcc, 1, v20\ns_mul_i32 s49, s3, {U}\nv_lshl_add_u32 v115, v21, 1, s49\nv_cndmask_b32 v24, v24, v25, vcc\nv_lshlrev_b32 v87, 1, v24\nv_mul_u32_u24 v20, {10*U}, v20\nv_add_u32 v115, v115, v20")
a("s_cmp_ge_u32 s3, 8\ns_cbranch_scc1 L_gtrig")
a("v_lshrrev_b32 v161, 8, v159\nv_bfe_u32 v4, v159, 7, 1\nv_lshl_add_u32 v161, v4, 3, v161\nv_lshrrev_b32 v4, 2, v161\nv_sub_u32 v4, 0, v4\nv_and_b32 v4, 3, v4\nv_lshlrev_b32 v4, 1, v4\nv_xor_b32 v4, v4, v6\nv_mul_u32_u24 v160, 5120, v2\nv_lshl_add_u32 v160, v4, 3, v160\nv_lshl_add_u32 v160, v161, 6, v160\nv_lshlrev_b32 v161, 2, v161")
a("v_mov_b32 v23, 0\nv_mov_b32 v27, 0\nv_mov_b32 v31, 0\nv_mov_b32 v35, 0\nv_mov_b32 v18, 0\nv_mov_b32 v19, 0\ns_mov_b32 s52, 0x05040100\ns_mov_b32 s53, 0x07060302")
a(f"ds_write_b32 v161, v23 offset:{L_CNT}\nv_add_lshl_u32 v86, v161, v2, 2")
a(f"v_mov_b32 v162, {fhex(-1/32)}\nv_cmp_eq_u32 vcc, 0, v2\nv_cndmask_b32 v162, 0, v162, vcc")
a("L_gtrig:")
a("s_add_u32 s12, s3, 80\ns_cmp_eq_u32 s3, 0\ns_cselect_b32 s13, 4, 8\ns_cselect_b32 s14, 20, s3\ns_cselect_b32 s12, 10, s12")
a("v_lshrrev_b32 v44, 2, v3\nv_and_b32 v45, 3, v0\nv_mad_u32_u24 v44, v44, s13, v45\nv_mul_u32_u24 v44, 20, v44\nv_add_u32 v45, s12, v44\nv_add_u32 v44, s14, v44\nv_lshlrev_b32 v46, 3, v2")
a(f"v_cvt_f32_u32 v44, v44\nv_cvt_f32_u32 v45, v45\nv_cvt_f32_u32 v46, v46\nv_mul_f32 v44, {fhex(1/640)}, v44\nv_mul_f32 v45, {fhex(1/640)}, v45\nv_mul_f32 v47, v46, v45\nv_mul_f32 v46, v46, v44")
for tau in range(2):
    a(f"v_cos_f32 v48, v{46+tau}\nv_sin_f32 v49, v{46+tau}\nv_add_f32 v{46+tau}, v{46+tau}, v{44+tau}\nv_cos_f32 v64, v{44+tau}\nv_cos_f32 v50, v{46+tau}\nv_sin_f32 v51, v{46+tau}\nv_add_f32 v64, v64, v64")
    for j in range(2,8): a(f"v_pk_fma_f32 v[{48+2*j}:{49+2*j}], v[{46+2*j}:{47+2*j}], v[64:65], v[{44+2*j}:{45+2*j}] op_sel_hi:[1,0,1] neg_lo:[0,0,1] neg_hi:[0,0,1]")
    for h in range(4):
        a(f"v_cvt_pk_bf16_f32 v{88+8*tau+h}, v{48+4*h}, v{50+4*h}\nv_cvt_pk_bf16_f32 v{104+4*tau+h}, v{49+4*h}, v{51+4*h}\nv_xor_b32 v{92+8*tau+h}, 0x80008000, v{104+4*tau+h}")
a(f"s_barrier\nds_read_b128 v[36:39], v157 offset:{L_R20}\nds_read_b128 v[40:43], v157 offset:{L_R20+1024}")
a(f"s_lshl_b32 s49, s3, 11")
a("v_lshlrev_b32 v166, 4, v2\nv_lshrrev_b32 v4, 2, v3\nv_sub_u32 v4, 0, v4\nv_and_b32 v4, 3, v4\nv_xor_b32 v4, v4, v2\nv_lshlrev_b32 v4, 4, v4\nv_lshl_add_u32 v163, v3, 6, v4\nv_add_u32 v163, s49, v163")
a(f"s_lshl_b32 s49, s3, 7\ns_add_u32 s49, s49, s2\ns_lshl_b32 s49, s49, 7\ns_add_u32 s49, s49, {WS_I}")
a("v_lshrrev_b32 v4, 1, v3\nv_and_b32 v5, 1, v0\nv_mul_u32_u24 v167, 0x28000, v4\nv_lshl_add_u32 v167, v5, 6, v167\nv_add3_u32 v167, v167, v166, s49")
a(f"s_lshl_b32 s49, s3, 7\nv_lshl_add_u32 v155, v5, 5, s49\nv_lshl_add_u32 v155, v4, 2, v155\nv_lshrrev_b32 v4, 1, v2\nv_lshl_add_u32 v155, v4, 6, v155\nv_and_b32 v154, 1, v2\nv_lshl_add_u32 v154, v154, 2, v4\ns_mul_i32 s49, s3, {U}\nv_lshl_add_u32 v154, v154, 3, s49")
a("v_lshrrev_b32 v4, 4, v0\nv_cmp_eq_u32 vcc, 3, v4\nv_mov_b32 v153, 0xffff\nv_cndmask_b32 v153, -1, v153, vcc")
a("v_mov_b32 v120, 0")
a("s_cmp_ge_u32 s3, 8\ns_cbranch_scc1 L_a8b")
p2addr()
stamp(2)
a("s_waitcnt vmcnt(0) lgkmcnt(0)\nglobal_load_ushort v87, v87, s[28:29]")
stamp(3)
for low in range(4):
    c=low>>1; sel="s53" if low&1 else "s52"; o=20+4*low
    a(f"v_perm_b32 v{o}, v{10+c}, v{8+c}, {sel}\nv_perm_b32 v{o+1}, v{14+c}, v{12+c}, {sel}\nv_perm_b32 v{o+2}, v23, v{16+c}, {sel}")
    if low>0: a(f"{MF} {vr(44+4*(low-1))}, v[36:39], {vr(20+4*(low-1))}, 0")
a("v_dot2c_f32_bf16 v18, v8, v8\nv_dot2c_f32_bf16 v19, v9, v9")
a(f"{MF} {vr(56)}, v[36:39], {vr(32)}, 0")
for i in range(1,5):
    a(f"v_dot2c_f32_bf16 v18, v{8+2*i}, v{8+2*i}\nv_dot2c_f32_bf16 v19, v{9+2*i}, v{9+2*i}")
    a(f"{MF} {vr(60+4*(i-1))}, v[40:43], {vr(20+4*(i-1))}, 0")
a("v_add_f32 v4, v47, v51\nv_add_f32 v5, v55, v59\nv_add_f32 v4, v4, v5\nv_add_f32 v18, v18, v19")
for m,r in (("quad_perm:[1,0,3,2]",1),("quad_perm:[2,3,0,1]",2),("row_half_mirror",0)):
    if r: a(f"v_cvt_pk_bf16_f32 v{76+2*r}, v{44+r}, v{48+r}")
    else: a("v_cvt_pk_bf16_f32 v82, v60, v64")
    a(f"v_add_f32_dpp v4, v4, v4 {m} {DPPM}\nv_add_f32_dpp v18, v18, v18 {m} {DPPM}")
    if r: a(f"v_cvt_pk_bf16_f32 v{77+2*r}, v{52+r}, v{56+r}\nds_write_b64 v160, v[{76+2*r}:{77+2*r}] offset:{1024*r}")
a("v_cvt_pk_bf16_f32 v83, v68, v72\nds_write_b64 v160, v[82:83] offset:3072\nv_cvt_pk_bf16_f32 v84, v61, v65\nv_cvt_pk_bf16_f32 v85, v69, v73\nds_write_b64 v160, v[84:85] offset:4096")
for low in range(4): a(f"v_fmac_f32 v{44+4*low}, v4, v162")
a("v_cvt_pk_bf16_f32 v76, v44, v48\nv_cvt_pk_bf16_f32 v77, v52, v56\nds_write_b64 v160, v[76:77]")
a(f"ds_write_b32 v86, v18 offset:{L_SQ4}\nds_write_b32 v161, v4 offset:{L_SUM}")
a("L_b1:\ns_setprio 1\ns_waitcnt lgkmcnt(0)\ns_barrier")
stamp(4)
a(f"ds_read_b128 v[20:23], v163\nds_read_b128 v[28:31], v163 offset:1024\ns_cmp_eq_u32 s3, 0")
lg(1)
a(f"{MF} v[44:47], v[20:23], v[88:91], 0\n{MF} v[48:51], v[20:23], v[92:95], 0\ns_cbranch_scc1 L_u0")
a(f"{MF} v[52:55], v[20:23], v[96:99], 0\n{MF} v[56:59], v[20:23], v[100:103], 0")
lg(0)
a(f"{MF} v[44:47], v[28:31], v[104:107], v[44:47]\n{MF} v[48:51], v[28:31], v[88:91], v[48:51]")
a(f"{MF} v[52:55], v[28:31], v[108:111], v[52:55]\n{MF} v[56:59], v[28:31], v[96:99], v[56:59]\nL_u1:")
tail.append(f"L_u0:\ns_waitcnt lgkmcnt(0)\n{MF} v[52:55], v[28:31], v[96:99], 0\n{MF} v[56:59], v[28:31], v[100:103], 0\ns_branch L_u1")
a(f"ds_read_b128 v[32:35], v157 offset:{L_SM}\ns_waitcnt vmcnt(0)\nds_write_b16 v115, v87 offset:{L_WP}")
a("v_cvt_pk_bf16_f32 v20, v44, v45\nv_cvt_pk_bf16_f32 v21, v46, v47\nv_cvt_pk_bf16_f32 v22, v48, v49\nv_cvt_pk_bf16_f32 v23, v50, v51")
a("v_cvt_pk_bf16_f32 v24, v52, v53\nv_cvt_pk_bf16_f32 v25, v54, v55\nv_cvt_pk_bf16_f32 v26, v56, v57\nv_cvt_pk_bf16_f32 v27, v58, v59")
a("L_sm:\ns_waitcnt lgkmcnt(0)\nv_max3_u32 v4, v32, v33, v34\nv_max_u32 v4, v4, v35\nv_cmp_eq_u32 vcc, -1, v4\ns_cbranch_vccnz L_smr\nL_smd:")
tail.append(f"L_smr:\ns_add_u32 s13, s13, 1\ns_cmp_gt_u32 s13, 0x10000\ns_cbranch_scc1 L_smd\nds_read_b128 v[32:35], v157 offset:{L_SM}\ns_branch L_sm")
a(f"{MF} v[44:47], v[20:23], v[32:35], 0\n{MF} v[48:51], v[24:27], v[32:35], 0")
a(f"ds_read_b64 v[60:61], v154 offset:{L_WP}\nds_read_b64 v[62:63], v154 offset:{L_WP+16}\nds_read_b64 v[64:65], v154 offset:{L_WP+10*U}\nds_read_b64 v[66:67], v154 offset:{L_WP+10*U+16}\nv_mov_b32 v68, 0\nv_mov_b32 v69, 0")
a("v_cvt_pk_bf16_f32 v20, v44, v45\nv_cvt_pk_bf16_f32 v21, v46, v47\nv_cvt_pk_bf16_f32 v22, v48, v49\nv_cvt_pk_bf16_f32 v23, v50, v51")
a("global_store_dwordx4 v167, v[20:23], s[40:41] sc1\ns_setprio 0")
stamp(5)
a("s_waitcnt lgkmcnt(0)\nv_and_b32 v65, v65, v153")
for i in range(4): a(f"v_dot2c_f32_bf16 v68, v{20+i}, v{60+i}\nv_dot2c_f32_bf16 v69, v{20+i}, v{64+i}")
a(f"v_permlane32_swap_b32 v68, v69\nv_add_f32 v68, v68, v69\nv_mov_b32 v69, v68\nv_permlane16_swap_b32 v68, v69\nv_add_f32 v68, v68, v69\nds_write_b32 v155, v68 offset:{L_EX}\ns_waitcnt lgkmcnt(0)\ns_barrier\ns_cmp_eq_u32 s3, 9\ns_cbranch_scc1 L_ext")
a(PMA)
read_pm()
a(f"s_mul_i32 s51, s48, {RS}\ns_add_u32 s51, s51, {L_XP}\nv_lshrrev_b32 v156, 3, v3\nv_mul_u32_u24 v156, {RS}, v156\nv_add_u32 v156, s51, v156")
a("s_cmp_lt_u32 s3, 8\ns_cbranch_scc1 L_scat\ns_cmp_lg_u32 s2, 0\ns_cbranch_scc1 L_fin\ns_barrier\ns_barrier\ns_branch L_p2end")
a("L_ext:\ns_setprio 3")
for i in range(10): a(f"ds_read_b32 v{44+i}, v112 offset:{L_EX+128*i}")
a("s_waitcnt lgkmcnt(0)\nv_pk_add_f32 v[44:45], v[44:45], v[46:47]\nv_pk_add_f32 v[48:49], v[48:49], v[50:51]\nv_pk_add_f32 v[44:45], v[44:45], v[52:53]\nv_pk_add_f32 v[44:45], v[44:45], v[48:49]\nv_add_f32 v44, v44, v45\nv_mul_f32 v44, v44, v113\nv_mov_b32 v45, v44")
a(f"v_permlane32_swap_b32 v44, v45\nv_add_f32 v44, v44, v45\nv_mov_b32 v45, v44\nv_permlane16_swap_b32 v44, v45\nv_add_f32 v44, v44, v45\nv_mov_b32_dpp v45, v44 quad_perm:[1,0,3,2] {DPPM}\nv_cvt_pk_bf16_f32 v44, v44, v45")
a("s_mov_b64 exec, 0x5555\nglobal_store_dword v120, v44, s[40:41] sc1\ns_mov_b64 exec, -1")
stamp(3)
a("s_barrier\ns_branch L_fin")
XA=[88,89,90,91,92]; XB=[94,95,96,97,93]; WA=[98,99,100,101,102]; WB=[104,105,106,107,103]
a("L_scat:\ns_cmp_ge_u32 s3, 4\ns_cbranch_scc1 L_b2\ns_waitcnt lgkmcnt(0)")
scatter(156)
a("L_b2:")
TABPOS=opt("tabpos",1)
if TABPOS==0:
    a("s_cmp_ge_u32 s3, 4\ns_cbranch_scc1 L_ntab")
    gentab()
    a("L_ntab:")
stamp(6)
a("s_waitcnt vmcnt(0) lgkmcnt(0)\ns_barrier" if opt("ack1",1) else "s_waitcnt lgkmcnt(0)\ns_barrier")
stamp(7)
if opt("pre1",0): a(f"s_sleep {opt('pre1',0)}")
def x1win():
    if TABPOS==1:
        a("s_cmp_ge_u32 s3, 4\ns_cbranch_scc1 L_ntab")
        gentab()
        a("s_branch L_ntab2\nL_ntab:\ns_cmp_ge_u32 s2, 128\ns_cbranch_scc1 L_ntab2")
        scatter(156)
        a("L_ntab2:")
poll(["global_load_dwordx4 v[40:43], v112, s[40:41] sc1","global_load_dwordx4 v[44:47], v113, s[40:41] sc1"],range(40,48),opt("sl1",2),16,between=x1win)
stamp(8)
a(f"ds_write_b128 v114, v[40:43] offset:{L_P2}\nds_write_b128 v114, v[44:47] offset:{L_P2+8192}\ns_waitcnt lgkmcnt(0)\ns_barrier")
a("s_cmp_ge_u32 s3, 4\ns_cbranch_scc1 L_p2end\ns_setprio 2")
def trg(i):
    k,c=i>>2,i&3; b=8+4*(i&7)
    a(f"ds_read_b64_tr_b16 v[{b}:{b+1}], v{116+c} offset:{L_P2+4096*k}\nds_read_b64_tr_b16 v[{b+2}:{b+3}], v{116+c} offset:{L_P2+4096*k+512}")
NPRE=7
for i in range(NPRE): trg(i)
for i in range(16):
    k,c=i>>2,i&3
    issued=min(16,NPRE+i)
    a(f"s_waitcnt lgkmcnt({2*(issued-i-1)})")
    a(f"{MF} {vr(40+4*c)}, {vr(8+4*(i&7))}, {vr(56+16*(c&1)+4*k)}, {'0' if k==0 else vr(40+4*c)}")
    if NPRE+i<16: trg(NPRE+i)
a(f"v_pk_add_f32 v[8:9], v[40:41], v[44:45] {NEG}\nv_pk_add_f32 v[10:11], v[42:43], v[46:47] {NEG}\nv_pk_add_f32 v[16:17], v[40:41], v[44:45]\nv_pk_add_f32 v[18:19], v[42:43], v[46:47]")
a("v_cvt_pk_bf16_f32 v24, v8, v9\nv_cvt_pk_bf16_f32 v25, v10, v11\nv_cvt_pk_bf16_f32 v28, v16, v17\nv_cvt_pk_bf16_f32 v29, v18, v19")
a(f"v_pk_add_f32 v[12:13], v[48:49], v[52:53] {NEG}\nv_pk_add_f32 v[14:15], v[50:51], v[54:55] {NEG}\nv_cvt_pk_bf16_f32 v26, v12, v13\nv_cvt_pk_bf16_f32 v27, v14, v15")
a("global_store_dwordx4 v120, v[24:27], s[40:41] sc1")
a("v_pk_add_f32 v[20:21], v[48:49], v[52:53]\nv_pk_add_f32 v[22:23], v[50:51], v[54:55]\nv_cvt_pk_bf16_f32 v30, v20, v21\nv_cvt_pk_bf16_f32 v31, v22, v23")
a("global_store_dwordx4 v121, v[28:31], s[40:41] sc1\ns_setprio 0")
stamp(9)
a("L_p2end:\ns_cmp_ge_u32 s2, 128\ns_cbranch_scc1 L_fin")
p3addrA()
a(f"ds_read_b64 v[88:89], v125\nds_read_b64 v[90:91], v125 offset:{8*U}\nds_read_b32 v92, v126 offset:{16*U}\nds_read_b64 v[94:95], v125 offset:{RS+10*U}\nds_read_b64 v[96:97], v127 offset:{RS}\nds_read_b32 v93, v126 offset:{RS+6*U}")
read_w()
p3addrB()
a(f"s_and_b32 s60, s2, 7\ns_lshl_b32 s60, s60, 7\ns_add_u32 s60, s60, {LIST}\nv_lshl_add_u32 v19, v3, 2, s60\nv_lshlrev_b32 v155, 7, v3\nv_add_u32 v155, {H3}, v155")
if opt("w2",-1)<0: a("s_waitcnt vmcnt(0)\ns_barrier")
else: a(f"s_barrier\ns_sleep {opt('w2',0)}")
stamp(10)
if opt("pre2",0): a(f"s_sleep {opt('pre2',0)}")
def x2win():
    a("s_waitcnt lgkmcnt(0)")
    for i in range(5):
        a(f"v_dot2c_f32_bf16 v{AC[0]}, s63, v{XA[i]}\nv_dot2c_f32_bf16 v{AC[1]}, v{XA[i]}, v{WA[i]}\nv_dot2c_f32_bf16 v{AC[2]}, v{XA[i]}, v{XA[i]}\nv_dot2c_f32_bf16 v{AC[3]}, s63, v{WA[i]}")
        a(f"v_dot2c_f32_bf16 v{AC[4]}, s63, v{XB[i]}\nv_dot2c_f32_bf16 v{AC[5]}, v{XB[i]}, v{WB[i]}\nv_dot2c_f32_bf16 v{AC[6]}, v{XB[i]}, v{XB[i]}")
    a(f"v_mov_b32 v{AC[7]}, v{AC[3]}\nv_mov_b32 v18, {fhex(1e-5)}\ns_mov_b32 s58, {fhex(1/640)}\ns_movk_i32 s59, 0x7ff")
    for X,hb in ((XA,32),(XB,42)):
        for i in range(5): a(f"v_lshlrev_b32 v{hb+2*i}, 16, v{X[i]}\nv_and_b32 v{hb+1+2*i}, 0xffff0000, v{X[i]}")
    a(f"v_lshlrev_b32 v154, 4, v0\nv_and_b32 v154, 0x1fff, v154\nv_add_u32 v154, {KEYS}, v154\nv_mov_b32 v119, {L_CNT}\ns_mov_b32 s61, 0\ns_mov_b32 s62, 0\ns_movk_i32 s44, 99\ns_movk_i32 s45, 99\ns_cmp_lt_u32 s3, 8\ns_cselect_b64 s[56:57], 1, 0\ns_add_u32 s49, s48, 1")
    a("s_waitcnt vmcnt(3)\nv_cmp_eq_u32 vcc, -1, v71\ns_mov_b32 s55, 1\ns_mov_b32 s54, -1\ns_cbranch_vccnz L_l2\ns_mov_b32 s55, 0\nv_cmp_eq_u32_e64 s[24:25], s46, v71\nv_cmp_eq_u32_e64 s[26:27], s47, v71\ns_ff1_i32_b64 s52, s[24:25]\ns_ff1_i32_b64 s53, s[26:27]\ns_cmp_eq_u32 s50, 0\ns_cselect_b32 s53, -1, s53\ns_and_b32 s54, s52, s53\ns_cmp_lt_i32 s54, 0\ns_cbranch_scc1 L_nl\n"+HINT+("" if GEN else "\ns_waitcnt vmcnt(1)\ns_branch LV1")+"\nL_nl:")
    if GEN==1: a(f"s_cmp_lg_u32 s3, {opt('gw',7)}\ns_cbranch_scc1 L_gh\ns_sub_u32 s60, s2, {opt('gh0',112)}\ns_cmp_ge_u32 s60, 16\ns_cbranch_scc1 L_gh\ns_lshl_b64 exec, 1, s60\nglobal_store_dword v155, v155, s[40:41] sc1\ns_mov_b64 exec, -1\ns_waitcnt vmcnt(1)\ns_branch LV1\nL_gh:")
    tail.append("L_l2:\nglobal_load_dword v71, v19, s[40:41] offset:1024 sc1\ns_branch L_nl")
NH3=16; H3POS=opt("h3pos",0)
GEN=opt("gen",0)
HINT="" if GEN else "s_cmp_eq_u32 s50, 0\ns_cselect_b32 s26, 0, s26\ns_or_b32 s24, s24, s26\ns_and_b32 exec_lo, s24, 0xffff\ns_mov_b32 exec_hi, 0\nglobal_store_dword v155, v155, s[40:41] sc1\ns_mov_b64 exec, -1"
if GEN==2: a(f"s_cmp_lg_u32 s3, {opt('gw',7)}\ns_cbranch_scc1 L_gh\ns_sub_u32 s60, s2, {opt('gh0',112)}\ns_cmp_ge_u32 s60, 16\ns_cbranch_scc1 L_gh\ns_lshl_b64 exec, 1, s60\nglobal_store_dword v155, v155, s[40:41] sc1\ns_mov_b64 exec, -1\nL_gh:")
a("global_load_dword v71, v19, s[40:41] sc1")
assert pc[0]==1
poll(["global_load_dwordx2 v[112:113], v128, s[40:41] sc1","global_load_dwordx2 v[114:115], v129, s[40:41] sc1","global_load_dword v116, v130, s[40:41] sc1"],range(112,117),opt("sl2",2),4,between=x2win)
stamp(11)
YA=[112,113,114,117,116]; YB=[112,118,114,115,116]
A0,A1,A2,A3,B0,B1,B2_,B3,C0,C1,C2,C3=AC
def p3main():
    for i in (0,2,4,1,3):
        a(f"v_dot2c_f32_bf16 v{C0}, s63, v{YA[i]}\nv_dot2c_f32_bf16 v{C1}, v{YA[i]}, v{YA[i]}\nv_dot2c_f32_bf16 v{C2}, v{YA[i]}, v{XA[i]}\nv_dot2c_f32_bf16 v{C3}, v{YB[i]}, v{XB[i]}")
        a(f"v_dot2c_f32_bf16 v{A1}, v{YA[i]}, v{WA[i]}\nv_dot2c_f32_bf16 v{B1}, v{YB[i]}, v{WB[i]}")
    a(f"v_add_f32 v{A0}, v{A0}, v{C0}\nv_add_f32 v{B0}, v{B0}, v{C0}\nv_add_f32 v{A2}, v{A2}, v{C1}\nv_add_f32 v{B2_}, v{B2_}, v{C1}\nv_fmac_f32 v{A2}, 2.0, v{C2}\nv_fmac_f32 v{B2_}, 2.0, v{C3}")
    a(f"v_permlane32_swap_b32 v{A0}, v{A1}\nv_permlane32_swap_b32 v{B0}, v{B1}\nv_permlane32_swap_b32 v{A2}, v{A3}\nv_permlane32_swap_b32 v{B2_}, v{B3}")
    a(f"v_add_f32 v{A0}, v{A0}, v{A1}\nv_add_f32 v{A2}, v{A2}, v{A3}\nv_add_f32 v{B0}, v{B0}, v{B1}\nv_add_f32 v{B2_}, v{B2_}, v{B3}")
    a(f"v_permlane16_swap_b32 v{A0}, v{A2}\nv_permlane16_swap_b32 v{B0}, v{B2_}\nv_add_f32 v{A0}, v{A0}, v{A2}\nv_add_f32 v{B0}, v{B0}, v{B2_}")
    for s_ in (8,4,2,1): a(f"v_add_f32_dpp v{A0}, v{A0}, v{A0} row_ror:{s_} {DPPM}\nv_add_f32_dpp v{B0}, v{B0}, v{B0} row_ror:{s_} {DPPM}")
    a(f"ds_write_b32 v133, v{A0} offset:{L_ST3}\nds_write_b32 v134, v{B0} offset:{L_ST3}")
def top2():
    a("v_mov_b32 v4, v79")
    for s_ in (8,4,2,1): a(f"v_max_u32_dpp v4, v4, v4 row_ror:{s_} {DPPM}")
    a("v_cmp_ne_u32 vcc, v4, v79\nv_readfirstlane_b32 s6, v4\nv_cndmask_b32 v79, 0, v79, vcc\nv_mov_b32 v4, v79")
    for s_ in (8,4,2,1): a(f"v_max_u32_dpp v4, v4, v4 row_ror:{s_} {DPPM}")
    a("v_cmp_ne_u32 vcc, v4, v79\nv_readfirstlane_b32 s7, v4\nv_cndmask_b32 v79, 0, v79, vcc")
def hsum(Y,hb,pk):
    for i in range(5):
        a(f"v_lshlrev_b32 v4, 16, v{Y[i]}\nv_and_b32 v5, 0xffff0000, v{Y[i]}\nv_pk_add_f32 v[{hb+2*i}:{hb+1+2*i}], v[{hb+2*i}:{hb+1+2*i}], v[4:5]\nv_cvt_pk_bf16_f32 v{pk+i}, v{hb+2*i}, v{hb+1+2*i}")
def hnorm(hb,nb,sr,mv):
    for i in range(5):
        a(f"v_pk_fma_f32 v[{nb+2*i}:{nb+1+2*i}], v[{hb+2*i}:{hb+1+2*i}], s[{sr}:{sr+1}], v[{mv}:{mv+1}] op_sel_hi:[1,0,0] neg_lo:[0,0,1] neg_hi:[0,0,1]")
def pubstat(base,sl,acc):
    a(f"s_lshl_b32 s26, s{sl}, 4\ns_add_u32 s26, s26, {base}\nv_lshl_add_u32 v4, v2, 2, s26\ns_mov_b64 exec, 0x10001\nglobal_store_dword v4, v{acc}, s[40:41] sc1\ns_mov_b64 exec, -1")
def publish(base,sl,pk,o0):
    a(f"s_mul_i32 s26, s{sl}, {XSS}\ns_add_u32 s26, s26, {base}\nv_add_u32 v4, s26, v{o0}\nv_add_u32 v5, s26, v{o0+1}\nv_add_u32 v6, s26, v{o0+2}")
    a(f"global_store_dwordx2 v4, v[{pk}:{pk+1}], s[40:41] sc1\nglobal_store_dwordx2 v5, v[{pk+2}:{pk+3}], s[40:41] sc1\nglobal_store_dword v6, v{pk+4}, s[40:41] sc1")
a("v_and_b32 v117, v115, v131\nv_and_b32 v118, v113, v132\ns_cmp_lg_u32 s55, 0\ns_cbranch_scc1 L_l3\ns_cmp_lt_i32 s54, 0\ns_cbranch_scc0 L_cand\nL_nc:")
tail.append("L_l3:\nv_cmp_eq_u32 vcc, -1, v71\ns_cbranch_vccnz L_nc\ns_mov_b32 s55, 0\nv_cmp_eq_u32_e64 s[24:25], s46, v71\nv_cmp_eq_u32_e64 s[26:27], s47, v71\ns_ff1_i32_b64 s52, s[24:25]\ns_ff1_i32_b64 s53, s[26:27]\ns_cmp_eq_u32 s50, 0\ns_cselect_b32 s53, -1, s53\ns_and_b32 s54, s52, s53\ns_cmp_lt_i32 s54, 0\ns_cbranch_scc1 L_nc\n"+HINT+"\ns_branch L_cand")
p3main()
a("s_cmp_lt_i32 s54, 0\ns_cbranch_scc0 L_cst\nL_nc1:")
a(f"s_waitcnt lgkmcnt(0)\ns_barrier\nds_read_b128 v[76:79], v137 offset:{L_ST3}\ns_waitcnt lgkmcnt(0)")
a("v_mul_f32 v76, s58, v76\nv_fma_f32 v77, v77, s58, v18\nv_fma_f32 v77, -v76, v76, v77\nv_max_f32 v77, v77, v18\nv_rsq_f32 v77, v77\nv_fma_f32 v78, -v76, v79, v78\nv_mul_f32 v78, v78, v77")
a("v_ashrrev_i32 v79, 31, v78\nv_or_b32 v79, 0x80000000, v79\nv_xor_b32 v79, v79, v78\nv_bfi_b32 v79, s59, v135, v79\nv_min_u32 v79, -2, v79")
a("s_cmp_lg_u32 s3, 0\ns_cbranch_scc1 L_nokey\ns_mov_b64 exec, 0xffff\nglobal_store_dword v136, v79, s[40:41] sc1\ns_mov_b64 exec, -1\nL_nokey:")
stamp(12)
a("v_mul_f32 v76, v76, v77\nv_readlane_b32 s8, v77, s48\nv_readlane_b32 s12, v77, s49\nv_readlane_b32 s10, v76, s48\nv_readlane_b32 s18, v76, s49")
a("v_readlane_b32 s20, v79, s48\nv_readlane_b32 s21, v79, s49\nv_readlane_b32 s22, v78, s48\nv_readlane_b32 s23, v78, s49")
a("s_cmp_eq_u32 s50, 0\ns_cselect_b32 s21, 0, s21\nv_mov_b32 v80, s10\nv_mov_b32 v82, s18")
a("s_cmp_eq_u32 s55, 0\ns_cbranch_scc1 L_nc2")
poll(["global_load_dword v71, v19, s[40:41] sc1"],[71],opt("sll",2),None)
a("v_cmp_eq_u32_e64 s[24:25], s46, v71\nv_cmp_eq_u32_e64 s[26:27], s47, v71\ns_ff1_i32_b64 s52, s[24:25]\ns_ff1_i32_b64 s53, s[26:27]\ns_cmp_eq_u32 s50, 0\ns_cselect_b32 s53, -1, s53\ns_and_b32 s54, s52, s53\ns_cmp_lt_i32 s54, 0\ns_cbranch_scc1 L_nc2\n"+HINT+"\ns_branch L_cand\nL_nc2:")
a("s_cmp_lt_i32 s52, 0\ns_cbranch_scc0 L_na")
hsum(YA,32,60)
a("L_na:\ns_cmp_lt_i32 s53, 0\ns_cbranch_scc0 L_nb2")
hsum(YB,42,66)
a("L_nb2:")
hnorm(32,8,8,80)
hnorm(42,20,12,82)
top2()
def cand():
    a("L_cand:\ns_setprio 3")
    for R,(sl,Y,hb,pk,o0) in enumerate(((52,YA,32,60,138),(53,YB,42,66,141))):
        a(f"s_cmp_lt_i32 s{sl}, 0\ns_cbranch_scc1 L_cs{R}")
        hsum(Y,hb,pk)
        publish(HN,sl,pk,o0)
        a(f"L_cs{R}:")
    stamp(16)
    a("s_cmp_eq_u32 s55, 0\ns_cbranch_scc1 L_nc\nL_cst:")
    for R,(sl,acc) in enumerate(((52,A0),(53,B0))):
        a(f"s_cmp_lt_i32 s{sl}, 0\ns_cbranch_scc1 L_ct{R}")
        pubstat(STAT,sl,acc)
        a(f"L_ct{R}:")
    a("s_setprio 0\ns_cmp_eq_u32 s55, 0\ns_cbranch_scc1 L_nc1\ns_branch L_nc2")
def outprep1():
    for R,(hb,nb,ob) in enumerate(((32,8,88),(42,20,94))):
        for i in range(5):
            a(f"v_pk_add_f32 v[4:5], v[{hb+2*i}:{hb+1+2*i}], v[{nb+2*i}:{nb+1+2*i}]\nv_cvt_pk_bf16_f32 v{ob+i}, v4, v5")
    a(f"ds_write_b64 v125, v[88:89]\nds_write_b64 v125, v[90:91] offset:{8*U}\nds_write_b32 v126, v92 offset:{16*U}\ns_cmp_eq_u32 s50, 0\ns_cbranch_scc1 L_nob")
    a(f"ds_write_b64 v125, v[94:95] offset:{RS+10*U}\nds_write_b64 v127, v[96:97] offset:{RS}\nds_write_b32 v126, v98 offset:{RS+6*U}\nL_nob:")
def outprep2():
    for i in range(10):
        t=4+2*(i&1)
        a(f"v_add_u32_sdwa v{t}, v{144+i}, v156 {SD.format(0)}\nv_add_u32_sdwa v{t+1}, v{144+i}, v156 {SD.format(1)}")
        a(f"ds_read_u16 v{8+i}, v{t}\nds_read_u16 v{20+i}, v{t+1}")
    a("v_cmp_lt_u32 vcc, 7, v3\nv_mov_b32 v4, s46\nv_mov_b32 v5, s47\nv_cndmask_b32 v52, v4, v5, vcc\nv_mov_b32 v4, s22\nv_mov_b32 v5, s23\nv_cndmask_b32 v53, v4, v5, vcc\nv_mov_b32 v4, s52\nv_mov_b32 v5, s53\nv_cndmask_b32 v54, v4, v5, vcc")
    a("v_mul_f32 v53, 0xbfb8aa3b, v53\nv_exp_f32 v53, v53\nv_and_b32 v54, 255, v54\nv_add_f32 v53, 1.0, v53\nv_rcp_f32 v53, v53\nv_mov_b32 v55, 0\ns_waitcnt lgkmcnt(0)")
    for i in range(10): a(f"v_lshl_or_b32 v{8+i}, v{20+i}, 16, v{8+i}")
OP=opt("op",1)
if OP>=1: outprep1()
if OP>=2: outprep2()
stamp(13)
if opt("pre3",0): a(f"s_sleep {opt('pre3',0)}")
poll(["global_load_dwordx4 v[72:75], v154, s[40:41] sc1"],range(72,76),opt("sl3",2),4,between=lambda: (outprep1() if OP<1 else None, outprep2() if OP<2 else None))
stamp(14)
a("L_round:")
SP=[24,26,28,30,8,10,16,58]
for i in range(4): a(f"v_cmp_gt_u32_e64 s[{SP[i]}:{SP[i]+1}], v{72+i}, s6")
for i in range(4): a(f"v_cmp_gt_u32_e64 s[{SP[4+i]}:{SP[4+i]+1}], v{72+i}, s7")
for i in range(8): a(f"s_bcnt1_i32_b64 s{SP[i]}, s[{SP[i]}:{SP[i]+1}]")
a("s_add_u32 s24, s24, s26\ns_add_u32 s28, s28, s30\ns_add_u32 s8, s8, s10\ns_add_u32 s16, s16, s58\ns_add_u32 s24, s24, s28\ns_add_u32 s8, s8, s16\ns_lshl_b32 s8, s8, 16\ns_add_u32 s24, s24, s8")
a("v_mov_b32 v4, s24\ns_mov_b64 exec, s[56:57]\nds_add_u32 v119, v4\ns_mov_b64 exec, -1\ns_waitcnt lgkmcnt(0)\ns_barrier\nds_read_b32 v4, v119\ns_waitcnt lgkmcnt(0)")
a("v_readfirstlane_b32 s24, v4\ns_and_b32 s25, s24, 0xffff\ns_lshr_b32 s24, s24, 16\ns_cmp_ge_u32 s25, 8\ns_cbranch_scc1 L_rdone")
for sk,srk in ((20,44),(21,45)):
    a(f"s_cmp_eq_u32 s{sk}, s7\ns_cselect_b32 s{srk}, s24, s{srk}\ns_cmp_eq_u32 s{sk}, s6\ns_cselect_b32 s{srk}, s25, s{srk}")
a("s_cmp_ge_u32 s24, 7\ns_cbranch_scc1 L_rdone\ns_cmp_ge_u32 s61, 3\ns_cbranch_scc1 L_rdone\ns_add_u32 s61, s61, 1\nv_add_u32 v119, 4, v119")
top2()
a("s_branch L_round\nL_rdone:")
stamp(15)
a("s_mov_b32 s24, 0x00ff00ff\ns_cmp_lt_u32 s44, 8\ns_cselect_b32 s30, 0, s24\ns_cselect_b32 s28, s24, 0\ns_not_b32 s24, s24\ns_cmp_lt_u32 s45, 8\ns_cselect_b32 s31, 0, s24\ns_cselect_b32 s29, s24, 0")
a("s_cmp_eq_u32 s50, 0\ns_cselect_b32 s31, 0, s31\ns_or_b32 s30, s30, s31\ns_mov_b32 s31, s30\ns_or_b32 s28, s28, s29\ns_cbranch_scc0 L_nosel\ns_mov_b32 s29, s28")
a(f"v_cmp_lt_u32 vcc, 7, v3\nv_mov_b32 v4, s44\nv_mov_b32 v5, s45\nv_cndmask_b32 v20, v4, v5, vcc\nv_and_b32 v20, 7, v20\nv_lshlrev_b32 v22, 7, v20\nv_add_u32 v22, {META}, v22")
a("s_and_b32 exec_lo, s28, 0x0101\ns_mov_b32 exec_hi, 0\nglobal_store_dwordx4 v22, v[52:55], s[40:41] sc1\ns_mov_b64 exec, s[28:29]")
a(f"v_mul_u32_u24 v21, 1280, v20\nv_add_u32 v21, {BASE}, v21\nv_lshl_add_u32 v21, v2, 6, v21\nv_and_b32 v4, 7, v0\nv_lshl_add_u32 v21, v4, 3, v21")
for i in range(5): a(f"global_store_dwordx2 v21, v[{8+2*i}:{9+2*i}], s[40:41] offset:{256*i} sc1")
a("s_mov_b64 exec, -1\ns_cmp_ge_u32 s44, 8\ns_cbranch_scc1 L_ns0")
publish(HN8,44,60,138)
pubstat(STAT8,44,A0)
a("L_ns0:\ns_cmp_ge_u32 s45, 8\ns_cbranch_scc1 L_nosel")
publish(HN8,45,66,141)
pubstat(STAT8,45,B0)
a("L_nosel:")
a("s_cmp_eq_u32 s30, 0\ns_cbranch_scc1 L_noout\ns_mov_b64 exec, s[30:31]")
for i in range(5): a(f"global_store_dwordx2 v158, v[{8+2*i}:{9+2*i}], s[36:37] offset:{256*i} {OUTF}")
a("s_mov_b64 exec, -1\nL_noout:")
a("s_or_b32 s24, s2, s3\ns_cbranch_scc1 L_fin")
a("s_load_dword s16, s[40:41], 0\nv_mov_b32 v4, 0\ns_waitcnt lgkmcnt(0)\ns_add_u32 s16, s16, 1\nv_mov_b32 v5, s16\ns_mov_b64 exec, 1\nglobal_store_dword v4, v5, s[40:41]\ns_mov_b64 exec, -1\ns_branch L_fin")
cand()
flush_tail()
a("L_a8b:\nv_mov_b32 v112, 0\nv_mov_b32 v113, 0\nv_mov_b32 v121, 0\ns_waitcnt lgkmcnt(0)\nglobal_load_ushort v87, v87, s[28:29]\ns_cmp_eq_u32 s3, 8\ns_cbranch_scc1 L_b1")
a(f"v_cvt_f32_u32 v20, s2\nv_mul_f32 v20, {fhex(1/256)}, v20\nv_cos_f32 v21, v20\nv_sin_f32 v22, v20\nv_and_b32 v6, 7, v0\nv_and_b32 v23, 8, v0\nv_cmp_eq_u32 vcc, 0, v6")
a("v_cndmask_b32 v21, 1.0, v21, vcc\nv_cndmask_b32 v22, 0, v22, vcc\nv_lshlrev_b32 v24, 28, v23\ns_cmp_eq_u32 s2, 0\ns_cselect_b64 s[8:9], vcc, 0\nv_cndmask_b32_e64 v24, v24, 0, s[8:9]\nv_xor_b32 v21, v21, v24")
a("v_sub_u32 v24, 8, v6\nv_and_b32 v24, 7, v24\nv_add3_u32 v24, v24, v23, 16\nv_sub_u32 v25, 24, v23\nv_cmp_eq_u32 vcc, 1, v2\nv_cndmask_b32 v112, v3, v24, vcc\nv_cndmask_b32 v113, 1.0, v21, vcc")
a(f"v_cmp_eq_u32 vcc, 2, v2\nv_cndmask_b32 v112, v112, v25, vcc\nv_cndmask_b32 v113, v113, v22, vcc\nv_cmp_eq_u32 vcc, 3, v2\nv_cndmask_b32_e64 v113, v113, 0, vcc\nv_lshlrev_b32 v112, 2, v112\ns_lshl_b32 s8, s2, 7\ns_add_u32 s8, s8, {EXT}\nv_lshl_add_u32 v120, v3, 1, s8")
stamp(2)
a("s_branch L_b1")
a("L_a10:\ns_setprio 2")
a("v_lshrrev_b32 v20, 2, v3\nv_and_b32 v21, 3, v0\nv_mad_u32_u24 v20, v20, 5, v21\nv_cvt_f32_u32 v28, v2")
for tile in range(2):
    if tile: a("v_add_u32 v20, 3, v20")
    a("v_lshrrev_b32 v22, 1, v20\nv_and_b32 v24, 1, v20")
    if tile==0:
        a("v_cmp_eq_u32 vcc, 1, v20\nv_cndmask_b32_e64 v22, v22, 10, vcc\nv_cndmask_b32_e64 v24, v24, 0, vcc\nv_cmp_eq_u32 vcc, 3, v21\nv_cndmask_b32_e64 v22, v22, 0, vcc\nv_cndmask_b32_e64 v24, v24, 0, vcc")
    a(f"v_cvt_f32_u32 v22, v22\nv_cvt_f32_u32 v24, v24\nv_mul_f32 v22, {fhex(0.05)}, v22\nv_mul_f32 v24, {fhex(0.25)}, v24\nv_fmac_f32 v24, v28, v22\nv_mul_f32 v22, 4.0, v22")
    for i in range(5):
        a(f"v_cos_f32 v{29+i}, v24")
        if i<4: a("v_add_f32 v24, v24, v22")
    a(f"v_cvt_pk_bf16_f32 v{36+4*tile}, v29, v30\nv_cvt_pk_bf16_f32 v{37+4*tile}, v31, v32\nv_cvt_pk_bf16_f32 v{38+4*tile}, v33, 0\nv_mov_b32 v{39+4*tile}, 0")
a(f"ds_write_b128 v157, v[36:39] offset:{L_R20}\nds_write_b128 v157, v[40:43] offset:{L_R20+1024}\ns_waitcnt lgkmcnt(0)\ns_barrier")
a("s_setprio 1\ns_lshl_b32 s7, s2, 7\ns_waitcnt lgkmcnt(0)\ns_load_dword s6, s[40:41], 0")
LATE10=f"s_movk_i32 m0, {L_PM}\nglobal_load_lds_dwordx4 v157, s[42:43]\nglobal_load_lds_dwordx4 v157, s[42:43] offset:1024"
a(f"s_add_u32 s7, s7, {WS_FA+0x4000}\nv_mov_b32 v18, s7\ns_sub_u32 s7, 256, s2\ns_cmp_eq_u32 s2, 0\ns_cselect_b32 s7, 128, s7")
a("v_lshrrev_b32 v20, 1, v3\nv_and_b32 v21, 1, v0\nv_lshrrev_b32 v22, 1, v2\nv_and_b32 v23, 1, v2")
a("v_mov_b32 v24, s7\nv_mov_b32 v25, s2\nv_cmp_eq_u32 vcc, 1, v22\nv_cndmask_b32 v24, v25, v24, vcc\nv_lshl_add_u32 v24, v23, 10, v24")
a("v_subrev_u32 v25, 4, v20\nv_mul_i32_i24 v24, v24, v25\nv_lshl_add_u32 v24, v21, 9, v24")
a("v_cmp_gt_u32 vcc, v22, v21\ns_cmp_lg_u32 s2, 0\ns_cselect_b32 s49, 1024, 0\nv_mov_b32 v25, s49\nv_cndmask_b32 v25, 0, v25, vcc\nv_add_u32 v24, v24, v25\nv_and_b32 v24, 2047, v24")
a(f"v_cvt_f32_u32 v24, v24\nv_cvt_f32_u32 v25, v20\nv_mul_f32 v24, {fhex(1/2048)}, v24\nv_mul_f32 v25, {fhex(0.125)}, v25")
a("v_cmp_eq_u32 vcc, v22, v21\ns_cselect_b64 s[52:53], -1, 0\ns_or_b64 vcc, vcc, s[52:53]")
for i in range(4):
    a(f"v_cos_f32 v{60+i}, v24\nv_sin_f32 v{64+i}, v24")
    if i<3: a("v_add_f32 v24, v24, v25")
for i in range(8): a(f"v_cndmask_b32 v{60+i}, 0, v{60+i}, vcc")
a(f"s_mov_b32 s60, {fhex(1/640)}\ns_mov_b32 s61, {fhex(1/640)}\nv_mov_b32 v86, {fhex(1e-5)}\nv_and_b32 v165, 3, v0\nv_lshl_add_u32 v165, v2, 2, v165\nv_lshlrev_b32 v166, 4, v165\nv_lshlrev_b32 v165, 2, v165")
a(LATE10)
a("s_waitcnt lgkmcnt(0)\ns_add_u32 s6, s6, 1")
NH1=opt("nh1",8); H1POS=opt("h1pos",1); H10=128-NH1
a(f"s_sub_u32 s8, s2, {H10-8}\ns_and_b32 s8, s8, 31\ns_lshl_b32 s8, s8, 7\ns_add_u32 s8, s8, {WS_GO}\nv_lshrrev_b32 v5, 3, v1\nv_lshl_add_u32 v5, v5, 12, s8\nv_lshl_add_u32 v16, v6, 4, v5\nv_mov_b32 v8, s6\nv_mov_b32 v9, s6\nv_mov_b32 v10, s6\nv_mov_b32 v11, s6")
def h1(): a(f"s_cmp_lt_u32 s2, {H10}\ns_cbranch_scc1 L_h1\nglobal_store_dwordx4 v16, v[8:11], s[40:41] sc1\nL_h1:")
def smat():
    stamp(2)
    if H1POS==-1: h1()
    a("s_setprio 3\ns_waitcnt lgkmcnt(0)\ns_barrier")
    stamp(4)
    a(f"ds_read_b128 v[36:39], v166 offset:{L_SQ4}\nds_read_b32 v40, v165 offset:{L_SUM}")
    if H1POS==0: h1()
    a("s_waitcnt lgkmcnt(0)")
    a("v_add_f32 v36, v36, v37\nv_add_f32 v38, v38, v39\nv_mul_f32 v40, s60, v40\nv_add_f32 v36, v36, v38\nv_fma_f32 v40, -v40, v40, v86\nv_fmac_f32 v40, s60, v36\nv_max_f32 v40, v40, v86\nv_rsq_f32 v40, v40")
    for h in range(4):
        for e_ in range(2):
            jj=2*h+e_; k=jj&3
            a(f"v_mul_f32_dpp v{60+jj}, v40, v{60+jj} quad_perm:[{k},{k},{k},{k}] {DPPM}")
        a(f"v_cvt_pk_bf16_f32 v{32+h}, v{60+2*h}, v{61+2*h}")
    if H1POS<=0: a(f"s_waitcnt vmcnt(1)\ns_cmp_ge_u32 s2, {H10}\ns_cbranch_scc1 LV{pc[0]-1}")
a(f"v_mov_b32 v12, -1\nv_mov_b32 v13, -1\nv_mov_b32 v14, -1\nv_mov_b32 v15, -1\nds_write_b128 v157, v[12:15] offset:{L_SM}\ns_waitcnt vmcnt(0)")
poll(["global_load_dword v20, v18, s[40:41] sc1"],None,opt("slf",1),None,chk="v_cmp_ne_u32 vcc, s6, v20",between=smat)
a(f"ds_write_b128 v157, v[32:35] offset:{L_SM}")
stamp(5)
if opt("h1d",0): a(f"s_sleep {opt('h1d',0)}")
if H1POS==1 and NH1: h1()
a("s_barrier\ns_setprio 0")
if H1POS==2 and NH1: h1()
NGO=opt("ngo",8); NH4=opt("nh4",8)
def gowait(n=8,off=0):
    a(f"s_and_b32 s7, s2, 7\ns_lshl_b32 s7, s7, 12\ns_add_u32 s7, s7, {WS_GO}\nv_lshl_add_u32 v4, v1, 7, s7\ns_mov_b64 exec, {hex((1<<n)-1)}")
    poll([f"global_load_dword v20, v4, s[40:41] offset:{off} sc1"],None,opt("slf",1),None,chk="v_cmp_ne_u32 vcc, s6, v20")
a("L_flagchk:")
gowait(8+NH1)
stamp(6)
a("s_barrier")
gowait(8,3072)
stamp(7)
a("s_barrier\ns_branch L_fin")
a(f"L_agg:\ns_cmp_ge_u32 s4, 16\ns_cbranch_scc1 L_bf8\ns_and_b32 s7, s4, 7\ns_lshl_b32 s7, s7, 7\ns_cmp_lt_u32 s4, 8\ns_cselect_b32 s8, 0x4000, 0\ns_cselect_b32 s9, 0, 3072\ns_add_u32 s8, s8, s7\ns_add_u32 s8, s8, {WS_FA}\nv_lshl_add_u32 v4, v1, 10, s8\ns_add_u32 s8, s7, s9\ns_add_u32 s8, s8, {WS_GO}\nv_lshrrev_b32 v5, 3, v1\nv_lshl_add_u32 v5, v5, 12, s8\nv_lshl_add_u32 v5, v6, 4, v5\ns_mov_b64 exec, 0xffff")
poll(["global_load_dword v20, v4, s[40:41] sc1"],None,opt("sla",1),None,chk="v_cmp_ne_u32 vcc, s6, v20")
stamp(6)
if opt("gdel",0): a(f"s_sleep {opt('gdel',0)}")
a("global_store_dwordx4 v5, v[8:11], s[40:41] sc1\ns_barrier\ns_branch L_fin")
L_FT=L_XS+21504
a(f"L_fw:\ns_cmp_ge_u32 s14, 216\ns_cbranch_scc1 L_fw1\ns_mov_b32 m0, {L_FT}")
for o in range(1,3): a(f"global_load_lds_dwordx4 v157, s[42:43] offset:{1024*o}")
a(f"L_fw1:\ns_sleep {opt('slb',50)}")
gowait(8,3072)
a("s_barrier")
a(f"s_cmp_ge_u32 s14, 216\ns_cselect_b32 s7, {NH4-1}, {NH3-1}\ns_cselect_b32 s8, {H4-H3}, 0\ns_add_u32 s8, s8, {H3}\nv_min_u32 v4, s7, v1\nv_lshl_add_u32 v4, v4, 7, s8")
poll(["global_load_dword v20, v4, s[40:41] sc1"],[20],opt("slh",1),None)
stamp(14)
a(f"s_barrier\ns_cmp_ge_u32 s14, 216\ns_cbranch_scc1 L_fin\nv_lshlrev_b32 v4, 7, v6\nv_add_u32 v4, {META+8}, v4\nv_mov_b32 v5, {L_VD}\ns_barrier")
a(f"v_min_u32 v7, {NH4-1}, v1\nv_lshlrev_b32 v7, 7, v7\nv_add_u32 v7, {H4}, v7")
poll(["global_load_dword v20, v7, s[40:41] sc1"],[20],opt("slh",1),None)
if opt("vdel",0): a(f"s_sleep {opt('vdel',0)}")
poll(["global_load_dword v20, v4, s[40:41] sc1"],[20],opt("slm",2),None)
a("v_cmp_lt_u32 vcc, 15, v20\nv_mov_b32 v6, vcc_lo\nds_write_b32 v5, v6\ns_waitcnt lgkmcnt(0)")
stamp(13)
a("s_barrier\ns_branch L_fin")
a("L_bf:\ns_load_dwordx2 s[40:41], s[0:1], 96\ns_load_dwordx4 s[28:31], s[0:1], 48\ns_load_dwordx8 s[32:39], s[0:1], 64\ns_cmp_ge_u32 s2, 256\ns_cbranch_scc1 L_end")
a("v_and_b32 v1, 63, v0\nv_lshrrev_b32 v2, 4, v1\nv_and_b32 v3, 15, v0\nv_lshlrev_b32 v157, 4, v1\ns_bfe_u32 s5, s2, 0x10003\ns_mov_b32 s15, 0\ns_add_u32 s42, s42, T_0-L_pc\ns_addc_u32 s43, s43, 0\ns_sub_u32 s4, s2, 128\nv_mov_b32 v12, -1\nv_mov_b32 v13, -1\nv_mov_b32 v14, -1\nv_mov_b32 v15, -1\ns_cmp_lg_u32 s3, 10\ns_cbranch_scc1 L_bf1")
a(f"s_lshl_b32 s7, s4, 7\ns_add_u32 s7, s7, {EXT}\nv_add_u32 v5, s7, v157\ns_mul_i32 s7, s4, 1536\ns_add_u32 s7, s7, {WS_SMALL}\nv_add_u32 v7, s7, v157\ns_waitcnt lgkmcnt(0)\nglobal_store_dwordx4 v7, v[12:15], s[40:41] offset:512 sc1\ns_mov_b64 exec, 0xff\ns_branch L_bf2")
a("L_bf1:")
a(f"s_lshl_b32 s7, s3, 7\ns_add_u32 s7, s7, s4\ns_lshl_b32 s7, s7, 7\ns_add_u32 s7, s7, {WS_I}\nv_lshrrev_b32 v5, 3, v1\nv_mul_u32_u24 v5, 0x28000, v5\nv_lshl_add_u32 v5, v6, 4, v5\nv_add_u32 v5, s7, v5")
a(f"s_mul_i32 s7, s4, 10\ns_add_u32 s7, s7, s3\ns_lshl_b32 s7, s7, 10\ns_add_u32 s7, s7, {WS_Y}\nv_add_u32 v7, s7, v157")
a("L_bf2:\ns_waitcnt lgkmcnt(0)\ns_load_dword s6, s[40:41], 0\nglobal_store_dwordx4 v5, v[12:15], s[40:41] sc1\ns_mov_b64 exec, -1\ns_barrier\nglobal_store_dwordx4 v7, v[12:15], s[40:41] sc1")
stamp(1)
a("s_and_b32 s7, s2, 7\ns_lshl1_add_u32 s7, s7, s5\ns_add_u32 s8, s7, 208\ns_add_u32 s9, s7, 242\ns_cmp_lt_u32 s7, 6\ns_cselect_b32 s8, s8, s9\ns_sub_u32 s9, 229, s7\ns_cmp_ge_u32 s7, 14\ns_cselect_b32 s8, s9, s8")
a("s_cmp_lt_u32 s2, 208\ns_cselect_b32 s14, s2, s8\ns_sub_u32 s9, s2, 8\ns_cmp_ge_u32 s2, 224\ns_cselect_b32 s14, s9, s14")
a(f"s_lshl_b32 s7, s4, 7\ns_add_u32 s7, s7, {WS_FA}\nv_add_u32 v18, s7, v157\nv_add_u32 v19, 0x4000, v18\ns_waitcnt lgkmcnt(0)\ns_add_u32 s6, s6, 1\nv_mov_b32 v8, s6\nv_mov_b32 v9, s6\nv_mov_b32 v10, s6\nv_mov_b32 v11, s6\ns_waitcnt vmcnt(1)\ns_barrier")
a("s_cmp_lg_u32 s3, 9\ns_cbranch_scc1 L_bf9\ns_mov_b64 exec, 0xff\nglobal_store_dwordx4 v19, v[8:11], s[40:41] sc1\ns_mov_b64 exec, -1\ns_waitcnt vmcnt(1)\ns_branch L_bfa\nL_bf9:\ns_waitcnt vmcnt(0)\nL_bfa:\ns_barrier")
stamp(2)
a("s_setprio 0\ns_cmp_lt_u32 s3, 8\ns_cbranch_scc1 L_bf3\ns_cmp_eq_u32 s3, 8\ns_cbranch_scc1 L_bf8\ns_cmp_eq_u32 s3, 9\ns_cbranch_scc1 L_agg")
a("s_mov_b64 exec, 0xff\nglobal_store_dwordx4 v18, v[8:11], s[40:41] sc1\ns_mov_b64 exec, -1")
a("s_cmp_lt_u32 s2, 160\ns_cbranch_scc1 L_flagchk\ns_and_b32 s7, s14, 254\ns_cmp_eq_u32 s7, 214\ns_cbranch_scc1 L_fin\ns_branch L_fw")
a("L_bf3:\ns_cmp_ge_u32 s2, 160\ns_cbranch_scc1 L_f\nv_mov_b32 v158, 0")
p2addr()
a("s_branch L_b2")
a("L_f:\ns_cmp_eq_u32 s14, 214\ns_cbranch_scc1 L_fin\ns_cmp_lg_u32 s14, 215\ns_cbranch_scc1 L_fx")
S_GM=8192; S_X=8448; S_C=8704
KTH=opt("kth",12)
a("L_sel:\ns_cmp_ge_u32 s3, 4\ns_cbranch_scc1 L_fin")
gentab("s_add_u32 s56, s3, 8",88)
gentab("s_mov_b32 s56, s3",56)
a(f"v_lshrrev_b32 v4, 1, v0\nv_and_b32 v5, 1, v0\nv_lshlrev_b32 v120, 7, v4\nv_lshl_add_u32 v120, v5, 4, v120\nv_add_u32 v120, {EXT}, v120\nv_lshlrev_b32 v121, 4, v0")
a("v_lshrrev_b32 v4, 2, v3\nv_lshl_add_u32 v4, v2, 3, v4\nv_lshlrev_b32 v122, 5, v4\nv_and_b32 v5, 3, v0\nv_lshl_add_u32 v122, v5, 3, v122")
a("s_lshl_b32 s56, s3, 6\nv_lshl_add_u32 v4, v6, 3, s56\nv_and_b32 v5, 8, v0\nv_lshl_add_u32 v4, v5, 5, v4\nv_sub_u32 v5, 2040, v4\nv_cmp_lt_u32 vcc, 31, v1\nv_bfe_u32 v7, v0, 4, 1\nv_cndmask_b32 v124, v4, v5, vcc\nv_lshl_add_u32 v124, v7, 2, v124")
a("v_cndmask_b32_e64 v123, -1.0, 1.0, vcc\ns_mov_b64 s[26:27], vcc\nv_xor_b32 v128, 512, v124")
for i_ in range(1,4): a(f"v_add_u32 v{124+i_}, {i_}, v124\nv_add_u32 v{128+i_}, {i_}, v128")
a(f"v_and_b32 v132, 0xf0, v0\ns_lshl_b32 s56, s3, 6\nv_lshl_add_u32 v133, v3, 2, s56\nv_lshlrev_b32 v134, 6, v2\nv_and_b32 v136, 3, v0\nv_lshlrev_b32 v136, 4, v136\nv_lshrrev_b32 v135, 2, v1\nv_lshl_add_u32 v135, v135, 7, v136\nv_add_u32 v135, {LIST}, v135\ns_movk_i32 s59, 0x7ff\nv_bfrev_b32 v140, 1")
gowait(8+NH1)
stamp(7)
if opt("pres",0): a(f"s_sleep {opt('pres',0)}")
poll(["global_load_dwordx4 v[8:11], v120, s[40:41] sc1"],range(8,12),opt("sls",1),16)
stamp(8)
a("ds_write_b128 v121, v[8:11]\nv_lshl_add_u32 v4, v6, 7, s7\nglobal_load_dword v142, v4, s[40:41] offset:3072 sc1\ns_waitcnt lgkmcnt(0)\ns_barrier")
for k in range(4): a(f"ds_read_b64_tr_b16 v[{8+4*k}:{9+4*k}], v122 offset:{1024*k}\nds_read_b64_tr_b16 v[{10+4*k}:{11+4*k}], v122 offset:{1024*k+128}")
for t_ in range(2):
    for k in range(4):
        if t_==0: a(f"s_waitcnt lgkmcnt({6-2*k})")
        for c in range(2): a(f"{MF} {vr(24+8*t_+4*c)}, {vr(8+4*k)}, {vr(56+32*t_+16*c+4*k)}, {'0' if k==0 else vr(24+8*t_+4*c)}")
for t_ in range(2):
    b=24+8*t_
    for r in range(4): a(f"v_cndmask_b32_e64 v{b+r}, v{b+r}, v{b+4+r}, s[26:27]")
    for r in range(4): a(f"v_mov_b32 v{b+4+r}, v{b+r}")
    for r in range(4): a(f"v_permlane32_swap_b32 v{b+r}, v{b+4+r}")
    for r in range(4): a(f"v_fmac_f32 v{b+r}, v{b+4+r}, v123")
    for r in range(4):
        if opt("forcemiss",0): a(f"v_xor_b32 v{b+r}, 0x80000000, v{b+r}")
        a(f"v_bfi_b32 v{40+4*t_+r}, s59, v{124+4*t_+r}, v{b+r}")
a("v_max3_i32 v8, v40, v41, v42\nv_med3_i32 v9, v40, v41, v42\nv_max3_i32 v10, v43, v44, v45\nv_med3_i32 v11, v43, v44, v45\nv_max_i32 v12, v46, v47\nv_min_i32 v13, v46, v47")
a("v_max3_i32 v48, v8, v10, v12\nv_med3_i32 v49, v8, v10, v12\nv_max3_i32 v9, v9, v11, v13\nv_max_i32 v49, v49, v9")
for it in range(4):
    a(f"v_max_i32_dpp v{52+it}, v48, v48 row_ror:8 {DPPM}")
    for s_ in (4,2,1): a(f"v_max_i32_dpp v{52+it}, v{52+it}, v{52+it} row_ror:{s_} {DPPM}")
    if it<3: a(f"v_cmp_eq_u32 vcc, v48, v{52+it}\nv_cndmask_b32 v48, v48, v49, vcc\nv_cndmask_b32 v49, v49, v140, vcc")
a(f"ds_write_b128 v132, v[52:55] offset:{S_GM}\ns_waitcnt lgkmcnt(0)\ns_barrier")
stamp(9)
a(f"ds_read_b32 v32, v133 offset:{S_GM}")
for q in range(4): a(f"ds_read_b128 {vr(8+4*q)}, v134 offset:{S_GM+16*q}")
a("v_mov_b32 v33, 0\nv_mov_b32 v34, 0")
for q in range(4):
    lg(3-q)
    for e_ in range(4): a(f"v_cmp_gt_i32_e64 s[{16+2*e_}:{17+2*e_}], v{8+4*q+e_}, v32")
    for e_ in range(4): a(f"v_addc_co_u32_e64 v{33+(e_&1)}, s[24:25], 0, v{33+(e_&1)}, s[{16+2*e_}:{17+2*e_}]")
a("v_add_u32 v33, v33, v34\nv_mov_b32 v34, v33\nv_and_b32 v32, 0x7ff, v32\nv_permlane32_swap_b32 v33, v34\nv_add_u32 v33, v33, v34\nv_mov_b32 v34, v33\nv_permlane16_swap_b32 v33, v34\nv_add_u32 v33, v33, v34")
a(f"v_lshlrev_b32 v33, 2, v33\nds_write_b32 v33, v32 offset:{S_X}\ns_waitcnt lgkmcnt(0)\ns_barrier\ns_cmp_lg_u32 s3, 0\ns_cbranch_scc1 L_fin\nds_read_b128 v[8:11], v136 offset:{S_X}\ns_waitcnt vmcnt(0)\nv_cmp_ne_u32 vcc, s6, v142\ns_cbranch_vccz L_sg")
gowait(8,3072)
a("L_sg:\ns_waitcnt lgkmcnt(0)\nglobal_store_dwordx4 v135, v[8:11], s[40:41] sc1")
stamp(10)
a("s_branch L_fin")
a("L_fx:")
if opt("fdel",2): a(f"s_sleep {opt('fdel',2)}")
a("s_cmp_ge_u32 s14, 216\ns_cbranch_scc1 L_f2")
a("s_sub_u32 s49, s14, 160\ns_and_b32 s50, s49, 7\ns_lshr_b32 s56, s49, 4\ns_lshl3_add_u32 s50, s56, s50\ns_lshl1_add_u32 s50, s50, s5\ns_cmp_ge_u32 s49, 48\ns_cselect_b32 s50, s49, s50")
a(f"s_mul_i32 s56, s3, 80\ns_lshl_b32 s57, s50, 6\nv_lshrrev_b32 v4, 2, v1\nv_mul_u32_u24 v6, 80, v4\nv_add_u32 v4, s56, v4\nv_and_b32 v5, 3, v0\nv_lshl_add_u32 v7, v5, 4, s57\ns_movk_i32 s56, 3456")
for i_ in range(5): a(f"v_add_u32 v5, {16*i_}, v4\nv_lshrrev_b32 v13, 5, v5\nv_and_b32 v5, 31, v5\nv_mad_u32_u24 v5, v5, 20, v13\nv_mad_u32_u24 v{8+i_}, v5, s56, v7")
a(f"s_mul_i32 s58, s3, 5120\ns_add_u32 s59, s58, {UPO}\ns_bitcmp1_b32 s50, 0\ns_cselect_b64 s[8:9], s[32:33], s[30:31]\ns_cselect_b64 s[10:11], s[30:31], s[32:33]\ns_cselect_b32 s60, s59, s58\ns_cselect_b32 s61, s58, s59")
for h in range(2):
    for i_ in range(5):
        a(f"s_add_u32 m0, s{60+h}, {1024*i_}\nglobal_load_lds_dwordx4 v{8+i_}, s[{8+2*h}:{9+2*h}]")
a(f"v_add_u32 v89, {L_FT+TO_W}, v6\nv_lshlrev_b32 v161, 4, v3\nv_add_u32 v161, {STAT}, v161\ns_mov_b32 s22, {fhex(1/640)}\nv_mov_b32 v158, {fhex(1e-5)}")
a(f"v_add_u32 v160, {HN}, v157\ns_mul_i32 s16, s3, 3072\nv_add_u32 v162, s16, v160\ns_add_u32 s17, s16, {L_XS}\ns_mov_b64 s[20:21], 0xffff")
a(f"v_mul_u32_u24 v165, {XSS}, v3\nv_lshl_add_u32 v165, v2, 4, v165\nv_add_u32 v165, {L_XS}, v165")
a(f"s_lshl2_add_u32 s16, s50, s3\ns_lshl_b32 s16, s16, 7\ns_add_u32 s16, s16, {ACT}\nv_and_b32 v164, 7, v0\nv_lshl_add_u32 v164, v164, 4, s16\nv_lshrrev_b32 v166, 3, v3\nv_mul_u32_u24 v166, 27648, v166\nv_add_u32 v164, v164, v166\nv_and_b32 v166, 1, v2\nv_lshl_add_u32 v164, v166, 3, v164\nv_lshrrev_b32 v166, 1, v2\nv_lshl_add_u32 v164, v166, 2, v164")
a(f"s_lshl_b32 s16, s49, 7\ns_add_u32 s16, s16, {H4}\nv_mov_b32 v167, s16\nv_mov_b32 v159, {L_VD}\ns_mov_b32 s62, 0")
a(f"v_and_b32 v4, 1, v0\nv_lshlrev_b32 v4, 3, v4\nv_bfe_u32 v5, v0, 1, 1\nv_mul_u32_u24 v5, {UPO}, v5\ns_lshl_b32 s56, s3, 4\nv_add3_u32 v7, v4, v5, s56")
stamp(3)
a("s_waitcnt vmcnt(0)\ns_barrier")
stamp(4)
a("s_cmp_ge_u32 s3, 4\ns_cbranch_scc1 L_f1w")
for i_ in range(5): a(f"ds_read_b128 {vr(104+4*i_)}, v89 offset:{16*i_}")
a("s_waitcnt lgkmcnt(0)")
for k in range(20):
    a(f"v_add_u32_sdwa v4, v{104+k}, v7 {SD.format(0)}\nv_add_u32_sdwa v5, v{104+k}, v7 {SD.format(1)}")
    a(f"ds_read_b64_tr_b16 v[{8+4*k}:{9+4*k}], v4\nds_read_b64_tr_b16 v[{10+4*k}:{11+4*k}], v5")
for i_ in range(4): a(f"v_mov_b32 v{88+i_}, 0x3f803f80")
a("s_waitcnt lgkmcnt(0)")
for k in range(20): a(f"{MF} v[152:155], {vr(8+4*k)}, v[88:91], {'0' if k==0 else 'v[152:155]'}")
a("L_f1w:")
stamp(5)
a("s_barrier")
stamp(14)
if opt("pre4",0): a(f"s_sleep {opt('pre4',0)}")
a("L_f1p:\ns_cmp_eq_u32 s3, 7\ns_cbranch_scc1 L_f1q\ns_mov_b32 m0, s17")
for o in range(3): a(f"global_load_lds_dwordx4 v162, s[40:41] offset:{1024*o} sc1")
a("s_waitcnt vmcnt(0)\nL_f1q:")
stamp(15)
a(f"s_barrier\ns_cmp_lt_u32 s3, 4\ns_cbranch_scc1 L_p4\ns_cmp_lg_u32 s3, 7\ns_cbranch_scc1 L_p4e\ns_cmp_ge_u32 s49, {NH4}\ns_cbranch_scc1 L_p4e")
store1(167,167)
a("s_branch L_p4e\nL_p4:")
NR=12
def p4mm():
    for i_ in range(NR): a(f"ds_read_b128 {vr(92+4*i_)}, v165 offset:{64*i_}")
    for i_ in range(20):
        issued=min(20,NR+max(0,i_-1))
        a(f"s_waitcnt lgkmcnt({issued-i_-1})\n{MF} v[144:147], {vr(8+4*i_)}, {vr(92+4*(i_%(NR+1)))}, {'0' if i_==0 else 'v[144:147]'}")
        if i_>=1 and NR+i_-1<20: a(f"ds_read_b128 {vr(92+4*((NR+i_-1)%(NR+1)))}, v165 offset:{64*(NR+i_-1)}")
poll(["global_load_dwordx2 v[88:89], v161, s[40:41] sc1"],[88,89],opt("sl4",2),90,between=p4mm)
a("v_mul_f32 v88, s22, v88\nv_fma_f32 v90, v89, s22, v158\nv_fma_f32 v90, -v88, v88, v90\nv_max_f32 v90, v90, v158\nv_rsq_f32 v90, v90")
a("v_pk_fma_f32 v[144:145], v[152:153], v[88:89], v[144:145] op_sel_hi:[1,0,1] neg_lo:[1,0,0] neg_hi:[1,0,0]\nv_pk_fma_f32 v[146:147], v[154:155], v[88:89], v[146:147] op_sel_hi:[1,0,1] neg_lo:[1,0,0] neg_hi:[1,0,0]")
a("v_pk_mul_f32 v[144:145], v[144:145], v[90:91] op_sel_hi:[1,0]\nv_pk_mul_f32 v[146:147], v[146:147], v[90:91] op_sel_hi:[1,0]")
a("v_permlane32_swap_b32 v144, v146\nv_permlane32_swap_b32 v145, v147")
a("v_mul_f32 v148, 0xbfb8aa3b, v144\nv_mul_f32 v149, 0xbfb8aa3b, v145\nv_exp_f32 v148, v148\nv_exp_f32 v149, v149\nv_cmp_u_f32 vcc, v144, v146\nv_mul_f32 v144, v144, v146\nv_mul_f32 v145, v145, v147")
a("v_add_f32 v148, 1.0, v148\nv_add_f32 v149, 1.0, v149\nv_rcp_f32 v148, v148\nv_rcp_f32 v149, v149\nv_mul_f32 v144, v144, v148\nv_mul_f32 v145, v145, v149\nv_cvt_pk_bf16_f32 v144, v144, v145")
a("s_and_b64 vcc, vcc, s[20:21]\ns_cbranch_vccnz L_p4r\nL_p4s:\nglobal_store_dword v164, v144, s[40:41] sc1")
tail.append(f"L_p4r:\ns_add_u32 s15, s15, 1\ns_cmp_lt_u32 s15, {LIMIT}\ns_cbranch_scc0 L_p4s\ns_and_b32 s16, vcc_lo, s20\nL_p4t:\ns_ff1_i32_b32 s18, s16\ns_bitset0_b32 s16, s18\ns_mulk_i32 s18, {XSS}\nv_add_u32 v4, s18, v160\ns_add_u32 m0, s18, {L_XS}\ns_nop 0\nglobal_load_lds_dwordx4 v4, s[40:41] sc1\nglobal_load_lds_dwordx4 v4, s[40:41] offset:256 sc1\ns_cmp_lg_u32 s16, 0\ns_cbranch_scc1 L_p4t\ns_waitcnt vmcnt(0)\ns_branch L_p4")
stamp(16)
a("L_p4e:\ns_cmp_lg_u32 s62, 0\ns_cbranch_scc1 L_fin\ns_barrier\nds_read_b32 v4, v159\ns_waitcnt lgkmcnt(0)\nv_readfirstlane_b32 s62, v4\ns_cmp_eq_u32 s62, 0\ns_cbranch_scc1 L_fin")
a(f"v_add_u32 v162, {HN8-HN}, v162\nv_add_u32 v160, {HN8-HN}, v160\nv_add_u32 v164, {ACT2-ACT}, v164\nv_and_b32 v4, 7, v0\nv_mul_u32_u24 v165, {XSS}, v4\nv_lshl_add_u32 v165, v2, 4, v165\nv_add_u32 v165, {L_XS}, v165\nv_lshlrev_b32 v161, 4, v4\nv_add_u32 v161, {STAT8}, v161\ns_movk_i32 s20, 0xff\ns_branch L_f1p")
a("L_bf8:\ns_cmp_lt_u32 s14, 216\ns_cbranch_scc1 L_fin\nL_f2:")
a(f"s_sub_u32 s49, s14, 216\ns_and_b32 s52, s49, 7\ns_lshr_b32 s50, s49, 3\ns_and_b32 s56, s49, 3\ns_lshr_b32 s57, s49, 2\ns_cmp_ge_u32 s49, 32\ns_cselect_b32 s50, s56, s50\ns_cselect_b32 s52, s57, s52")
a(f"s_lshr_b32 s51, s50, 1\ns_lshl1_add_u32 s51, s52, s51\ns_lshl_b32 s51, s51, 6\ns_and_b32 s53, s50, 1\nv_mov_b32 v159, {L_VD}\nv_bfe_u32 v7, v0, 3, 1\ns_cmp_ge_u32 s3, 8\ns_cbranch_scc1 L_f2e")
a("v_lshrrev_b32 v4, 2, v1\nv_mul_u32_u24 v4, 1280, v4\nv_and_b32 v5, 3, v0\nv_lshl_add_u32 v4, v5, 4, v4\ns_mul_i32 s56, s3, 81920\ns_add_u32 s56, s56, s51\nv_add_u32 v4, s56, v4\ns_lshl_b32 s58, s3, 14")
a("s_cmp_ge_u32 s3, 3\ns_cselect_b32 s61, 2, 3\ns_mov_b32 s62, 0")
for i_ in range(4):
    a(f"s_add_u32 s59, s50, {i_}\ns_and_b32 s59, s59, 3\ns_cmp_gt_u32 s59, s61\ns_cbranch_scc1 L_f2s{i_}\ns_mul_i32 s60, s59, 655360\ns_lshl_b32 s59, s59, 12\ns_add_u32 m0, s59, s58\nv_add_u32 v5, s60, v4\nglobal_load_lds_dwordx4 v5, s[34:35]")
    for q in range(3): a(f"s_add_u32 m0, m0, 1024\nv_add_u32 v5, 20480, v5\nglobal_load_lds_dwordx4 v5, s[34:35]")
    a(f"L_f2s{i_}:")
a(f"s_mul_i32 s17, s53, 27648\ns_lshl_b32 s16, s3, 10\ns_add_u32 s17, s17, s16\ns_add_u32 s17, s17, {ACT}\nv_lshl_add_u32 v104, v6, 4, s17\nv_lshl_add_u32 v104, v2, 7, v104\nv_lshl_add_u32 v104, v7, 9, v104")
a(f"v_add_u32 v105, 0x2000, v104\nv_add_u32 v106, 0x4000, v104\ns_lshl_b32 s61, s61, 13\nv_add_u32 v107, s61, v104\ns_add_u32 s16, s16, {L_RED}\nv_add_u32 v157, s16, v157\nv_cmp_eq_u32_e64 s[20:21], 1, v7")
a("v_lshrrev_b32 v4, 2, v3\nv_lshl_add_u32 v4, v2, 3, v4\nv_lshlrev_b32 v4, 6, v4\nv_and_b32 v5, 3, v0\nv_lshl_add_u32 v4, v5, 3, v4\nv_add_u32 v4, s58, v4")
stamp(3)
a("s_waitcnt vmcnt(0)")
stamp(4)
for k in range(8):
    for t_ in range(2):
        b=8+8*k+4*t_
        a(f"ds_read_b64_tr_b16 v[{b}:{b+1}], v4 offset:{2048*k+32*t_}\nds_read_b64_tr_b16 v[{b+2}:{b+3}], v4 offset:{2048*k+32*t_+256}")
a("s_waitcnt lgkmcnt(0)\ns_cmp_lt_u32 s3, 3\ns_cbranch_scc1 L_p5a")
for i_ in range(16): a(f"v_mov_b32 v{56+i_}, 0")
a("L_p5a:\ns_barrier")
stamp(5)
a("s_barrier")
stamp(14)
if opt("pre5",0): a(f"s_sleep {opt('pre5',0)}")
a("L_f2p:")
ck="s_mov_b64 exec, -1\n"
for i_ in range(4):
    b=72+4*i_
    ck+=f"s_waitcnt vmcnt({3-i_})\n"
    for h in range(2):
        for t_ in range(2):
            ac=88+8*t_+4*h
            ck+=f"{MF} {vr(ac)}, {vr(8+16*i_+8*h+4*t_)}, {vr(b)}, {'0' if i_==0 else vr(ac)}\n"
        if h==0: ck+=(f"v_max_u32 v114, v{b}, v{b+1}\n" if i_==0 else f"v_max3_u32 v114, v114, v{b}, v{b+1}\n")+f"v_max3_u32 v114, v114, v{b+2}, v{b+3}\n"
ck+="v_cmp_eq_u32 vcc, -1, v114"
poll([f"global_load_dwordx4 {vr(72+4*i_)}, v{104+i_}, s[40:41] sc1" for i_ in range(4)],None,opt("sl5",2),None,chk=ck,wait=1)
stamp(15)
for r in range(4): a(f"v_add_f32_dpp v{88+r}, v{92+r}, v{88+r} row_ror:8 row_mask:0xf bank_mask:0x3")
for r in range(4): a(f"v_add_f32_dpp v{88+r}, v{96+r}, v{100+r} row_ror:8 row_mask:0xf bank_mask:0xc")
a(f"ds_write_b128 v157, v[88:91]\ns_waitcnt lgkmcnt(0)\ns_barrier\ns_cmp_lg_u32 s62, 0\ns_cbranch_scc1 L_fin\nds_read_b32 v4, v159\ns_waitcnt lgkmcnt(0)\nv_readfirstlane_b32 s62, v4\ns_cmp_eq_u32 s62, 0\ns_cbranch_scc1 L_fin")
for i_ in range(4): a(f"v_add_u32 v{104+i_}, {ACT2-ACT}, v{104+i_}")
a("s_branch L_f2p\nL_f2e:")
a(f"s_and_b32 s56, s3, 1\ns_lshl_b32 s57, s56, 5\ns_add_u32 s51, s51, s57\nv_lshlrev_b32 v104, 7, v6\nv_add_u32 v104, {META}, v104\nv_mul_u32_u24 v105, 1280, v6\nv_lshl_add_u32 v106, v2, 3, s51\nv_add_u32 v105, v105, v106\nv_add_u32 v105, {BASE}, v105")
a(f"s_lshl_b32 s56, s56, 7\ns_add_u32 s56, s56, {L_RED}\nv_lshl_add_u32 v107, v2, 8, s56\nv_lshl_add_u32 v107, v7, 12, v107\ns_mov_b32 s18, 0x00ff00ff\ns_mov_b32 s19, 0x00ff00ff")
a("s_setprio 3\ns_barrier\ns_barrier")
poll(["global_load_dwordx4 v[60:63], v104, s[40:41] sc1","global_load_dwordx2 v[58:59], v105, s[40:41] sc1"],range(58,64),opt("slm",2),114)
a("v_cmp_lt_u32 vcc, 15, v62\nv_lshlrev_b32 v64, 16, v58\nv_and_b32 v65, 0xffff0000, v58\nv_mov_b32 v4, vcc_lo\nds_write_b32 v159, v4\nv_lshlrev_b32 v66, 16, v59\nv_and_b32 v67, 0xffff0000, v59")
a("v_and_b32 v60, 2047, v60\nv_mul_u32_u24 v60, 1280, v60\nv_add_u32 v60, v60, v106\ns_waitcnt lgkmcnt(0)\ns_cbranch_vccz L_hit\nv_mov_b32 v62, v6\ns_barrier\nL_hit:")
a("v_lshrrev_b32 v4, 3, v62\nv_cmp_eq_u32 vcc, s53, v4\nv_and_b32 v62, 7, v62\nv_lshl_add_u32 v62, v62, 4, v107\ns_and_b64 s[18:19], s[18:19], vcc")
stamp(13)
a("s_barrier")
for i_ in range(4): a(f"ds_read_b128 {vr(72+4*i_)}, v62 offset:{1024*i_}")
a("s_waitcnt lgkmcnt(0)")
a("v_pk_add_f32 v[72:73], v[72:73], v[76:77]\nv_pk_add_f32 v[74:75], v[74:75], v[78:79]\nv_pk_add_f32 v[80:81], v[80:81], v[84:85]\nv_pk_add_f32 v[82:83], v[82:83], v[86:87]\nv_pk_add_f32 v[72:73], v[72:73], v[80:81]\nv_pk_add_f32 v[74:75], v[74:75], v[82:83]")
for i_ in range(4): a(f"v_add_f32_dpp v{72+i_}, v{72+i_}, v{72+i_} row_ror:8 {DPPM}")
for i_ in range(4): a(f"v_fma_f32 v{72+i_}, v{72+i_}, v61, v{64+i_}")
a(f"v_cvt_pk_bf16_f32 v72, v72, v73\nv_cvt_pk_bf16_f32 v73, v74, v75\ns_mov_b64 exec, s[18:19]\ns_cbranch_execz L_f2z\nglobal_store_dwordx2 v60, v[72:73], s[36:37] {OUTF}\nL_f2z:\ns_mov_b64 exec, -1")
stamp(16)
a("L_fin:")
if STAMP:
    a("s_waitcnt vmcnt(0)")
    stamp(17)
    if "probe" in kw:
        k=int(kw["probe"])
        a(f"s_waitcnt lgkmcnt(0)\ns_cmp_ge_u32 s3, {opt('pw',4)}\ns_cbranch_scc1 L_end\ns_cmp_lt_u32 s3, {opt('pw0',0)}\ns_cbranch_scc1 L_end\ns_cmp_lt_u32 s2, {opt('plo',0)}\ns_cbranch_scc1 L_end\ns_cmp_ge_u32 s2, {opt('phi',256)}\ns_cbranch_scc1 L_end")
        a(f"s_add_u32 s16, s{64+2*k}, 4000\nL_spin:\ns_sleep 1\ns_memrealtime s[18:19]\ns_waitcnt lgkmcnt(0)\ns_sub_u32 s17, s16, s18\ns_cmp_lt_u32 s17, 4001\ns_cbranch_scc1 L_spin\ns_endpgm")
    else:
        a(f"s_waitcnt lgkmcnt(0)")
        for k in range(NST): a(f"v_writelane_b32 v5, s{64+2*k}, {k}")
        a(f"v_writelane_b32 v5, s15, 31\ns_mul_i32 s16, s2, {NW}\ns_add_u32 s16, s16, s3\ns_lshl_b32 s16, s16, 7\ns_add_u32 s16, s16, {WS_STAMP}\nv_lshl_add_u32 v4, v1, 2, s16\ns_mov_b32 exec_hi, 0\nglobal_store_dword v4, v5, s[40:41]")
a("L_end:\ns_endpgm")
flush_tail()
if opt("now",0): a.L=[l for l in a.L if not ("global_load_lds" in l and "s[4" not in l)]
if kw.get("wf"): a.L=[l+" "+kw["wf"] if ("global_load_lds" in l and "s[42:43]" not in l) else l for l in a.L]
if opt("noy",0): a.L=[l for l in a.L if not l.startswith("global_store_dwordx4 v7, v[12:15]")]
if opt("noi",0): a.L=[l for l in a.L if not l.startswith("global_store_dwordx4 v5, v[12:15]")]
body=a.finish()
small=np.zeros(1536,np.uint16)
small[0:768]=T.t_pm().reshape(-1); small[768:768+640]=T.t_w().reshape(-1)
tab=".p2align 7\n.type T_0,@object\nT_0:\n"+T.emit(small)+"T_end:\n"
txt=f"""; FNet (hidden DFT 20x32, sequence DFT 8x256 with real/Hermitian folding) + LayerNorm + top-8 SwiGLU, one persistent launch.
; @launch grid=(256,1,1) block=({64*NW},1,1) lds={LDS_BYTES}
.amdgcn_target "amdgcn-amd-amdhsa--gfx950"
.text
.globl {KN}
.p2align 8
.type {KN},@function
{body}
{tab}.section .rodata,"a"
.p2align 6
.amdhsa_kernel {KN}
  .amdhsa_next_free_vgpr 168
  .amdhsa_next_free_sgpr 102
  .amdhsa_accum_offset 168
  .amdhsa_group_segment_fixed_size 0
  .amdhsa_kernarg_size 104
  .amdhsa_user_sgpr_count 2
  .amdhsa_user_sgpr_kernarg_segment_ptr 1
  .amdhsa_system_sgpr_workgroup_id_x 1
.end_amdhsa_kernel
"""
open(outp,"w").write(txt)
print("nops inserted",a.nops,"bytes",len(txt),file=sys.stderr)
```

```python
import sys, struct
sys.path.insert(0,"gen")
from asmlib import Asm
import tables4 as T
import numpy as np
KN="sequential_preLN__spectral_fnet__moe_arch_mod__prompt_kernel"
kw=dict(a.split("=") for a in sys.argv[2:])
outp=sys.argv[1]
STAMP=int(kw.get("stamp",0))
def opt(n,d): return int(kw.get(n,d))
def fhex(f): return hex(struct.unpack("<I",struct.pack("<f",f))[0])
WS_GO=0x14000; WS_FA=0x8000; WS_F3=0x1C000; EXT=0x10000; WS_I=0x20000; WS_Y=0x160000; WS_STAMP=0x300000
WS_SMALL=0x2A0000; KEYS=WS_SMALL; HN=KEYS+0x2000; HN8=HN+0x5400; BASE=HN8+0x5400; META=BASE+0x2800; LIST=META+0x400; META2=WS_SMALL+128*1536-0x800; H3=LIST+0x800; STAT=H3+0x800; STAT8=STAT+0x100; H4=STAT+0x200; ACT=H4+0x1000; ACT2=ACT+0xD800
assert ACT2+0xD800<=WS_SMALL+128*1536
TO_PM=0; TO_W=1536; TO_P2=3072
U=T.US; RS=T.RS
L_ZERO=20480; L_SUM=21504; L_SQ=21568; L_ST3=21632; L_CNT=21952; L_SM=22528; L_WP=23552; L_PM=25088; L_XP=27136; L_P2=0; L_TAB=52224
L_XS=82048; XSS=opt("xss",1312); UPO=40992; L_RED=131072; L_VD=L_RED+8192; LDS_BYTES=L_VD+64; L_EX=51904; L_R20=53248; L_SQ4=22016
LIMIT=40000; NW=11
OUTF=kw.get("outf","sc1").replace("+"," "); OUTG=kw.get("outg","").replace("+"," ")
a=Asm()
NST=18
def stamp(k):
    if STAMP: a(f"s_memrealtime s[{64+2*k}:{65+2*k}]")
def lg(n): a(f"s_waitcnt lgkmcnt({0 if STAMP else n})")
pc=[0]; tail=[]
def poll(loads, regs, sleep, tmp, between=None, chk=None, wait=None):
    k=pc[0]; pc[0]+=1
    for l in loads: a(l)
    if between: between()
    a(f"LW{k}:" if wait else f"LW{k}:\ns_waitcnt vmcnt(0)\nLV{k}:")
    if chk: a(chk)
    else:
        r=list(regs)
        if len(r)==1: tmp=r[0]; r=[]
        elif len(r)%2==1: a(f"v_max3_u32 v{tmp}, v{r[0]}, v{r[1]}, v{r[2]}"); r=r[3:]
        else: a(f"v_max_u32 v{tmp}, v{r[0]}, v{r[1]}"); r=r[2:]
        while r: a(f"v_max3_u32 v{tmp}, v{tmp}, v{r[0]}, v{r[1]}"); r=r[2:]
        a(f"v_cmp_eq_u32 vcc, -1, v{tmp}")
    a(f"s_cbranch_vccnz LR{k}\nLD{k}:\ns_mov_b64 exec, -1")
    tail.append(f"LR{k}:\ns_add_u32 s15, s15, 1\ns_cmp_lt_u32 s15, {LIMIT}\ns_cbranch_scc0 LD{k}\ns_mov_b64 exec, vcc\n"+(f"s_sleep {sleep}\n" if sleep else "")+"\n".join(loads)+f"\ns_branch LW{k}")
def flush_tail():
    for t in tail: a(t)
    tail.clear()
DPPM="row_mask:0xf bank_mask:0xf"
MF="v_mfma_f32_16x16x32_bf16"
SD="dst_sel:DWORD dst_unused:UNUSED_PAD src0_sel:WORD_{} src1_sel:DWORD"
NEG="neg_lo:[0,1] neg_hi:[0,1]"
def vr(b,n=4): return f"v[{b}:{b+n-1}]"
def read_pm():
    a(f"ds_read_b128 v[144:147], v159 offset:{L_PM}\nds_read_b128 v[148:151], v159 offset:{L_PM+16}\nds_read_b64 v[152:153], v159 offset:{L_PM+32}")
def scatter(base):
    for i in range(10):
        t=4+2*(i&1)
        a(f"v_add_u32_sdwa v{t}, v{144+i}, v{base} {SD.format(0)}\nv_add_u32_sdwa v{t+1}, v{144+i}, v{base} {SD.format(1)}")
        a(f"ds_write_b16 v{t}, v{8+i}\nds_write_b16_d16_hi v{t+1}, v{8+i}")
def store1(addr,val):
    a(f"s_mov_b64 exec, 1\nglobal_store_dword v{addr}, v{val}, s[40:41] sc1\ns_mov_b64 exec, -1")

def p2addr():
    a(f"s_and_b32 s62, s2, 7\ns_lshr_b32 s56, s2, 4\ns_mul_i32 s57, s62, 10\ns_add_u32 s57, s57, s56\ns_lshl_b32 s57, s57, 14\ns_add_u32 s57, s57, {WS_I}")
    a("v_lshl_add_u32 v112, v0, 4, s57\nv_add_u32 v113, 0x2000, v112")
    a("v_lshlrev_b32 v6, 1, v0\nv_and_b32 v6, 32, v6\nv_and_b32 v7, 64, v0\nv_or_b32 v6, v6, v7\nv_lshlrev_b32 v7, 4, v0\nv_xor_b32 v114, v6, v7")
    a(f"s_lshl_b32 s56, s56, 7\ns_add_u32 s56, s56, {WS_Y}\ns_lshl_b32 s58, s3, 8\ns_add_u32 s58, s58, s5\ns_lshl2_add_u32 s59, s62, s58\ns_mulk_i32 s59, 1280\ns_add_u32 s59, s59, s56")
    a("s_lshl_b32 s60, s62, 2\ns_add_u32 s60, s60, 995\ns_sub_u32 s60, s60, s58\ns_mulk_i32 s60, 1280\ns_add_u32 s60, s60, s56\ns_add_u32 s60, s60, 64")
    a("v_and_b32 v4, 7, v0\nv_mul_u32_u24 v4, 40960, v4\nv_lshrrev_b32 v5, 3, v3\nv_lshl_add_u32 v4, v5, 6, v4\nv_lshlrev_b32 v5, 4, v2\nv_add3_u32 v120, v4, v5, s59\nv_sub_u32 v121, s60, v4\nv_add_u32 v121, v121, v5")
    a("v_lshrrev_b32 v5, 2, v3\nv_lshl_add_u32 v4, v2, 3, v5\nv_lshlrev_b32 v4, 7, v4\nv_and_b32 v5, 3, v0\nv_lshl_add_u32 v4, v5, 3, v4")
    a(f"v_bfe_u32 v5, v0, 3, 2\nv_lshl_add_u32 v116, v5, 5, v4\nv_xor_b32 v117, 64, v116\nv_xor_b32 v118, 32, v116\nv_xor_b32 v119, 96, v116")
def yoff(dst,t):
    a(f"s_and_b32 {dst}, {t}, 255\ns_lshr_b32 s59, {t}, 9\ns_lshl2_add_u32 {dst}, {dst}, s59\ns_mulk_i32 {dst}, 1280\ns_bfe_u32 s59, {t}, 0x10008\ns_lshl_b32 s59, s59, 6\ns_add_u32 {dst}, {dst}, s59\ns_add_u32 {dst}, {dst}, {WS_Y}")
def p3addrA():
    a(f"s_movk_i32 s62, {U}\nv_lshrrev_b32 v4, 3, v1\nv_and_b32 v5, 7, v0\nv_lshlrev_b32 v5, 3, v5\nv_mad_u32_u24 v122, v4, s62, v5")
    a(f"v_lshl_add_u32 v128, v4, 7, v5\nv_lshlrev_b32 v5, 2, v3\nv_mad_u32_u24 v123, v2, s62, v5\nv_lshl_add_u32 v130, v2, 7, v5")
    a(f"v_cmp_eq_u32 vcc, 0, v2\nv_add_u32 v124, {18*U}, v122\nv_subrev_u32 v4, {2*U}, v122\nv_cndmask_b32 v124, v4, v124, vcc")
    a("v_add_u32 v125, s51, v122\nv_add_u32 v126, s51, v123\nv_add_u32 v127, s51, v124")
def p3addrB():
    a("v_cmp_eq_u32 vcc, 0, v2\nv_lshlrev_b32 v138, 3, v1\nv_add_u32 v139, 512, v138\nv_lshlrev_b32 v140, 2, v1\nv_add_u32 v143, 384, v140\nv_add_u32 v140, 1024, v140\nv_add_u32 v141, 640, v138\nv_add_u32 v142, 1152, v138\nv_subrev_u32 v4, 128, v138\nv_cndmask_b32 v142, v4, v142, vcc")
    yoff("s56","s46")
    a("s_sub_u32 s58, 2048, s46\ns_and_b32 s58, s58, 2047")
    yoff("s57","s58")
    a("s_add_u32 s62, s56, 1024\ns_sub_u32 s59, s57, 256\nv_mov_b32 v129, s59\nv_mov_b32 v4, s62\nv_cndmask_b32 v129, v129, v4, vcc\nv_add_u32 v129, v129, v128\nv_add_u32 v128, s56, v128\ns_add_u32 s62, s57, 768\nv_add_u32 v130, s62, v130")
    a("v_cmp_eq_u32 vcc, 21, v1\nv_mov_b32 v132, 0xffff\nv_lshlrev_b32 v137, 4, v3\nv_cndmask_b32 v131, -1, v132, vcc\nv_cmp_eq_u32 vcc, 5, v1\ns_lshl_b32 s57, s2, 4\nv_add_u32 v135, s57, v3\nv_cndmask_b32 v132, -1, v132, vcc")
    a("s_lshl_b32 s57, s48, 4\nv_lshl_add_u32 v133, v2, 2, s57\ns_add_u32 s57, s57, 16\ns_cmp_eq_u32 s50, 0\ns_cselect_b32 s57, 272, s57\nv_lshl_add_u32 v134, v2, 2, s57\ns_mov_b32 s63, 0x3f803f80")
    a(f"v_lshlrev_b32 v136, 2, v135\nv_add_u32 v136, {KEYS}, v136")
    for i in AC: a(f"v_mov_b32 v{i}, 0")
AC=[108,109,110,111,160,161,162,163,164,165,166,167]
PMA="v_and_b32 v159, 7, v0\nv_lshl_add_u32 v159, v2, 3, v159\nv_mul_u32_u24 v159, 48, v159"
def gentab(first="s_lshl3_add_u32 s56, s5, s3",tb=56):
    a(first+"\ns_lshl_b32 s56, s56, 4\ns_add_u32 s56, s56, 1\nv_and_b32 v16, 7, v0\nv_lshl_add_u32 v16, v16, 1, s56\nv_and_b32 v17, 8, v0\nv_lshl_add_u32 v16, v17, 3, v16")
    a(f"v_cvt_f32_u32 v16, v16\nv_lshlrev_b32 v17, 3, v2\nv_cvt_f32_u32 v17, v17\nv_mul_f32 v16, {fhex(-1/512)}, v16\nv_cos_f32 v18, v16\nv_mul_f32 v17, v17, v16\nv_mul_f32 v20, {fhex(31.0)}, v16\nv_add_f32 v18, v18, v18")
    for k in range(4):
        a("v_cos_f32 v24, v17\nv_sin_f32 v25, v17\nv_add_f32 v17, v17, v16\nv_cos_f32 v26, v17\nv_sin_f32 v27, v17\nv_add_f32 v17, v17, v20")
        for j in range(2,8): a(f"v_pk_fma_f32 v[{24+2*j}:{25+2*j}], v[{22+2*j}:{23+2*j}], v[18:19], v[{20+2*j}:{21+2*j}] op_sel_hi:[1,0,1] neg_lo:[0,0,1] neg_hi:[0,0,1]")
        if k==0: a("v_lshlrev_b32 v21, 31, v0\nv_xor_b32 v21, -1.0, v21\nv_cmp_eq_u32 vcc, 0, v2\nv_cndmask_b32 v25, v25, v21, vcc")
        for h in range(4): a(f"v_cvt_pk_bf16_f32 v{tb+4*k+h}, v{24+4*h}, v{26+4*h}\nv_cvt_pk_bf16_f32 v{tb+16+4*k+h}, v{25+4*h}, v{27+4*h}")
def read_w():
    a(f"ds_read_b64 v[98:99], v122 offset:{L_WP}\nds_read_b64 v[100:101], v122 offset:{L_WP+8*U}\nds_read_b32 v102, v123 offset:{L_WP+16*U}\nds_read_b64 v[104:105], v122 offset:{L_WP+10*U}\nds_read_b64 v[106:107], v124 offset:{L_WP}\nds_read_b32 v103, v123 offset:{L_WP+6*U}")

a(f"{KN}:")
stamp(0)
a("s_load_dwordx2 s[16:17], s[0:1], 0\nv_lshrrev_b32 v4, 6, v0\ns_cmp_eq_u32 s2, 0\ns_cselect_b32 s4, 7, 8\nv_readfirstlane_b32 s3, v4\ns_lshr_b32 s7, s2, 7\ns_cbranch_scc1 L_bf")
a("s_setprio 3\nv_lshlrev_b32 v4, s4, v4\nv_add_u32 v4, s2, v4\nv_sub_u32 v5, 2048, v4\nv_and_b32 v7, 8, v0\nv_cmp_ne_u32 vcc, 0, v7\nv_lshrrev_b32 v7, 11, v5\nv_lshrrev_b32 v5, v7, v5\nv_cndmask_b32 v159, v4, v5, vcc")
a("v_mul_u32_u24 v158, 1280, v159\nv_and_b32 v7, 48, v0\nv_and_b32 v6, 7, v0\nv_lshl_add_u32 v158, v7, 2, v158\nv_lshl_add_u32 v158, v6, 3, v158\ns_cmp_ge_u32 s3, 8\ns_cbranch_scc1 L_nox\ns_waitcnt lgkmcnt(0)")
for i in range(5): a(f"global_load_dwordx2 v[{8+2*i}:{9+2*i}], v158, s[16:17] offset:{256*i}")
a("s_branch L_nox")
a("L_bf:\ns_load_dwordx2 s[40:41], s[0:1], 96\ns_getpc_b64 s[42:43]\nL_pc:\ns_cmp_lg_u32 s3, 0\ns_cbranch_scc1 L_bf0\ns_bfe_u32 s4, s2, 0x30003\ns_mulk_i32 s4, 3072\nv_lshrrev_b32 v4, 1, v0\nv_lshl_add_u32 v4, v4, 7, s4\nv_min_u32 v4, T_end-L_pc-4, v4\nglobal_load_dword v22, v4, s[42:43]\nL_bf0:\nv_and_b32 v6, 7, v0\ns_load_dwordx4 s[28:31], s[0:1], 48\ns_load_dwordx8 s[32:39], s[0:1], 64\ns_cmp_ge_u32 s2, 256\ns_cbranch_scc1 L_end")
a("v_and_b32 v1, 63, v0\nv_lshrrev_b32 v2, 4, v1\nv_and_b32 v3, 15, v0\nv_lshlrev_b32 v157, 4, v1\ns_bfe_u32 s5, s2, 0x10003\ns_mov_b32 s15, 0\ns_add_u32 s42, s42, T_0-L_pc\ns_addc_u32 s43, s43, 0\ns_sub_u32 s4, s2, 128\nv_mov_b32 v12, -1\nv_mov_b32 v13, -1\nv_mov_b32 v14, -1\nv_mov_b32 v15, -1\ns_cmp_lg_u32 s3, 10\ns_cbranch_scc1 L_bf1")
a(f"s_lshl_b32 s7, s4, 7\ns_add_u32 s7, s7, {EXT}\nv_add_u32 v5, s7, v157\ns_mul_i32 s7, s4, 1536\ns_add_u32 s7, s7, {WS_SMALL}\nv_add_u32 v7, s7, v157\nv_min_u32 v4, 9, v1\nv_lshlrev_b32 v4, 7, v4\ns_waitcnt lgkmcnt(0)\nglobal_load_dword v22, v4, s[28:29]\nglobal_store_dwordx4 v7, v[12:15], s[40:41] offset:512 sc1\ns_mov_b64 exec, 0xff\ns_branch L_bf2")
a("L_bf1:")
a(f"s_lshl_b32 s7, s3, 7\ns_add_u32 s7, s7, s4\ns_lshl_b32 s7, s7, 7\ns_add_u32 s7, s7, {WS_I}\nv_lshrrev_b32 v5, 3, v1\nv_mul_u32_u24 v5, 0x28000, v5\nv_lshl_add_u32 v5, v6, 4, v5\nv_add_u32 v5, s7, v5")
a(f"s_mul_i32 s7, s4, 10\ns_add_u32 s7, s7, s3\ns_lshl_b32 s7, s7, 10\ns_add_u32 s7, s7, {WS_Y}\nv_add_u32 v7, s7, v157")
a("L_bf2:\ns_waitcnt lgkmcnt(0)\ns_load_dword s6, s[40:41], 0\nglobal_store_dwordx4 v5, v[12:15], s[40:41] sc1\ns_mov_b64 exec, -1\ns_barrier\nglobal_store_dwordx4 v7, v[12:15], s[40:41] sc1")
stamp(1)
a("s_and_b32 s7, s2, 7\ns_lshl1_add_u32 s7, s7, s5\ns_add_u32 s8, s7, 208\ns_add_u32 s9, s7, 242\ns_cmp_lt_u32 s7, 6\ns_cselect_b32 s8, s8, s9\ns_sub_u32 s9, 229, s7\ns_cmp_ge_u32 s7, 14\ns_cselect_b32 s8, s9, s8")
a("s_cmp_lt_u32 s2, 208\ns_cselect_b32 s14, s2, s8\ns_sub_u32 s9, s2, 8\ns_cmp_ge_u32 s2, 224\ns_cselect_b32 s14, s9, s14")
a(f"s_lshl_b32 s7, s4, 7\ns_add_u32 s7, s7, {WS_FA}\nv_add_u32 v18, s7, v157\nv_lshrrev_b32 v4, 3, v1\nv_lshlrev_b32 v19, 15, v4\nv_lshrrev_b32 v4, 1, v4\nv_lshl_add_u32 v19, v4, 15, v19\nv_lshl_add_u32 v19, v6, 4, v19\ns_sub_u32 s7, s7, 0x4000\nv_add_u32 v19, s7, v19\ns_waitcnt lgkmcnt(0)\ns_add_u32 s6, s6, 1\nv_mov_b32 v8, s6\nv_mov_b32 v9, s6\nv_mov_b32 v10, s6\nv_mov_b32 v11, s6\ns_waitcnt vmcnt(1)\ns_barrier")
EK=opt("ek",1)
if EK: a("s_sub_u32 s49, s14, 160\ns_cmp_lt_u32 s49, 54\ns_cselect_b32 s7, s3, 9\ns_cmp_lt_u32 s7, 8\ns_cbranch_scc1 L_f1")
a("s_cmp_lg_u32 s3, 9\ns_cbranch_scc1 L_bf9\ns_mov_b64 exec, 0xffffff\nglobal_store_dwordx4 v19, v[8:11], s[40:41] sc1\ns_mov_b64 exec, -1\ns_waitcnt vmcnt(1)\ns_branch L_bfa\nL_bf9:\ns_waitcnt vmcnt(0)\nL_bfa:\ns_barrier")
stamp(2)
a("s_setprio 0\ns_cmp_lt_u32 s3, 8\ns_cbranch_scc1 L_bf3\ns_cmp_eq_u32 s3, 8\ns_cbranch_scc1 L_bf8\ns_cmp_eq_u32 s3, 9\ns_cbranch_scc1 L_agg")
a("s_mov_b64 exec, 0xff\nglobal_store_dwordx4 v18, v[8:11], s[40:41] sc1\ns_mov_b64 exec, -1")
a("s_cmp_lt_u32 s2, 160\ns_cbranch_scc1 L_flagchk\ns_and_b32 s7, s14, 254\ns_cmp_eq_u32 s7, 214\ns_cbranch_scc1 L_fin\ns_branch L_fw")
a("L_nox:\ns_setprio 0\ns_load_dwordx2 s[40:41], s[0:1], 96\ns_load_dwordx4 s[28:31], s[0:1], 48\ns_load_dwordx8 s[32:39], s[0:1], 64\ns_getpc_b64 s[42:43]\nL_pc2:")
stamp(1)
a("v_and_b32 v1, 63, v0\nv_lshrrev_b32 v2, 4, v1\nv_and_b32 v3, 15, v0\nv_lshlrev_b32 v157, 4, v1\ns_bfe_u32 s5, s2, 0x10003\ns_mov_b32 s15, 0\ns_add_u32 s42, s42, T_0-L_pc2\ns_addc_u32 s43, s43, 0\ns_cmp_eq_u32 s3, 10\ns_cbranch_scc1 L_a10")
a("v_readfirstlane_b32 s46, v4\nv_readfirstlane_b32 s47, v5\ns_lshl_b32 s48, s3, 1\ns_cmp_eq_u32 s3, 8\ns_cselect_b32 s48, 1, s48\ns_and_b32 s50, s46, 1023")
a("v_bfe_u32 v20, v0, 2, 1\nv_bfe_u32 v21, v0, 3, 2\nv_and_b32 v22, 3, v0\nv_lshl_add_u32 v24, v21, 2, v22\nv_lshl_add_u32 v24, v20, 4, v24\nv_mul_u32_u24 v24, 20, v24\nv_add_u32 v24, s3, v24\ns_cmp_lg_u32 s3, 0\ns_cbranch_scc1 L_wg")
a("v_lshrrev_b32 v24, 1, v21\nv_lshl_add_u32 v24, v20, 1, v24\nv_lshl_add_u32 v24, v24, 2, v22\nv_and_b32 v21, 1, v21\nv_lshl_add_u32 v24, v24, 1, 2\nv_sub_u32 v24, v24, v21\nv_mul_u32_u24 v24, 10, v24\nL_wg:")
a(f"v_sub_u32 v25, 640, v24\nv_cmp_eq_u32 vcc, 320, v24\nv_lshrrev_b32 v20, 5, v1\nv_and_b32 v21, 31, v0\nv_cndmask_b32_e64 v25, v25, 0, vcc\nv_cmp_eq_u32 vcc, 1, v20\ns_mul_i32 s49, s3, {U}\nv_lshl_add_u32 v115, v21, 1, s49\nv_cndmask_b32 v24, v24, v25, vcc\nv_lshlrev_b32 v87, 1, v24\nv_mul_u32_u24 v20, {10*U}, v20\nv_add_u32 v115, v115, v20")
a("s_cmp_ge_u32 s3, 8\ns_cbranch_scc1 L_gtrig")
a("v_lshrrev_b32 v161, 8, v159\nv_bfe_u32 v4, v159, 7, 1\nv_lshl_add_u32 v161, v4, 3, v161\nv_lshrrev_b32 v4, 2, v161\nv_sub_u32 v4, 0, v4\nv_and_b32 v4, 3, v4\nv_lshlrev_b32 v4, 1, v4\nv_xor_b32 v4, v4, v6\nv_mul_u32_u24 v160, 5120, v2\nv_lshl_add_u32 v160, v4, 3, v160\nv_lshl_add_u32 v160, v161, 6, v160\nv_lshlrev_b32 v161, 2, v161")
a("v_mov_b32 v23, 0\nv_mov_b32 v27, 0\nv_mov_b32 v31, 0\nv_mov_b32 v35, 0\nv_mov_b32 v18, 0\nv_mov_b32 v19, 0\ns_mov_b32 s52, 0x05040100\ns_mov_b32 s53, 0x07060302")
a(f"ds_write_b32 v161, v23 offset:{L_CNT}\nv_add_lshl_u32 v86, v161, v2, 2")
a(f"v_mov_b32 v162, {fhex(-1/32)}\nv_cmp_eq_u32 vcc, 0, v2\nv_cndmask_b32 v162, 0, v162, vcc")
a("L_gtrig:")
a("s_add_u32 s12, s3, 80\ns_cmp_eq_u32 s3, 0\ns_cselect_b32 s13, 4, 8\ns_cselect_b32 s14, 20, s3\ns_cselect_b32 s12, 10, s12")
a("v_lshrrev_b32 v44, 2, v3\nv_and_b32 v45, 3, v0\nv_mad_u32_u24 v44, v44, s13, v45\nv_mul_u32_u24 v44, 20, v44\nv_add_u32 v45, s12, v44\nv_add_u32 v44, s14, v44\nv_lshlrev_b32 v46, 3, v2")
a(f"v_cvt_f32_u32 v44, v44\nv_cvt_f32_u32 v45, v45\nv_cvt_f32_u32 v46, v46\nv_mul_f32 v44, {fhex(1/640)}, v44\nv_mul_f32 v45, {fhex(1/640)}, v45\nv_mul_f32 v47, v46, v45\nv_mul_f32 v46, v46, v44")
for tau in range(2):
    a(f"v_cos_f32 v48, v{46+tau}\nv_sin_f32 v49, v{46+tau}\nv_add_f32 v{46+tau}, v{46+tau}, v{44+tau}\nv_cos_f32 v64, v{44+tau}\nv_cos_f32 v50, v{46+tau}\nv_sin_f32 v51, v{46+tau}\nv_add_f32 v64, v64, v64")
    for j in range(2,8): a(f"v_pk_fma_f32 v[{48+2*j}:{49+2*j}], v[{46+2*j}:{47+2*j}], v[64:65], v[{44+2*j}:{45+2*j}] op_sel_hi:[1,0,1] neg_lo:[0,0,1] neg_hi:[0,0,1]")
    for h in range(4):
        a(f"v_cvt_pk_bf16_f32 v{88+8*tau+h}, v{48+4*h}, v{50+4*h}\nv_cvt_pk_bf16_f32 v{104+4*tau+h}, v{49+4*h}, v{51+4*h}\nv_xor_b32 v{92+8*tau+h}, 0x80008000, v{104+4*tau+h}")
a(f"s_barrier\nds_read_b128 v[36:39], v157 offset:{L_R20}\nds_read_b128 v[40:43], v157 offset:{L_R20+1024}")
a(f"s_lshl_b32 s49, s3, 11")
a("v_lshlrev_b32 v166, 4, v2\nv_lshrrev_b32 v4, 2, v3\nv_sub_u32 v4, 0, v4\nv_and_b32 v4, 3, v4\nv_xor_b32 v4, v4, v2\nv_lshlrev_b32 v4, 4, v4\nv_lshl_add_u32 v163, v3, 6, v4\nv_add_u32 v163, s49, v163")
a(f"s_lshl_b32 s49, s3, 7\ns_add_u32 s49, s49, s2\ns_lshl_b32 s49, s49, 7\ns_add_u32 s49, s49, {WS_I}")
a("v_lshrrev_b32 v4, 1, v3\nv_and_b32 v5, 1, v0\nv_mul_u32_u24 v167, 0x28000, v4\nv_lshl_add_u32 v167, v5, 6, v167\nv_add3_u32 v167, v167, v166, s49")
a(f"s_lshl_b32 s49, s3, 7\ns_add_u32 s49, s49, {L_EX}\nv_lshl_add_u32 v155, v5, 5, s49\nv_lshl_add_u32 v155, v4, 2, v155\nv_lshrrev_b32 v4, 1, v2\nv_and_b32 v154, 1, v2\nv_lshl_add_u32 v154, v154, 2, v4\ns_mul_i32 s49, s3, {U}\nv_lshl_add_u32 v154, v154, 3, s49\nv_mul_u32_u24 v4, {10*U}, v5\nv_add_u32 v154, v154, v4")
a("v_and_b32 v4, 0xff1, v0\nv_cmp_eq_u32 vcc, 49, v4\nv_mov_b32 v153, 0xffff\nv_cndmask_b32 v153, -1, v153, vcc")
a("v_mov_b32 v120, 0")
a("s_cmp_ge_u32 s3, 8\ns_cbranch_scc1 L_a8b")
p2addr()
stamp(2)
a("s_waitcnt vmcnt(0) lgkmcnt(0)\nglobal_load_ushort v87, v87, s[28:29]")
stamp(3)
for low in range(4):
    c=low>>1; sel="s53" if low&1 else "s52"; o=20+4*low
    a(f"v_perm_b32 v{o}, v{10+c}, v{8+c}, {sel}\nv_perm_b32 v{o+1}, v{14+c}, v{12+c}, {sel}\nv_perm_b32 v{o+2}, v23, v{16+c}, {sel}")
    if low>0: a(f"{MF} {vr(44+4*(low-1))}, v[36:39], {vr(20+4*(low-1))}, 0")
a("v_dot2c_f32_bf16 v18, v8, v8\nv_dot2c_f32_bf16 v19, v9, v9")
a(f"{MF} {vr(56)}, v[36:39], {vr(32)}, 0")
for i in range(1,5):
    a(f"v_dot2c_f32_bf16 v18, v{8+2*i}, v{8+2*i}\nv_dot2c_f32_bf16 v19, v{9+2*i}, v{9+2*i}")
    a(f"{MF} {vr(60+4*(i-1))}, v[40:43], {vr(20+4*(i-1))}, 0")
a("v_add_f32 v4, v47, v51\nv_add_f32 v5, v55, v59\nv_add_f32 v4, v4, v5\nv_add_f32 v18, v18, v19")
for m,r in (("quad_perm:[1,0,3,2]",1),("quad_perm:[2,3,0,1]",2),("row_half_mirror",0)):
    if r: a(f"v_cvt_pk_bf16_f32 v{76+2*r}, v{44+r}, v{48+r}")
    else: a("v_cvt_pk_bf16_f32 v82, v60, v64")
    a(f"v_add_f32_dpp v4, v4, v4 {m} {DPPM}\nv_add_f32_dpp v18, v18, v18 {m} {DPPM}")
    if r: a(f"v_cvt_pk_bf16_f32 v{77+2*r}, v{52+r}, v{56+r}\nds_write_b64 v160, v[{76+2*r}:{77+2*r}] offset:{1024*r}")
a("v_cvt_pk_bf16_f32 v83, v68, v72\nds_write_b64 v160, v[82:83] offset:3072\nv_cvt_pk_bf16_f32 v84, v61, v65\nv_cvt_pk_bf16_f32 v85, v69, v73\nds_write_b64 v160, v[84:85] offset:4096")
for low in range(4): a(f"v_fmac_f32 v{44+4*low}, v4, v162")
a("v_cvt_pk_bf16_f32 v76, v44, v48\nv_cvt_pk_bf16_f32 v77, v52, v56\nds_write_b64 v160, v[76:77]")
a(f"ds_write_b32 v86, v18 offset:{L_SQ4}\nds_write_b32 v161, v4 offset:{L_SUM}")
a("L_b1:\ns_setprio 1\ns_waitcnt lgkmcnt(0)\ns_barrier")
stamp(4)
a(f"ds_read_b128 v[20:23], v163\nds_read_b128 v[28:31], v163 offset:1024\ns_cmp_eq_u32 s3, 0")
lg(1)
a(f"{MF} v[44:47], v[20:23], v[88:91], 0\n{MF} v[48:51], v[20:23], v[92:95], 0\ns_cbranch_scc1 L_u0")
a(f"{MF} v[52:55], v[20:23], v[96:99], 0\n{MF} v[56:59], v[20:23], v[100:103], 0")
lg(0)
a(f"{MF} v[44:47], v[28:31], v[104:107], v[44:47]\n{MF} v[48:51], v[28:31], v[88:91], v[48:51]")
a(f"{MF} v[52:55], v[28:31], v[108:111], v[52:55]\n{MF} v[56:59], v[28:31], v[96:99], v[56:59]\nL_u1:")
tail.append(f"L_u0:\ns_waitcnt lgkmcnt(0)\n{MF} v[52:55], v[28:31], v[96:99], 0\n{MF} v[56:59], v[28:31], v[100:103], 0\ns_branch L_u1")
a(f"ds_read_b128 v[32:35], v157 offset:{L_SM}\ns_waitcnt vmcnt(0)\nds_write_b16 v115, v87 offset:{L_WP}")
a("v_cvt_pk_bf16_f32 v20, v44, v45\nv_cvt_pk_bf16_f32 v21, v46, v47\nv_cvt_pk_bf16_f32 v22, v48, v49\nv_cvt_pk_bf16_f32 v23, v50, v51")
a("v_cvt_pk_bf16_f32 v24, v52, v53\nv_cvt_pk_bf16_f32 v25, v54, v55\nv_cvt_pk_bf16_f32 v26, v56, v57\nv_cvt_pk_bf16_f32 v27, v58, v59")
a("L_sm:\ns_waitcnt lgkmcnt(0)\nv_max3_u32 v4, v32, v33, v34\nv_max_u32 v4, v4, v35\nv_cmp_eq_u32 vcc, -1, v4\ns_cbranch_vccnz L_smr\nL_smd:")
tail.append(f"L_smr:\ns_add_u32 s13, s13, 1\ns_cmp_gt_u32 s13, 0x10000\ns_cbranch_scc1 L_smd\nds_read_b128 v[32:35], v157 offset:{L_SM}\ns_branch L_sm")
a(f"{MF} v[44:47], v[20:23], v[32:35], 0\n{MF} v[48:51], v[24:27], v[32:35], 0")
a(f"ds_read_b64 v[60:61], v154 offset:{L_WP}\nds_read_b64 v[62:63], v154 offset:{L_WP+16}")
a("v_cvt_pk_bf16_f32 v20, v44, v45\nv_cvt_pk_bf16_f32 v21, v46, v47\nv_cvt_pk_bf16_f32 v22, v48, v49\nv_cvt_pk_bf16_f32 v23, v50, v51")
a("global_store_dwordx4 v167, v[20:23], s[40:41] sc1\ns_setprio 0")
stamp(5)
a(f"s_waitcnt lgkmcnt(0)\nv_and_b32 v61, v61, v153\n{MF} v[64:67], v[60:63], v[20:23], 0\nds_write2_b32 v155, v64, v65 offset0:0 offset1:16\ns_waitcnt lgkmcnt(0)\ns_barrier\ns_cmp_eq_u32 s3, 9\ns_cbranch_scc1 L_ext")
a(PMA)
read_pm()
a(f"s_mul_i32 s51, s48, {RS}\ns_add_u32 s51, s51, {L_XP}\nv_lshrrev_b32 v156, 3, v3\nv_mul_u32_u24 v156, {RS}, v156\nv_add_u32 v156, s51, v156")
a("s_cmp_lt_u32 s3, 8\ns_cbranch_scc1 L_scat\ns_cmp_lg_u32 s2, 0\ns_cbranch_scc1 L_fin\ns_barrier\ns_barrier\ns_branch L_p2end")
a("L_ext:\ns_setprio 3")
for i in range(10): a(f"ds_read_b32 v{44+i}, v112 offset:{L_EX+128*i}")
a("s_waitcnt lgkmcnt(0)\nv_pk_add_f32 v[44:45], v[44:45], v[46:47]\nv_pk_add_f32 v[48:49], v[48:49], v[50:51]\nv_pk_add_f32 v[44:45], v[44:45], v[52:53]\nv_pk_add_f32 v[44:45], v[44:45], v[48:49]\nv_add_f32 v44, v44, v45\nv_mul_f32 v44, v44, v113\nv_mov_b32 v45, v44")
a(f"v_permlane32_swap_b32 v44, v45\nv_add_f32 v44, v44, v45\nv_mov_b32 v45, v44\nv_permlane16_swap_b32 v44, v45\nv_add_f32 v44, v44, v45\nv_mov_b32_dpp v45, v44 quad_perm:[1,0,3,2] {DPPM}\nv_cvt_pk_bf16_f32 v44, v44, v45")
a("s_mov_b64 exec, 0x5555\nglobal_store_dword v120, v44, s[40:41] sc1\ns_mov_b64 exec, -1")
stamp(3)
a("s_barrier\ns_branch L_fin")
XA=[88,89,90,91,92]; XB=[94,95,96,97,93]; WA=[98,99,100,101,102]; WB=[104,105,106,107,103]
a("L_scat:\ns_cmp_ge_u32 s3, 4\ns_cbranch_scc1 L_b2\ns_waitcnt lgkmcnt(0)")
scatter(156)
a("L_b2:")
TABPOS=opt("tabpos",1)
if TABPOS==0:
    a("s_cmp_ge_u32 s3, 4\ns_cbranch_scc1 L_ntab")
    gentab()
    a("L_ntab:")
stamp(6)
a("s_waitcnt vmcnt(0) lgkmcnt(0)\ns_barrier" if opt("ack1",1) else "s_waitcnt lgkmcnt(0)\ns_barrier")
stamp(7)
if opt("pre1",0): a(f"s_sleep {opt('pre1',0)}")
def x1win():
    if TABPOS==1:
        a("s_cmp_ge_u32 s3, 4\ns_cbranch_scc1 L_ntab")
        gentab()
        a("s_branch L_ntab2\nL_ntab:\ns_cmp_ge_u32 s2, 128\ns_cbranch_scc1 L_ntab2")
        scatter(156)
        a("L_ntab2:")
poll(["global_load_dwordx4 v[40:43], v112, s[40:41] sc1","global_load_dwordx4 v[44:47], v113, s[40:41] sc1"],range(40,48),opt("sl1",2),16,between=x1win)
stamp(8)
a(f"ds_write_b128 v114, v[40:43] offset:{L_P2}\nds_write_b128 v114, v[44:47] offset:{L_P2+8192}\ns_waitcnt lgkmcnt(0)\ns_barrier")
a("s_cmp_ge_u32 s3, 4\ns_cbranch_scc1 L_p2end\ns_setprio 2")
def trg(i):
    k,c=i>>2,i&3; b=8+4*(i&7)
    a(f"ds_read_b64_tr_b16 v[{b}:{b+1}], v{116+c} offset:{L_P2+4096*k}\nds_read_b64_tr_b16 v[{b+2}:{b+3}], v{116+c} offset:{L_P2+4096*k+512}")
NPRE=7
for i in range(NPRE): trg(i)
for i in range(16):
    k,c=i>>2,i&3
    issued=min(16,NPRE+i)
    a(f"s_waitcnt lgkmcnt({2*(issued-i-1)})")
    a(f"{MF} {vr(40+4*c)}, {vr(8+4*(i&7))}, {vr(56+16*(c&1)+4*k)}, {'0' if k==0 else vr(40+4*c)}")
    if NPRE+i<16: trg(NPRE+i)
a(f"v_pk_add_f32 v[8:9], v[40:41], v[44:45] {NEG}\nv_pk_add_f32 v[10:11], v[42:43], v[46:47] {NEG}\nv_pk_add_f32 v[16:17], v[40:41], v[44:45]\nv_pk_add_f32 v[18:19], v[42:43], v[46:47]")
a("v_cvt_pk_bf16_f32 v24, v8, v9\nv_cvt_pk_bf16_f32 v25, v10, v11\nv_cvt_pk_bf16_f32 v28, v16, v17\nv_cvt_pk_bf16_f32 v29, v18, v19")
a(f"v_pk_add_f32 v[12:13], v[48:49], v[52:53] {NEG}\nv_pk_add_f32 v[14:15], v[50:51], v[54:55] {NEG}\nv_cvt_pk_bf16_f32 v26, v12, v13\nv_cvt_pk_bf16_f32 v27, v14, v15")
a("global_store_dwordx4 v120, v[24:27], s[40:41] sc1")
a("v_pk_add_f32 v[20:21], v[48:49], v[52:53]\nv_pk_add_f32 v[22:23], v[50:51], v[54:55]\nv_cvt_pk_bf16_f32 v30, v20, v21\nv_cvt_pk_bf16_f32 v31, v22, v23")
a("global_store_dwordx4 v121, v[28:31], s[40:41] sc1\ns_setprio 0")
stamp(9)
a("L_p2end:\ns_cmp_ge_u32 s2, 128\ns_cbranch_scc1 L_fin")
p3addrA()
a(f"ds_read_b64 v[88:89], v125\nds_read_b64 v[90:91], v125 offset:{8*U}\nds_read_b32 v92, v126 offset:{16*U}\nds_read_b64 v[94:95], v125 offset:{RS+10*U}\nds_read_b64 v[96:97], v127 offset:{RS}\nds_read_b32 v93, v126 offset:{RS+6*U}")
read_w()
p3addrB()
a(f"s_and_b32 s60, s2, 7\ns_lshl_b32 s60, s60, 7\ns_add_u32 s60, s60, {LIST}\nv_lshl_add_u32 v19, v3, 2, s60\nv_lshlrev_b32 v155, 7, v3\nv_add_u32 v155, {H3}, v155")
if opt("w2",-1)<0: a("s_waitcnt vmcnt(0)\ns_barrier")
else: a(f"s_barrier\ns_sleep {opt('w2',0)}")
stamp(10)
if opt("pre2",0): a(f"s_sleep {opt('pre2',0)}")
def x2win():
    a("s_waitcnt lgkmcnt(0)")
    for i in range(5):
        a(f"v_dot2c_f32_bf16 v{AC[0]}, s63, v{XA[i]}\nv_dot2c_f32_bf16 v{AC[1]}, v{XA[i]}, v{WA[i]}\nv_dot2c_f32_bf16 v{AC[2]}, v{XA[i]}, v{XA[i]}\nv_dot2c_f32_bf16 v{AC[3]}, s63, v{WA[i]}")
        a(f"v_dot2c_f32_bf16 v{AC[4]}, s63, v{XB[i]}\nv_dot2c_f32_bf16 v{AC[5]}, v{XB[i]}, v{WB[i]}\nv_dot2c_f32_bf16 v{AC[6]}, v{XB[i]}, v{XB[i]}")
    a(f"v_mov_b32 v{AC[7]}, v{AC[3]}\nv_mov_b32 v18, {fhex(1e-5)}\ns_mov_b32 s58, {fhex(1/640)}\ns_movk_i32 s59, 0x7ff")
    for X,hb in ((XA,32),(XB,42)):
        for i in range(5): a(f"v_lshlrev_b32 v{hb+2*i}, 16, v{X[i]}\nv_and_b32 v{hb+1+2*i}, 0xffff0000, v{X[i]}")
    a(f"v_lshlrev_b32 v154, 4, v0\nv_and_b32 v154, 0x1fff, v154\nv_add_u32 v154, {KEYS}, v154\nv_mov_b32 v119, {L_CNT}\ns_mov_b32 s61, 0\ns_mov_b32 s62, 0\ns_movk_i32 s44, 99\ns_movk_i32 s45, 99\ns_cmp_lt_u32 s3, 8\ns_cselect_b64 s[56:57], 1, 0\ns_add_u32 s49, s48, 1")
    a("s_waitcnt vmcnt(3)\nv_cmp_eq_u32 vcc, -1, v71\ns_mov_b32 s55, 1\ns_mov_b32 s54, -1\ns_cbranch_vccnz L_l2\ns_mov_b32 s55, 0\nv_cmp_eq_u32_e64 s[24:25], s46, v71\nv_cmp_eq_u32_e64 s[26:27], s47, v71\ns_ff1_i32_b64 s52, s[24:25]\ns_ff1_i32_b64 s53, s[26:27]\ns_cmp_eq_u32 s50, 0\ns_cselect_b32 s53, -1, s53\ns_and_b32 s54, s52, s53\ns_cmp_lt_i32 s54, 0\ns_cbranch_scc1 L_nl\n"+HINT+("" if GEN else "\ns_waitcnt vmcnt(1)\ns_branch LV1")+"\nL_nl:")
    if GEN==1: a(f"s_cmp_lg_u32 s3, {opt('gw',7)}\ns_cbranch_scc1 L_gh\ns_sub_u32 s60, s2, {opt('gh0',112)}\ns_cmp_ge_u32 s60, 16\ns_cbranch_scc1 L_gh\ns_lshl_b64 exec, 1, s60\nglobal_store_dword v155, v155, s[40:41] sc1\ns_mov_b64 exec, -1\ns_waitcnt vmcnt(1)\ns_branch LV1\nL_gh:")
    tail.append("L_l2:\nglobal_load_dword v71, v19, s[40:41] offset:1024 sc1\ns_branch L_nl")
NH3=16; H3POS=opt("h3pos",0)
GEN=opt("gen",0)
HINT="" if GEN else "s_cmp_eq_u32 s50, 0\ns_cselect_b32 s26, 0, s26\ns_or_b32 s24, s24, s26\ns_and_b32 exec_lo, s24, 0xffff\ns_mov_b32 exec_hi, 0\nglobal_store_dword v155, v155, s[40:41] sc1\ns_mov_b64 exec, -1"
if GEN==2: a(f"s_cmp_lg_u32 s3, {opt('gw',7)}\ns_cbranch_scc1 L_gh\ns_sub_u32 s60, s2, {opt('gh0',112)}\ns_cmp_ge_u32 s60, 16\ns_cbranch_scc1 L_gh\ns_lshl_b64 exec, 1, s60\nglobal_store_dword v155, v155, s[40:41] sc1\ns_mov_b64 exec, -1\nL_gh:")
a("global_load_dword v71, v19, s[40:41] sc1")
assert pc[0]==1
poll(["global_load_dwordx2 v[112:113], v128, s[40:41] sc1","global_load_dwordx2 v[114:115], v129, s[40:41] sc1","global_load_dword v116, v130, s[40:41] sc1"],range(112,117),opt("sl2",2),4,between=x2win)
stamp(11)
YA=[112,113,114,117,116]; YB=[112,118,114,115,116]
A0,A1,A2,A3,B0,B1,B2_,B3,C0,C1,C2,C3=AC
def p3main():
    for i in (0,2,4,1,3):
        a(f"v_dot2c_f32_bf16 v{C0}, s63, v{YA[i]}\nv_dot2c_f32_bf16 v{C1}, v{YA[i]}, v{YA[i]}\nv_dot2c_f32_bf16 v{C2}, v{YA[i]}, v{XA[i]}\nv_dot2c_f32_bf16 v{C3}, v{YB[i]}, v{XB[i]}")
        a(f"v_dot2c_f32_bf16 v{A1}, v{YA[i]}, v{WA[i]}\nv_dot2c_f32_bf16 v{B1}, v{YB[i]}, v{WB[i]}")
    a(f"v_add_f32 v{A0}, v{A0}, v{C0}\nv_add_f32 v{B0}, v{B0}, v{C0}\nv_add_f32 v{A2}, v{A2}, v{C1}\nv_add_f32 v{B2_}, v{B2_}, v{C1}\nv_fmac_f32 v{A2}, 2.0, v{C2}\nv_fmac_f32 v{B2_}, 2.0, v{C3}")
    a(f"v_permlane32_swap_b32 v{A0}, v{A1}\nv_permlane32_swap_b32 v{B0}, v{B1}\nv_permlane32_swap_b32 v{A2}, v{A3}\nv_permlane32_swap_b32 v{B2_}, v{B3}")
    a(f"v_add_f32 v{A0}, v{A0}, v{A1}\nv_add_f32 v{A2}, v{A2}, v{A3}\nv_add_f32 v{B0}, v{B0}, v{B1}\nv_add_f32 v{B2_}, v{B2_}, v{B3}")
    a(f"v_permlane16_swap_b32 v{A0}, v{A2}\nv_permlane16_swap_b32 v{B0}, v{B2_}\nv_add_f32 v{A0}, v{A0}, v{A2}\nv_add_f32 v{B0}, v{B0}, v{B2_}")
    for s_ in (8,4,2,1): a(f"v_add_f32_dpp v{A0}, v{A0}, v{A0} row_ror:{s_} {DPPM}\nv_add_f32_dpp v{B0}, v{B0}, v{B0} row_ror:{s_} {DPPM}")
    a(f"ds_write_b32 v133, v{A0} offset:{L_ST3}\nds_write_b32 v134, v{B0} offset:{L_ST3}")
def top2():
    a("v_mov_b32 v4, v79")
    for s_ in (8,4,2,1): a(f"v_max_u32_dpp v4, v4, v4 row_ror:{s_} {DPPM}")
    a("v_cmp_ne_u32 vcc, v4, v79\nv_readfirstlane_b32 s6, v4\nv_cndmask_b32 v79, 0, v79, vcc\nv_mov_b32 v4, v79")
    for s_ in (8,4,2,1): a(f"v_max_u32_dpp v4, v4, v4 row_ror:{s_} {DPPM}")
    a("v_cmp_ne_u32 vcc, v4, v79\nv_readfirstlane_b32 s7, v4\nv_cndmask_b32 v79, 0, v79, vcc")
def hsum(Y,hb,pk):
    for i in range(5):
        a(f"v_lshlrev_b32 v4, 16, v{Y[i]}\nv_and_b32 v5, 0xffff0000, v{Y[i]}\nv_pk_add_f32 v[{hb+2*i}:{hb+1+2*i}], v[{hb+2*i}:{hb+1+2*i}], v[4:5]\nv_cvt_pk_bf16_f32 v{pk+i}, v{hb+2*i}, v{hb+1+2*i}")
def hnorm(hb,nb,sr,mv):
    for i in range(5):
        a(f"v_pk_fma_f32 v[{nb+2*i}:{nb+1+2*i}], v[{hb+2*i}:{hb+1+2*i}], s[{sr}:{sr+1}], v[{mv}:{mv+1}] op_sel_hi:[1,0,0] neg_lo:[0,0,1] neg_hi:[0,0,1]")
def pubstat(base,sl,acc):
    a(f"s_lshl_b32 s26, s{sl}, 4\ns_add_u32 s26, s26, {base}\nv_lshl_add_u32 v4, v2, 2, s26\ns_mov_b64 exec, 0x10001\nglobal_store_dword v4, v{acc}, s[40:41] sc1\ns_mov_b64 exec, -1")
def publish(base,sl,pk,o0):
    a(f"s_mul_i32 s26, s{sl}, {XSS}\ns_add_u32 s26, s26, {base}\nv_add_u32 v4, s26, v{o0}\nv_add_u32 v5, s26, v{o0+1}\nv_add_u32 v6, s26, v{o0+2}")
    a(f"global_store_dwordx2 v4, v[{pk}:{pk+1}], s[40:41] sc1\nglobal_store_dwordx2 v5, v[{pk+2}:{pk+3}], s[40:41] sc1\nglobal_store_dword v6, v{pk+4}, s[40:41] sc1")
a("v_and_b32 v117, v115, v131\nv_and_b32 v118, v113, v132\ns_cmp_lg_u32 s55, 0\ns_cbranch_scc1 L_l3\ns_cmp_lt_i32 s54, 0\ns_cbranch_scc0 L_cand\nL_nc:")
tail.append("L_l3:\nv_cmp_eq_u32 vcc, -1, v71\ns_cbranch_vccnz L_nc\ns_mov_b32 s55, 0\nv_cmp_eq_u32_e64 s[24:25], s46, v71\nv_cmp_eq_u32_e64 s[26:27], s47, v71\ns_ff1_i32_b64 s52, s[24:25]\ns_ff1_i32_b64 s53, s[26:27]\ns_cmp_eq_u32 s50, 0\ns_cselect_b32 s53, -1, s53\ns_and_b32 s54, s52, s53\ns_cmp_lt_i32 s54, 0\ns_cbranch_scc1 L_nc\n"+HINT+"\ns_branch L_cand")
p3main()
a("s_cmp_lt_i32 s54, 0\ns_cbranch_scc0 L_cst\nL_nc1:")
a(f"s_waitcnt lgkmcnt(0)\ns_barrier\nds_read_b128 v[76:79], v137 offset:{L_ST3}\ns_waitcnt lgkmcnt(0)")
a("v_mul_f32 v76, s58, v76\nv_fma_f32 v77, v77, s58, v18\nv_fma_f32 v77, -v76, v76, v77\nv_max_f32 v77, v77, v18\nv_rsq_f32 v77, v77\nv_fma_f32 v78, -v76, v79, v78\nv_mul_f32 v78, v78, v77")
a("v_ashrrev_i32 v79, 31, v78\nv_or_b32 v79, 0x80000000, v79\nv_xor_b32 v79, v79, v78\nv_bfi_b32 v79, s59, v135, v79\nv_min_u32 v79, -2, v79")
a("s_cmp_lg_u32 s3, 0\ns_cbranch_scc1 L_nokey\ns_mov_b64 exec, 0xffff\nglobal_store_dword v136, v79, s[40:41] sc1\ns_mov_b64 exec, -1\nL_nokey:")
stamp(12)
a("v_mul_f32 v76, v76, v77\nv_readlane_b32 s8, v77, s48\nv_readlane_b32 s12, v77, s49\nv_readlane_b32 s10, v76, s48\nv_readlane_b32 s18, v76, s49")
a("v_readlane_b32 s20, v79, s48\nv_readlane_b32 s21, v79, s49\nv_readlane_b32 s22, v78, s48\nv_readlane_b32 s23, v78, s49")
a("s_cmp_eq_u32 s50, 0\ns_cselect_b32 s21, 0, s21\nv_mov_b32 v80, s10\nv_mov_b32 v82, s18")
a("s_cmp_eq_u32 s55, 0\ns_cbranch_scc1 L_nc2")
poll(["global_load_dword v71, v19, s[40:41] sc1"],[71],opt("sll",2),None)
a("v_cmp_eq_u32_e64 s[24:25], s46, v71\nv_cmp_eq_u32_e64 s[26:27], s47, v71\ns_ff1_i32_b64 s52, s[24:25]\ns_ff1_i32_b64 s53, s[26:27]\ns_cmp_eq_u32 s50, 0\ns_cselect_b32 s53, -1, s53\ns_and_b32 s54, s52, s53\ns_cmp_lt_i32 s54, 0\ns_cbranch_scc1 L_nc2\n"+HINT+"\ns_branch L_cand\nL_nc2:")
a("s_cmp_lt_i32 s52, 0\ns_cbranch_scc0 L_na")
hsum(YA,32,60)
a("L_na:\ns_cmp_lt_i32 s53, 0\ns_cbranch_scc0 L_nb2")
hsum(YB,42,66)
a("L_nb2:")
hnorm(32,8,8,80)
hnorm(42,20,12,82)
top2()
def cand():
    a("L_cand:\ns_setprio 3")
    for R,(sl,Y,hb,pk,o0) in enumerate(((52,YA,32,60,138),(53,YB,42,66,141))):
        a(f"s_cmp_lt_i32 s{sl}, 0\ns_cbranch_scc1 L_cs{R}")
        hsum(Y,hb,pk)
        publish(HN,sl,pk,o0)
        a(f"L_cs{R}:")
    stamp(16)
    a("s_cmp_eq_u32 s55, 0\ns_cbranch_scc1 L_nc\nL_cst:")
    for R,(sl,acc) in enumerate(((52,A0),(53,B0))):
        a(f"s_cmp_lt_i32 s{sl}, 0\ns_cbranch_scc1 L_ct{R}")
        pubstat(STAT,sl,acc)
        a(f"L_ct{R}:")
    a("s_setprio 0\ns_cmp_eq_u32 s55, 0\ns_cbranch_scc1 L_nc1\ns_branch L_nc2")
def outprep1():
    for R,(hb,nb,ob) in enumerate(((32,8,88),(42,20,94))):
        for i in range(5):
            a(f"v_pk_add_f32 v[4:5], v[{hb+2*i}:{hb+1+2*i}], v[{nb+2*i}:{nb+1+2*i}]\nv_cvt_pk_bf16_f32 v{ob+i}, v4, v5")
    a(f"ds_write_b64 v125, v[88:89]\nds_write_b64 v125, v[90:91] offset:{8*U}\nds_write_b32 v126, v92 offset:{16*U}\ns_cmp_eq_u32 s50, 0\ns_cbranch_scc1 L_nob")
    a(f"ds_write_b64 v125, v[94:95] offset:{RS+10*U}\nds_write_b64 v127, v[96:97] offset:{RS}\nds_write_b32 v126, v98 offset:{RS+6*U}\nL_nob:")
def outprep2():
    for i in range(10):
        t=4+2*(i&1)
        a(f"v_add_u32_sdwa v{t}, v{144+i}, v156 {SD.format(0)}\nv_add_u32_sdwa v{t+1}, v{144+i}, v156 {SD.format(1)}")
        a(f"ds_read_u16 v{8+i}, v{t}\nds_read_u16 v{20+i}, v{t+1}")
    a("v_cmp_lt_u32 vcc, 7, v3\nv_mov_b32 v4, s46\nv_mov_b32 v5, s47\nv_cndmask_b32 v52, v4, v5, vcc\nv_mov_b32 v4, s22\nv_mov_b32 v5, s23\nv_cndmask_b32 v53, v4, v5, vcc\nv_mov_b32 v4, s52\nv_mov_b32 v5, s53\nv_cndmask_b32 v54, v4, v5, vcc")
    a("v_mul_f32 v53, 0xbfb8aa3b, v53\nv_exp_f32 v53, v53\nv_and_b32 v54, 255, v54\nv_add_f32 v53, 1.0, v53\nv_rcp_f32 v53, v53\nv_mov_b32 v55, 0\ns_waitcnt lgkmcnt(0)")
    for i in range(10): a(f"v_lshl_or_b32 v{8+i}, v{20+i}, 16, v{8+i}")
OP=opt("op",1)
if OP>=1: outprep1()
if OP>=2: outprep2()
stamp(13)
if opt("pre3",0): a(f"s_sleep {opt('pre3',0)}")
poll(["global_load_dwordx4 v[72:75], v154, s[40:41] sc1"],range(72,76),opt("sl3",2),4,between=lambda: (outprep1() if OP<1 else None, outprep2() if OP<2 else None))
stamp(14)
a("L_round:")
SP=[24,26,28,30,8,10,16,58]
for i in range(4): a(f"v_cmp_gt_u32_e64 s[{SP[i]}:{SP[i]+1}], v{72+i}, s6")
for i in range(4): a(f"v_cmp_gt_u32_e64 s[{SP[4+i]}:{SP[4+i]+1}], v{72+i}, s7")
for i in range(8): a(f"s_bcnt1_i32_b64 s{SP[i]}, s[{SP[i]}:{SP[i]+1}]")
a("s_add_u32 s24, s24, s26\ns_add_u32 s28, s28, s30\ns_add_u32 s8, s8, s10\ns_add_u32 s16, s16, s58\ns_add_u32 s24, s24, s28\ns_add_u32 s8, s8, s16\ns_lshl_b32 s8, s8, 16\ns_add_u32 s24, s24, s8")
a("v_mov_b32 v4, s24\ns_mov_b64 exec, s[56:57]\nds_add_u32 v119, v4\ns_mov_b64 exec, -1\ns_waitcnt lgkmcnt(0)\ns_barrier\nds_read_b32 v4, v119\ns_waitcnt lgkmcnt(0)")
a("v_readfirstlane_b32 s24, v4\ns_and_b32 s25, s24, 0xffff\ns_lshr_b32 s24, s24, 16\ns_cmp_ge_u32 s25, 8\ns_cbranch_scc1 L_rdone")
for sk,srk in ((20,44),(21,45)):
    a(f"s_cmp_eq_u32 s{sk}, s7\ns_cselect_b32 s{srk}, s24, s{srk}\ns_cmp_eq_u32 s{sk}, s6\ns_cselect_b32 s{srk}, s25, s{srk}")
a("s_cmp_ge_u32 s24, 7\ns_cbranch_scc1 L_rdone\ns_cmp_ge_u32 s61, 3\ns_cbranch_scc1 L_rdone\ns_add_u32 s61, s61, 1\nv_add_u32 v119, 4, v119")
top2()
a("s_branch L_round\nL_rdone:")
stamp(15)
a("s_mov_b32 s24, 0x00ff00ff\ns_cmp_lt_u32 s44, 8\ns_cselect_b32 s30, 0, s24\ns_cselect_b32 s28, s24, 0\ns_not_b32 s24, s24\ns_cmp_lt_u32 s45, 8\ns_cselect_b32 s31, 0, s24\ns_cselect_b32 s29, s24, 0")
a("s_cmp_eq_u32 s50, 0\ns_cselect_b32 s31, 0, s31\ns_or_b32 s30, s30, s31\ns_mov_b32 s31, s30\ns_or_b32 s28, s28, s29\ns_cbranch_scc0 L_nosel\ns_mov_b32 s29, s28")
a(f"v_cmp_lt_u32 vcc, 7, v3\nv_mov_b32 v4, s44\nv_mov_b32 v5, s45\nv_cndmask_b32 v20, v4, v5, vcc\nv_and_b32 v20, 7, v20\nv_lshlrev_b32 v22, 7, v20\nv_add_u32 v22, {META}, v22")
MC=opt("mc",1)
if MC: a(f"v_and_b32 v4, 1, v0\nv_mul_u32_u24 v4, {META2-META}, v4\nv_add_u32 v22, v22, v4")
a(f"s_and_b32 exec_lo, s28, {'0x0303' if MC else '0x0101'}\ns_mov_b32 exec_hi, 0\nglobal_store_dwordx4 v22, v[52:55], s[40:41] sc1\ns_mov_b64 exec, s[28:29]")
a(f"v_mul_u32_u24 v21, 1280, v20\nv_add_u32 v21, {BASE}, v21\nv_lshl_add_u32 v21, v2, 6, v21\nv_and_b32 v4, 7, v0\nv_lshl_add_u32 v21, v4, 3, v21")
for i in range(5): a(f"global_store_dwordx2 v21, v[{8+2*i}:{9+2*i}], s[40:41] offset:{256*i} sc1")
a("s_mov_b64 exec, -1\ns_cmp_ge_u32 s44, 8\ns_cbranch_scc1 L_ns0")
publish(HN8,44,60,138)
pubstat(STAT8,44,A0)
a("L_ns0:\ns_cmp_ge_u32 s45, 8\ns_cbranch_scc1 L_nosel")
publish(HN8,45,66,141)
pubstat(STAT8,45,B0)
a("L_nosel:")
a("s_cmp_eq_u32 s30, 0\ns_cbranch_scc1 L_noout\ns_mov_b64 exec, s[30:31]")
for i in range(5): a(f"global_store_dwordx2 v158, v[{8+2*i}:{9+2*i}], s[36:37] offset:{256*i} {OUTF}")
a("s_mov_b64 exec, -1\nL_noout:")
a("s_or_b32 s24, s2, s3\ns_cbranch_scc1 L_fin")
a("s_load_dword s16, s[40:41], 0\nv_mov_b32 v4, 0\ns_waitcnt lgkmcnt(0)\ns_add_u32 s16, s16, 1\nv_mov_b32 v5, s16\ns_mov_b64 exec, 1\nglobal_store_dword v4, v5, s[40:41]\ns_mov_b64 exec, -1\ns_branch L_fin")
cand()
flush_tail()
a("L_a8b:\nv_mov_b32 v112, 0\nv_mov_b32 v113, 0\nv_mov_b32 v121, 0\ns_waitcnt lgkmcnt(0)\nglobal_load_ushort v87, v87, s[28:29]\ns_cmp_eq_u32 s3, 8\ns_cbranch_scc1 L_b1")
a(f"v_cvt_f32_u32 v20, s2\nv_mul_f32 v20, {fhex(1/256)}, v20\nv_cos_f32 v21, v20\nv_sin_f32 v22, v20\nv_and_b32 v6, 7, v0\nv_and_b32 v23, 8, v0\nv_cmp_eq_u32 vcc, 0, v6")
a("v_cndmask_b32 v21, 1.0, v21, vcc\nv_cndmask_b32 v22, 0, v22, vcc\nv_lshlrev_b32 v24, 28, v23\ns_cmp_eq_u32 s2, 0\ns_cselect_b64 s[8:9], vcc, 0\nv_cndmask_b32_e64 v24, v24, 0, s[8:9]\nv_xor_b32 v21, v21, v24")
a("v_sub_u32 v24, 8, v6\nv_and_b32 v24, 7, v24\nv_add3_u32 v24, v24, v23, 16\nv_sub_u32 v25, 24, v23\nv_cmp_eq_u32 vcc, 1, v2\nv_cndmask_b32 v112, v3, v24, vcc\nv_cndmask_b32 v113, 1.0, v21, vcc")
a(f"v_cmp_eq_u32 vcc, 2, v2\nv_cndmask_b32 v112, v112, v25, vcc\nv_cndmask_b32 v113, v113, v22, vcc\nv_cmp_eq_u32 vcc, 3, v2\nv_cndmask_b32_e64 v113, v113, 0, vcc\nv_lshlrev_b32 v112, 2, v112\ns_lshl_b32 s8, s2, 7\ns_add_u32 s8, s8, {EXT}\nv_lshl_add_u32 v120, v3, 1, s8")
stamp(2)
a("s_branch L_b1")
a("L_a10:\ns_setprio 2")
a("v_lshrrev_b32 v20, 2, v3\nv_and_b32 v21, 3, v0\nv_mad_u32_u24 v20, v20, 5, v21\nv_cvt_f32_u32 v28, v2")
for tile in range(2):
    if tile: a("v_add_u32 v20, 3, v20")
    a("v_lshrrev_b32 v22, 1, v20\nv_and_b32 v24, 1, v20")
    if tile==0:
        a("v_cmp_eq_u32 vcc, 1, v20\nv_cndmask_b32_e64 v22, v22, 10, vcc\nv_cndmask_b32_e64 v24, v24, 0, vcc\nv_cmp_eq_u32 vcc, 3, v21\nv_cndmask_b32_e64 v22, v22, 0, vcc\nv_cndmask_b32_e64 v24, v24, 0, vcc")
    a(f"v_cvt_f32_u32 v22, v22\nv_cvt_f32_u32 v24, v24\nv_mul_f32 v22, {fhex(0.05)}, v22\nv_mul_f32 v24, {fhex(0.25)}, v24\nv_fmac_f32 v24, v28, v22\nv_mul_f32 v22, 4.0, v22")
    for i in range(5):
        a(f"v_cos_f32 v{29+i}, v24")
        if i<4: a("v_add_f32 v24, v24, v22")
    a(f"v_cvt_pk_bf16_f32 v{36+4*tile}, v29, v30\nv_cvt_pk_bf16_f32 v{37+4*tile}, v31, v32\nv_cvt_pk_bf16_f32 v{38+4*tile}, v33, 0\nv_mov_b32 v{39+4*tile}, 0")
a(f"ds_write_b128 v157, v[36:39] offset:{L_R20}\nds_write_b128 v157, v[40:43] offset:{L_R20+1024}\ns_waitcnt lgkmcnt(0)\ns_barrier")
a("s_setprio 1\ns_lshl_b32 s7, s2, 7\ns_waitcnt lgkmcnt(0)\ns_load_dword s6, s[40:41], 0")
LATE10=f"s_movk_i32 m0, {L_PM}\nglobal_load_lds_dwordx4 v157, s[42:43]\nglobal_load_lds_dwordx4 v157, s[42:43] offset:1024"
a(f"s_add_u32 s7, s7, {WS_FA-0x4000}\nv_mov_b32 v17, s7\nv_add_u32 v18, {WS_F3-WS_FA+0x4000}, v17\ns_sub_u32 s7, 256, s2\ns_cmp_eq_u32 s2, 0\ns_cselect_b32 s7, 128, s7")
a("v_lshrrev_b32 v20, 1, v3\nv_and_b32 v21, 1, v0\nv_lshrrev_b32 v22, 1, v2\nv_and_b32 v23, 1, v2")
a("v_mov_b32 v24, s7\nv_mov_b32 v25, s2\nv_cmp_eq_u32 vcc, 1, v22\nv_cndmask_b32 v24, v25, v24, vcc\nv_lshl_add_u32 v24, v23, 10, v24")
a("v_subrev_u32 v25, 4, v20\nv_mul_i32_i24 v24, v24, v25\nv_lshl_add_u32 v24, v21, 9, v24")
a("v_cmp_gt_u32 vcc, v22, v21\ns_cmp_lg_u32 s2, 0\ns_cselect_b32 s49, 1024, 0\nv_mov_b32 v25, s49\nv_cndmask_b32 v25, 0, v25, vcc\nv_add_u32 v24, v24, v25\nv_and_b32 v24, 2047, v24")
a(f"v_cvt_f32_u32 v24, v24\nv_cvt_f32_u32 v25, v20\nv_mul_f32 v24, {fhex(1/2048)}, v24\nv_mul_f32 v25, {fhex(0.125)}, v25")
a("v_cmp_eq_u32 vcc, v22, v21\ns_cselect_b64 s[52:53], -1, 0\ns_or_b64 vcc, vcc, s[52:53]")
for i in range(4):
    a(f"v_cos_f32 v{60+i}, v24\nv_sin_f32 v{64+i}, v24")
    if i<3: a("v_add_f32 v24, v24, v25")
for i in range(8): a(f"v_cndmask_b32 v{60+i}, 0, v{60+i}, vcc")
a(f"s_mov_b32 s60, {fhex(1/640)}\ns_mov_b32 s61, {fhex(1/640)}\nv_mov_b32 v86, {fhex(1e-5)}\nv_and_b32 v165, 3, v0\nv_lshl_add_u32 v165, v2, 2, v165\nv_lshlrev_b32 v166, 4, v165\nv_lshlrev_b32 v165, 2, v165")
a(LATE10)
a("s_waitcnt lgkmcnt(0)\ns_add_u32 s6, s6, 1")
NH1=opt("nh1",8); H1POS=opt("h1pos",1); H10=128-NH1
a(f"s_sub_u32 s8, s2, {H10-8}\ns_and_b32 s8, s8, 31\ns_lshl_b32 s8, s8, 7\ns_add_u32 s8, s8, {WS_GO}\nv_lshrrev_b32 v5, 3, v1\nv_lshl_add_u32 v5, v5, 12, s8\nv_lshl_add_u32 v16, v6, 4, v5\nv_mov_b32 v8, s6\nv_mov_b32 v9, s6\nv_mov_b32 v10, s6\nv_mov_b32 v11, s6")
def h1(): a(f"s_cmp_lt_u32 s2, {H10}\ns_cbranch_scc1 L_h1\nglobal_store_dwordx4 v16, v[8:11], s[40:41] sc1\nL_h1:")
a(f"v_mov_b32 v12, -1\nv_mov_b32 v13, -1\nv_mov_b32 v14, -1\nv_mov_b32 v15, -1\nds_write_b128 v157, v[12:15] offset:{L_SM}\ns_waitcnt vmcnt(0)\nglobal_load_dword v21, v17, s[40:41] sc1")
stamp(2)
a("s_setprio 3\ns_waitcnt lgkmcnt(0)\ns_barrier")
stamp(4)
a(f"ds_read_b128 v[36:39], v166 offset:{L_SQ4}\nds_read_b32 v40, v165 offset:{L_SUM}")
def smat():
    stamp(8)
    a("s_waitcnt lgkmcnt(0)")
    stamp(9)
    a("v_add_f32 v36, v36, v37\nv_add_f32 v38, v38, v39\nv_mul_f32 v40, s60, v40\nv_add_f32 v36, v36, v38\nv_fma_f32 v40, -v40, v40, v86\nv_fmac_f32 v40, s60, v36\nv_max_f32 v40, v40, v86\nv_rsq_f32 v40, v40")
    for h in range(4):
        for e_ in range(2):
            jj=2*h+e_; k=jj&3
            a(f"v_mul_f32_dpp v{60+jj}, v40, v{60+jj} quad_perm:[{k},{k},{k},{k}] {DPPM}")
        a(f"v_cvt_pk_bf16_f32 v{32+h}, v{60+2*h}, v{61+2*h}")
    stamp(10)
    a("s_waitcnt vmcnt(1)")
    stamp(11)
    a(f"v_cmp_ne_u32 vcc, s6, v21\ns_cbranch_vccz LD{pc[0]-1}")
poll(["global_load_dword v20, v18, s[40:41] sc1"],None,opt("slf",1),None,chk="v_cmp_ne_u32 vcc, s6, v20",between=smat)
a(f"ds_write_b128 v157, v[32:35] offset:{L_SM}")
stamp(5)
if opt("h1d",0): a(f"s_sleep {opt('h1d',0)}")
if H1POS==1 and NH1: h1()
a("s_barrier\ns_setprio 0")
if H1POS==2 and NH1: h1()
NGO=opt("ngo",8); NH4=opt("nh4",8)
def gowait(n=8,off=0):
    a(f"s_and_b32 s7, s2, 7\ns_lshl_b32 s7, s7, 12\ns_add_u32 s7, s7, {WS_GO}\nv_lshl_add_u32 v4, v1, 7, s7\ns_mov_b64 exec, {hex((1<<n)-1)}")
    poll([f"global_load_dword v20, v4, s[40:41] offset:{off} sc1"],None,opt("slf",1),None,chk="v_cmp_ne_u32 vcc, s6, v20")
a("L_flagchk:")
gowait(8+NH1)
stamp(6)
a("s_barrier")
gowait(8,3072)
stamp(7)
a("s_barrier\ns_branch L_fin")
a(f"L_agg:\ns_cmp_ge_u32 s4, 16\ns_cbranch_scc1 L_bf8\ns_and_b32 s7, s4, 7\ns_lshl_b32 s7, s7, 7\ns_cmp_lt_u32 s4, 8\ns_cselect_b32 s8, 0x4000, 0\ns_cselect_b32 s9, 0, 3072\ns_add_u32 s8, s8, s7\ns_add_u32 s8, s8, {WS_FA}\nv_lshl_add_u32 v4, v1, 10, s8\ns_add_u32 s8, s7, s9\ns_add_u32 s8, s8, {WS_GO}\nv_lshrrev_b32 v5, 3, v1\nv_lshl_add_u32 v5, v5, 12, s8\nv_lshl_add_u32 v5, v6, 4, v5\ns_mov_b64 exec, 0xffff")
poll(["global_load_dword v20, v4, s[40:41] sc1"],None,opt("sla",1),None,chk="v_cmp_ne_u32 vcc, s6, v20")
stamp(6)
if opt("gdel",0): a(f"s_sleep {opt('gdel',0)}")
a("global_store_dwordx4 v5, v[8:11], s[40:41] sc1\ns_barrier\ns_branch L_fin")
L_FT=L_XS+21504
a(f"L_fw:\ns_cmp_ge_u32 s14, 216\ns_cbranch_scc1 L_fw1\ns_mov_b32 m0, {L_FT}")
for o in range(1,3): a(f"global_load_lds_dwordx4 v157, s[42:43] offset:{1024*o}")
a("L_fw1:\ns_waitcnt vmcnt(0)\ns_barrier")
gowait(8,3072)
a(f"s_cmp_ge_u32 s14, 216\ns_cselect_b32 s7, {NH4-1}, {NH3-1}\ns_cselect_b32 s8, {H4-H3}, 0\ns_add_u32 s8, s8, {H3}\nv_min_u32 v4, s7, v1\nv_lshl_add_u32 v4, v4, 7, s8")
poll(["global_load_dword v20, v4, s[40:41] sc1"],[20],opt("slh",1),None)
stamp(14)
a(f"s_barrier\ns_cmp_ge_u32 s14, 216\ns_cbranch_scc1 L_fin\nv_lshlrev_b32 v4, 7, v6\nv_add_u32 v4, {(META2 if MC else META)+8}, v4\nv_mov_b32 v5, {L_VD}\ns_barrier")
a(f"v_min_u32 v7, {NH4-1}, v1\nv_lshlrev_b32 v7, 7, v7\nv_add_u32 v7, {H4}, v7")
poll(["global_load_dword v20, v7, s[40:41] sc1"],[20],opt("slh",1),None)
if opt("vdel",0): a(f"s_sleep {opt('vdel',0)}")
poll(["global_load_dword v20, v4, s[40:41] sc1"],[20],opt("slm",2),None)
a("v_cmp_lt_u32 vcc, 15, v20\nv_mov_b32 v6, vcc_lo\nds_write_b32 v5, v6\ns_waitcnt lgkmcnt(0)")
stamp(13)
a("s_barrier\ns_branch L_fin")
a("L_bf3:\ns_cmp_ge_u32 s2, 160\ns_cbranch_scc1 L_f\nv_mov_b32 v158, 0")
p2addr()
a("s_branch L_b2")
a("L_f:\ns_cmp_eq_u32 s14, 214\ns_cbranch_scc1 L_fin\ns_cmp_lg_u32 s14, 215\ns_cbranch_scc1 L_fx")
S_GM=8192; S_X=8448; S_C=8704
KTH=opt("kth",12)
a("L_sel:\ns_cmp_ge_u32 s3, 4\ns_cbranch_scc1 L_fin")
if not opt("gt2",0): gentab("s_add_u32 s56, s3, 8",88)
gentab("s_mov_b32 s56, s3",56)
a(f"v_lshrrev_b32 v4, 1, v0\nv_and_b32 v5, 1, v0\nv_lshlrev_b32 v120, 7, v4\nv_lshl_add_u32 v120, v5, 4, v120\nv_add_u32 v120, {EXT}, v120\nv_lshlrev_b32 v121, 4, v0")
a("v_lshrrev_b32 v4, 2, v3\nv_lshl_add_u32 v4, v2, 3, v4\nv_lshlrev_b32 v122, 5, v4\nv_and_b32 v5, 1, v0\nv_lshl_add_u32 v122, v5, 3, v122")
a("s_lshl_b32 s56, s3, 6\nv_lshl_add_u32 v4, v6, 3, s56\nv_and_b32 v5, 8, v0\nv_lshl_add_u32 v4, v5, 5, v4\nv_sub_u32 v5, 2040, v4\nv_cmp_lt_u32 vcc, 31, v1\nv_bfe_u32 v7, v0, 4, 1\nv_cndmask_b32 v124, v4, v5, vcc\nv_lshl_add_u32 v124, v7, 2, v124")
a("v_cndmask_b32_e64 v123, -1.0, 1.0, vcc\ns_mov_b64 s[26:27], vcc\nv_xor_b32 v128, 512, v124")
for i_ in range(1,4): a(f"v_add_u32 v{124+i_}, {i_}, v124\nv_add_u32 v{128+i_}, {i_}, v128")
a(f"v_and_b32 v132, 0xf0, v0\ns_lshl_b32 s56, s3, 6\nv_lshl_add_u32 v133, v3, 2, s56\nv_lshlrev_b32 v134, 6, v2\nv_and_b32 v136, 3, v0\nv_lshlrev_b32 v136, 4, v136\nv_lshrrev_b32 v135, 2, v1\nv_lshl_add_u32 v135, v135, 7, v136\nv_add_u32 v135, {LIST}, v135\ns_movk_i32 s59, 0x7ff\nv_bfrev_b32 v140, 1")
gowait(8+NH1)
stamp(7)
if opt("gt2",0): gentab("s_add_u32 s56, s3, 8",88)
if opt("pres",0): a(f"s_sleep {opt('pres',0)}")
poll(["global_load_dwordx4 v[8:11], v120, s[40:41] sc1"],range(8,12),opt("sls",1),16)
stamp(8)
a("ds_write_b128 v121, v[8:11]\nv_lshl_add_u32 v4, v6, 7, s7\nglobal_load_dword v142, v4, s[40:41] offset:3072 sc1\ns_waitcnt lgkmcnt(0)\ns_barrier")
for k in range(4):
    for c in range(2): a(f"ds_read_b64_tr_b16 v[{8+8*k+4*c}:{9+8*k+4*c}], v122 offset:{1024*k+16*c}\nds_read_b64_tr_b16 v[{10+8*k+4*c}:{11+8*k+4*c}], v122 offset:{1024*k+16*c+128}")
def fin(t_,r):
    b=144+8*t_
    a(f"v_fmac_f32 v{b+r}, v{b+4+r}, v123")
    if opt("forcemiss",0): a(f"v_xor_b32 v{b+r}, 0x80000000, v{b+r}")
    a(f"v_bfi_b32 v{40+4*t_+r}, s59, v{124+4*t_+r}, v{b+r}")
for t_ in range(2):
    for k in range(4):
        for c in range(2):
            if t_==0: a(f"s_waitcnt lgkmcnt({14-4*k-2*c})")
            a(f"{MF} {vr(144+8*t_+4*c)}, {vr(8+8*k+4*c)}, {vr(56+32*t_+16*c+4*k)}, {'0' if k==0 else vr(144+8*t_+4*c)}")
for r in range(4): fin(0,r)
for r in range(4): fin(1,r)
a("v_max3_i32 v8, v40, v41, v42\nv_med3_i32 v9, v40, v41, v42\nv_max3_i32 v10, v43, v44, v45\nv_med3_i32 v11, v43, v44, v45\nv_max_i32 v12, v46, v47\nv_min_i32 v13, v46, v47")
a("v_max3_i32 v48, v8, v10, v12\nv_med3_i32 v49, v8, v10, v12\nv_max3_i32 v9, v9, v11, v13\nv_max_i32 v49, v49, v9")
for ps in range(2):
    d1,d2=52+2*ps,53+2*ps
    for st,s_ in enumerate((8,4,2,1)):
        a1,a2=(48,49) if st==0 else ((10,11) if st&1 else (d1,d2))
        o1,o2=(d1,d2) if st&1 else (10,11)
        a(f"v_mov_b32_dpp v8, v{a1} row_ror:{s_} {DPPM}\nv_max_i32_dpp v9, v{a2}, v{a2} row_ror:{s_} {DPPM}\nv_max_i32 v{o1}, v{a1}, v8\nv_med3_i32 v{o2}, v{a1}, v8, v9")
    if ps==0: a("v_cmp_le_i32 vcc, v53, v48\nv_cmp_le_i32_e64 s[16:17], v53, v49\nv_cndmask_b32 v48, v48, v49, vcc\nv_cndmask_b32 v49, v49, v140, vcc\nv_cndmask_b32_e64 v48, v48, v140, s[16:17]")
a(f"ds_write_b128 v132, v[52:55] offset:{S_GM}\ns_waitcnt lgkmcnt(0)\ns_barrier")
stamp(9)
a(f"ds_read_b32 v32, v133 offset:{S_GM}")
for q in range(4): a(f"ds_read_b128 {vr(8+4*q)}, v134 offset:{S_GM+16*q}")
a("v_mov_b32 v33, 0\nv_mov_b32 v34, 0")
for q in range(4):
    lg(3-q)
    for e_ in range(4): a(f"v_cmp_gt_i32_e64 s[{16+2*e_}:{17+2*e_}], v{8+4*q+e_}, v32")
    for e_ in range(4): a(f"v_addc_co_u32_e64 v{33+(e_&1)}, s[24:25], 0, v{33+(e_&1)}, s[{16+2*e_}:{17+2*e_}]")
a("v_add_u32 v33, v33, v34\nv_mov_b32 v34, v33\nv_and_b32 v32, 0x7ff, v32\nv_permlane32_swap_b32 v33, v34\nv_add_u32 v33, v33, v34\nv_mov_b32 v34, v33\nv_permlane16_swap_b32 v33, v34\nv_add_u32 v33, v33, v34")
a(f"v_lshlrev_b32 v33, 2, v33\nds_write_b32 v33, v32 offset:{S_X}\ns_waitcnt lgkmcnt(0)\ns_barrier\ns_cmp_lg_u32 s3, 0\ns_cbranch_scc1 L_fin\nds_read_b128 v[8:11], v136 offset:{S_X}\ns_waitcnt vmcnt(0)\nv_cmp_ne_u32 vcc, s6, v142\ns_cbranch_vccz L_sg")
gowait(8,3072)
a("L_sg:\ns_waitcnt lgkmcnt(0)\nglobal_store_dwordx4 v135, v[8:11], s[40:41] sc1")
stamp(10)
a("s_branch L_fin")
a("L_fx:")
if opt("fdel",2): a(f"s_sleep {opt('fdel',2)}")
a("s_branch L_f2" if EK else "s_cmp_ge_u32 s14, 216\ns_cbranch_scc1 L_f2")
a("L_f1:\ns_setprio 0\ns_sub_u32 s49, s14, 160\ns_and_b32 s50, s49, 7\ns_lshr_b32 s56, s49, 4\ns_lshl3_add_u32 s50, s56, s50\ns_lshl1_add_u32 s50, s50, s5\ns_cmp_ge_u32 s49, 48\ns_cselect_b32 s50, s49, s50")
a(f"s_mul_i32 s56, s3, 80\ns_lshl_b32 s57, s50, 6\nv_lshrrev_b32 v4, 2, v1\nv_mul_u32_u24 v6, 80, v4\nv_add_u32 v4, s56, v4\nv_and_b32 v5, 3, v0\nv_lshl_add_u32 v7, v5, 4, s57\ns_movk_i32 s56, 3456")
for i_ in range(5): a(f"v_add_u32 v5, {16*i_}, v4\nv_lshrrev_b32 v13, 5, v5\nv_and_b32 v5, 31, v5\nv_mad_u32_u24 v5, v5, 20, v13\nv_mad_u32_u24 v{8+i_}, v5, s56, v7")
a(f"s_mul_i32 s58, s3, 5120\ns_add_u32 s59, s58, {UPO}\ns_bitcmp1_b32 s50, 0\ns_cselect_b64 s[8:9], s[32:33], s[30:31]\ns_cselect_b64 s[10:11], s[30:31], s[32:33]\ns_cselect_b32 s60, s59, s58\ns_cselect_b32 s61, s58, s59")
for h in range(2):
    for i_ in range(5):
        a(f"s_add_u32 m0, s{60+h}, {1024*i_}\nglobal_load_lds_dwordx4 v{8+i_}, s[{8+2*h}:{9+2*h}]")
        if EK and 5*h+i_+1==EK:
            a(f"s_waitcnt vmcnt({EK})\ns_barrier")
            if opt("fdel",2): a(f"s_sleep {opt('fdel',2)}")
a(f"v_add_u32 v89, {L_FT+TO_W}, v6\nv_lshlrev_b32 v161, 4, v3\nv_add_u32 v161, {STAT}, v161\ns_mov_b32 s22, {fhex(1/640)}\nv_mov_b32 v158, {fhex(1e-5)}")
a(f"v_add_u32 v160, {HN}, v157\ns_mul_i32 s16, s3, 3072\nv_add_u32 v162, s16, v160\ns_add_u32 s17, s16, {L_XS}\ns_mov_b64 s[20:21], 0xffff")
a(f"v_mul_u32_u24 v165, {XSS}, v3\nv_lshl_add_u32 v165, v2, 4, v165\nv_add_u32 v165, {L_XS}, v165")
a(f"s_lshl2_add_u32 s16, s50, s3\ns_lshl_b32 s16, s16, 7\ns_add_u32 s16, s16, {ACT}\nv_and_b32 v164, 7, v0\nv_lshl_add_u32 v164, v164, 4, s16\nv_lshrrev_b32 v166, 3, v3\nv_mul_u32_u24 v166, 27648, v166\nv_add_u32 v164, v164, v166\nv_and_b32 v166, 1, v2\nv_lshl_add_u32 v164, v166, 3, v164\nv_lshrrev_b32 v166, 1, v2\nv_lshl_add_u32 v164, v166, 2, v164")
a(f"s_lshl_b32 s16, s49, 7\ns_add_u32 s16, s16, {H4}\nv_mov_b32 v167, s16\nv_mov_b32 v159, {L_VD}\ns_mov_b32 s62, 0")
a(f"v_and_b32 v4, 1, v0\nv_lshlrev_b32 v4, 3, v4\nv_bfe_u32 v5, v0, 1, 1\nv_mul_u32_u24 v5, {UPO}, v5\ns_lshl_b32 s56, s3, 4\nv_add3_u32 v7, v4, v5, s56")
stamp(3)
a("s_waitcnt vmcnt(0)\ns_barrier")
stamp(4)
a("s_cmp_ge_u32 s3, 4\ns_cbranch_scc1 L_f1w")
for i_ in range(5): a(f"ds_read_b128 {vr(104+4*i_)}, v89 offset:{16*i_}")
a("s_waitcnt lgkmcnt(0)")
for k in range(20):
    a(f"v_add_u32_sdwa v4, v{104+k}, v7 {SD.format(0)}\nv_add_u32_sdwa v5, v{104+k}, v7 {SD.format(1)}")
    a(f"ds_read_b64_tr_b16 v[{8+4*k}:{9+4*k}], v4\nds_read_b64_tr_b16 v[{10+4*k}:{11+4*k}], v5")
a("s_waitcnt lgkmcnt(0)")
a("L_f1w:")
stamp(5)
a("s_barrier")
stamp(14)
if opt("pre4",0): a(f"s_sleep {opt('pre4',0)}")
H4E=opt("h4e",1)
a(f"L_f1p:\ns_cmp_eq_u32 s3, 7\ns_cbranch_scc1 {'L_f1h' if H4E else 'L_f1q'}\ns_mov_b32 m0, s17")
if H4E: tail.append(f"L_f1h:\ns_cmp_ge_u32 s49, {NH4}\ns_cbranch_scc1 L_f1q\ns_mov_b64 exec, 1\nglobal_load_dword v150, v161, s[40:41] sc1\ns_waitcnt vmcnt(0)\nglobal_store_dword v167, v167, s[40:41] sc1\ns_mov_b64 exec, -1\ns_branch L_f1q")
for o in range(3): a(f"global_load_lds_dwordx4 v162, s[40:41] offset:{1024*o} sc1")
a("s_cmp_ge_u32 s3, 4\ns_cbranch_scc1 L_f1r\nglobal_load_dwordx2 v[150:151], v161, s[40:41] sc1")
for i_ in range(4): a(f"v_mov_b32 v{88+i_}, 0x3f803f80")
for k in range(20): a(f"{MF} v[152:155], {vr(8+4*k)}, v[88:91], {'0' if k==0 else 'v[152:155]'}")
a("L_f1r:\ns_waitcnt vmcnt(0)\nL_f1q:")
stamp(15)
a(f"s_barrier\ns_cmp_lt_u32 s3, 4\ns_cbranch_scc1 L_p4\ns_cmp_lg_u32 s3, 7\ns_cbranch_scc1 L_p4e\ns_cmp_ge_u32 s49, {NH4}\ns_cbranch_scc1 L_p4e")
if not H4E: store1(167,167)
a("s_branch L_p4e\nL_p4:")
NR=12
for i_ in range(4): a(f"ds_read_b128 {vr(92+4*i_)}, v165 offset:{64*i_}")
a("v_mul_f32 v88, s22, v150\nv_pk_mul_f32 v[144:145], v[152:153], v[88:89] op_sel_hi:[1,0] neg_lo:[1,0] neg_hi:[1,0]\nv_pk_mul_f32 v[146:147], v[154:155], v[88:89] op_sel_hi:[1,0] neg_lo:[1,0] neg_hi:[1,0]")
for i_ in range(4,NR): a(f"ds_read_b128 {vr(92+4*i_)}, v165 offset:{64*i_}")
SC=["v_fma_f32 v90, v151, s22, v158","v_fma_f32 v91, -v88, v88, v90","v_max_f32 v91, v91, v158","v_rsq_f32 v89, v91","v_rcp_f32 v91, v91","v_mul_f32 v89, 0xbfb8aa3b, v89"]
for i_ in range(20):
    issued=min(20,NR+max(0,i_-1))
    a(f"s_waitcnt lgkmcnt({issued-i_-1})\n{MF} v[144:147], {vr(8+4*i_)}, {vr(92+4*(i_%(NR+1)))}, v[144:147]")
    if i_>=1 and NR+i_-1<20: a(f"ds_read_b128 {vr(92+4*((NR+i_-1)%(NR+1)))}, v165 offset:{64*(NR+i_-1)}")
    if 10<=i_<10+len(SC): a(SC[i_-10])
a("v_permlane32_swap_b32 v144, v146\nv_permlane32_swap_b32 v145, v147")
a("v_mul_f32 v148, v89, v144\nv_mul_f32 v149, v89, v145\nv_exp_f32 v148, v148\nv_exp_f32 v149, v149\nv_mul_f32 v144, v144, v146\nv_mul_f32 v145, v145, v147")
a("v_add_f32 v148, 1.0, v148\nv_add_f32 v149, 1.0, v149\nv_rcp_f32 v148, v148\nv_rcp_f32 v149, v149\nv_cmp_u_f32 vcc, v146, v90\nv_mul_f32 v144, v144, v91\nv_mul_f32 v145, v145, v91\nv_mul_f32 v144, v144, v148\nv_mul_f32 v145, v145, v149\nv_cvt_pk_bf16_f32 v144, v144, v145")
a("s_and_b64 vcc, vcc, s[20:21]\ns_cbranch_vccnz L_p4r\nL_p4s:\nglobal_store_dword v164, v144, s[40:41] sc1")
tail.append(f"L_p4r:\ns_add_u32 s15, s15, 1\ns_cmp_lt_u32 s15, {LIMIT}\ns_cbranch_scc0 L_p4s\ns_and_b32 s16, vcc_lo, s20\nL_p4t:\ns_ff1_i32_b32 s18, s16\ns_bitset0_b32 s16, s18\ns_mulk_i32 s18, {XSS}\nv_add_u32 v4, s18, v160\ns_add_u32 m0, s18, {L_XS}\ns_nop 0\nglobal_load_lds_dwordx4 v4, s[40:41] sc1\nglobal_load_lds_dwordx4 v4, s[40:41] offset:256 sc1\ns_cmp_lg_u32 s16, 0\ns_cbranch_scc1 L_p4t\nglobal_load_dwordx2 v[150:151], v161, s[40:41] sc1\ns_waitcnt vmcnt(0)\ns_branch L_p4")
stamp(16)
a("L_p4e:\ns_cmp_lg_u32 s62, 0\ns_cbranch_scc1 L_fin\ns_barrier\nds_read_b32 v4, v159\ns_waitcnt lgkmcnt(0)\nv_readfirstlane_b32 s62, v4\ns_cmp_eq_u32 s62, 0\ns_cbranch_scc1 L_fin")
a(f"v_add_u32 v162, {HN8-HN}, v162\nv_add_u32 v160, {HN8-HN}, v160\nv_add_u32 v164, {ACT2-ACT}, v164\nv_and_b32 v4, 7, v0\nv_mul_u32_u24 v165, {XSS}, v4\nv_lshl_add_u32 v165, v2, 4, v165\nv_add_u32 v165, {L_XS}, v165\nv_lshlrev_b32 v161, 4, v4\nv_add_u32 v161, {STAT8}, v161\ns_movk_i32 s20, 0xff\ns_branch L_f1p")
a("L_bf8:\ns_cmp_lt_u32 s14, 216\ns_cbranch_scc1 L_fin\nL_f2:")
a(f"s_sub_u32 s49, s14, 216\ns_and_b32 s52, s49, 7\ns_lshr_b32 s50, s49, 3\ns_and_b32 s56, s49, 3\ns_lshr_b32 s57, s49, 2\ns_cmp_ge_u32 s49, 32\ns_cselect_b32 s50, s56, s50\ns_cselect_b32 s52, s57, s52")
a(f"s_lshr_b32 s51, s50, 1\ns_lshl1_add_u32 s51, s52, s51\ns_lshl_b32 s51, s51, 6\ns_and_b32 s53, s50, 1\nv_mov_b32 v159, {L_VD}\nv_bfe_u32 v7, v0, 3, 1\ns_cmp_ge_u32 s3, 8\ns_cbranch_scc1 L_f2e")
a("v_lshrrev_b32 v4, 2, v1\nv_mul_u32_u24 v4, 1280, v4\nv_and_b32 v5, 3, v0\nv_lshl_add_u32 v4, v5, 4, v4\ns_mul_i32 s56, s3, 81920\ns_add_u32 s56, s56, s51\nv_add_u32 v4, s56, v4\ns_lshl_b32 s58, s3, 14")
a("s_cmp_ge_u32 s3, 3\ns_cselect_b32 s61, 2, 3\ns_mov_b32 s62, 0")
for i_ in range(4):
    a(f"s_add_u32 s59, s50, {i_}\ns_and_b32 s59, s59, 3\ns_cmp_gt_u32 s59, s61\ns_cbranch_scc1 L_f2s{i_}\ns_mul_i32 s60, s59, 655360\ns_lshl_b32 s59, s59, 12\ns_add_u32 m0, s59, s58\nv_add_u32 v5, s60, v4\nglobal_load_lds_dwordx4 v5, s[34:35]")
    for q in range(3): a(f"s_add_u32 m0, m0, 1024\nv_add_u32 v5, 20480, v5\nglobal_load_lds_dwordx4 v5, s[34:35]")
    a(f"L_f2s{i_}:")
a(f"s_mul_i32 s17, s53, 27648\ns_lshl_b32 s16, s3, 10\ns_add_u32 s17, s17, s16\ns_add_u32 s17, s17, {ACT}\nv_lshl_add_u32 v104, v6, 4, s17\nv_lshl_add_u32 v104, v2, 7, v104\nv_lshl_add_u32 v104, v7, 9, v104")
a(f"v_add_u32 v105, 0x2000, v104\nv_add_u32 v106, 0x4000, v104\ns_lshl_b32 s61, s61, 13\nv_add_u32 v107, s61, v104\ns_add_u32 s16, s16, {L_RED}\nv_add_u32 v157, s16, v157\nv_cmp_eq_u32_e64 s[20:21], 1, v7")
a("v_lshrrev_b32 v4, 2, v3\nv_lshl_add_u32 v4, v2, 3, v4\nv_lshlrev_b32 v4, 6, v4\nv_and_b32 v5, 3, v0\nv_lshl_add_u32 v4, v5, 3, v4\nv_add_u32 v4, s58, v4")
stamp(3)
a("s_waitcnt vmcnt(0)")
stamp(4)
for k in range(8):
    for t_ in range(2):
        b=8+8*k+4*t_
        a(f"ds_read_b64_tr_b16 v[{b}:{b+1}], v4 offset:{2048*k+32*t_}\nds_read_b64_tr_b16 v[{b+2}:{b+3}], v4 offset:{2048*k+32*t_+256}")
a("s_waitcnt lgkmcnt(0)\ns_cmp_lt_u32 s3, 3\ns_cbranch_scc1 L_p5a")
for i_ in range(16): a(f"v_mov_b32 v{56+i_}, 0")
a("L_p5a:\ns_barrier")
stamp(5)
a("s_barrier")
stamp(14)
if opt("pre5",0): a(f"s_sleep {opt('pre5',0)}")
a("L_f2p:")
ck="s_mov_b64 exec, -1\n"
for i_ in range(4):
    b=72+4*i_
    ck+=f"s_waitcnt vmcnt({3-i_})\n"
    for h in range(2):
        for t_ in range(2):
            ac=88+8*t_+4*h
            ck+=f"{MF} {vr(ac)}, {vr(8+16*i_+8*h+4*t_)}, {vr(b)}, {'0' if i_==0 else vr(ac)}\n"
        if h==0: ck+=(f"v_max_u32 v114, v{b}, v{b+1}\n" if i_==0 else f"v_max3_u32 v114, v114, v{b}, v{b+1}\n")+f"v_max3_u32 v114, v114, v{b+2}, v{b+3}\n"
ck+="v_cmp_eq_u32 vcc, -1, v114"
poll([f"global_load_dwordx4 {vr(72+4*i_)}, v{104+i_}, s[40:41] sc1" for i_ in range(4)],None,opt("sl5",2),None,chk=ck,wait=1)
stamp(15)
for r in range(4): a(f"v_add_f32_dpp v{88+r}, v{92+r}, v{88+r} row_ror:8 row_mask:0xf bank_mask:0x3")
for r in range(4): a(f"v_add_f32_dpp v{88+r}, v{96+r}, v{100+r} row_ror:8 row_mask:0xf bank_mask:0xc")
a(f"ds_write_b128 v157, v[88:91]\ns_waitcnt lgkmcnt(0)\ns_barrier\ns_cmp_lg_u32 s62, 0\ns_cbranch_scc1 L_fin\nds_read_b32 v4, v159\ns_waitcnt lgkmcnt(0)\nv_readfirstlane_b32 s62, v4\ns_cmp_eq_u32 s62, 0\ns_cbranch_scc1 L_fin")
for i_ in range(4): a(f"v_add_u32 v{104+i_}, {ACT2-ACT}, v{104+i_}")
a("s_branch L_f2p\nL_f2e:")
a(f"s_and_b32 s56, s3, 1\ns_lshl_b32 s57, s56, 5\ns_add_u32 s51, s51, s57\nv_lshlrev_b32 v104, 7, v6\nv_add_u32 v104, {META}, v104\nv_mul_u32_u24 v105, 1280, v6\nv_lshl_add_u32 v106, v2, 3, s51\nv_add_u32 v105, v105, v106\nv_add_u32 v105, {BASE}, v105")
a(f"s_lshl_b32 s56, s56, 7\ns_add_u32 s56, s56, {L_RED}\nv_lshl_add_u32 v107, v2, 8, s56\nv_lshl_add_u32 v107, v7, 12, v107\ns_mov_b32 s18, 0x00ff00ff\ns_mov_b32 s19, 0x00ff00ff")
a(f"s_setprio {opt('ep',3)}\ns_barrier\ns_barrier")
if opt("edel",0): a(f"s_sleep {opt('edel',0)}")
poll(["global_load_dwordx4 v[60:63], v104, s[40:41] sc1","global_load_dwordx2 v[58:59], v105, s[40:41] sc1"],range(58,64),opt("slm",2),114)
a("v_cmp_lt_u32 vcc, 15, v62\nv_lshlrev_b32 v64, 16, v58\nv_and_b32 v65, 0xffff0000, v58\nv_mov_b32 v4, vcc_lo\nds_write_b32 v159, v4\nv_lshlrev_b32 v66, 16, v59\nv_and_b32 v67, 0xffff0000, v59")
a("v_and_b32 v60, 2047, v60\nv_mul_u32_u24 v60, 1280, v60\nv_add_u32 v60, v60, v106\ns_waitcnt lgkmcnt(0)\ns_cbranch_vccz L_hit\nv_mov_b32 v62, v6\ns_barrier\nL_hit:")
a("v_lshrrev_b32 v4, 3, v62\nv_cmp_eq_u32 vcc, s53, v4\nv_and_b32 v62, 7, v62\nv_lshl_add_u32 v62, v62, 4, v107\ns_and_b64 s[18:19], s[18:19], vcc")
stamp(13)
a("s_barrier")
for i_ in range(4): a(f"ds_read_b128 {vr(72+4*i_)}, v62 offset:{1024*i_}")
a("s_waitcnt lgkmcnt(0)")
a("v_pk_add_f32 v[72:73], v[72:73], v[76:77]\nv_pk_add_f32 v[74:75], v[74:75], v[78:79]\nv_pk_add_f32 v[80:81], v[80:81], v[84:85]\nv_pk_add_f32 v[82:83], v[82:83], v[86:87]\nv_pk_add_f32 v[72:73], v[72:73], v[80:81]\nv_pk_add_f32 v[74:75], v[74:75], v[82:83]")
for i_ in range(4): a(f"v_add_f32_dpp v{72+i_}, v{72+i_}, v{72+i_} row_ror:8 {DPPM}")
for i_ in range(4): a(f"v_fma_f32 v{72+i_}, v{72+i_}, v61, v{64+i_}")
a(f"v_cvt_pk_bf16_f32 v72, v72, v73\nv_cvt_pk_bf16_f32 v73, v74, v75\ns_mov_b64 exec, s[18:19]\ns_cbranch_execz L_f2z\nglobal_store_dwordx2 v60, v[72:73], s[36:37] {OUTG}\nL_f2z:\ns_mov_b64 exec, -1")
stamp(16)
a("L_fin:")
if STAMP:
    a("s_waitcnt vmcnt(0)")
    stamp(17)
    if "probe" in kw:
        k=int(kw["probe"])
        a(f"s_waitcnt lgkmcnt(0)\ns_cmp_ge_u32 s3, {opt('pw',4)}\ns_cbranch_scc1 L_end\ns_cmp_lt_u32 s3, {opt('pw0',0)}\ns_cbranch_scc1 L_end\ns_cmp_lt_u32 s2, {opt('plo',0)}\ns_cbranch_scc1 L_end\ns_cmp_ge_u32 s2, {opt('phi',256)}\ns_cbranch_scc1 L_end")
        a(f"s_add_u32 s16, s{64+2*k}, 4000\nL_spin:\ns_sleep 1\ns_memrealtime s[18:19]\ns_waitcnt lgkmcnt(0)\ns_sub_u32 s17, s16, s18\ns_cmp_lt_u32 s17, 4001\ns_cbranch_scc1 L_spin\ns_endpgm")
    else:
        a(f"s_waitcnt lgkmcnt(0)")
        for k in range(NST): a(f"v_writelane_b32 v5, s{64+2*k}, {k}")
        a(f"v_writelane_b32 v5, s15, 31\ns_mul_i32 s16, s2, {NW}\ns_add_u32 s16, s16, s3\ns_lshl_b32 s16, s16, 7\ns_add_u32 s16, s16, {WS_STAMP}\nv_lshl_add_u32 v4, v1, 2, s16\ns_mov_b32 exec_hi, 0\nglobal_store_dword v4, v5, s[40:41]")
a("L_end:\ns_endpgm")
flush_tail()
if opt("now",0): a.L=[l for l in a.L if not ("global_load_lds" in l and "s[4" not in l)]
if kw.get("wf"): a.L=[l+" "+kw["wf"] if ("global_load_lds" in l and "s[42:43]" not in l) else l for l in a.L]
if opt("noy",0): a.L=[l for l in a.L if not l.startswith("global_store_dwordx4 v7, v[12:15]")]
if opt("noi",0): a.L=[l for l in a.L if not l.startswith("global_store_dwordx4 v5, v[12:15]")]
if opt("noout",0): a.L=[l for l in a.L if not l.startswith("global_store_dwordx2 v158")]
body=a.finish()
small=np.zeros(1536,np.uint16)
small[0:768]=T.t_pm().reshape(-1); small[768:768+640]=T.t_w().reshape(-1)
tab=".p2align 7\n.type T_0,@object\nT_0:\n"+T.emit(small)+"T_end:\n"
txt=f"""; FNet (hidden DFT 20x32, sequence DFT 8x256 with real/Hermitian folding) + LayerNorm + top-8 SwiGLU, one persistent launch.
; @launch grid=(256,1,1) block=({64*NW},1,1) lds={LDS_BYTES}
.amdgcn_target "amdgcn-amd-amdhsa--gfx950"
.text
.globl {KN}
.p2align 8
.type {KN},@function
{body}
{tab}.section .rodata,"a"
.p2align 6
.amdhsa_kernel {KN}
  .amdhsa_next_free_vgpr 168
  .amdhsa_next_free_sgpr 102
  .amdhsa_accum_offset 168
  .amdhsa_group_segment_fixed_size 0
  .amdhsa_kernarg_size 104
  .amdhsa_user_sgpr_count 2
  .amdhsa_user_sgpr_kernarg_segment_ptr 1
  .amdhsa_system_sgpr_workgroup_id_x 1
.end_amdhsa_kernel
"""
open(outp,"w").write(txt)
print("nops inserted",a.nops,"bytes",len(txt),file=sys.stderr)
```

```python
import sys, struct
sys.path.insert(0,"gen")
from asmlib import Asm
import tables4 as T
import numpy as np
KN="sequential_preLN__spectral_fnet__moe_arch_mod__prompt_kernel"
kw=dict(a.split("=") for a in sys.argv[2:])
outp=sys.argv[1]
STAMP=int(kw.get("stamp",0))
def opt(n,d): return int(kw.get(n,d))
def fhex(f): return hex(struct.unpack("<I",struct.pack("<f",f))[0])
WS_GO=0x14000; WS_FA=0x8000; WS_F3=0x1C000; EXT=0x10000; WS_I=0x20000; WS_Y=0x160000; WS_STAMP=0x300000
WS_SMALL=0x2A0000; SMW=1664; KEYS=WS_SMALL; HN=KEYS+0x2000; HN8=HN+0x5400; BASE=HN8+0x5400; META=BASE+0x2800; LIST=META+0x400; META2=WS_SMALL+0x2D000; H3=WS_SMALL+0x2E000; STAT=LIST+0x1000; STAT8=STAT+0x100; H4=STAT+0x200; ACT=H4+0x1000; ACT2=ACT+0xD800
assert ACT2+0xD800<=META2 and H3+0x4000<=WS_SMALL+128*SMW
TO_PM=0; TO_W=1536; TO_P2=3072
U=T.US; RS=T.RS
L_ZERO=20480; L_SUM=21504; L_SQ=21568; L_ST3=21632; L_CNT=21952; L_SM=22528; L_WP=23552; L_PM=25088; L_XP=27136; L_P2=0; L_TAB=52224
L_XS=82048; XSS=opt("xss",1312); UPO=40992; L_RED=131072; L_VD=L_RED+8192; LDS_BYTES=L_VD+64; L_EX=51904; L_R20=53248; L_SQ4=22016
LIMIT=40000; NW=11
OUTF=kw.get("outf","sc1").replace("+"," "); OUTG=kw.get("outg","").replace("+"," ")
a=Asm()
NST=18
def stamp(k):
    if STAMP: a(f"s_memrealtime s[{64+2*k}:{65+2*k}]")
def lg(n): a(f"s_waitcnt lgkmcnt({0 if STAMP else n})")
pc=[0]; tail=[]
def poll(loads, regs, sleep, tmp, between=None, chk=None, wait=None):
    k=pc[0]; pc[0]+=1
    for l in loads: a(l)
    if between: between()
    a(f"LW{k}:" if wait else f"LW{k}:\ns_waitcnt vmcnt(0)\nLV{k}:")
    if chk: a(chk)
    else:
        r=list(regs)
        if len(r)==1: tmp=r[0]; r=[]
        elif len(r)%2==1: a(f"v_max3_u32 v{tmp}, v{r[0]}, v{r[1]}, v{r[2]}"); r=r[3:]
        else: a(f"v_max_u32 v{tmp}, v{r[0]}, v{r[1]}"); r=r[2:]
        while r: a(f"v_max3_u32 v{tmp}, v{tmp}, v{r[0]}, v{r[1]}"); r=r[2:]
        a(f"v_cmp_eq_u32 vcc, -1, v{tmp}")
    a(f"s_cbranch_vccnz LR{k}\nLD{k}:\ns_mov_b64 exec, -1")
    tail.append(f"LR{k}:\ns_add_u32 s15, s15, 1\ns_cmp_lt_u32 s15, {LIMIT}\ns_cbranch_scc0 LD{k}\ns_mov_b64 exec, vcc\n"+(f"s_sleep {sleep}\n" if sleep else "")+"\n".join(loads)+f"\ns_branch LW{k}")
def flush_tail():
    for t in tail: a(t)
    tail.clear()
DPPM="row_mask:0xf bank_mask:0xf"
MF="v_mfma_f32_16x16x32_bf16"
SD="dst_sel:DWORD dst_unused:UNUSED_PAD src0_sel:WORD_{} src1_sel:DWORD"
NEG="neg_lo:[0,1] neg_hi:[0,1]"
def vr(b,n=4): return f"v[{b}:{b+n-1}]"
def read_pm():
    a(f"ds_read_b128 v[144:147], v159 offset:{L_PM}\nds_read_b128 v[148:151], v159 offset:{L_PM+16}\nds_read_b64 v[152:153], v159 offset:{L_PM+32}")
def scatter(base):
    for i in range(10):
        t=4+2*(i&1)
        a(f"v_add_u32_sdwa v{t}, v{144+i}, v{base} {SD.format(0)}\nv_add_u32_sdwa v{t+1}, v{144+i}, v{base} {SD.format(1)}")
        a(f"ds_write_b16 v{t}, v{8+i}\nds_write_b16_d16_hi v{t+1}, v{8+i}")
def store1(addr,val):
    a(f"s_mov_b64 exec, 1\nglobal_store_dword v{addr}, v{val}, s[40:41] sc1\ns_mov_b64 exec, -1")

def p2addr():
    a(f"s_and_b32 s62, s2, 7\ns_lshr_b32 s56, s2, 4\ns_mul_i32 s57, s62, 10\ns_add_u32 s57, s57, s56\ns_lshl_b32 s57, s57, 14\ns_add_u32 s57, s57, {WS_I}")
    a("v_lshl_add_u32 v112, v0, 4, s57\nv_add_u32 v113, 0x2000, v112")
    a("v_lshlrev_b32 v6, 1, v0\nv_and_b32 v6, 32, v6\nv_and_b32 v7, 64, v0\nv_or_b32 v6, v6, v7\nv_lshlrev_b32 v7, 4, v0\nv_xor_b32 v114, v6, v7")
    a(f"s_lshl_b32 s56, s56, 7\ns_add_u32 s56, s56, {WS_Y}\ns_lshl_b32 s58, s3, 8\ns_add_u32 s58, s58, s5\ns_lshl2_add_u32 s59, s62, s58\ns_mulk_i32 s59, 1280\ns_add_u32 s59, s59, s56")
    a("s_lshl_b32 s60, s62, 2\ns_add_u32 s60, s60, 995\ns_sub_u32 s60, s60, s58\ns_mulk_i32 s60, 1280\ns_add_u32 s60, s60, s56\ns_add_u32 s60, s60, 64")
    a("v_and_b32 v4, 7, v0\nv_mul_u32_u24 v4, 40960, v4\nv_lshrrev_b32 v5, 3, v3\nv_lshl_add_u32 v4, v5, 6, v4\nv_lshlrev_b32 v5, 4, v2\nv_add3_u32 v120, v4, v5, s59\nv_sub_u32 v121, s60, v4\nv_add_u32 v121, v121, v5")
    a("v_lshrrev_b32 v5, 2, v3\nv_lshl_add_u32 v4, v2, 3, v5\nv_lshlrev_b32 v4, 7, v4\nv_and_b32 v5, 3, v0\nv_lshl_add_u32 v4, v5, 3, v4")
    a(f"v_bfe_u32 v5, v0, 3, 2\nv_lshl_add_u32 v116, v5, 5, v4\nv_xor_b32 v117, 64, v116\nv_xor_b32 v118, 32, v116\nv_xor_b32 v119, 96, v116")
def yoff(dst,t):
    a(f"s_and_b32 {dst}, {t}, 255\ns_lshr_b32 s59, {t}, 9\ns_lshl2_add_u32 {dst}, {dst}, s59\ns_mulk_i32 {dst}, 1280\ns_bfe_u32 s59, {t}, 0x10008\ns_lshl_b32 s59, s59, 6\ns_add_u32 {dst}, {dst}, s59\ns_add_u32 {dst}, {dst}, {WS_Y}")
def p3addrA():
    a(f"s_movk_i32 s62, {U}\nv_lshrrev_b32 v4, 3, v1\nv_and_b32 v5, 7, v0\nv_lshlrev_b32 v5, 3, v5\nv_mad_u32_u24 v122, v4, s62, v5")
    a(f"v_lshl_add_u32 v128, v4, 7, v5\nv_lshlrev_b32 v5, 2, v3\nv_mad_u32_u24 v123, v2, s62, v5\nv_lshl_add_u32 v130, v2, 7, v5")
    a(f"v_cmp_eq_u32 vcc, 0, v2\nv_add_u32 v124, {18*U}, v122\nv_subrev_u32 v4, {2*U}, v122\nv_cndmask_b32 v124, v4, v124, vcc")
    a("v_add_u32 v125, s51, v122\nv_add_u32 v126, s51, v123\nv_add_u32 v127, s51, v124")
def p3addrB():
    a("v_cmp_eq_u32 vcc, 0, v2\nv_lshlrev_b32 v138, 3, v1\nv_add_u32 v139, 512, v138\nv_lshlrev_b32 v140, 2, v1\nv_add_u32 v143, 384, v140\nv_add_u32 v140, 1024, v140\nv_add_u32 v141, 640, v138\nv_add_u32 v142, 1152, v138\nv_subrev_u32 v4, 128, v138\nv_cndmask_b32 v142, v4, v142, vcc")
    yoff("s56","s46")
    a("s_sub_u32 s58, 2048, s46\ns_and_b32 s58, s58, 2047")
    yoff("s57","s58")
    a("s_add_u32 s62, s56, 1024\ns_sub_u32 s59, s57, 256\nv_mov_b32 v129, s59\nv_mov_b32 v4, s62\nv_cndmask_b32 v129, v129, v4, vcc\nv_add_u32 v129, v129, v128\nv_add_u32 v128, s56, v128\ns_add_u32 s62, s57, 768\nv_add_u32 v130, s62, v130")
    a("v_cmp_eq_u32 vcc, 21, v1\nv_mov_b32 v132, 0xffff\nv_lshlrev_b32 v137, 4, v3\nv_cndmask_b32 v131, -1, v132, vcc\nv_cmp_eq_u32 vcc, 5, v1\ns_lshl_b32 s57, s2, 4\nv_add_u32 v135, s57, v3\nv_cndmask_b32 v132, -1, v132, vcc")
    a("s_lshl_b32 s57, s48, 4\nv_lshl_add_u32 v133, v2, 2, s57\ns_add_u32 s57, s57, 16\ns_cmp_eq_u32 s50, 0\ns_cselect_b32 s57, 272, s57\nv_lshl_add_u32 v134, v2, 2, s57\ns_mov_b32 s63, 0x3f803f80")
    a(f"v_lshlrev_b32 v136, 2, v135\nv_add_u32 v136, {KEYS}, v136")
    for i in AC: a(f"v_mov_b32 v{i}, 0")
AC=[108,109,110,111,160,161,162,163,164,165,166,167]
PMA="v_and_b32 v159, 7, v0\nv_lshl_add_u32 v159, v2, 3, v159\nv_mul_u32_u24 v159, 48, v159"
def gentab(first="s_lshl3_add_u32 s56, s5, s3",tb=56):
    a(first+"\ns_lshl_b32 s56, s56, 4\ns_add_u32 s56, s56, 1\nv_and_b32 v16, 7, v0\nv_lshl_add_u32 v16, v16, 1, s56\nv_and_b32 v17, 8, v0\nv_lshl_add_u32 v16, v17, 3, v16")
    a(f"v_cvt_f32_u32 v16, v16\nv_lshlrev_b32 v17, 3, v2\nv_cvt_f32_u32 v17, v17\nv_mul_f32 v16, {fhex(-1/512)}, v16\nv_cos_f32 v18, v16\nv_mul_f32 v17, v17, v16\nv_mul_f32 v20, {fhex(31.0)}, v16\nv_add_f32 v18, v18, v18")
    for k in range(4):
        a("v_cos_f32 v24, v17\nv_sin_f32 v25, v17\nv_add_f32 v17, v17, v16\nv_cos_f32 v26, v17\nv_sin_f32 v27, v17\nv_add_f32 v17, v17, v20")
        for j in range(2,8): a(f"v_pk_fma_f32 v[{24+2*j}:{25+2*j}], v[{22+2*j}:{23+2*j}], v[18:19], v[{20+2*j}:{21+2*j}] op_sel_hi:[1,0,1] neg_lo:[0,0,1] neg_hi:[0,0,1]")
        if k==0: a("v_lshlrev_b32 v21, 31, v0\nv_xor_b32 v21, -1.0, v21\nv_cmp_eq_u32 vcc, 0, v2\nv_cndmask_b32 v25, v25, v21, vcc")
        for h in range(4): a(f"v_cvt_pk_bf16_f32 v{tb+4*k+h}, v{24+4*h}, v{26+4*h}\nv_cvt_pk_bf16_f32 v{tb+16+4*k+h}, v{25+4*h}, v{27+4*h}")
def read_w():
    a(f"ds_read_b64 v[98:99], v122 offset:{L_WP}\nds_read_b64 v[100:101], v122 offset:{L_WP+8*U}\nds_read_b32 v102, v123 offset:{L_WP+16*U}\nds_read_b64 v[104:105], v122 offset:{L_WP+10*U}\nds_read_b64 v[106:107], v124 offset:{L_WP}\nds_read_b32 v103, v123 offset:{L_WP+6*U}")

a(f"{KN}:")
stamp(0)
a("s_load_dwordx2 s[16:17], s[0:1], 0\nv_lshrrev_b32 v4, 6, v0\ns_cmp_eq_u32 s2, 0\ns_cselect_b32 s4, 7, 8\nv_readfirstlane_b32 s3, v4\ns_lshr_b32 s7, s2, 7\ns_cbranch_scc1 L_bf")
a("s_setprio 3\nv_lshlrev_b32 v4, s4, v4\nv_add_u32 v4, s2, v4\nv_sub_u32 v5, 2048, v4\nv_and_b32 v7, 8, v0\nv_cmp_ne_u32 vcc, 0, v7\nv_lshrrev_b32 v7, 11, v5\nv_lshrrev_b32 v5, v7, v5\nv_cndmask_b32 v159, v4, v5, vcc")
a("v_mul_u32_u24 v158, 1280, v159\nv_and_b32 v7, 48, v0\nv_and_b32 v6, 7, v0\nv_lshl_add_u32 v158, v7, 2, v158\nv_lshl_add_u32 v158, v6, 3, v158\ns_cmp_ge_u32 s3, 8\ns_cbranch_scc1 L_nox\ns_waitcnt lgkmcnt(0)")
for i in range(5): a(f"global_load_dwordx2 v[{8+2*i}:{9+2*i}], v158, s[16:17] offset:{256*i}")
a("s_branch L_nox")
a("L_bf:\ns_load_dwordx2 s[40:41], s[0:1], 96\ns_getpc_b64 s[42:43]\nL_pc:\ns_cmp_lg_u32 s3, 0\ns_cbranch_scc1 L_bf0\ns_bfe_u32 s4, s2, 0x30003\ns_mulk_i32 s4, 3072\nv_lshrrev_b32 v4, 1, v0\nv_lshl_add_u32 v4, v4, 7, s4\nv_min_u32 v4, T_end-L_pc-4, v4\nglobal_load_dword v22, v4, s[42:43]\nL_bf0:\nv_and_b32 v6, 7, v0\ns_load_dwordx4 s[28:31], s[0:1], 48\ns_load_dwordx8 s[32:39], s[0:1], 64\ns_cmp_ge_u32 s2, 256\ns_cbranch_scc1 L_end")
a("v_and_b32 v1, 63, v0\nv_lshrrev_b32 v2, 4, v1\nv_and_b32 v3, 15, v0\nv_lshlrev_b32 v157, 4, v1\ns_bfe_u32 s5, s2, 0x10003\ns_mov_b32 s15, 0\ns_add_u32 s42, s42, T_0-L_pc\ns_addc_u32 s43, s43, 0\ns_sub_u32 s4, s2, 128\nv_mov_b32 v12, -1\nv_mov_b32 v13, -1\nv_mov_b32 v14, -1\nv_mov_b32 v15, -1\ns_cmp_lg_u32 s3, 10\ns_cbranch_scc1 L_bf1")
a(f"s_lshl_b32 s7, s4, 7\ns_add_u32 s7, s7, {EXT}\nv_add_u32 v5, s7, v157\ns_mul_i32 s7, s4, {SMW}\ns_add_u32 s7, s7, {WS_SMALL}\nv_add_u32 v7, s7, v157\nv_min_u32 v4, 9, v1\nv_lshlrev_b32 v4, 7, v4\ns_waitcnt lgkmcnt(0)\nglobal_load_dword v22, v4, s[28:29]\nglobal_store_dwordx4 v7, v[12:15], s[40:41] offset:{SMW-1024} sc1\ns_mov_b64 exec, 0xff\ns_branch L_bf2")
a("L_bf1:")
a(f"s_lshl_b32 s7, s3, 7\ns_add_u32 s7, s7, s4\ns_lshl_b32 s7, s7, 7\ns_add_u32 s7, s7, {WS_I}\nv_lshrrev_b32 v5, 3, v1\nv_mul_u32_u24 v5, 0x28000, v5\nv_lshl_add_u32 v5, v6, 4, v5\nv_add_u32 v5, s7, v5")
a(f"s_mul_i32 s7, s4, 10\ns_add_u32 s7, s7, s3\ns_lshl_b32 s7, s7, 10\ns_add_u32 s7, s7, {WS_Y}\nv_add_u32 v7, s7, v157")
a("L_bf2:\ns_waitcnt lgkmcnt(0)\ns_load_dword s6, s[40:41], 0\nglobal_store_dwordx4 v5, v[12:15], s[40:41] sc1\ns_mov_b64 exec, -1\ns_barrier\nglobal_store_dwordx4 v7, v[12:15], s[40:41] sc1")
stamp(1)
a("s_and_b32 s7, s2, 7\ns_lshl1_add_u32 s7, s7, s5\ns_add_u32 s8, s7, 208\ns_add_u32 s9, s7, 242\ns_cmp_lt_u32 s7, 6\ns_cselect_b32 s8, s8, s9\ns_sub_u32 s9, 229, s7\ns_cmp_ge_u32 s7, 14\ns_cselect_b32 s8, s9, s8")
a("s_cmp_lt_u32 s2, 208\ns_cselect_b32 s14, s2, s8\ns_sub_u32 s9, s2, 8\ns_cmp_ge_u32 s2, 224\ns_cselect_b32 s14, s9, s14")
a(f"s_lshl_b32 s7, s4, 7\ns_add_u32 s7, s7, {WS_FA}\nv_add_u32 v18, s7, v157\nv_lshrrev_b32 v4, 3, v1\nv_lshlrev_b32 v19, 15, v4\nv_lshrrev_b32 v4, 1, v4\nv_lshl_add_u32 v19, v4, 15, v19\nv_lshl_add_u32 v19, v6, 4, v19\ns_sub_u32 s7, s7, 0x4000\nv_add_u32 v19, s7, v19\ns_waitcnt lgkmcnt(0)\ns_add_u32 s6, s6, 1\nv_mov_b32 v8, s6\nv_mov_b32 v9, s6\nv_mov_b32 v10, s6\nv_mov_b32 v11, s6\ns_waitcnt vmcnt(1)\ns_barrier")
EK=opt("ek",1)
if EK: a("s_sub_u32 s49, s14, 160\ns_cmp_lt_u32 s49, 54\ns_cselect_b32 s7, s3, 9\ns_cmp_lt_u32 s7, 8\ns_cbranch_scc1 L_f1")
a("s_cmp_lg_u32 s3, 9\ns_cbranch_scc1 L_bf9\ns_mov_b64 exec, 0xffffff\nglobal_store_dwordx4 v19, v[8:11], s[40:41] sc1\ns_mov_b64 exec, -1\ns_waitcnt vmcnt(1)\ns_branch L_bfa\nL_bf9:\ns_waitcnt vmcnt(0)\nL_bfa:\ns_barrier\ns_cmp_lg_u32 s3, 10\ns_cbranch_scc1 L_bfb\ns_mov_b64 exec, 0xff\nglobal_store_dwordx4 v18, v[8:11], s[40:41] sc1\ns_mov_b64 exec, -1\nL_bfb:\ns_barrier")
stamp(2)
a("s_setprio 0\ns_cmp_lt_u32 s3, 8\ns_cbranch_scc1 L_bf3\ns_cmp_eq_u32 s3, 8\ns_cbranch_scc1 L_bf8\ns_cmp_eq_u32 s3, 9\ns_cbranch_scc1 L_agg")
a("s_cmp_lt_u32 s2, 160\ns_cbranch_scc1 L_flagchk\ns_and_b32 s7, s14, 254\ns_cmp_eq_u32 s7, 214\ns_cbranch_scc1 L_fin\ns_branch L_fw")
a("L_nox:\ns_setprio 0\ns_load_dwordx2 s[40:41], s[0:1], 96\ns_load_dwordx4 s[28:31], s[0:1], 48\ns_load_dwordx8 s[32:39], s[0:1], 64\ns_getpc_b64 s[42:43]\nL_pc2:")
stamp(1)
a("v_and_b32 v1, 63, v0\nv_lshrrev_b32 v2, 4, v1\nv_and_b32 v3, 15, v0\nv_lshlrev_b32 v157, 4, v1\ns_bfe_u32 s5, s2, 0x10003\ns_mov_b32 s15, 0\ns_add_u32 s42, s42, T_0-L_pc2\ns_addc_u32 s43, s43, 0\ns_cmp_eq_u32 s3, 10\ns_cbranch_scc1 L_a10")
a("v_readfirstlane_b32 s46, v4\nv_readfirstlane_b32 s47, v5\ns_lshl_b32 s48, s3, 1\ns_cmp_eq_u32 s3, 8\ns_cselect_b32 s48, 1, s48\ns_and_b32 s50, s46, 1023")
a("v_bfe_u32 v20, v0, 2, 1\nv_bfe_u32 v21, v0, 3, 2\nv_and_b32 v22, 3, v0\nv_lshl_add_u32 v24, v21, 2, v22\nv_lshl_add_u32 v24, v20, 4, v24\nv_mul_u32_u24 v24, 20, v24\nv_add_u32 v24, s3, v24\ns_cmp_lg_u32 s3, 0\ns_cbranch_scc1 L_wg")
a("v_lshrrev_b32 v24, 1, v21\nv_lshl_add_u32 v24, v20, 1, v24\nv_lshl_add_u32 v24, v24, 2, v22\nv_and_b32 v21, 1, v21\nv_lshl_add_u32 v24, v24, 1, 2\nv_sub_u32 v24, v24, v21\nv_mul_u32_u24 v24, 10, v24\nL_wg:")
a(f"v_sub_u32 v25, 640, v24\nv_cmp_eq_u32 vcc, 320, v24\nv_lshrrev_b32 v20, 5, v1\nv_and_b32 v21, 31, v0\nv_cndmask_b32_e64 v25, v25, 0, vcc\nv_cmp_eq_u32 vcc, 1, v20\ns_mul_i32 s49, s3, {U}\nv_lshl_add_u32 v115, v21, 1, s49\nv_cndmask_b32 v24, v24, v25, vcc\nv_lshlrev_b32 v87, 1, v24\nv_mul_u32_u24 v20, {10*U}, v20\nv_add_u32 v115, v115, v20")
a("s_cmp_ge_u32 s3, 8\ns_cbranch_scc1 L_gtrig")
a("v_lshrrev_b32 v161, 8, v159\nv_bfe_u32 v4, v159, 7, 1\nv_lshl_add_u32 v161, v4, 3, v161\nv_lshrrev_b32 v4, 2, v161\nv_sub_u32 v4, 0, v4\nv_and_b32 v4, 3, v4\nv_lshlrev_b32 v4, 1, v4\nv_xor_b32 v4, v4, v6\nv_mul_u32_u24 v160, 5120, v2\nv_lshl_add_u32 v160, v4, 3, v160\nv_lshl_add_u32 v160, v161, 6, v160\nv_lshlrev_b32 v161, 2, v161")
a("v_mov_b32 v23, 0\nv_mov_b32 v27, 0\nv_mov_b32 v31, 0\nv_mov_b32 v35, 0\nv_mov_b32 v18, 0\nv_mov_b32 v19, 0\ns_mov_b32 s52, 0x05040100\ns_mov_b32 s53, 0x07060302")
a(f"ds_write_b32 v161, v23 offset:{L_CNT}\nv_add_lshl_u32 v86, v161, v2, 2")
a(f"v_mov_b32 v162, {fhex(-1/32)}\nv_cmp_eq_u32 vcc, 0, v2\nv_cndmask_b32 v162, 0, v162, vcc")
a("L_gtrig:")
a("s_add_u32 s12, s3, 80\ns_cmp_eq_u32 s3, 0\ns_cselect_b32 s13, 4, 8\ns_cselect_b32 s14, 20, s3\ns_cselect_b32 s12, 10, s12")
a("v_lshrrev_b32 v44, 2, v3\nv_and_b32 v45, 3, v0\nv_mad_u32_u24 v44, v44, s13, v45\nv_mul_u32_u24 v44, 20, v44\nv_add_u32 v45, s12, v44\nv_add_u32 v44, s14, v44\nv_lshlrev_b32 v46, 3, v2")
a(f"v_cvt_f32_u32 v44, v44\nv_cvt_f32_u32 v45, v45\nv_cvt_f32_u32 v46, v46\nv_mul_f32 v44, {fhex(1/640)}, v44\nv_mul_f32 v45, {fhex(1/640)}, v45\nv_mul_f32 v47, v46, v45\nv_mul_f32 v46, v46, v44")
for tau in range(2):
    a(f"v_cos_f32 v48, v{46+tau}\nv_sin_f32 v49, v{46+tau}\nv_add_f32 v{46+tau}, v{46+tau}, v{44+tau}\nv_cos_f32 v64, v{44+tau}\nv_cos_f32 v50, v{46+tau}\nv_sin_f32 v51, v{46+tau}\nv_add_f32 v64, v64, v64")
    for j in range(2,8): a(f"v_pk_fma_f32 v[{48+2*j}:{49+2*j}], v[{46+2*j}:{47+2*j}], v[64:65], v[{44+2*j}:{45+2*j}] op_sel_hi:[1,0,1] neg_lo:[0,0,1] neg_hi:[0,0,1]")
    for h in range(4):
        a(f"v_cvt_pk_bf16_f32 v{88+8*tau+h}, v{48+4*h}, v{50+4*h}\nv_cvt_pk_bf16_f32 v{104+4*tau+h}, v{49+4*h}, v{51+4*h}\nv_xor_b32 v{92+8*tau+h}, 0x80008000, v{104+4*tau+h}")
a(f"s_barrier\nds_read_b128 v[36:39], v157 offset:{L_R20}\nds_read_b128 v[40:43], v157 offset:{L_R20+1024}")
a(f"s_lshl_b32 s49, s3, 11")
a("v_lshlrev_b32 v166, 4, v2\nv_lshrrev_b32 v4, 2, v3\nv_sub_u32 v4, 0, v4\nv_and_b32 v4, 3, v4\nv_xor_b32 v4, v4, v2\nv_lshlrev_b32 v4, 4, v4\nv_lshl_add_u32 v163, v3, 6, v4\nv_add_u32 v163, s49, v163")
a(f"s_lshl_b32 s49, s3, 7\ns_add_u32 s49, s49, s2\ns_lshl_b32 s49, s49, 7\ns_add_u32 s49, s49, {WS_I}")
a("v_lshrrev_b32 v4, 1, v3\nv_and_b32 v5, 1, v0\nv_mul_u32_u24 v167, 0x28000, v4\nv_lshl_add_u32 v167, v5, 6, v167\nv_add3_u32 v167, v167, v166, s49")
a(f"s_lshl_b32 s49, s3, 7\ns_add_u32 s49, s49, {L_EX}\nv_lshl_add_u32 v155, v5, 5, s49\nv_lshl_add_u32 v155, v4, 2, v155\nv_lshrrev_b32 v4, 1, v2\nv_and_b32 v154, 1, v2\nv_lshl_add_u32 v154, v154, 2, v4\ns_mul_i32 s49, s3, {U}\nv_lshl_add_u32 v154, v154, 3, s49\nv_mul_u32_u24 v4, {10*U}, v5\nv_add_u32 v154, v154, v4")
a("v_and_b32 v4, 0xff1, v0\nv_cmp_eq_u32 vcc, 49, v4\nv_mov_b32 v153, 0xffff\nv_cndmask_b32 v153, -1, v153, vcc")
a("v_mov_b32 v120, 0")
a("s_cmp_ge_u32 s3, 8\ns_cbranch_scc1 L_a8b")
p2addr()
stamp(2)
a("s_waitcnt vmcnt(0) lgkmcnt(0)\nglobal_load_ushort v87, v87, s[28:29]")
stamp(3)
for low in range(4):
    c=low>>1; sel="s53" if low&1 else "s52"; o=20+4*low
    a(f"v_perm_b32 v{o}, v{10+c}, v{8+c}, {sel}\nv_perm_b32 v{o+1}, v{14+c}, v{12+c}, {sel}\nv_perm_b32 v{o+2}, v23, v{16+c}, {sel}")
    if low>0: a(f"{MF} {vr(44+4*(low-1))}, v[36:39], {vr(20+4*(low-1))}, 0")
a("v_dot2c_f32_bf16 v18, v8, v8\nv_dot2c_f32_bf16 v19, v9, v9")
a(f"{MF} {vr(56)}, v[36:39], {vr(32)}, 0")
for i in range(1,5):
    a(f"v_dot2c_f32_bf16 v18, v{8+2*i}, v{8+2*i}\nv_dot2c_f32_bf16 v19, v{9+2*i}, v{9+2*i}")
    a(f"{MF} {vr(60+4*(i-1))}, v[40:43], {vr(20+4*(i-1))}, 0")
a("v_add_f32 v4, v47, v51\nv_add_f32 v5, v55, v59\nv_add_f32 v4, v4, v5\nv_add_f32 v18, v18, v19")
for m,r in (("quad_perm:[1,0,3,2]",1),("quad_perm:[2,3,0,1]",2),("row_half_mirror",0)):
    if r: a(f"v_cvt_pk_bf16_f32 v{76+2*r}, v{44+r}, v{48+r}")
    else: a("v_cvt_pk_bf16_f32 v82, v60, v64")
    a(f"v_add_f32_dpp v4, v4, v4 {m} {DPPM}\nv_add_f32_dpp v18, v18, v18 {m} {DPPM}")
    if r: a(f"v_cvt_pk_bf16_f32 v{77+2*r}, v{52+r}, v{56+r}\nds_write_b64 v160, v[{76+2*r}:{77+2*r}] offset:{1024*r}")
a("v_cvt_pk_bf16_f32 v83, v68, v72\nds_write_b64 v160, v[82:83] offset:3072\nv_cvt_pk_bf16_f32 v84, v61, v65\nv_cvt_pk_bf16_f32 v85, v69, v73\nds_write_b64 v160, v[84:85] offset:4096")
for low in range(4): a(f"v_fmac_f32 v{44+4*low}, v4, v162")
a("v_cvt_pk_bf16_f32 v76, v44, v48\nv_cvt_pk_bf16_f32 v77, v52, v56\nds_write_b64 v160, v[76:77]")
a(f"ds_write_b32 v86, v18 offset:{L_SQ4}\nds_write_b32 v161, v4 offset:{L_SUM}")
a("L_b1:\ns_setprio 1\ns_waitcnt lgkmcnt(0)\ns_barrier")
stamp(4)
a(f"ds_read_b128 v[20:23], v163\nds_read_b128 v[28:31], v163 offset:1024\ns_cmp_eq_u32 s3, 0")
lg(1)
a(f"{MF} v[44:47], v[20:23], v[88:91], 0\n{MF} v[48:51], v[20:23], v[92:95], 0\ns_cbranch_scc1 L_u0")
a(f"{MF} v[52:55], v[20:23], v[96:99], 0\n{MF} v[56:59], v[20:23], v[100:103], 0")
lg(0)
a(f"{MF} v[44:47], v[28:31], v[104:107], v[44:47]\n{MF} v[48:51], v[28:31], v[88:91], v[48:51]")
a(f"{MF} v[52:55], v[28:31], v[108:111], v[52:55]\n{MF} v[56:59], v[28:31], v[96:99], v[56:59]\nL_u1:")
tail.append(f"L_u0:\ns_waitcnt lgkmcnt(0)\n{MF} v[52:55], v[28:31], v[96:99], 0\n{MF} v[56:59], v[28:31], v[100:103], 0\ns_branch L_u1")
a(f"ds_read_b128 v[32:35], v157 offset:{L_SM}\ns_waitcnt vmcnt(0)\nds_write_b16 v115, v87 offset:{L_WP}")
a("v_cvt_pk_bf16_f32 v20, v44, v45\nv_cvt_pk_bf16_f32 v21, v46, v47\nv_cvt_pk_bf16_f32 v22, v48, v49\nv_cvt_pk_bf16_f32 v23, v50, v51")
a("v_cvt_pk_bf16_f32 v24, v52, v53\nv_cvt_pk_bf16_f32 v25, v54, v55\nv_cvt_pk_bf16_f32 v26, v56, v57\nv_cvt_pk_bf16_f32 v27, v58, v59")
a("L_sm:\ns_waitcnt lgkmcnt(0)\nv_max3_u32 v4, v32, v33, v34\nv_max_u32 v4, v4, v35\nv_cmp_eq_u32 vcc, -1, v4\ns_cbranch_vccnz L_smr\nL_smd:")
tail.append(f"L_smr:\ns_add_u32 s13, s13, 1\ns_cmp_gt_u32 s13, 0x10000\ns_cbranch_scc1 L_smd\nds_read_b128 v[32:35], v157 offset:{L_SM}\ns_branch L_sm")
a(f"{MF} v[44:47], v[20:23], v[32:35], 0\n{MF} v[48:51], v[24:27], v[32:35], 0")
a(f"ds_read_b64 v[60:61], v154 offset:{L_WP}\nds_read_b64 v[62:63], v154 offset:{L_WP+16}")
a("v_cvt_pk_bf16_f32 v20, v44, v45\nv_cvt_pk_bf16_f32 v21, v46, v47\nv_cvt_pk_bf16_f32 v22, v48, v49\nv_cvt_pk_bf16_f32 v23, v50, v51")
a("global_store_dwordx4 v167, v[20:23], s[40:41] sc1\ns_setprio 0")
stamp(5)
a(f"s_waitcnt lgkmcnt(0)\nv_and_b32 v61, v61, v153\n{MF} v[64:67], v[60:63], v[20:23], 0\nds_write2_b32 v155, v64, v65 offset0:0 offset1:16\ns_waitcnt lgkmcnt(0)\ns_barrier\ns_cmp_eq_u32 s3, 9\ns_cbranch_scc1 L_ext")
a(PMA)
read_pm()
a(f"s_mul_i32 s51, s48, {RS}\ns_add_u32 s51, s51, {L_XP}\nv_lshrrev_b32 v156, 3, v3\nv_mul_u32_u24 v156, {RS}, v156\nv_add_u32 v156, s51, v156")
a("s_cmp_lt_u32 s3, 8\ns_cbranch_scc1 L_scat\ns_cmp_lg_u32 s2, 0\ns_cbranch_scc1 L_fin\ns_barrier\ns_barrier\ns_branch L_p2end")
a("L_ext:\ns_setprio 3")
for i in range(10): a(f"ds_read_b32 v{44+i}, v112 offset:{L_EX+128*i}")
a("s_waitcnt lgkmcnt(0)\nv_pk_add_f32 v[44:45], v[44:45], v[46:47]\nv_pk_add_f32 v[48:49], v[48:49], v[50:51]\nv_pk_add_f32 v[44:45], v[44:45], v[52:53]\nv_pk_add_f32 v[44:45], v[44:45], v[48:49]\nv_add_f32 v44, v44, v45\nv_mul_f32 v44, v44, v113\nv_mov_b32 v45, v44")
a(f"v_permlane32_swap_b32 v44, v45\nv_add_f32 v44, v44, v45\nv_mov_b32 v45, v44\nv_permlane16_swap_b32 v44, v45\nv_add_f32 v44, v44, v45\nv_mov_b32_dpp v45, v44 quad_perm:[1,0,3,2] {DPPM}\nv_cvt_pk_bf16_f32 v44, v44, v45")
a("s_mov_b64 exec, 0x5555\nglobal_store_dword v120, v44, s[40:41] sc1\ns_mov_b64 exec, -1")
stamp(3)
a("s_barrier\ns_branch L_fin")
XA=[88,89,90,91,92]; XB=[94,95,96,97,93]; WA=[98,99,100,101,102]; WB=[104,105,106,107,103]
a("L_scat:\ns_cmp_ge_u32 s3, 4\ns_cbranch_scc1 L_b2\ns_waitcnt lgkmcnt(0)")
scatter(156)
a("L_b2:")
TABPOS=opt("tabpos",1)
if TABPOS==0:
    a("s_cmp_ge_u32 s3, 4\ns_cbranch_scc1 L_ntab")
    gentab()
    a("L_ntab:")
stamp(6)
a("s_waitcnt vmcnt(0) lgkmcnt(0)\ns_barrier" if opt("ack1",1) else "s_waitcnt lgkmcnt(0)\ns_barrier")
stamp(7)
if opt("pre1",0): a(f"s_sleep {opt('pre1',0)}")
def x1win():
    if TABPOS==1:
        a("s_cmp_ge_u32 s3, 4\ns_cbranch_scc1 L_ntab")
        gentab()
        a("s_branch L_ntab2\nL_ntab:\ns_cmp_ge_u32 s2, 128\ns_cbranch_scc1 L_ntab2")
        scatter(156)
        a("L_ntab2:")
poll(["global_load_dwordx4 v[40:43], v112, s[40:41] sc1","global_load_dwordx4 v[44:47], v113, s[40:41] sc1"],range(40,48),opt("sl1",2),16,between=x1win)
stamp(8)
a(f"ds_write_b128 v114, v[40:43] offset:{L_P2}\nds_write_b128 v114, v[44:47] offset:{L_P2+8192}\ns_waitcnt lgkmcnt(0)\ns_barrier")
a("s_cmp_ge_u32 s3, 4\ns_cbranch_scc1 L_p2end\ns_setprio 2")
def trg(i):
    k,c=i>>2,i&3; b=8+4*(i&7)
    a(f"ds_read_b64_tr_b16 v[{b}:{b+1}], v{116+c} offset:{L_P2+4096*k}\nds_read_b64_tr_b16 v[{b+2}:{b+3}], v{116+c} offset:{L_P2+4096*k+512}")
NPRE=7
for i in range(NPRE): trg(i)
for i in range(16):
    k,c=i>>2,i&3
    issued=min(16,NPRE+i)
    a(f"s_waitcnt lgkmcnt({2*(issued-i-1)})")
    a(f"{MF} {vr(40+4*c)}, {vr(8+4*(i&7))}, {vr(56+16*(c&1)+4*k)}, {'0' if k==0 else vr(40+4*c)}")
    if NPRE+i<16: trg(NPRE+i)
a(f"v_pk_add_f32 v[8:9], v[40:41], v[44:45] {NEG}\nv_pk_add_f32 v[10:11], v[42:43], v[46:47] {NEG}\nv_pk_add_f32 v[16:17], v[40:41], v[44:45]\nv_pk_add_f32 v[18:19], v[42:43], v[46:47]")
a("v_cvt_pk_bf16_f32 v24, v8, v9\nv_cvt_pk_bf16_f32 v25, v10, v11\nv_cvt_pk_bf16_f32 v28, v16, v17\nv_cvt_pk_bf16_f32 v29, v18, v19")
a(f"v_pk_add_f32 v[12:13], v[48:49], v[52:53] {NEG}\nv_pk_add_f32 v[14:15], v[50:51], v[54:55] {NEG}\nv_cvt_pk_bf16_f32 v26, v12, v13\nv_cvt_pk_bf16_f32 v27, v14, v15")
a("global_store_dwordx4 v120, v[24:27], s[40:41] sc1")
a("v_pk_add_f32 v[20:21], v[48:49], v[52:53]\nv_pk_add_f32 v[22:23], v[50:51], v[54:55]\nv_cvt_pk_bf16_f32 v30, v20, v21\nv_cvt_pk_bf16_f32 v31, v22, v23")
a("global_store_dwordx4 v121, v[28:31], s[40:41] sc1\ns_setprio 0")
stamp(9)
a("L_p2end:\ns_cmp_ge_u32 s2, 128\ns_cbranch_scc1 L_fin")
p3addrA()
a(f"ds_read_b64 v[88:89], v125\nds_read_b64 v[90:91], v125 offset:{8*U}\nds_read_b32 v92, v126 offset:{16*U}\nds_read_b64 v[94:95], v125 offset:{RS+10*U}\nds_read_b64 v[96:97], v127 offset:{RS}\nds_read_b32 v93, v126 offset:{RS+6*U}")
read_w()
p3addrB()
a(f"s_and_b32 s60, s2, 7\ns_lshl_b32 s60, s60, 7\ns_add_u32 s60, s60, {LIST}\nv_lshl_add_u32 v19, v3, 2, s60\nv_lshlrev_b32 v155, 7, v1\nv_add_u32 v155, {H3}, v155\nv_add_u32 v121, 0x2000, v155")
if opt("w2",-1)<0: a("s_waitcnt vmcnt(0)\ns_barrier")
else: a(f"s_barrier\ns_sleep {opt('w2',0)}")
stamp(10)
if opt("pre2",0): a(f"s_sleep {opt('pre2',0)}")
def x2win():
    a("s_waitcnt lgkmcnt(0)")
    for i in range(5):
        a(f"v_dot2c_f32_bf16 v{AC[0]}, s63, v{XA[i]}\nv_dot2c_f32_bf16 v{AC[1]}, v{XA[i]}, v{WA[i]}\nv_dot2c_f32_bf16 v{AC[2]}, v{XA[i]}, v{XA[i]}\nv_dot2c_f32_bf16 v{AC[3]}, s63, v{WA[i]}")
        a(f"v_dot2c_f32_bf16 v{AC[4]}, s63, v{XB[i]}\nv_dot2c_f32_bf16 v{AC[5]}, v{XB[i]}, v{WB[i]}\nv_dot2c_f32_bf16 v{AC[6]}, v{XB[i]}, v{XB[i]}")
    a(f"v_mov_b32 v{AC[7]}, v{AC[3]}\nv_mov_b32 v18, {fhex(1e-5)}\ns_mov_b32 s58, {fhex(1/640)}\ns_movk_i32 s59, 0x7ff")
    for X,hb in ((XA,32),(XB,42)):
        for i in range(5): a(f"v_lshlrev_b32 v{hb+2*i}, 16, v{X[i]}\nv_and_b32 v{hb+1+2*i}, 0xffff0000, v{X[i]}")
    a(f"v_lshlrev_b32 v154, 4, v0\nv_and_b32 v154, 0x1fff, v154\nv_add_u32 v154, {KEYS}, v154\nv_mov_b32 v119, {L_CNT}\ns_mov_b32 s61, 0\ns_mov_b32 s62, 0\ns_movk_i32 s44, 99\ns_movk_i32 s45, 99\ns_cmp_lt_u32 s3, 8\ns_cselect_b64 s[56:57], 1, 0\ns_add_u32 s49, s48, 1")
    a("s_waitcnt vmcnt(3)\nv_cmp_eq_u32 vcc, -1, v71\ns_mov_b32 s55, 1\ns_mov_b32 s54, -1\ns_cbranch_vccnz L_l2\ns_mov_b32 s55, 0\nv_cmp_eq_u32_e64 s[24:25], s46, v71\nv_cmp_eq_u32_e64 s[26:27], s47, v71\ns_ff1_i32_b64 s52, s[24:25]\ns_ff1_i32_b64 s53, s[26:27]\ns_cmp_eq_u32 s50, 0\ns_cselect_b32 s53, -1, s53\ns_and_b32 s54, s52, s53\ns_cmp_lt_i32 s54, 0\ns_cbranch_scc1 L_nl\n"+HINT+("" if GEN else "\ns_waitcnt vmcnt(2)\ns_branch LV1")+"\nL_nl:")
    if GEN==1: a(f"s_cmp_lg_u32 s3, {opt('gw',7)}\ns_cbranch_scc1 L_gh\ns_sub_u32 s60, s2, {opt('gh0',112)}\ns_cmp_ge_u32 s60, 16\ns_cbranch_scc1 L_gh\ns_lshl_b64 exec, 1, s60\nglobal_store_dword v155, v155, s[40:41] sc1\ns_mov_b64 exec, -1\ns_waitcnt vmcnt(1)\ns_branch LV1\nL_gh:")
    tail.append("L_l2:\nglobal_load_dword v71, v19, s[40:41] offset:1024 sc1\ns_branch L_nl")
NH3=16; H3POS=opt("h3pos",0)
GEN=opt("gen",0)
HINT="" if GEN else "s_cmp_eq_u32 s50, 0\ns_cselect_b32 s26, 0, s26\ns_or_b32 exec_lo, s24, s26\ns_mov_b32 exec_hi, exec_lo\nglobal_store_dword v155, v155, s[40:41] sc1\nglobal_store_dword v121, v155, s[40:41] sc1\ns_mov_b64 exec, -1"
if GEN==2: a(f"s_cmp_lg_u32 s3, {opt('gw',7)}\ns_cbranch_scc1 L_gh\ns_sub_u32 s60, s2, {opt('gh0',112)}\ns_cmp_ge_u32 s60, 16\ns_cbranch_scc1 L_gh\ns_lshl_b64 exec, 1, s60\nglobal_store_dword v155, v155, s[40:41] sc1\ns_mov_b64 exec, -1\nL_gh:")
a("global_load_dword v71, v19, s[40:41] sc1")
assert pc[0]==1
poll(["global_load_dwordx2 v[112:113], v128, s[40:41] sc1","global_load_dwordx2 v[114:115], v129, s[40:41] sc1","global_load_dword v116, v130, s[40:41] sc1"],range(112,117),opt("sl2",2),4,between=x2win)
stamp(11)
YA=[112,113,114,117,116]; YB=[112,118,114,115,116]
A0,A1,A2,A3,B0,B1,B2_,B3,C0,C1,C2,C3=AC
def p3main():
    for i in (0,2,4,1,3):
        a(f"v_dot2c_f32_bf16 v{C0}, s63, v{YA[i]}\nv_dot2c_f32_bf16 v{C1}, v{YA[i]}, v{YA[i]}\nv_dot2c_f32_bf16 v{C2}, v{YA[i]}, v{XA[i]}\nv_dot2c_f32_bf16 v{C3}, v{YB[i]}, v{XB[i]}")
        a(f"v_dot2c_f32_bf16 v{A1}, v{YA[i]}, v{WA[i]}\nv_dot2c_f32_bf16 v{B1}, v{YB[i]}, v{WB[i]}")
    a(f"v_add_f32 v{A0}, v{A0}, v{C0}\nv_add_f32 v{B0}, v{B0}, v{C0}\nv_add_f32 v{A2}, v{A2}, v{C1}\nv_add_f32 v{B2_}, v{B2_}, v{C1}\nv_fmac_f32 v{A2}, 2.0, v{C2}\nv_fmac_f32 v{B2_}, 2.0, v{C3}")
    a(f"v_permlane32_swap_b32 v{A0}, v{A1}\nv_permlane32_swap_b32 v{B0}, v{B1}\nv_permlane32_swap_b32 v{A2}, v{A3}\nv_permlane32_swap_b32 v{B2_}, v{B3}")
    a(f"v_add_f32 v{A0}, v{A0}, v{A1}\nv_add_f32 v{A2}, v{A2}, v{A3}\nv_add_f32 v{B0}, v{B0}, v{B1}\nv_add_f32 v{B2_}, v{B2_}, v{B3}")
    a(f"v_permlane16_swap_b32 v{A0}, v{A2}\nv_permlane16_swap_b32 v{B0}, v{B2_}\nv_add_f32 v{A0}, v{A0}, v{A2}\nv_add_f32 v{B0}, v{B0}, v{B2_}")
    for s_ in (8,4,2,1): a(f"v_add_f32_dpp v{A0}, v{A0}, v{A0} row_ror:{s_} {DPPM}\nv_add_f32_dpp v{B0}, v{B0}, v{B0} row_ror:{s_} {DPPM}")
    a(f"ds_write_b32 v133, v{A0} offset:{L_ST3}\nds_write_b32 v134, v{B0} offset:{L_ST3}")
def top2():
    a("v_mov_b32 v4, v79")
    for s_ in (8,4,2,1): a(f"v_max_u32_dpp v4, v4, v4 row_ror:{s_} {DPPM}")
    a("v_cmp_ne_u32 vcc, v4, v79\nv_readfirstlane_b32 s6, v4\nv_cndmask_b32 v79, 0, v79, vcc\nv_mov_b32 v4, v79")
    for s_ in (8,4,2,1): a(f"v_max_u32_dpp v4, v4, v4 row_ror:{s_} {DPPM}")
    a("v_cmp_ne_u32 vcc, v4, v79\nv_readfirstlane_b32 s7, v4\nv_cndmask_b32 v79, 0, v79, vcc")
def hsum(Y,hb,pk):
    for i in range(5):
        a(f"v_lshlrev_b32 v4, 16, v{Y[i]}\nv_and_b32 v5, 0xffff0000, v{Y[i]}\nv_pk_add_f32 v[{hb+2*i}:{hb+1+2*i}], v[{hb+2*i}:{hb+1+2*i}], v[4:5]\nv_cvt_pk_bf16_f32 v{pk+i}, v{hb+2*i}, v{hb+1+2*i}")
def hnorm(hb,nb,sr,mv):
    for i in range(5):
        a(f"v_pk_fma_f32 v[{nb+2*i}:{nb+1+2*i}], v[{hb+2*i}:{hb+1+2*i}], s[{sr}:{sr+1}], v[{mv}:{mv+1}] op_sel_hi:[1,0,0] neg_lo:[0,0,1] neg_hi:[0,0,1]")
def pubstat(base,sl,acc):
    a(f"s_lshl_b32 s26, s{sl}, 4\ns_add_u32 s26, s26, {base}\nv_lshl_add_u32 v4, v2, 2, s26\ns_mov_b64 exec, 0x10001\nglobal_store_dword v4, v{acc}, s[40:41] sc1\ns_mov_b64 exec, -1")
def publish(base,sl,pk,o0):
    a(f"s_mul_i32 s26, s{sl}, {XSS}\ns_add_u32 s26, s26, {base}\nv_add_u32 v4, s26, v{o0}\nv_add_u32 v5, s26, v{o0+1}\nv_add_u32 v6, s26, v{o0+2}")
    a(f"global_store_dwordx2 v4, v[{pk}:{pk+1}], s[40:41] sc1\nglobal_store_dwordx2 v5, v[{pk+2}:{pk+3}], s[40:41] sc1\nglobal_store_dword v6, v{pk+4}, s[40:41] sc1")
a("v_and_b32 v117, v115, v131\nv_and_b32 v118, v113, v132\ns_cmp_lg_u32 s55, 0\ns_cbranch_scc1 L_l3\ns_cmp_lt_i32 s54, 0\ns_cbranch_scc0 L_cand\nL_nc:")
tail.append("L_l3:\nv_cmp_eq_u32 vcc, -1, v71\ns_cbranch_vccnz L_nc\ns_mov_b32 s55, 0\nv_cmp_eq_u32_e64 s[24:25], s46, v71\nv_cmp_eq_u32_e64 s[26:27], s47, v71\ns_ff1_i32_b64 s52, s[24:25]\ns_ff1_i32_b64 s53, s[26:27]\ns_cmp_eq_u32 s50, 0\ns_cselect_b32 s53, -1, s53\ns_and_b32 s54, s52, s53\ns_cmp_lt_i32 s54, 0\ns_cbranch_scc1 L_nc\n"+HINT+"\ns_branch L_cand")
p3main()
a("s_cmp_lt_i32 s54, 0\ns_cbranch_scc0 L_cst\nL_nc1:")
a(f"s_waitcnt lgkmcnt(0)\ns_barrier\nds_read_b128 v[76:79], v137 offset:{L_ST3}\ns_waitcnt lgkmcnt(0)")
a("v_mul_f32 v76, s58, v76\nv_fma_f32 v77, v77, s58, v18\nv_fma_f32 v77, -v76, v76, v77\nv_max_f32 v77, v77, v18\nv_rsq_f32 v77, v77\nv_fma_f32 v78, -v76, v79, v78\nv_mul_f32 v78, v78, v77")
a("v_ashrrev_i32 v79, 31, v78\nv_or_b32 v79, 0x80000000, v79\nv_xor_b32 v79, v79, v78\nv_bfi_b32 v79, s59, v135, v79\nv_min_u32 v79, -2, v79")
a("s_cmp_lg_u32 s3, 0\ns_cbranch_scc1 L_nokey\ns_mov_b64 exec, 0xffff\nglobal_store_dword v136, v79, s[40:41] sc1\ns_mov_b64 exec, -1\nL_nokey:")
stamp(12)
a("v_mul_f32 v76, v76, v77\nv_readlane_b32 s8, v77, s48\nv_readlane_b32 s12, v77, s49\nv_readlane_b32 s10, v76, s48\nv_readlane_b32 s18, v76, s49")
a("v_readlane_b32 s20, v79, s48\nv_readlane_b32 s21, v79, s49\nv_readlane_b32 s22, v78, s48\nv_readlane_b32 s23, v78, s49")
a("s_cmp_eq_u32 s50, 0\ns_cselect_b32 s21, 0, s21\nv_mov_b32 v80, s10\nv_mov_b32 v82, s18")
a("s_cmp_eq_u32 s55, 0\ns_cbranch_scc1 L_nc2")
poll(["global_load_dword v71, v19, s[40:41] sc1"],[71],opt("sll",2),None)
a("v_cmp_eq_u32_e64 s[24:25], s46, v71\nv_cmp_eq_u32_e64 s[26:27], s47, v71\ns_ff1_i32_b64 s52, s[24:25]\ns_ff1_i32_b64 s53, s[26:27]\ns_cmp_eq_u32 s50, 0\ns_cselect_b32 s53, -1, s53\ns_and_b32 s54, s52, s53\ns_cmp_lt_i32 s54, 0\ns_cbranch_scc1 L_nc2\n"+HINT+"\ns_branch L_cand\nL_nc2:")
a("s_cmp_lt_i32 s52, 0\ns_cbranch_scc0 L_na")
hsum(YA,32,60)
a("L_na:\ns_cmp_lt_i32 s53, 0\ns_cbranch_scc0 L_nb2")
hsum(YB,42,66)
a("L_nb2:")
hnorm(32,8,8,80)
hnorm(42,20,12,82)
top2()
def cand():
    a("L_wm0:\ns_branch L_wm1\nL_cand:\ns_setprio 3")
    for R,(sl,Y,hb,pk,o0) in enumerate(((52,YA,32,60,138),(53,YB,42,66,141))):
        a(f"s_cmp_lt_i32 s{sl}, 0\ns_cbranch_scc1 L_cs{R}")
        hsum(Y,hb,pk)
        publish(HN,sl,pk,o0)
        a(f"L_cs{R}:")
    stamp(16)
    a("s_cmp_eq_u32 s55, 0\ns_cbranch_scc1 L_nc\nL_cst:")
    for R,(sl,acc) in enumerate(((52,A0),(53,B0))):
        a(f"s_cmp_lt_i32 s{sl}, 0\ns_cbranch_scc1 L_ct{R}")
        pubstat(STAT,sl,acc)
        a(f"L_ct{R}:")
    a("s_setprio 0\ns_cmp_eq_u32 s55, 0\ns_cbranch_scc1 L_nc1\ns_branch L_nc2\nL_wm1:\ns_branch L_b1")
def outprep1():
    for R,(hb,nb,ob) in enumerate(((32,8,88),(42,20,94))):
        for i in range(5):
            a(f"v_pk_add_f32 v[4:5], v[{hb+2*i}:{hb+1+2*i}], v[{nb+2*i}:{nb+1+2*i}]\nv_cvt_pk_bf16_f32 v{ob+i}, v4, v5")
    a(f"ds_write_b64 v125, v[88:89]\nds_write_b64 v125, v[90:91] offset:{8*U}\nds_write_b32 v126, v92 offset:{16*U}\ns_cmp_eq_u32 s50, 0\ns_cbranch_scc1 L_nob")
    a(f"ds_write_b64 v125, v[94:95] offset:{RS+10*U}\nds_write_b64 v127, v[96:97] offset:{RS}\nds_write_b32 v126, v98 offset:{RS+6*U}\nL_nob:")
def outprep2():
    for i in range(10):
        t=4+2*(i&1)
        a(f"v_add_u32_sdwa v{t}, v{144+i}, v156 {SD.format(0)}\nv_add_u32_sdwa v{t+1}, v{144+i}, v156 {SD.format(1)}")
        a(f"ds_read_u16 v{8+i}, v{t}\nds_read_u16 v{20+i}, v{t+1}")
    a("v_cmp_lt_u32 vcc, 7, v3\nv_mov_b32 v4, s46\nv_mov_b32 v5, s47\nv_cndmask_b32 v52, v4, v5, vcc\nv_mov_b32 v4, s22\nv_mov_b32 v5, s23\nv_cndmask_b32 v53, v4, v5, vcc\nv_mov_b32 v4, s52\nv_mov_b32 v5, s53\nv_cndmask_b32 v54, v4, v5, vcc")
    a("v_mul_f32 v53, 0xbfb8aa3b, v53\nv_exp_f32 v53, v53\nv_and_b32 v54, 255, v54\nv_add_f32 v53, 1.0, v53\nv_rcp_f32 v53, v53\nv_mov_b32 v55, 0\ns_waitcnt lgkmcnt(0)")
    for i in range(10): a(f"v_lshl_or_b32 v{8+i}, v{20+i}, 16, v{8+i}")
OP=opt("op",1)
if OP>=1: outprep1()
if OP>=2: outprep2()
stamp(13)
if opt("pre3",0): a(f"s_sleep {opt('pre3',0)}")
poll(["global_load_dwordx4 v[72:75], v154, s[40:41] sc1"],range(72,76),opt("sl3",2),4,between=lambda: (outprep1() if OP<1 else None, outprep2() if OP<2 else None))
stamp(14)
a("L_round:")
SP=[24,26,28,30,8,10,16,58]
for i in range(4): a(f"v_cmp_gt_u32_e64 s[{SP[i]}:{SP[i]+1}], v{72+i}, s6")
for i in range(4): a(f"v_cmp_gt_u32_e64 s[{SP[4+i]}:{SP[4+i]+1}], v{72+i}, s7")
for i in range(8): a(f"s_bcnt1_i32_b64 s{SP[i]}, s[{SP[i]}:{SP[i]+1}]")
a("s_add_u32 s24, s24, s26\ns_add_u32 s28, s28, s30\ns_add_u32 s8, s8, s10\ns_add_u32 s16, s16, s58\ns_add_u32 s24, s24, s28\ns_add_u32 s8, s8, s16\ns_lshl_b32 s8, s8, 16\ns_add_u32 s24, s24, s8")
a("v_mov_b32 v4, s24\ns_mov_b64 exec, s[56:57]\nds_add_u32 v119, v4\ns_mov_b64 exec, -1\ns_waitcnt lgkmcnt(0)\ns_barrier\nds_read_b32 v4, v119\ns_waitcnt lgkmcnt(0)")
a("v_readfirstlane_b32 s24, v4\ns_and_b32 s25, s24, 0xffff\ns_lshr_b32 s24, s24, 16\ns_cmp_ge_u32 s25, 8\ns_cbranch_scc1 L_rdone")
for sk,srk in ((20,44),(21,45)):
    a(f"s_cmp_eq_u32 s{sk}, s7\ns_cselect_b32 s{srk}, s24, s{srk}\ns_cmp_eq_u32 s{sk}, s6\ns_cselect_b32 s{srk}, s25, s{srk}")
a("s_cmp_ge_u32 s24, 7\ns_cbranch_scc1 L_rdone\ns_cmp_ge_u32 s61, 3\ns_cbranch_scc1 L_rdone\ns_add_u32 s61, s61, 1\nv_add_u32 v119, 4, v119")
top2()
a("s_branch L_round\nL_rdone:")
stamp(15)
a("s_mov_b32 s24, 0x00ff00ff\ns_cmp_lt_u32 s44, 8\ns_cselect_b32 s30, 0, s24\ns_cselect_b32 s28, s24, 0\ns_not_b32 s24, s24\ns_cmp_lt_u32 s45, 8\ns_cselect_b32 s31, 0, s24\ns_cselect_b32 s29, s24, 0")
a("s_cmp_eq_u32 s50, 0\ns_cselect_b32 s31, 0, s31\ns_or_b32 s30, s30, s31\ns_mov_b32 s31, s30\ns_or_b32 s28, s28, s29\ns_cbranch_scc0 L_nosel\ns_mov_b32 s29, s28")
a(f"v_cmp_lt_u32 vcc, 7, v3\nv_mov_b32 v4, s44\nv_mov_b32 v5, s45\nv_cndmask_b32 v20, v4, v5, vcc\nv_and_b32 v20, 7, v20\nv_lshlrev_b32 v22, 7, v20\nv_add_u32 v22, {META}, v22")
MC=opt("mc",1)
if MC: a(f"v_and_b32 v4, 1, v0\nv_mul_u32_u24 v4, {META2-META}, v4\nv_add_u32 v22, v22, v4")
a(f"s_and_b32 exec_lo, s28, {'0x0303' if MC else '0x0101'}\ns_mov_b32 exec_hi, 0\nglobal_store_dwordx4 v22, v[52:55], s[40:41] sc1\ns_mov_b64 exec, s[28:29]")
a(f"v_mul_u32_u24 v21, 1280, v20\nv_add_u32 v21, {BASE}, v21\nv_lshl_add_u32 v21, v2, 6, v21\nv_and_b32 v4, 7, v0\nv_lshl_add_u32 v21, v4, 3, v21")
for i in range(5): a(f"global_store_dwordx2 v21, v[{8+2*i}:{9+2*i}], s[40:41] offset:{256*i} sc1")
a("s_mov_b64 exec, -1\ns_cmp_ge_u32 s44, 8\ns_cbranch_scc1 L_ns0")
publish(HN8,44,60,138)
pubstat(STAT8,44,A0)
a("L_ns0:\ns_cmp_ge_u32 s45, 8\ns_cbranch_scc1 L_nosel")
publish(HN8,45,66,141)
pubstat(STAT8,45,B0)
a("L_nosel:")
a("s_cmp_eq_u32 s30, 0\ns_cbranch_scc1 L_noout\ns_mov_b64 exec, s[30:31]")
for i in range(5): a(f"global_store_dwordx2 v158, v[{8+2*i}:{9+2*i}], s[36:37] offset:{256*i} {OUTF}")
a("s_mov_b64 exec, -1\nL_noout:")
a("s_or_b32 s24, s2, s3\ns_cbranch_scc1 L_fin")
a("s_load_dword s16, s[40:41], 0\nv_mov_b32 v4, 0\ns_waitcnt lgkmcnt(0)\ns_add_u32 s16, s16, 1\nv_mov_b32 v5, s16\ns_mov_b64 exec, 1\nglobal_store_dword v4, v5, s[40:41]\ns_mov_b64 exec, -1\ns_branch L_fin")
cand()
flush_tail()
a("L_a8b:\nv_mov_b32 v112, 0\nv_mov_b32 v113, 0\nv_mov_b32 v121, 0\ns_waitcnt lgkmcnt(0)\nglobal_load_ushort v87, v87, s[28:29]\ns_cmp_eq_u32 s3, 8\ns_cbranch_scc1 "+("L_wm0" if opt("wm",1) else "L_b1"))
a(f"v_cvt_f32_u32 v20, s2\nv_mul_f32 v20, {fhex(1/256)}, v20\nv_cos_f32 v21, v20\nv_sin_f32 v22, v20\nv_and_b32 v6, 7, v0\nv_and_b32 v23, 8, v0\nv_cmp_eq_u32 vcc, 0, v6")
a("v_cndmask_b32 v21, 1.0, v21, vcc\nv_cndmask_b32 v22, 0, v22, vcc\nv_lshlrev_b32 v24, 28, v23\ns_cmp_eq_u32 s2, 0\ns_cselect_b64 s[8:9], vcc, 0\nv_cndmask_b32_e64 v24, v24, 0, s[8:9]\nv_xor_b32 v21, v21, v24")
a("v_sub_u32 v24, 8, v6\nv_and_b32 v24, 7, v24\nv_add3_u32 v24, v24, v23, 16\nv_sub_u32 v25, 24, v23\nv_cmp_eq_u32 vcc, 1, v2\nv_cndmask_b32 v112, v3, v24, vcc\nv_cndmask_b32 v113, 1.0, v21, vcc")
a(f"v_cmp_eq_u32 vcc, 2, v2\nv_cndmask_b32 v112, v112, v25, vcc\nv_cndmask_b32 v113, v113, v22, vcc\nv_cmp_eq_u32 vcc, 3, v2\nv_cndmask_b32_e64 v113, v113, 0, vcc\nv_lshlrev_b32 v112, 2, v112\ns_lshl_b32 s8, s2, 7\ns_add_u32 s8, s8, {EXT}\nv_lshl_add_u32 v120, v3, 1, s8")
stamp(2)
a("s_branch L_b1")
a("L_a10:\ns_setprio 2")
a("v_lshrrev_b32 v20, 2, v3\nv_and_b32 v21, 3, v0\nv_mad_u32_u24 v20, v20, 5, v21\nv_cvt_f32_u32 v28, v2")
for tile in range(2):
    if tile: a("v_add_u32 v20, 3, v20")
    a("v_lshrrev_b32 v22, 1, v20\nv_and_b32 v24, 1, v20")
    if tile==0:
        a("v_cmp_eq_u32 vcc, 1, v20\nv_cndmask_b32_e64 v22, v22, 10, vcc\nv_cndmask_b32_e64 v24, v24, 0, vcc\nv_cmp_eq_u32 vcc, 3, v21\nv_cndmask_b32_e64 v22, v22, 0, vcc\nv_cndmask_b32_e64 v24, v24, 0, vcc")
    a(f"v_cvt_f32_u32 v22, v22\nv_cvt_f32_u32 v24, v24\nv_mul_f32 v22, {fhex(0.05)}, v22\nv_mul_f32 v24, {fhex(0.25)}, v24\nv_fmac_f32 v24, v28, v22\nv_mul_f32 v22, 4.0, v22")
    for i in range(5):
        a(f"v_cos_f32 v{29+i}, v24")
        if i<4: a("v_add_f32 v24, v24, v22")
    a(f"v_cvt_pk_bf16_f32 v{36+4*tile}, v29, v30\nv_cvt_pk_bf16_f32 v{37+4*tile}, v31, v32\nv_cvt_pk_bf16_f32 v{38+4*tile}, v33, 0\nv_mov_b32 v{39+4*tile}, 0")
a(f"ds_write_b128 v157, v[36:39] offset:{L_R20}\nds_write_b128 v157, v[40:43] offset:{L_R20+1024}\ns_waitcnt lgkmcnt(0)\ns_barrier")
a("s_setprio 1\ns_lshl_b32 s7, s2, 7\ns_waitcnt lgkmcnt(0)\ns_load_dword s6, s[40:41], 0")
LATE10=f"s_movk_i32 m0, {L_PM}\nglobal_load_lds_dwordx4 v157, s[42:43]\nglobal_load_lds_dwordx4 v157, s[42:43] offset:1024"
a(f"s_add_u32 s7, s7, {WS_FA-0x4000}\nv_mov_b32 v17, s7\nv_add_u32 v18, {WS_F3-WS_FA+0x4000}, v17\ns_sub_u32 s7, 256, s2\ns_cmp_eq_u32 s2, 0\ns_cselect_b32 s7, 128, s7")
a("v_lshrrev_b32 v20, 1, v3\nv_and_b32 v21, 1, v0\nv_lshrrev_b32 v22, 1, v2\nv_and_b32 v23, 1, v2")
a("v_mov_b32 v24, s7\nv_mov_b32 v25, s2\nv_cmp_eq_u32 vcc, 1, v22\nv_cndmask_b32 v24, v25, v24, vcc\nv_lshl_add_u32 v24, v23, 10, v24")
a("v_subrev_u32 v25, 4, v20\nv_mul_i32_i24 v24, v24, v25\nv_lshl_add_u32 v24, v21, 9, v24")
a("v_cmp_gt_u32 vcc, v22, v21\ns_cmp_lg_u32 s2, 0\ns_cselect_b32 s49, 1024, 0\nv_mov_b32 v25, s49\nv_cndmask_b32 v25, 0, v25, vcc\nv_add_u32 v24, v24, v25\nv_and_b32 v24, 2047, v24")
a(f"v_cvt_f32_u32 v24, v24\nv_cvt_f32_u32 v25, v20\nv_mul_f32 v24, {fhex(1/2048)}, v24\nv_mul_f32 v25, {fhex(0.125)}, v25")
a("v_cmp_eq_u32 vcc, v22, v21\ns_cselect_b64 s[52:53], -1, 0\ns_or_b64 vcc, vcc, s[52:53]")
for i in range(4):
    a(f"v_cos_f32 v{60+i}, v24\nv_sin_f32 v{64+i}, v24")
    if i<3: a("v_add_f32 v24, v24, v25")
for i in range(8): a(f"v_cndmask_b32 v{60+i}, 0, v{60+i}, vcc")
a(f"s_mov_b32 s60, {fhex(1/640)}\ns_mov_b32 s61, {fhex(1/640)}\nv_mov_b32 v86, {fhex(1e-5)}\nv_and_b32 v165, 3, v0\nv_lshl_add_u32 v165, v2, 2, v165\nv_lshlrev_b32 v166, 4, v165\nv_lshlrev_b32 v165, 2, v165")
a(LATE10)
a("s_waitcnt lgkmcnt(0)\ns_add_u32 s6, s6, 1")
NH1=opt("nh1",8); H1POS=opt("h1pos",1); H10=128-NH1
a(f"s_sub_u32 s8, s2, {H10-8}\ns_and_b32 s8, s8, 31\ns_lshl_b32 s8, s8, 7\ns_add_u32 s8, s8, {WS_GO}\nv_lshrrev_b32 v5, 3, v1\nv_lshl_add_u32 v5, v5, 12, s8\nv_lshl_add_u32 v16, v6, 4, v5\nv_mov_b32 v8, s6\nv_mov_b32 v9, s6\nv_mov_b32 v10, s6\nv_mov_b32 v11, s6")
def h1(): a(f"s_cmp_lt_u32 s2, {H10}\ns_cbranch_scc1 L_h1\nglobal_store_dwordx4 v16, v[8:11], s[40:41] sc1\nL_h1:")
a(f"v_mov_b32 v12, -1\nv_mov_b32 v13, -1\nv_mov_b32 v14, -1\nv_mov_b32 v15, -1\nds_write_b128 v157, v[12:15] offset:{L_SM}\ns_waitcnt vmcnt(0)\nglobal_load_dword v21, v17, s[40:41] sc1")
stamp(2)
a("s_setprio 3\ns_waitcnt lgkmcnt(0)\ns_barrier")
stamp(4)
a(f"ds_read_b128 v[36:39], v166 offset:{L_SQ4}\nds_read_b32 v40, v165 offset:{L_SUM}")
def smat():
    stamp(8)
    a("s_waitcnt lgkmcnt(0)")
    stamp(9)
    a("v_add_f32 v36, v36, v37\nv_add_f32 v38, v38, v39\nv_mul_f32 v40, s60, v40\nv_add_f32 v36, v36, v38\nv_fma_f32 v40, -v40, v40, v86\nv_fmac_f32 v40, s60, v36\nv_max_f32 v40, v40, v86\nv_rsq_f32 v40, v40")
    for h in range(4):
        for e_ in range(2):
            jj=2*h+e_; k=jj&3
            a(f"v_mul_f32_dpp v{60+jj}, v40, v{60+jj} quad_perm:[{k},{k},{k},{k}] {DPPM}")
        a(f"v_cvt_pk_bf16_f32 v{32+h}, v{60+2*h}, v{61+2*h}")
    stamp(10)
    a("s_waitcnt vmcnt(1)")
    stamp(11)
    a(f"v_cmp_ne_u32 vcc, s6, v21\ns_cbranch_vccz LD{pc[0]-1}")
poll(["global_load_dword v20, v18, s[40:41] sc1"],None,opt("slf",1),None,chk="v_cmp_ne_u32 vcc, s6, v20",between=smat)
a(f"ds_write_b128 v157, v[32:35] offset:{L_SM}")
stamp(5)
if opt("h1d",0): a(f"s_sleep {opt('h1d',0)}")
if H1POS==1 and NH1: h1()
a("s_barrier\ns_setprio 0")
if H1POS==2 and NH1: h1()
NGO=opt("ngo",8); NH4=opt("nh4",8)
def gowait(n=8,off=0):
    a(f"s_and_b32 s7, s2, 7\ns_lshl_b32 s7, s7, 12\ns_add_u32 s7, s7, {WS_GO}\nv_lshl_add_u32 v4, v1, 7, s7\ns_mov_b64 exec, {hex((1<<n)-1)}")
    poll([f"global_load_dword v20, v4, s[40:41] offset:{off} sc1"],None,opt("slf",1),None,chk="v_cmp_ne_u32 vcc, s6, v20")
a("L_flagchk:")
gowait(8+NH1)
stamp(6)
a("s_mov_b64 exec, 0xff")
poll(["global_load_dword v20, v4, s[40:41] offset:3072 sc1"],None,opt("slf",1),None,chk="v_cmp_ne_u32 vcc, s6, v20",between=lambda: a("s_barrier"))
stamp(7)
a("s_barrier\ns_branch L_fin")
a(f"L_agg:\ns_cmp_ge_u32 s4, 16\ns_cbranch_scc1 L_bf8\ns_and_b32 s7, s4, 7\ns_lshl_b32 s7, s7, 7\ns_cmp_lt_u32 s4, 8\ns_cselect_b32 s8, 0x4000, 0\ns_cselect_b32 s9, 0, 3072\ns_add_u32 s8, s8, s7\ns_add_u32 s8, s8, {WS_FA}\nv_lshl_add_u32 v4, v1, 10, s8\ns_add_u32 s8, s7, s9\ns_add_u32 s8, s8, {WS_GO}\nv_lshrrev_b32 v5, 3, v1\nv_lshl_add_u32 v5, v5, 12, s8\nv_lshl_add_u32 v5, v6, 4, v5\ns_mov_b64 exec, 0xffff")
poll(["global_load_dword v20, v4, s[40:41] sc1"],None,opt("sla",1),None,chk="v_cmp_ne_u32 vcc, s6, v20")
stamp(6)
if opt("gdel",0): a(f"s_sleep {opt('gdel',0)}")
a("global_store_dwordx4 v5, v[8:11], s[40:41] sc1\ns_barrier\ns_branch L_fin")
L_FT=L_XS+21504
a(f"L_fw:\ns_cmp_ge_u32 s14, 216\ns_cbranch_scc1 L_fw1\ns_mov_b32 m0, {L_FT}")
for o in range(1,3): a(f"global_load_lds_dwordx4 v157, s[42:43] offset:{1024*o}")
a("L_fw1:\ns_waitcnt vmcnt(0)\ns_barrier")
gowait(8,3072)
a(f"s_and_b32 s9, s2, 7\ns_lshl_b32 s9, s9, 11\ns_add_u32 s9, s9, {H3}\ns_cmp_ge_u32 s14, 216\ns_cselect_b32 s7, {NH4-1}, {NH3-1}\ns_cselect_b32 s8, {H4}, s9\nv_min_u32 v4, s7, v1\nv_lshl_add_u32 v4, v4, 7, s8")
poll(["global_load_dword v20, v4, s[40:41] sc1"],[20],opt("slh",1),None)
stamp(14)
a(f"s_barrier\ns_cmp_ge_u32 s14, 216\ns_cbranch_scc1 L_fin\nv_lshlrev_b32 v4, 7, v6\nv_add_u32 v4, {(META2 if MC else META)+8}, v4\nv_mov_b32 v5, {L_VD}\ns_barrier")
a(f"v_min_u32 v7, {NH4-1}, v1\nv_lshlrev_b32 v7, 7, v7\nv_add_u32 v7, {H4}, v7")
poll(["global_load_dword v20, v7, s[40:41] sc1"],[20],opt("slh",1),None)
if opt("vdel",0): a(f"s_sleep {opt('vdel',0)}")
poll(["global_load_dword v20, v4, s[40:41] sc1"],[20],opt("slm",2),None)
a("v_cmp_lt_u32 vcc, 15, v20\nv_mov_b32 v6, vcc_lo\nds_write_b32 v5, v6\ns_waitcnt lgkmcnt(0)")
stamp(13)
a("s_barrier\ns_branch L_fin")
a("L_bf3:\ns_cmp_ge_u32 s2, 160\ns_cbranch_scc1 L_f\nv_mov_b32 v158, 0")
p2addr()
a("s_branch L_b2")
a("L_f:\ns_cmp_eq_u32 s14, 214\ns_cbranch_scc1 L_fin\ns_cmp_lg_u32 s14, 215\ns_cbranch_scc1 L_fx")
S_GM=8192; S_X=8448; S_C=8704
KTH=opt("kth",12)
a("L_sel:\ns_cmp_ge_u32 s3, 4\ns_cbranch_scc1 L_fin")
if not opt("gt2",0): gentab("s_add_u32 s56, s3, 8",88)
gentab("s_mov_b32 s56, s3",56)
a(f"v_lshrrev_b32 v4, 1, v0\nv_and_b32 v5, 1, v0\nv_lshlrev_b32 v120, 7, v4\nv_lshl_add_u32 v120, v5, 4, v120\nv_add_u32 v120, {EXT}, v120\nv_lshlrev_b32 v121, 4, v0")
a("v_lshrrev_b32 v4, 2, v3\nv_lshl_add_u32 v4, v2, 3, v4\nv_lshlrev_b32 v122, 5, v4\nv_and_b32 v5, 1, v0\nv_lshl_add_u32 v122, v5, 3, v122")
a("s_lshl_b32 s56, s3, 6\nv_lshl_add_u32 v4, v6, 3, s56\nv_and_b32 v5, 8, v0\nv_lshl_add_u32 v4, v5, 5, v4\nv_sub_u32 v5, 2040, v4\nv_cmp_lt_u32 vcc, 31, v1\nv_bfe_u32 v7, v0, 4, 1\nv_cndmask_b32 v124, v4, v5, vcc\nv_lshl_add_u32 v124, v7, 2, v124")
a("v_cndmask_b32_e64 v123, -1.0, 1.0, vcc\ns_mov_b64 s[26:27], vcc\nv_xor_b32 v128, 512, v124")
for i_ in range(1,4): a(f"v_add_u32 v{124+i_}, {i_}, v124\nv_add_u32 v{128+i_}, {i_}, v128")
a(f"v_and_b32 v132, 0xf0, v0\ns_lshl_b32 s56, s3, 6\nv_lshl_add_u32 v133, v3, 2, s56\nv_lshlrev_b32 v134, 6, v2\nv_and_b32 v136, 3, v0\nv_lshlrev_b32 v136, 4, v136\nv_lshrrev_b32 v135, 2, v1\nv_lshl_add_u32 v135, v135, 7, v136\nv_add_u32 v135, {LIST}, v135\ns_movk_i32 s59, 0x7ff\nv_bfrev_b32 v140, 1")
gowait(8+NH1)
stamp(7)
if opt("gt2",0): gentab("s_add_u32 s56, s3, 8",88)
if opt("pres",0): a(f"s_sleep {opt('pres',0)}")
poll(["global_load_dwordx4 v[8:11], v120, s[40:41] sc1"],range(8,12),opt("sls",1),16)
stamp(8)
a("ds_write_b128 v121, v[8:11]\nv_lshl_add_u32 v4, v6, 7, s7\nglobal_load_dword v142, v4, s[40:41] offset:3072 sc1\ns_waitcnt lgkmcnt(0)\ns_barrier")
for k in range(4):
    for c in range(2): a(f"ds_read_b64_tr_b16 v[{8+8*k+4*c}:{9+8*k+4*c}], v122 offset:{1024*k+16*c}\nds_read_b64_tr_b16 v[{10+8*k+4*c}:{11+8*k+4*c}], v122 offset:{1024*k+16*c+128}")
def fin(t_,r):
    b=144+8*t_
    a(f"v_fmac_f32 v{b+r}, v{b+4+r}, v123")
    if opt("forcemiss",0): a(f"v_xor_b32 v{b+r}, 0x80000000, v{b+r}")
    a(f"v_bfi_b32 v{40+4*t_+r}, s59, v{124+4*t_+r}, v{b+r}")
for t_ in range(2):
    for k in range(4):
        for c in range(2):
            if t_==0: a(f"s_waitcnt lgkmcnt({14-4*k-2*c})")
            a(f"{MF} {vr(144+8*t_+4*c)}, {vr(8+8*k+4*c)}, {vr(56+32*t_+16*c+4*k)}, {'0' if k==0 else vr(144+8*t_+4*c)}")
for r in range(4): fin(0,r)
for r in range(4): fin(1,r)
a("v_max3_i32 v8, v40, v41, v42\nv_med3_i32 v9, v40, v41, v42\nv_max3_i32 v10, v43, v44, v45\nv_med3_i32 v11, v43, v44, v45\nv_max_i32 v12, v46, v47\nv_min_i32 v13, v46, v47")
a("v_max3_i32 v48, v8, v10, v12\nv_med3_i32 v49, v8, v10, v12\nv_max3_i32 v9, v9, v11, v13\nv_max_i32 v49, v49, v9")
for ps in range(2):
    d1,d2=52+2*ps,53+2*ps
    for st,s_ in enumerate((8,4,2,1)):
        a1,a2=(48,49) if st==0 else ((10,11) if st&1 else (d1,d2))
        o1,o2=(d1,d2) if st&1 else (10,11)
        a(f"v_mov_b32_dpp v8, v{a1} row_ror:{s_} {DPPM}\nv_max_i32_dpp v9, v{a2}, v{a2} row_ror:{s_} {DPPM}\nv_max_i32 v{o1}, v{a1}, v8\nv_med3_i32 v{o2}, v{a1}, v8, v9")
    if ps==0: a("v_cmp_le_i32 vcc, v53, v48\nv_cmp_le_i32_e64 s[16:17], v53, v49\nv_cndmask_b32 v48, v48, v49, vcc\nv_cndmask_b32 v49, v49, v140, vcc\nv_cndmask_b32_e64 v48, v48, v140, s[16:17]")
a(f"ds_write_b128 v132, v[52:55] offset:{S_GM}\ns_waitcnt lgkmcnt(0)\ns_barrier")
stamp(9)
a(f"ds_read_b32 v32, v133 offset:{S_GM}")
for q in range(4): a(f"ds_read_b128 {vr(8+4*q)}, v134 offset:{S_GM+16*q}")
a("v_mov_b32 v33, 0\nv_mov_b32 v34, 0")
for q in range(4):
    lg(3-q)
    for e_ in range(4): a(f"v_cmp_gt_i32_e64 s[{16+2*e_}:{17+2*e_}], v{8+4*q+e_}, v32")
    for e_ in range(4): a(f"v_addc_co_u32_e64 v{33+(e_&1)}, s[24:25], 0, v{33+(e_&1)}, s[{16+2*e_}:{17+2*e_}]")
a("v_add_u32 v33, v33, v34\nv_mov_b32 v34, v33\nv_and_b32 v32, 0x7ff, v32\nv_permlane32_swap_b32 v33, v34\nv_add_u32 v33, v33, v34\nv_mov_b32 v34, v33\nv_permlane16_swap_b32 v33, v34\nv_add_u32 v33, v33, v34")
a(f"v_lshlrev_b32 v33, 2, v33\nds_write_b32 v33, v32 offset:{S_X}\ns_waitcnt lgkmcnt(0)\ns_barrier\ns_cmp_lg_u32 s3, 0\ns_cbranch_scc1 L_fin\nds_read_b128 v[8:11], v136 offset:{S_X}\ns_waitcnt vmcnt(0)\nv_cmp_ne_u32 vcc, s6, v142\ns_cbranch_vccz L_sg")
gowait(8,3072)
a("L_sg:\ns_waitcnt lgkmcnt(0)\nglobal_store_dwordx4 v135, v[8:11], s[40:41] sc1")
stamp(10)
a("s_branch L_fin")
a("L_fx:")
if opt("fdel",0): a(f"s_sleep {opt('fdel',2)}")
a("s_branch L_f2" if EK else "s_cmp_ge_u32 s14, 216\ns_cbranch_scc1 L_f2")
a("L_f1:\ns_setprio 0\ns_sub_u32 s49, s14, 160\ns_and_b32 s50, s49, 7\ns_lshr_b32 s56, s49, 4\ns_lshl3_add_u32 s50, s56, s50\ns_lshl1_add_u32 s50, s50, s5\ns_cmp_ge_u32 s49, 48\ns_cselect_b32 s50, s49, s50")
a(f"s_mul_i32 s56, s3, 80\ns_lshl_b32 s57, s50, 6\nv_lshrrev_b32 v4, 2, v1\nv_mul_u32_u24 v6, 80, v4\nv_add_u32 v4, s56, v4\nv_and_b32 v5, 3, v0\nv_lshl_add_u32 v7, v5, 4, s57\ns_movk_i32 s56, 3456")
for i_ in range(5): a(f"v_add_u32 v5, {16*i_}, v4\nv_lshrrev_b32 v13, 5, v5\nv_and_b32 v5, 31, v5\nv_mad_u32_u24 v5, v5, 20, v13\nv_mad_u32_u24 v{8+i_}, v5, s56, v7")
a(f"s_mul_i32 s58, s3, 5120\ns_add_u32 s59, s58, {UPO}\ns_bitcmp1_b32 s50, 0\ns_cselect_b64 s[8:9], s[32:33], s[30:31]\ns_cselect_b64 s[10:11], s[30:31], s[32:33]\ns_cselect_b32 s60, s59, s58\ns_cselect_b32 s61, s58, s59")
for h in range(2):
    for i_ in range(5):
        a(f"s_add_u32 m0, s{60+h}, {1024*i_}\nglobal_load_lds_dwordx4 v{8+i_}, s[{8+2*h}:{9+2*h}]")
        if EK and 5*h+i_+1==EK:
            a(f"s_waitcnt vmcnt({EK})\ns_barrier\ns_barrier")
            if opt("fdel",0): a(f"s_sleep {opt('fdel',2)}")
a(f"v_add_u32 v89, {L_FT+TO_W}, v6\nv_lshlrev_b32 v161, 4, v3\nv_add_u32 v161, {STAT}, v161\ns_mov_b32 s22, {fhex(1/640)}\nv_mov_b32 v158, {fhex(1e-5)}")
a(f"v_add_u32 v160, {HN}, v157\ns_mul_i32 s16, s3, 3072\nv_add_u32 v162, s16, v160\ns_add_u32 s17, s16, {L_XS}\ns_mov_b64 s[20:21], 0xffff")
a(f"v_mul_u32_u24 v165, {XSS}, v3\nv_lshl_add_u32 v165, v2, 4, v165\nv_add_u32 v165, {L_XS}, v165")
a(f"s_lshl2_add_u32 s16, s50, s3\ns_lshl_b32 s16, s16, 7\ns_add_u32 s16, s16, {ACT}\nv_and_b32 v164, 7, v0\nv_lshl_add_u32 v164, v164, 4, s16\nv_lshrrev_b32 v166, 3, v3\nv_mul_u32_u24 v166, 27648, v166\nv_add_u32 v164, v164, v166\nv_and_b32 v166, 1, v2\nv_lshl_add_u32 v164, v166, 3, v164\nv_lshrrev_b32 v166, 1, v2\nv_lshl_add_u32 v164, v166, 2, v164")
a(f"s_lshl_b32 s16, s49, 7\ns_add_u32 s16, s16, {H4}\nv_mov_b32 v167, s16\nv_mov_b32 v159, {L_VD}\ns_mov_b32 s62, 0")
a(f"v_and_b32 v4, 1, v0\nv_lshlrev_b32 v4, 3, v4\nv_bfe_u32 v5, v0, 1, 1\nv_mul_u32_u24 v5, {UPO}, v5\ns_lshl_b32 s56, s3, 4\nv_add3_u32 v7, v4, v5, s56")
stamp(3)
a("s_waitcnt vmcnt(0)\ns_barrier")
stamp(4)
a("s_cmp_ge_u32 s3, 4\ns_cbranch_scc1 L_f1w")
for i_ in range(5): a(f"ds_read_b128 {vr(104+4*i_)}, v89 offset:{16*i_}")
a("s_waitcnt lgkmcnt(0)")
for k in range(20):
    a(f"v_add_u32_sdwa v4, v{104+k}, v7 {SD.format(0)}\nv_add_u32_sdwa v5, v{104+k}, v7 {SD.format(1)}")
    a(f"ds_read_b64_tr_b16 v[{8+4*k}:{9+4*k}], v4\nds_read_b64_tr_b16 v[{10+4*k}:{11+4*k}], v5")
a("s_waitcnt lgkmcnt(0)")
a("L_f1w:")
stamp(5)
a("s_barrier")
stamp(14)
if opt("pre4",0): a(f"s_sleep {opt('pre4',0)}")
H4E=opt("h4e",1)
a(f"L_f1p:\ns_cmp_eq_u32 s3, 7\ns_cbranch_scc1 {'L_f1h' if H4E else 'L_f1q'}\ns_mov_b32 m0, s17")
if H4E: tail.append(f"L_f1h:\ns_cmp_ge_u32 s49, {NH4}\ns_cbranch_scc1 L_f1q\ns_mov_b64 exec, 1\nglobal_load_dword v150, v161, s[40:41] sc1\ns_waitcnt vmcnt(0)\nglobal_store_dword v167, v167, s[40:41] sc1\ns_mov_b64 exec, -1\ns_branch L_f1q")
for o in range(3): a(f"global_load_lds_dwordx4 v162, s[40:41] offset:{1024*o} sc1")
a("s_cmp_ge_u32 s3, 4\ns_cbranch_scc1 L_f1r\nglobal_load_dwordx2 v[150:151], v161, s[40:41] sc1")
for i_ in range(4): a(f"v_mov_b32 v{88+i_}, 0x3f803f80")
for k in range(20): a(f"{MF} v[152:155], {vr(8+4*k)}, v[88:91], {'0' if k==0 else 'v[152:155]'}")
a("L_f1r:\ns_waitcnt vmcnt(0)\nL_f1q:")
stamp(15)
a(f"s_barrier\ns_cmp_lt_u32 s3, 4\ns_cbranch_scc1 L_p4\ns_cmp_lg_u32 s3, 7\ns_cbranch_scc1 L_p4e\ns_cmp_ge_u32 s49, {NH4}\ns_cbranch_scc1 L_p4e")
if not H4E: store1(167,167)
a("s_branch L_p4e\nL_p4:")
NR=12
for i_ in range(4): a(f"ds_read_b128 {vr(92+4*i_)}, v165 offset:{64*i_}")
a("v_cmp_u_f32 vcc, v150, v151\nv_mul_f32 v88, s22, v150")
for i_ in range(4,NR): a(f"ds_read_b128 {vr(92+4*i_)}, v165 offset:{64*i_}")
SC=["v_fma_f32 v90, v151, s22, v158","v_fma_f32 v91, -v88, v88, v90","v_max_f32 v91, v91, v158","v_rsq_f32 v89, v91","v_rcp_f32 v91, v91","v_mul_f32 v89, 0xbfb8aa3b, v89"]
for i_ in range(20):
    issued=min(20,NR+max(0,i_-1))
    a(f"s_waitcnt lgkmcnt({issued-i_-1})\n{MF} v[144:147], {vr(8+4*i_)}, {vr(92+4*(i_%(NR+1)))}, {'0' if i_==0 else 'v[144:147]'}")
    if i_>=1 and NR+i_-1<20: a(f"ds_read_b128 {vr(92+4*((NR+i_-1)%(NR+1)))}, v165 offset:{64*(NR+i_-1)}")
    if 10<=i_<10+len(SC): a(SC[i_-10])
a("s_cbranch_vccnz L_st\nL_std:\nv_pk_fma_f32 v[144:145], v[152:153], v[88:89], v[144:145] op_sel_hi:[1,0,1] neg_lo:[1,0,0] neg_hi:[1,0,0]\nv_pk_fma_f32 v[146:147], v[154:155], v[88:89], v[146:147] op_sel_hi:[1,0,1] neg_lo:[1,0,0] neg_hi:[1,0,0]")
tail.append(f"L_st:\nglobal_load_dwordx2 v[150:151], v161, s[40:41] sc1\ns_add_u32 s15, s15, 1\ns_cmp_lt_u32 s15, {LIMIT}\ns_waitcnt vmcnt(0)\nv_cmp_u_f32 vcc, v150, v151\ns_cbranch_scc0 L_su\ns_cbranch_vccnz L_st\nL_su:\nv_mul_f32 v88, s22, v150\n"+"\n".join(SC)+"\ns_branch L_std")
a("v_permlane32_swap_b32 v144, v146\nv_permlane32_swap_b32 v145, v147")
a("v_mul_f32 v148, v89, v144\nv_mul_f32 v149, v89, v145\nv_exp_f32 v148, v148\nv_exp_f32 v149, v149\nv_mul_f32 v144, v144, v146\nv_mul_f32 v145, v145, v147")
a("v_add_f32 v148, 1.0, v148\nv_add_f32 v149, 1.0, v149\nv_rcp_f32 v148, v148\nv_rcp_f32 v149, v149\nv_cmp_u_f32 vcc, v146, v90\nv_mul_f32 v144, v144, v91\nv_mul_f32 v145, v145, v91\nv_mul_f32 v144, v144, v148\nv_mul_f32 v145, v145, v149\nv_cvt_pk_bf16_f32 v144, v144, v145")
a("s_and_b64 vcc, vcc, s[20:21]\ns_cbranch_vccnz L_p4r\nL_p4s:\nglobal_store_dword v164, v144, s[40:41] sc1")
tail.append(f"L_p4r:\ns_add_u32 s15, s15, 1\ns_cmp_lt_u32 s15, {LIMIT}\ns_cbranch_scc0 L_p4s\ns_and_b32 s16, vcc_lo, s20\nL_p4t:\ns_ff1_i32_b32 s18, s16\ns_bitset0_b32 s16, s18\ns_mulk_i32 s18, {XSS}\nv_add_u32 v4, s18, v160\ns_add_u32 m0, s18, {L_XS}\ns_nop 0\nglobal_load_lds_dwordx4 v4, s[40:41] sc1\nglobal_load_lds_dwordx4 v4, s[40:41] offset:256 sc1\ns_cmp_lg_u32 s16, 0\ns_cbranch_scc1 L_p4t\ns_waitcnt vmcnt(0)\ns_branch L_p4")
stamp(16)
a("L_p4e:\ns_cmp_lg_u32 s62, 0\ns_cbranch_scc1 L_fin\ns_barrier\nds_read_b32 v4, v159\ns_waitcnt lgkmcnt(0)\nv_readfirstlane_b32 s62, v4\ns_cmp_eq_u32 s62, 0\ns_cbranch_scc1 L_fin")
a(f"v_add_u32 v162, {HN8-HN}, v162\nv_add_u32 v160, {HN8-HN}, v160\nv_add_u32 v164, {ACT2-ACT}, v164\nv_and_b32 v4, 7, v0\nv_mul_u32_u24 v165, {XSS}, v4\nv_lshl_add_u32 v165, v2, 4, v165\nv_add_u32 v165, {L_XS}, v165\nv_lshlrev_b32 v161, 4, v4\nv_add_u32 v161, {STAT8}, v161\ns_movk_i32 s20, 0xff\ns_branch L_f1p")
a("L_bf8:\ns_cmp_lt_u32 s14, 216\ns_cbranch_scc1 L_fin\nL_f2:")
a(f"s_sub_u32 s49, s14, 216\ns_and_b32 s52, s49, 7\ns_lshr_b32 s50, s49, 3\ns_and_b32 s56, s49, 3\ns_lshr_b32 s57, s49, 2\ns_cmp_ge_u32 s49, 32\ns_cselect_b32 s50, s56, s50\ns_cselect_b32 s52, s57, s52")
a(f"s_lshr_b32 s51, s50, 1\ns_lshl1_add_u32 s51, s52, s51\ns_lshl_b32 s51, s51, 6\ns_and_b32 s53, s50, 1\nv_mov_b32 v159, {L_VD}\nv_bfe_u32 v7, v0, 3, 1\ns_cmp_ge_u32 s3, 8\ns_cbranch_scc1 L_f2e")
a("v_lshrrev_b32 v4, 2, v1\nv_mul_u32_u24 v4, 1280, v4\nv_and_b32 v5, 3, v0\nv_lshl_add_u32 v4, v5, 4, v4\ns_mul_i32 s56, s3, 81920\ns_add_u32 s56, s56, s51\nv_add_u32 v4, s56, v4\ns_lshl_b32 s58, s3, 14")
a("s_cmp_ge_u32 s3, 3\ns_cselect_b32 s61, 2, 3\ns_mov_b32 s62, 0")
for i_ in range(4):
    a(f"s_add_u32 s59, s50, {i_}\ns_and_b32 s59, s59, 3\ns_cmp_gt_u32 s59, s61\ns_cbranch_scc1 L_f2s{i_}\ns_mul_i32 s60, s59, 655360\ns_lshl_b32 s59, s59, 12\ns_add_u32 m0, s59, s58\nv_add_u32 v5, s60, v4\nglobal_load_lds_dwordx4 v5, s[34:35]")
    for q in range(3): a(f"s_add_u32 m0, m0, 1024\nv_add_u32 v5, 20480, v5\nglobal_load_lds_dwordx4 v5, s[34:35]")
    a(f"L_f2s{i_}:")
a(f"s_mul_i32 s17, s53, 27648\ns_lshl_b32 s16, s3, 10\ns_add_u32 s17, s17, s16\ns_add_u32 s17, s17, {ACT}\nv_lshl_add_u32 v104, v6, 4, s17\nv_lshl_add_u32 v104, v2, 7, v104\nv_lshl_add_u32 v104, v7, 9, v104")
a(f"v_add_u32 v105, 0x2000, v104\nv_add_u32 v106, 0x4000, v104\ns_lshl_b32 s61, s61, 13\nv_add_u32 v107, s61, v104\ns_add_u32 s16, s16, {L_RED}\nv_add_u32 v157, s16, v157\nv_cmp_eq_u32_e64 s[20:21], 1, v7")
a("v_lshrrev_b32 v4, 2, v3\nv_lshl_add_u32 v4, v2, 3, v4\nv_lshlrev_b32 v4, 6, v4\nv_and_b32 v5, 3, v0\nv_lshl_add_u32 v4, v5, 3, v4\nv_add_u32 v4, s58, v4")
stamp(3)
a("s_waitcnt vmcnt(0)")
stamp(4)
for k in range(8):
    for t_ in range(2):
        b=8+8*k+4*t_
        a(f"ds_read_b64_tr_b16 v[{b}:{b+1}], v4 offset:{2048*k+32*t_}\nds_read_b64_tr_b16 v[{b+2}:{b+3}], v4 offset:{2048*k+32*t_+256}")
a("s_waitcnt lgkmcnt(0)\ns_cmp_lt_u32 s3, 3\ns_cbranch_scc1 L_p5a")
for i_ in range(16): a(f"v_mov_b32 v{56+i_}, 0")
a("L_p5a:\ns_barrier")
stamp(5)
a("s_barrier")
stamp(14)
if opt("pre5",0): a(f"s_sleep {opt('pre5',0)}")
a("L_f2p:")
ck="s_mov_b64 exec, -1\n"
for i_ in range(4):
    b=72+4*i_
    ck+=f"s_waitcnt vmcnt({3-i_})\n"
    for h in range(2):
        for t_ in range(2):
            ac=88+8*t_+4*h
            ck+=f"{MF} {vr(ac)}, {vr(8+16*i_+8*h+4*t_)}, {vr(b)}, {'0' if i_==0 else vr(ac)}\n"
        if h==0: ck+=(f"v_max_u32 v114, v{b}, v{b+1}\n" if i_==0 else f"v_max3_u32 v114, v114, v{b}, v{b+1}\n")+f"v_max3_u32 v114, v114, v{b+2}, v{b+3}\n"
ck+="v_cmp_eq_u32 vcc, -1, v114"
poll([f"global_load_dwordx4 {vr(72+4*i_)}, v{104+i_}, s[40:41] sc1" for i_ in range(4)],None,opt("sl5",2),None,chk=ck,wait=1)
stamp(15)
for r in range(4): a(f"v_add_f32_dpp v{88+r}, v{92+r}, v{88+r} row_ror:8 row_mask:0xf bank_mask:0x3")
for r in range(4): a(f"v_add_f32_dpp v{88+r}, v{96+r}, v{100+r} row_ror:8 row_mask:0xf bank_mask:0xc")
a(f"ds_write_b128 v157, v[88:91]\ns_waitcnt lgkmcnt(0)\ns_barrier\ns_cmp_lg_u32 s62, 0\ns_cbranch_scc1 L_fin\nds_read_b32 v4, v159\ns_waitcnt lgkmcnt(0)\nv_readfirstlane_b32 s62, v4\ns_cmp_eq_u32 s62, 0\ns_cbranch_scc1 L_fin")
for i_ in range(4): a(f"v_add_u32 v{104+i_}, {ACT2-ACT}, v{104+i_}")
a("s_branch L_f2p\nL_f2e:")
a(f"s_and_b32 s56, s3, 1\ns_lshl_b32 s57, s56, 5\ns_add_u32 s51, s51, s57\nv_lshlrev_b32 v104, 7, v6\nv_add_u32 v104, {META}, v104\nv_mul_u32_u24 v105, 1280, v6\nv_lshl_add_u32 v106, v2, 3, s51\nv_add_u32 v105, v105, v106\nv_add_u32 v105, {BASE}, v105")
a(f"s_lshl_b32 s56, s56, 7\ns_add_u32 s56, s56, {L_RED}\nv_lshl_add_u32 v107, v2, 8, s56\nv_lshl_add_u32 v107, v7, 12, v107\ns_mov_b32 s18, 0x00ff00ff\ns_mov_b32 s19, 0x00ff00ff")
a(f"s_setprio {opt('ep',0)}\ns_barrier\ns_barrier")
if opt("edel",0): a(f"s_sleep {opt('edel',0)}")
poll(["global_load_dwordx4 v[60:63], v104, s[40:41] sc1","global_load_dwordx2 v[58:59], v105, s[40:41] sc1"],range(58,64),opt("slm",2),114)
a("v_cmp_lt_u32 vcc, 15, v62\nv_lshlrev_b32 v64, 16, v58\nv_and_b32 v65, 0xffff0000, v58\nv_mov_b32 v4, vcc_lo\nds_write_b32 v159, v4\nv_lshlrev_b32 v66, 16, v59\nv_and_b32 v67, 0xffff0000, v59")
a("v_and_b32 v60, 2047, v60\nv_mul_u32_u24 v60, 1280, v60\nv_add_u32 v60, v60, v106\ns_waitcnt lgkmcnt(0)\ns_cbranch_vccz L_hit\nv_mov_b32 v62, v6\ns_barrier\nL_hit:")
a("v_lshrrev_b32 v4, 3, v62\nv_cmp_eq_u32 vcc, s53, v4\nv_and_b32 v62, 7, v62\nv_lshl_add_u32 v62, v62, 4, v107\ns_and_b64 s[18:19], s[18:19], vcc")
stamp(13)
a("s_barrier")
for i_ in range(4): a(f"ds_read_b128 {vr(72+4*i_)}, v62 offset:{1024*i_}")
a("s_waitcnt lgkmcnt(0)")
a("v_pk_add_f32 v[72:73], v[72:73], v[76:77]\nv_pk_add_f32 v[74:75], v[74:75], v[78:79]\nv_pk_add_f32 v[80:81], v[80:81], v[84:85]\nv_pk_add_f32 v[82:83], v[82:83], v[86:87]\nv_pk_add_f32 v[72:73], v[72:73], v[80:81]\nv_pk_add_f32 v[74:75], v[74:75], v[82:83]")
for i_ in range(4): a(f"v_add_f32_dpp v{72+i_}, v{72+i_}, v{72+i_} row_ror:8 {DPPM}")
for i_ in range(4): a(f"v_fma_f32 v{72+i_}, v{72+i_}, v61, v{64+i_}")
a(f"v_cvt_pk_bf16_f32 v72, v72, v73\nv_cvt_pk_bf16_f32 v73, v74, v75\ns_mov_b64 exec, s[18:19]\ns_cbranch_execz L_f2z\nglobal_store_dwordx2 v60, v[72:73], s[36:37] {OUTG}\nL_f2z:\ns_mov_b64 exec, -1")
stamp(16)
a("L_fin:")
if STAMP:
    a("s_waitcnt vmcnt(0)")
    stamp(17)
    if "probe" in kw:
        k=int(kw["probe"])
        a(f"s_waitcnt lgkmcnt(0)\ns_cmp_ge_u32 s3, {opt('pw',4)}\ns_cbranch_scc1 L_end\ns_cmp_lt_u32 s3, {opt('pw0',0)}\ns_cbranch_scc1 L_end\ns_cmp_lt_u32 s2, {opt('plo',0)}\ns_cbranch_scc1 L_end\ns_cmp_ge_u32 s2, {opt('phi',256)}\ns_cbranch_scc1 L_end")
        a(f"s_add_u32 s16, s{64+2*k}, 4000\nL_spin:\ns_sleep 1\ns_memrealtime s[18:19]\ns_waitcnt lgkmcnt(0)\ns_sub_u32 s17, s16, s18\ns_cmp_lt_u32 s17, 4001\ns_cbranch_scc1 L_spin\ns_endpgm")
    else:
        a(f"s_waitcnt lgkmcnt(0)")
        for k in range(NST): a(f"v_writelane_b32 v5, s{64+2*k}, {k}")
        a(f"v_writelane_b32 v5, s15, 31\ns_mul_i32 s16, s2, {NW}\ns_add_u32 s16, s16, s3\ns_lshl_b32 s16, s16, 7\ns_add_u32 s16, s16, {WS_STAMP}\nv_lshl_add_u32 v4, v1, 2, s16\ns_mov_b32 exec_hi, 0\nglobal_store_dword v4, v5, s[40:41]")
a("L_end:\ns_endpgm")
flush_tail()
if opt("now",0): a.L=[l for l in a.L if not ("global_load_lds" in l and "s[4" not in l)]
if kw.get("wf"): a.L=[l+" "+kw["wf"] if ("global_load_lds" in l and "s[42:43]" not in l) else l for l in a.L]
if opt("noy",0): a.L=[l for l in a.L if not l.startswith("global_store_dwordx4 v7, v[12:15]")]
if opt("noi",0): a.L=[l for l in a.L if not l.startswith("global_store_dwordx4 v5, v[12:15]")]
if opt("noout",0): a.L=[l for l in a.L if not l.startswith("global_store_dwordx2 v158")]
body=a.finish()
small=np.zeros(1536,np.uint16)
small[0:768]=T.t_pm().reshape(-1); small[768:768+640]=T.t_w().reshape(-1)
tab=".p2align 7\n.type T_0,@object\nT_0:\n"+T.emit(small)+"T_end:\n"
txt=f"""; FNet (hidden DFT 20x32, sequence DFT 8x256 with real/Hermitian folding) + LayerNorm + top-8 SwiGLU, one persistent launch.
; @launch grid=(256,1,1) block=({64*NW},1,1) lds={LDS_BYTES}
.amdgcn_target "amdgcn-amd-amdhsa--gfx950"
.text
.globl {KN}
.p2align 8
.type {KN},@function
{body}
{tab}.section .rodata,"a"
.p2align 6
.amdhsa_kernel {KN}
  .amdhsa_next_free_vgpr 168
  .amdhsa_next_free_sgpr 102
  .amdhsa_accum_offset 168
  .amdhsa_group_segment_fixed_size 0
  .amdhsa_kernarg_size 104
  .amdhsa_user_sgpr_count 2
  .amdhsa_user_sgpr_kernarg_segment_ptr 1
  .amdhsa_system_sgpr_workgroup_id_x 1
.end_amdhsa_kernel
"""
open(outp,"w").write(txt)
print("nops inserted",a.nops,"bytes",len(txt),file=sys.stderr)
```

```python
import sys, struct
sys.path.insert(0,"gen")
from asmlib import Asm
import tables4 as T
import numpy as np
KN="sequential_preLN__spectral_fnet__moe_arch_mod__prompt_kernel"
kw=dict(a.split("=") for a in sys.argv[2:])
outp=sys.argv[1]
STAMP=int(kw.get("stamp",0))
def opt(n,d): return int(kw.get(n,d))
def fhex(f): return hex(struct.unpack("<I",struct.pack("<f",f))[0])
WS_GO=0x14000; WS_FA=0x8000; WS_F3=0x1C000; EXT=0x10000; WS_I=0x20000; WS_Y=0x160000; WS_STAMP=0x300000
WS_SMALL=0x2A0000; SMW=1664; KEYS=WS_SMALL; HN=KEYS+0x2000; HN8=HN+0x5400; BASE=HN8+0x5400; META=BASE+0x2800; LIST=META+0x400; META2=WS_SMALL+0x2D000; H3=WS_SMALL+0x2E000; STAT=LIST+0x1000; STAT8=STAT+0x100; H4=STAT+0x200; ACT=H4+0x1000; ACT2=ACT+0xD800
assert ACT2+0xD800<=META2 and H3+0x4000<=WS_SMALL+128*SMW
TO_PM=0; TO_W=1536; TO_P2=3072
U=T.US; RS=T.RS
L_ZERO=20480; L_SUM=21504; L_SQ=21568; L_ST3=21632; L_CNT=21952; L_SM=22528; L_WP=23552; L_PM=25088; L_XP=27136; L_P2=0; L_TAB=52224
L_XS=82048; XSS=opt("xss",1312); UPO=40992; L_RED=131072; L_VD=L_RED+8192; LDS_BYTES=L_VD+64; L_EX=51904; L_R20=53248; L_SQ4=22016
LIMIT=40000; NW=11
OUTF=kw.get("outf","sc1").replace("+"," "); OUTG=kw.get("outg","").replace("+"," ")
a=Asm()
NST=18
def stamp(k):
    if STAMP: a(f"s_memrealtime s[{64+2*k}:{65+2*k}]")
def lg(n): a(f"s_waitcnt lgkmcnt({0 if STAMP else n})")
pc=[0]; tail=[]
def poll(loads, regs, sleep, tmp, between=None, chk=None, wait=None):
    k=pc[0]; pc[0]+=1
    for l in loads: a(l)
    if between: between()
    a(f"LW{k}:" if wait else f"LW{k}:\ns_waitcnt vmcnt(0)\nLV{k}:")
    if chk: a(chk)
    else:
        r=list(regs)
        if len(r)==1: tmp=r[0]; r=[]
        elif len(r)%2==1: a(f"v_max3_u32 v{tmp}, v{r[0]}, v{r[1]}, v{r[2]}"); r=r[3:]
        else: a(f"v_max_u32 v{tmp}, v{r[0]}, v{r[1]}"); r=r[2:]
        while r: a(f"v_max3_u32 v{tmp}, v{tmp}, v{r[0]}, v{r[1]}"); r=r[2:]
        a(f"v_cmp_eq_u32 vcc, -1, v{tmp}")
    a(f"s_cbranch_vccnz LR{k}\nLD{k}:\ns_mov_b64 exec, -1")
    tail.append(f"LR{k}:\ns_add_u32 s15, s15, 1\ns_cmp_lt_u32 s15, {LIMIT}\ns_cbranch_scc0 LD{k}\ns_mov_b64 exec, vcc\n"+(f"s_sleep {sleep}\n" if sleep else "")+"\n".join(loads)+f"\ns_branch LW{k}")
def flush_tail():
    for t in tail: a(t)
    tail.clear()
DPPM="row_mask:0xf bank_mask:0xf"
MF="v_mfma_f32_16x16x32_bf16"
SD="dst_sel:DWORD dst_unused:UNUSED_PAD src0_sel:WORD_{} src1_sel:DWORD"
NEG="neg_lo:[0,1] neg_hi:[0,1]"
def vr(b,n=4): return f"v[{b}:{b+n-1}]"
def read_pm():
    a(f"ds_read_b128 v[144:147], v159 offset:{L_PM}\nds_read_b128 v[148:151], v159 offset:{L_PM+16}\nds_read_b64 v[152:153], v159 offset:{L_PM+32}")
def scatter(base):
    for i in range(10):
        t=4+2*(i&1)
        a(f"v_add_u32_sdwa v{t}, v{144+i}, v{base} {SD.format(0)}\nv_add_u32_sdwa v{t+1}, v{144+i}, v{base} {SD.format(1)}")
        a(f"ds_write_b16 v{t}, v{8+i}\nds_write_b16_d16_hi v{t+1}, v{8+i}")
def store1(addr,val):
    a(f"s_mov_b64 exec, 1\nglobal_store_dword v{addr}, v{val}, s[40:41] sc1\ns_mov_b64 exec, -1")

def p2addr():
    a(f"s_and_b32 s62, s2, 7\ns_lshr_b32 s56, s2, 4\ns_mul_i32 s57, s62, 10\ns_add_u32 s57, s57, s56\ns_lshl_b32 s57, s57, 14\ns_add_u32 s57, s57, {WS_I}")
    a("v_lshl_add_u32 v112, v0, 4, s57\nv_add_u32 v113, 0x2000, v112")
    a("v_lshlrev_b32 v6, 1, v0\nv_and_b32 v6, 32, v6\nv_and_b32 v7, 64, v0\nv_or_b32 v6, v6, v7\nv_lshlrev_b32 v7, 4, v0\nv_xor_b32 v114, v6, v7")
    a(f"s_lshl_b32 s56, s56, 7\ns_add_u32 s56, s56, {WS_Y}\ns_lshl_b32 s58, s3, 8\ns_add_u32 s58, s58, s5\ns_lshl2_add_u32 s59, s62, s58\ns_mulk_i32 s59, 1280\ns_add_u32 s59, s59, s56")
    a("s_lshl_b32 s60, s62, 2\ns_add_u32 s60, s60, 995\ns_sub_u32 s60, s60, s58\ns_mulk_i32 s60, 1280\ns_add_u32 s60, s60, s56\ns_add_u32 s60, s60, 64")
    a("v_and_b32 v4, 7, v0\nv_mul_u32_u24 v4, 40960, v4\nv_lshrrev_b32 v5, 3, v3\nv_lshl_add_u32 v4, v5, 6, v4\nv_lshlrev_b32 v5, 4, v2\nv_add3_u32 v120, v4, v5, s59\nv_sub_u32 v121, s60, v4\nv_add_u32 v121, v121, v5")
    a("v_lshrrev_b32 v5, 2, v3\nv_lshl_add_u32 v4, v2, 3, v5\nv_lshlrev_b32 v4, 7, v4\nv_and_b32 v5, 3, v0\nv_lshl_add_u32 v4, v5, 3, v4")
    a(f"v_bfe_u32 v5, v0, 3, 2\nv_lshl_add_u32 v116, v5, 5, v4\nv_xor_b32 v117, 64, v116\nv_xor_b32 v118, 32, v116\nv_xor_b32 v119, 96, v116")
def yoff(dst,t):
    a(f"s_and_b32 {dst}, {t}, 255\ns_lshr_b32 s59, {t}, 9\ns_lshl2_add_u32 {dst}, {dst}, s59\ns_mulk_i32 {dst}, 1280\ns_bfe_u32 s59, {t}, 0x10008\ns_lshl_b32 s59, s59, 6\ns_add_u32 {dst}, {dst}, s59\ns_add_u32 {dst}, {dst}, {WS_Y}")
def p3addrA():
    a(f"s_movk_i32 s62, {U}\nv_lshrrev_b32 v4, 3, v1\nv_and_b32 v5, 7, v0\nv_lshlrev_b32 v5, 3, v5\nv_mad_u32_u24 v122, v4, s62, v5")
    a(f"v_lshl_add_u32 v128, v4, 7, v5\nv_lshlrev_b32 v5, 2, v3\nv_mad_u32_u24 v123, v2, s62, v5\nv_lshl_add_u32 v130, v2, 7, v5")
    a(f"v_cmp_eq_u32 vcc, 0, v2\nv_add_u32 v124, {18*U}, v122\nv_subrev_u32 v4, {2*U}, v122\nv_cndmask_b32 v124, v4, v124, vcc")
    a("v_add_u32 v125, s51, v122\nv_add_u32 v126, s51, v123\nv_add_u32 v127, s51, v124")
def p3addrB():
    a("v_cmp_eq_u32 vcc, 0, v2\nv_lshlrev_b32 v138, 3, v1\nv_add_u32 v139, 512, v138\nv_lshlrev_b32 v140, 2, v1\nv_add_u32 v143, 384, v140\nv_add_u32 v140, 1024, v140\nv_add_u32 v141, 640, v138\nv_add_u32 v142, 1152, v138\nv_subrev_u32 v4, 128, v138\nv_cndmask_b32 v142, v4, v142, vcc")
    yoff("s56","s46")
    a("s_sub_u32 s58, 2048, s46\ns_and_b32 s58, s58, 2047")
    yoff("s57","s58")
    a("s_add_u32 s62, s56, 1024\ns_sub_u32 s59, s57, 256\nv_mov_b32 v129, s59\nv_mov_b32 v4, s62\nv_cndmask_b32 v129, v129, v4, vcc\nv_add_u32 v129, v129, v128\nv_add_u32 v128, s56, v128\ns_add_u32 s62, s57, 768\nv_add_u32 v130, s62, v130")
    a("v_cmp_eq_u32 vcc, 21, v1\nv_mov_b32 v132, 0xffff\nv_lshlrev_b32 v137, 4, v3\nv_cndmask_b32 v131, -1, v132, vcc\nv_cmp_eq_u32 vcc, 5, v1\ns_lshl_b32 s57, s2, 4\nv_add_u32 v135, s57, v3\nv_cndmask_b32 v132, -1, v132, vcc")
    a("s_lshl_b32 s57, s48, 4\nv_lshl_add_u32 v133, v2, 2, s57\ns_add_u32 s57, s57, 16\ns_cmp_eq_u32 s50, 0\ns_cselect_b32 s57, 272, s57\nv_lshl_add_u32 v134, v2, 2, s57\ns_mov_b32 s63, 0x3f803f80")
    a(f"v_lshlrev_b32 v136, 2, v135\nv_add_u32 v136, {KEYS}, v136")
    for i in AC: a(f"v_mov_b32 v{i}, 0")
AC=[108,109,110,111,160,161,162,163,164,165,166,167]
PMA="v_and_b32 v159, 7, v0\nv_lshl_add_u32 v159, v2, 3, v159\nv_mul_u32_u24 v159, 48, v159"
def gentab(first="s_lshl3_add_u32 s56, s5, s3",tb=56):
    a(first+"\ns_lshl_b32 s56, s56, 4\ns_add_u32 s56, s56, 1\nv_and_b32 v16, 7, v0\nv_lshl_add_u32 v16, v16, 1, s56\nv_and_b32 v17, 8, v0\nv_lshl_add_u32 v16, v17, 3, v16")
    a(f"v_cvt_f32_u32 v16, v16\nv_lshlrev_b32 v17, 3, v2\nv_cvt_f32_u32 v17, v17\nv_mul_f32 v16, {fhex(-1/512)}, v16\nv_cos_f32 v18, v16\nv_mul_f32 v17, v17, v16\nv_mul_f32 v20, {fhex(31.0)}, v16\nv_add_f32 v18, v18, v18")
    for k in range(4):
        a("v_cos_f32 v24, v17\nv_sin_f32 v25, v17\nv_add_f32 v17, v17, v16\nv_cos_f32 v26, v17\nv_sin_f32 v27, v17\nv_add_f32 v17, v17, v20")
        for j in range(2,8): a(f"v_pk_fma_f32 v[{24+2*j}:{25+2*j}], v[{22+2*j}:{23+2*j}], v[18:19], v[{20+2*j}:{21+2*j}] op_sel_hi:[1,0,1] neg_lo:[0,0,1] neg_hi:[0,0,1]")
        if k==0: a("v_lshlrev_b32 v21, 31, v0\nv_xor_b32 v21, -1.0, v21\nv_cmp_eq_u32 vcc, 0, v2\nv_cndmask_b32 v25, v25, v21, vcc")
        for h in range(4): a(f"v_cvt_pk_bf16_f32 v{tb+4*k+h}, v{24+4*h}, v{26+4*h}\nv_cvt_pk_bf16_f32 v{tb+16+4*k+h}, v{25+4*h}, v{27+4*h}")
def read_w():
    a(f"ds_read_b64 v[98:99], v122 offset:{L_WP}\nds_read_b64 v[100:101], v122 offset:{L_WP+8*U}\nds_read_b32 v102, v123 offset:{L_WP+16*U}\nds_read_b64 v[104:105], v122 offset:{L_WP+10*U}\nds_read_b64 v[106:107], v124 offset:{L_WP}\nds_read_b32 v103, v123 offset:{L_WP+6*U}")

a(f"{KN}:")
stamp(0)
a("s_load_dwordx2 s[16:17], s[0:1], 0\nv_lshrrev_b32 v4, 6, v0\ns_cmp_eq_u32 s2, 0\ns_cselect_b32 s4, 7, 8\nv_readfirstlane_b32 s3, v4\ns_lshr_b32 s7, s2, 7\ns_cbranch_scc1 L_bf")
a("s_setprio 3\nv_lshlrev_b32 v4, s4, v4\nv_add_u32 v4, s2, v4\nv_sub_u32 v5, 2048, v4\nv_and_b32 v7, 8, v0\nv_cmp_ne_u32 vcc, 0, v7\nv_lshrrev_b32 v7, 11, v5\nv_lshrrev_b32 v5, v7, v5\nv_cndmask_b32 v159, v4, v5, vcc")
a("v_mul_u32_u24 v158, 1280, v159\nv_and_b32 v7, 48, v0\nv_and_b32 v6, 7, v0\nv_lshl_add_u32 v158, v7, 2, v158\nv_lshl_add_u32 v158, v6, 3, v158\ns_cmp_ge_u32 s3, 8\ns_cbranch_scc1 L_nox\ns_waitcnt lgkmcnt(0)")
for i in range(5): a(f"global_load_dwordx2 v[{8+2*i}:{9+2*i}], v158, s[16:17] offset:{256*i}")
a("s_branch L_nox")
a("L_bf:\ns_load_dwordx2 s[40:41], s[0:1], 96\ns_getpc_b64 s[42:43]\nL_pc:\ns_cmp_lg_u32 s3, 0\ns_cbranch_scc1 L_bf0\ns_bfe_u32 s4, s2, 0x30003\ns_mulk_i32 s4, 3072\nv_lshrrev_b32 v4, 1, v0\nv_lshl_add_u32 v4, v4, 7, s4\nv_min_u32 v4, T_end-L_pc-4, v4\nglobal_load_dword v22, v4, s[42:43]\nL_bf0:\nv_and_b32 v6, 7, v0\ns_load_dwordx4 s[28:31], s[0:1], 48\ns_load_dwordx8 s[32:39], s[0:1], 64\ns_cmp_ge_u32 s2, 256\ns_cbranch_scc1 L_end")
a("v_and_b32 v1, 63, v0\nv_lshrrev_b32 v2, 4, v1\nv_and_b32 v3, 15, v0\nv_lshlrev_b32 v157, 4, v1\ns_bfe_u32 s5, s2, 0x10003\ns_mov_b32 s15, 0\ns_add_u32 s42, s42, T_0-L_pc\ns_addc_u32 s43, s43, 0\ns_sub_u32 s4, s2, 128\nv_mov_b32 v12, -1\nv_mov_b32 v13, -1\nv_mov_b32 v14, -1\nv_mov_b32 v15, -1\ns_cmp_lg_u32 s3, 10\ns_cbranch_scc1 L_bf1")
a(f"s_lshl_b32 s7, s4, 7\ns_add_u32 s7, s7, {EXT}\nv_add_u32 v5, s7, v157\ns_mul_i32 s7, s4, {SMW}\ns_add_u32 s7, s7, {WS_SMALL}\nv_add_u32 v7, s7, v157\nv_min_u32 v4, 9, v1\nv_lshlrev_b32 v4, 7, v4\ns_waitcnt lgkmcnt(0)\nglobal_load_dword v22, v4, s[28:29]\nglobal_store_dwordx4 v7, v[12:15], s[40:41] offset:{SMW-1024} sc1\ns_mov_b64 exec, 0xff\ns_branch L_bf2")
a("L_bf1:")
a(f"s_lshl_b32 s7, s3, 7\ns_add_u32 s7, s7, s4\ns_lshl_b32 s7, s7, 7\ns_add_u32 s7, s7, {WS_I}\nv_lshrrev_b32 v5, 3, v1\nv_mul_u32_u24 v5, 0x28000, v5\nv_lshl_add_u32 v5, v6, 4, v5\nv_add_u32 v5, s7, v5")
a(f"s_mul_i32 s7, s4, 10\ns_add_u32 s7, s7, s3\ns_lshl_b32 s7, s7, 10\ns_add_u32 s7, s7, {WS_Y}\nv_add_u32 v7, s7, v157")
a("L_bf2:\ns_waitcnt lgkmcnt(0)\ns_load_dword s6, s[40:41], 0\nglobal_store_dwordx4 v5, v[12:15], s[40:41] sc1\ns_mov_b64 exec, -1")
YM=opt("ym",0)
if not YM: a("s_barrier\nglobal_store_dwordx4 v7, v[12:15], s[40:41] sc1")
stamp(1)
a("s_and_b32 s7, s2, 7\ns_lshl1_add_u32 s7, s7, s5\ns_add_u32 s8, s7, 208\ns_add_u32 s9, s7, 242\ns_cmp_lt_u32 s7, 6\ns_cselect_b32 s8, s8, s9\ns_sub_u32 s9, 229, s7\ns_cmp_ge_u32 s7, 14\ns_cselect_b32 s8, s9, s8")
a("s_cmp_lt_u32 s2, 208\ns_cselect_b32 s14, s2, s8\ns_sub_u32 s9, s2, 8\ns_cmp_ge_u32 s2, 224\ns_cselect_b32 s14, s9, s14")
a(f"s_lshl_b32 s7, s4, 7\ns_add_u32 s7, s7, {WS_FA}\nv_add_u32 v18, s7, v157\nv_lshrrev_b32 v4, 3, v1\nv_lshlrev_b32 v19, 15, v4\nv_lshrrev_b32 v4, 1, v4\nv_lshl_add_u32 v19, v4, 15, v19\nv_lshl_add_u32 v19, v6, 4, v19\ns_sub_u32 s7, s7, 0x4000\nv_add_u32 v19, s7, v19\ns_waitcnt lgkmcnt(0)\ns_add_u32 s6, s6, 1\nv_mov_b32 v8, s6\nv_mov_b32 v9, s6\nv_mov_b32 v10, s6\nv_mov_b32 v11, s6\ns_waitcnt vmcnt({0 if YM else 1})\ns_barrier")
if YM: a("s_cmp_lg_u32 s3, 9\ns_cbranch_scc1 L_y1\ns_mov_b64 exec, 0xffffff\nglobal_store_dwordx4 v19, v[8:11], s[40:41] sc1\ns_mov_b64 exec, -1\nL_y1:\ns_barrier\nglobal_store_dwordx4 v7, v[12:15], s[40:41] sc1\ns_nop 1")
EK=opt("ek",1)
if EK: a("s_sub_u32 s49, s14, 160\ns_cmp_lt_u32 s49, 54\ns_cselect_b32 s7, s3, 9\ns_cmp_lt_u32 s7, 8\ns_cbranch_scc1 L_f1")
a(("s_branch L_bf9" if YM else "s_cmp_lg_u32 s3, 9\ns_cbranch_scc1 L_bf9")+"\ns_mov_b64 exec, 0xffffff\nglobal_store_dwordx4 v19, v[8:11], s[40:41] sc1\ns_mov_b64 exec, -1\ns_waitcnt vmcnt(1)\ns_branch L_bfa\nL_bf9:\ns_waitcnt vmcnt(0)\nL_bfa:\ns_barrier\ns_cmp_lg_u32 s3, 10\ns_cbranch_scc1 L_bfb\ns_mov_b64 exec, 0xff\nglobal_store_dwordx4 v18, v[8:11], s[40:41] sc1\ns_mov_b64 exec, -1\nL_bfb:\ns_barrier")
stamp(2)
a("s_setprio 0\ns_cmp_lt_u32 s3, 8\ns_cbranch_scc1 L_bf3\ns_cmp_lt_u32 s3, 10\ns_cbranch_scc1 L_bf8\ns_cmp_lt_u32 s4, 16\ns_cbranch_scc1 L_agg")
a("s_cmp_lt_u32 s2, 160\ns_cbranch_scc1 L_flagchk\ns_and_b32 s7, s14, 254\ns_cmp_eq_u32 s7, 214\ns_cbranch_scc1 L_fin\ns_branch L_fw")
a("L_nox:\ns_setprio 0\ns_load_dwordx2 s[40:41], s[0:1], 96\ns_load_dwordx4 s[28:31], s[0:1], 48\ns_load_dwordx8 s[32:39], s[0:1], 64\ns_getpc_b64 s[42:43]\nL_pc2:")
stamp(1)
a("v_and_b32 v1, 63, v0\nv_lshrrev_b32 v2, 4, v1\nv_and_b32 v3, 15, v0\nv_lshlrev_b32 v157, 4, v1\ns_bfe_u32 s5, s2, 0x10003\ns_mov_b32 s15, 0\ns_add_u32 s42, s42, T_0-L_pc2\ns_addc_u32 s43, s43, 0\ns_cmp_eq_u32 s3, 10\ns_cbranch_scc1 L_a10")
a("v_readfirstlane_b32 s46, v4\nv_readfirstlane_b32 s47, v5\ns_lshl_b32 s48, s3, 1\ns_cmp_eq_u32 s3, 8\ns_cselect_b32 s48, 1, s48\ns_and_b32 s50, s46, 1023")
a("v_bfe_u32 v20, v0, 2, 1\nv_bfe_u32 v21, v0, 3, 2\nv_and_b32 v22, 3, v0\nv_lshl_add_u32 v24, v21, 2, v22\nv_lshl_add_u32 v24, v20, 4, v24\nv_mul_u32_u24 v24, 20, v24\nv_add_u32 v24, s3, v24\ns_cmp_lg_u32 s3, 0\ns_cbranch_scc1 L_wg")
a("v_lshrrev_b32 v24, 1, v21\nv_lshl_add_u32 v24, v20, 1, v24\nv_lshl_add_u32 v24, v24, 2, v22\nv_and_b32 v21, 1, v21\nv_lshl_add_u32 v24, v24, 1, 2\nv_sub_u32 v24, v24, v21\nv_mul_u32_u24 v24, 10, v24\nL_wg:")
a(f"v_sub_u32 v25, 640, v24\nv_cmp_eq_u32 vcc, 320, v24\nv_lshrrev_b32 v20, 5, v1\nv_and_b32 v21, 31, v0\nv_cndmask_b32_e64 v25, v25, 0, vcc\nv_cmp_eq_u32 vcc, 1, v20\ns_mul_i32 s49, s3, {U}\nv_lshl_add_u32 v115, v21, 1, s49\nv_cndmask_b32 v24, v24, v25, vcc\nv_lshlrev_b32 v87, 1, v24\nv_mul_u32_u24 v20, {10*U}, v20\nv_add_u32 v115, v115, v20")
a("s_cmp_ge_u32 s3, 8\ns_cbranch_scc1 L_gtrig")
a("v_lshrrev_b32 v161, 8, v159\nv_bfe_u32 v4, v159, 7, 1\nv_lshl_add_u32 v161, v4, 3, v161\nv_lshrrev_b32 v4, 2, v161\nv_sub_u32 v4, 0, v4\nv_and_b32 v4, 3, v4\nv_lshlrev_b32 v4, 1, v4\nv_xor_b32 v4, v4, v6\nv_mul_u32_u24 v160, 5120, v2\nv_lshl_add_u32 v160, v4, 3, v160\nv_lshl_add_u32 v160, v161, 6, v160\nv_lshlrev_b32 v161, 2, v161")
a("v_mov_b32 v23, 0\nv_mov_b32 v27, 0\nv_mov_b32 v31, 0\nv_mov_b32 v35, 0\nv_mov_b32 v18, 0\nv_mov_b32 v19, 0\ns_mov_b32 s52, 0x05040100\ns_mov_b32 s53, 0x07060302")
a(f"ds_write_b32 v161, v23 offset:{L_CNT}\nv_add_lshl_u32 v86, v161, v2, 2")
a(f"v_mov_b32 v162, {fhex(-1/32)}\nv_cmp_eq_u32 vcc, 0, v2\nv_cndmask_b32 v162, 0, v162, vcc")
a("L_gtrig:")
a("s_add_u32 s12, s3, 80\ns_cmp_eq_u32 s3, 0\ns_cselect_b32 s13, 4, 8\ns_cselect_b32 s14, 20, s3\ns_cselect_b32 s12, 10, s12")
a("v_lshrrev_b32 v44, 2, v3\nv_and_b32 v45, 3, v0\nv_mad_u32_u24 v44, v44, s13, v45\nv_mul_u32_u24 v44, 20, v44\nv_add_u32 v45, s12, v44\nv_add_u32 v44, s14, v44\nv_lshlrev_b32 v46, 3, v2")
a(f"v_cvt_f32_u32 v44, v44\nv_cvt_f32_u32 v45, v45\nv_cvt_f32_u32 v46, v46\nv_mul_f32 v44, {fhex(1/640)}, v44\nv_mul_f32 v45, {fhex(1/640)}, v45\nv_mul_f32 v47, v46, v45\nv_mul_f32 v46, v46, v44")
for tau in range(2):
    a(f"v_cos_f32 v48, v{46+tau}\nv_sin_f32 v49, v{46+tau}\nv_add_f32 v{46+tau}, v{46+tau}, v{44+tau}\nv_cos_f32 v64, v{44+tau}\nv_cos_f32 v50, v{46+tau}\nv_sin_f32 v51, v{46+tau}\nv_add_f32 v64, v64, v64")
    for j in range(2,8): a(f"v_pk_fma_f32 v[{48+2*j}:{49+2*j}], v[{46+2*j}:{47+2*j}], v[64:65], v[{44+2*j}:{45+2*j}] op_sel_hi:[1,0,1] neg_lo:[0,0,1] neg_hi:[0,0,1]")
    for h in range(4):
        a(f"v_cvt_pk_bf16_f32 v{88+8*tau+h}, v{48+4*h}, v{50+4*h}\nv_cvt_pk_bf16_f32 v{104+4*tau+h}, v{49+4*h}, v{51+4*h}\nv_xor_b32 v{92+8*tau+h}, 0x80008000, v{104+4*tau+h}")
a(f"s_barrier\nds_read_b128 v[36:39], v157 offset:{L_R20}\nds_read_b128 v[40:43], v157 offset:{L_R20+1024}")
a(f"s_lshl_b32 s49, s3, 11")
a("v_lshlrev_b32 v166, 4, v2\nv_lshrrev_b32 v4, 2, v3\nv_sub_u32 v4, 0, v4\nv_and_b32 v4, 3, v4\nv_xor_b32 v4, v4, v2\nv_lshlrev_b32 v4, 4, v4\nv_lshl_add_u32 v163, v3, 6, v4\nv_add_u32 v163, s49, v163")
a(f"s_lshl_b32 s49, s3, 7\ns_add_u32 s49, s49, s2\ns_lshl_b32 s49, s49, 7\ns_add_u32 s49, s49, {WS_I}")
a("v_lshrrev_b32 v4, 1, v3\nv_and_b32 v5, 1, v0\nv_mul_u32_u24 v167, 0x28000, v4\nv_lshl_add_u32 v167, v5, 6, v167\nv_add3_u32 v167, v167, v166, s49")
a(f"s_lshl_b32 s49, s3, 7\ns_add_u32 s49, s49, {L_EX}\nv_lshl_add_u32 v155, v5, 5, s49\nv_lshl_add_u32 v155, v4, 2, v155\nv_lshrrev_b32 v4, 1, v2\nv_and_b32 v154, 1, v2\nv_lshl_add_u32 v154, v154, 2, v4\ns_mul_i32 s49, s3, {U}\nv_lshl_add_u32 v154, v154, 3, s49\nv_mul_u32_u24 v4, {10*U}, v5\nv_add_u32 v154, v154, v4")
a("v_and_b32 v4, 0xff1, v0\nv_cmp_eq_u32 vcc, 49, v4\nv_mov_b32 v153, 0xffff\nv_cndmask_b32 v153, -1, v153, vcc")
a("v_mov_b32 v120, 0")
a("s_cmp_ge_u32 s3, 8\ns_cbranch_scc1 L_a8b")
p2addr()
stamp(2)
a("s_waitcnt vmcnt(0) lgkmcnt(0)\nglobal_load_ushort v87, v87, s[28:29]")
stamp(3)
for low in range(4):
    c=low>>1; sel="s53" if low&1 else "s52"; o=20+4*low
    a(f"v_perm_b32 v{o}, v{10+c}, v{8+c}, {sel}\nv_perm_b32 v{o+1}, v{14+c}, v{12+c}, {sel}\nv_perm_b32 v{o+2}, v23, v{16+c}, {sel}")
    if low>0: a(f"{MF} {vr(44+4*(low-1))}, v[36:39], {vr(20+4*(low-1))}, 0")
a("v_dot2c_f32_bf16 v18, v8, v8\nv_dot2c_f32_bf16 v19, v9, v9")
a(f"{MF} {vr(56)}, v[36:39], {vr(32)}, 0")
for i in range(1,5):
    a(f"v_dot2c_f32_bf16 v18, v{8+2*i}, v{8+2*i}\nv_dot2c_f32_bf16 v19, v{9+2*i}, v{9+2*i}")
    a(f"{MF} {vr(60+4*(i-1))}, v[40:43], {vr(20+4*(i-1))}, 0")
a("v_add_f32 v4, v47, v51\nv_add_f32 v5, v55, v59\nv_add_f32 v4, v4, v5\nv_add_f32 v18, v18, v19")
for m,r in (("quad_perm:[1,0,3,2]",1),("quad_perm:[2,3,0,1]",2),("row_half_mirror",0)):
    if r: a(f"v_cvt_pk_bf16_f32 v{76+2*r}, v{44+r}, v{48+r}")
    else: a("v_cvt_pk_bf16_f32 v82, v60, v64")
    a(f"v_add_f32_dpp v4, v4, v4 {m} {DPPM}\nv_add_f32_dpp v18, v18, v18 {m} {DPPM}")
    if r: a(f"v_cvt_pk_bf16_f32 v{77+2*r}, v{52+r}, v{56+r}\nds_write_b64 v160, v[{76+2*r}:{77+2*r}] offset:{1024*r}")
a("v_cvt_pk_bf16_f32 v83, v68, v72\nds_write_b64 v160, v[82:83] offset:3072\nv_cvt_pk_bf16_f32 v84, v61, v65\nv_cvt_pk_bf16_f32 v85, v69, v73\nds_write_b64 v160, v[84:85] offset:4096")
for low in range(4): a(f"v_fmac_f32 v{44+4*low}, v4, v162")
a("v_cvt_pk_bf16_f32 v76, v44, v48\nv_cvt_pk_bf16_f32 v77, v52, v56\nds_write_b64 v160, v[76:77]")
a(f"ds_write_b32 v86, v18 offset:{L_SQ4}\nds_write_b32 v161, v4 offset:{L_SUM}")
a("L_b1:\ns_setprio 1\ns_waitcnt lgkmcnt(0)\ns_barrier")
stamp(4)
a(f"ds_read_b128 v[20:23], v163\nds_read_b128 v[28:31], v163 offset:1024\ns_cmp_eq_u32 s3, 0")
lg(1)
a(f"{MF} v[44:47], v[20:23], v[88:91], 0\n{MF} v[48:51], v[20:23], v[92:95], 0\ns_cbranch_scc1 L_u0")
a(f"{MF} v[52:55], v[20:23], v[96:99], 0\n{MF} v[56:59], v[20:23], v[100:103], 0")
lg(0)
a(f"{MF} v[44:47], v[28:31], v[104:107], v[44:47]\n{MF} v[48:51], v[28:31], v[88:91], v[48:51]")
a(f"{MF} v[52:55], v[28:31], v[108:111], v[52:55]\n{MF} v[56:59], v[28:31], v[96:99], v[56:59]\nL_u1:")
tail.append(f"L_u0:\ns_waitcnt lgkmcnt(0)\n{MF} v[52:55], v[28:31], v[96:99], 0\n{MF} v[56:59], v[28:31], v[100:103], 0\ns_branch L_u1")
a(f"ds_read_b128 v[32:35], v157 offset:{L_SM}\ns_waitcnt vmcnt(0)\nds_write_b16 v115, v87 offset:{L_WP}")
a("v_cvt_pk_bf16_f32 v20, v44, v45\nv_cvt_pk_bf16_f32 v21, v46, v47\nv_cvt_pk_bf16_f32 v22, v48, v49\nv_cvt_pk_bf16_f32 v23, v50, v51")
a("v_cvt_pk_bf16_f32 v24, v52, v53\nv_cvt_pk_bf16_f32 v25, v54, v55\nv_cvt_pk_bf16_f32 v26, v56, v57\nv_cvt_pk_bf16_f32 v27, v58, v59")
a("L_sm:\ns_waitcnt lgkmcnt(0)\nv_max3_u32 v4, v32, v33, v34\nv_max_u32 v4, v4, v35\nv_cmp_eq_u32 vcc, -1, v4\ns_cbranch_vccnz L_smr\nL_smd:")
tail.append(f"L_smr:\ns_add_u32 s13, s13, 1\ns_cmp_gt_u32 s13, 0x10000\ns_cbranch_scc1 L_smd\nds_read_b128 v[32:35], v157 offset:{L_SM}\ns_branch L_sm")
a(f"{MF} v[44:47], v[20:23], v[32:35], 0\n{MF} v[48:51], v[24:27], v[32:35], 0")
a(f"ds_read_b64 v[60:61], v154 offset:{L_WP}\nds_read_b64 v[62:63], v154 offset:{L_WP+16}")
a("v_cvt_pk_bf16_f32 v20, v44, v45\nv_cvt_pk_bf16_f32 v21, v46, v47\nv_cvt_pk_bf16_f32 v22, v48, v49\nv_cvt_pk_bf16_f32 v23, v50, v51")
a("global_store_dwordx4 v167, v[20:23], s[40:41] sc1\ns_setprio 0")
stamp(5)
a(f"s_waitcnt lgkmcnt(0)\nv_and_b32 v61, v61, v153\n{MF} v[64:67], v[60:63], v[20:23], 0\nds_write2_b32 v155, v64, v65 offset0:0 offset1:16\ns_waitcnt lgkmcnt(0)\ns_barrier\ns_cmp_eq_u32 s3, 9\ns_cbranch_scc1 L_ext")
a(PMA)
read_pm()
a(f"s_mul_i32 s51, s48, {RS}\ns_add_u32 s51, s51, {L_XP}\nv_lshrrev_b32 v156, 3, v3\nv_mul_u32_u24 v156, {RS}, v156\nv_add_u32 v156, s51, v156")
a("s_cmp_lt_u32 s3, 8\ns_cbranch_scc1 L_scat\ns_cmp_lg_u32 s2, 0\ns_cbranch_scc1 L_fin\ns_barrier\ns_barrier\ns_branch L_p2end")
a("L_ext:\ns_setprio 3")
for i in range(10): a(f"ds_read_b32 v{44+i}, v112 offset:{L_EX+128*i}")
a("s_waitcnt lgkmcnt(0)\nv_pk_add_f32 v[44:45], v[44:45], v[46:47]\nv_pk_add_f32 v[48:49], v[48:49], v[50:51]\nv_pk_add_f32 v[44:45], v[44:45], v[52:53]\nv_pk_add_f32 v[44:45], v[44:45], v[48:49]\nv_add_f32 v44, v44, v45\nv_mul_f32 v44, v44, v113\nv_mov_b32 v45, v44")
a(f"v_permlane32_swap_b32 v44, v45\nv_add_f32 v44, v44, v45\nv_mov_b32 v45, v44\nv_permlane16_swap_b32 v44, v45\nv_add_f32 v44, v44, v45\nv_mov_b32_dpp v45, v44 quad_perm:[1,0,3,2] {DPPM}\nv_cvt_pk_bf16_f32 v44, v44, v45")
a("s_mov_b64 exec, 0x5555\nglobal_store_dword v120, v44, s[40:41] sc1\ns_mov_b64 exec, -1")
stamp(3)
a("s_barrier\ns_branch L_fin")
XA=[88,89,90,91,92]; XB=[94,95,96,97,93]; WA=[98,99,100,101,102]; WB=[104,105,106,107,103]
a("L_scat:\ns_cmp_ge_u32 s3, 4\ns_cbranch_scc1 L_b2\ns_waitcnt lgkmcnt(0)")
scatter(156)
a("L_b2:")
TABPOS=opt("tabpos",1)
if TABPOS==0:
    a("s_cmp_ge_u32 s3, 4\ns_cbranch_scc1 L_ntab")
    gentab()
    a("L_ntab:")
stamp(6)
a("s_waitcnt vmcnt(0) lgkmcnt(0)\ns_barrier" if opt("ack1",1) else "s_waitcnt lgkmcnt(0)\ns_barrier")
stamp(7)
if opt("pre1",0): a(f"s_sleep {opt('pre1',0)}")
def x1win():
    if TABPOS==1:
        a("s_cmp_ge_u32 s3, 4\ns_cbranch_scc1 L_ntab")
        gentab()
        a("s_branch L_ntab2\nL_ntab:\ns_cmp_ge_u32 s2, 128\ns_cbranch_scc1 L_ntab2")
        scatter(156)
        a("L_ntab2:")
poll(["global_load_dwordx4 v[40:43], v112, s[40:41] sc1","global_load_dwordx4 v[44:47], v113, s[40:41] sc1"],range(40,48),opt("sl1",2),16,between=x1win)
stamp(8)
a(f"ds_write_b128 v114, v[40:43] offset:{L_P2}\nds_write_b128 v114, v[44:47] offset:{L_P2+8192}\ns_waitcnt lgkmcnt(0)\ns_barrier")
a("s_cmp_ge_u32 s3, 4\ns_cbranch_scc1 L_p2end\ns_setprio 2")
def trg(i):
    k,c=i>>2,i&3; b=8+4*(i&7)
    a(f"ds_read_b64_tr_b16 v[{b}:{b+1}], v{116+c} offset:{L_P2+4096*k}\nds_read_b64_tr_b16 v[{b+2}:{b+3}], v{116+c} offset:{L_P2+4096*k+512}")
NPRE=7
for i in range(NPRE): trg(i)
for i in range(16):
    k,c=i>>2,i&3
    issued=min(16,NPRE+i)
    a(f"s_waitcnt lgkmcnt({2*(issued-i-1)})")
    a(f"{MF} {vr(40+4*c)}, {vr(8+4*(i&7))}, {vr(56+16*(c&1)+4*k)}, {'0' if k==0 else vr(40+4*c)}")
    if NPRE+i<16: trg(NPRE+i)
a(f"v_pk_add_f32 v[8:9], v[40:41], v[44:45] {NEG}\nv_pk_add_f32 v[10:11], v[42:43], v[46:47] {NEG}\nv_pk_add_f32 v[16:17], v[40:41], v[44:45]\nv_pk_add_f32 v[18:19], v[42:43], v[46:47]")
a("v_cvt_pk_bf16_f32 v24, v8, v9\nv_cvt_pk_bf16_f32 v25, v10, v11\nv_cvt_pk_bf16_f32 v28, v16, v17\nv_cvt_pk_bf16_f32 v29, v18, v19")
a(f"v_pk_add_f32 v[12:13], v[48:49], v[52:53] {NEG}\nv_pk_add_f32 v[14:15], v[50:51], v[54:55] {NEG}\nv_cvt_pk_bf16_f32 v26, v12, v13\nv_cvt_pk_bf16_f32 v27, v14, v15")
a("global_store_dwordx4 v120, v[24:27], s[40:41] sc1")
a("v_pk_add_f32 v[20:21], v[48:49], v[52:53]\nv_pk_add_f32 v[22:23], v[50:51], v[54:55]\nv_cvt_pk_bf16_f32 v30, v20, v21\nv_cvt_pk_bf16_f32 v31, v22, v23")
a("global_store_dwordx4 v121, v[28:31], s[40:41] sc1\ns_setprio 0")
stamp(9)
a("L_p2end:\ns_cmp_ge_u32 s2, 128\ns_cbranch_scc1 L_fin")
p3addrA()
a(f"ds_read_b64 v[88:89], v125\nds_read_b64 v[90:91], v125 offset:{8*U}\nds_read_b32 v92, v126 offset:{16*U}\nds_read_b64 v[94:95], v125 offset:{RS+10*U}\nds_read_b64 v[96:97], v127 offset:{RS}\nds_read_b32 v93, v126 offset:{RS+6*U}")
read_w()
p3addrB()
a(f"s_and_b32 s60, s2, 7\ns_lshl_b32 s60, s60, 7\ns_add_u32 s60, s60, {LIST}\nv_lshl_add_u32 v19, v3, 2, s60\nv_lshlrev_b32 v155, 7, v1\nv_add_u32 v155, {H3}, v155\nv_add_u32 v121, 0x2000, v155")
if opt("w2",-1)<0: a("s_waitcnt vmcnt(0)\ns_barrier")
else: a(f"s_barrier\ns_sleep {opt('w2',0)}")
stamp(10)
if opt("pre2",0): a(f"s_sleep {opt('pre2',0)}")
def x2win():
    a("s_waitcnt lgkmcnt(0)")
    for i in range(5):
        a(f"v_dot2c_f32_bf16 v{AC[0]}, s63, v{XA[i]}\nv_dot2c_f32_bf16 v{AC[1]}, v{XA[i]}, v{WA[i]}\nv_dot2c_f32_bf16 v{AC[2]}, v{XA[i]}, v{XA[i]}\nv_dot2c_f32_bf16 v{AC[3]}, s63, v{WA[i]}")
        a(f"v_dot2c_f32_bf16 v{AC[4]}, s63, v{XB[i]}\nv_dot2c_f32_bf16 v{AC[5]}, v{XB[i]}, v{WB[i]}\nv_dot2c_f32_bf16 v{AC[6]}, v{XB[i]}, v{XB[i]}")
    a(f"v_mov_b32 v{AC[7]}, v{AC[3]}\nv_mov_b32 v18, {fhex(1e-5)}\ns_mov_b32 s58, {fhex(1/640)}\ns_movk_i32 s59, 0x7ff")
    for X,hb in ((XA,32),(XB,42)):
        for i in range(5): a(f"v_lshlrev_b32 v{hb+2*i}, 16, v{X[i]}\nv_and_b32 v{hb+1+2*i}, 0xffff0000, v{X[i]}")
    a(f"v_lshlrev_b32 v154, 4, v0\nv_and_b32 v154, 0x1fff, v154\nv_add_u32 v154, {KEYS}, v154\nv_mov_b32 v119, {L_CNT}\ns_mov_b32 s61, 0\ns_mov_b32 s62, 0\ns_movk_i32 s44, 99\ns_movk_i32 s45, 99\ns_cmp_lt_u32 s3, 8\ns_cselect_b64 s[56:57], 1, 0\ns_add_u32 s49, s48, 1")
    a("s_waitcnt vmcnt(3)\nv_cmp_eq_u32 vcc, -1, v71\ns_mov_b32 s55, 1\ns_mov_b32 s54, -1\ns_cbranch_vccnz L_l2\ns_mov_b32 s55, 0\nv_cmp_eq_u32_e64 s[24:25], s46, v71\nv_cmp_eq_u32_e64 s[26:27], s47, v71\ns_ff1_i32_b64 s52, s[24:25]\ns_ff1_i32_b64 s53, s[26:27]\ns_cmp_eq_u32 s50, 0\ns_cselect_b32 s53, -1, s53\ns_and_b32 s54, s52, s53\ns_cmp_lt_i32 s54, 0\ns_cbranch_scc1 L_nl\n"+HINT+("" if GEN else "\ns_waitcnt vmcnt(2)\ns_branch LV1")+"\nL_nl:")
    if GEN==1: a(f"s_cmp_lg_u32 s3, {opt('gw',7)}\ns_cbranch_scc1 L_gh\ns_sub_u32 s60, s2, {opt('gh0',112)}\ns_cmp_ge_u32 s60, 16\ns_cbranch_scc1 L_gh\ns_lshl_b64 exec, 1, s60\nglobal_store_dword v155, v155, s[40:41] sc1\ns_mov_b64 exec, -1\ns_waitcnt vmcnt(1)\ns_branch LV1\nL_gh:")
    tail.append("L_l2:\nglobal_load_dword v71, v19, s[40:41] offset:1024 sc1\ns_branch L_nl")
NH3=16; H3POS=opt("h3pos",0)
GEN=opt("gen",0)
HINT="" if GEN else "s_cmp_eq_u32 s50, 0\ns_cselect_b32 s26, 0, s26\ns_or_b32 exec_lo, s24, s26\ns_mov_b32 exec_hi, exec_lo\nglobal_store_dword v155, v155, s[40:41] sc1\nglobal_store_dword v121, v155, s[40:41] sc1\ns_mov_b64 exec, -1"
if GEN==2: a(f"s_cmp_lg_u32 s3, {opt('gw',7)}\ns_cbranch_scc1 L_gh\ns_sub_u32 s60, s2, {opt('gh0',112)}\ns_cmp_ge_u32 s60, 16\ns_cbranch_scc1 L_gh\ns_lshl_b64 exec, 1, s60\nglobal_store_dword v155, v155, s[40:41] sc1\ns_mov_b64 exec, -1\nL_gh:")
a("global_load_dword v71, v19, s[40:41] sc1")
assert pc[0]==1
poll(["global_load_dwordx2 v[112:113], v128, s[40:41] sc1","global_load_dwordx2 v[114:115], v129, s[40:41] sc1","global_load_dword v116, v130, s[40:41] sc1"],range(112,117),opt("sl2",2),4,between=x2win)
stamp(11)
YA=[112,113,114,117,116]; YB=[112,118,114,115,116]
A0,A1,A2,A3,B0,B1,B2_,B3,C0,C1,C2,C3=AC
def p3main():
    for i in (0,2,4,1,3):
        a(f"v_dot2c_f32_bf16 v{C0}, s63, v{YA[i]}\nv_dot2c_f32_bf16 v{C1}, v{YA[i]}, v{YA[i]}\nv_dot2c_f32_bf16 v{C2}, v{YA[i]}, v{XA[i]}\nv_dot2c_f32_bf16 v{C3}, v{YB[i]}, v{XB[i]}")
        a(f"v_dot2c_f32_bf16 v{A1}, v{YA[i]}, v{WA[i]}\nv_dot2c_f32_bf16 v{B1}, v{YB[i]}, v{WB[i]}")
    a(f"v_add_f32 v{A0}, v{A0}, v{C0}\nv_add_f32 v{B0}, v{B0}, v{C0}\nv_add_f32 v{A2}, v{A2}, v{C1}\nv_add_f32 v{B2_}, v{B2_}, v{C1}\nv_fmac_f32 v{A2}, 2.0, v{C2}\nv_fmac_f32 v{B2_}, 2.0, v{C3}")
    a(f"v_permlane32_swap_b32 v{A0}, v{A1}\nv_permlane32_swap_b32 v{B0}, v{B1}\nv_permlane32_swap_b32 v{A2}, v{A3}\nv_permlane32_swap_b32 v{B2_}, v{B3}")
    a(f"v_add_f32 v{A0}, v{A0}, v{A1}\nv_add_f32 v{A2}, v{A2}, v{A3}\nv_add_f32 v{B0}, v{B0}, v{B1}\nv_add_f32 v{B2_}, v{B2_}, v{B3}")
    a(f"v_permlane16_swap_b32 v{A0}, v{A2}\nv_permlane16_swap_b32 v{B0}, v{B2_}\nv_add_f32 v{A0}, v{A0}, v{A2}\nv_add_f32 v{B0}, v{B0}, v{B2_}")
    for s_ in (8,4,2,1): a(f"v_add_f32_dpp v{A0}, v{A0}, v{A0} row_ror:{s_} {DPPM}\nv_add_f32_dpp v{B0}, v{B0}, v{B0} row_ror:{s_} {DPPM}")
    a(f"ds_write_b32 v133, v{A0} offset:{L_ST3}\nds_write_b32 v134, v{B0} offset:{L_ST3}")
def top2():
    a("v_mov_b32 v4, v79")
    for s_ in (8,4,2,1): a(f"v_max_u32_dpp v4, v4, v4 row_ror:{s_} {DPPM}")
    a("v_cmp_ne_u32 vcc, v4, v79\nv_readfirstlane_b32 s6, v4\nv_cndmask_b32 v79, 0, v79, vcc\nv_mov_b32 v4, v79")
    for s_ in (8,4,2,1): a(f"v_max_u32_dpp v4, v4, v4 row_ror:{s_} {DPPM}")
    a("v_cmp_ne_u32 vcc, v4, v79\nv_readfirstlane_b32 s7, v4\nv_cndmask_b32 v79, 0, v79, vcc")
def hsum(Y,hb,pk):
    for i in range(5):
        a(f"v_lshlrev_b32 v4, 16, v{Y[i]}\nv_and_b32 v5, 0xffff0000, v{Y[i]}\nv_pk_add_f32 v[{hb+2*i}:{hb+1+2*i}], v[{hb+2*i}:{hb+1+2*i}], v[4:5]\nv_cvt_pk_bf16_f32 v{pk+i}, v{hb+2*i}, v{hb+1+2*i}")
def hnorm(hb,nb,sr,mv):
    for i in range(5):
        a(f"v_pk_fma_f32 v[{nb+2*i}:{nb+1+2*i}], v[{hb+2*i}:{hb+1+2*i}], s[{sr}:{sr+1}], v[{mv}:{mv+1}] op_sel_hi:[1,0,0] neg_lo:[0,0,1] neg_hi:[0,0,1]")
def pubstat(base,sl,acc):
    a(f"s_lshl_b32 s26, s{sl}, 4\ns_add_u32 s26, s26, {base}\nv_lshl_add_u32 v4, v2, 2, s26\ns_mov_b64 exec, 0x10001\nglobal_store_dword v4, v{acc}, s[40:41] sc1\ns_mov_b64 exec, -1")
def publish(base,sl,pk,o0):
    a(f"s_mul_i32 s26, s{sl}, {XSS}\ns_add_u32 s26, s26, {base}\nv_add_u32 v4, s26, v{o0}\nv_add_u32 v5, s26, v{o0+1}\nv_add_u32 v6, s26, v{o0+2}")
    a(f"global_store_dwordx2 v4, v[{pk}:{pk+1}], s[40:41] sc1\nglobal_store_dwordx2 v5, v[{pk+2}:{pk+3}], s[40:41] sc1\nglobal_store_dword v6, v{pk+4}, s[40:41] sc1")
a("v_and_b32 v117, v115, v131\nv_and_b32 v118, v113, v132\ns_cmp_lg_u32 s55, 0\ns_cbranch_scc1 L_l3\ns_cmp_lt_i32 s54, 0\ns_cbranch_scc0 L_cand\nL_nc:")
tail.append("L_l3:\nv_cmp_eq_u32 vcc, -1, v71\ns_cbranch_vccnz L_nc\ns_mov_b32 s55, 0\nv_cmp_eq_u32_e64 s[24:25], s46, v71\nv_cmp_eq_u32_e64 s[26:27], s47, v71\ns_ff1_i32_b64 s52, s[24:25]\ns_ff1_i32_b64 s53, s[26:27]\ns_cmp_eq_u32 s50, 0\ns_cselect_b32 s53, -1, s53\ns_and_b32 s54, s52, s53\ns_cmp_lt_i32 s54, 0\ns_cbranch_scc1 L_nc\n"+HINT+"\ns_branch L_cand")
p3main()
a("s_cmp_lt_i32 s54, 0\ns_cbranch_scc0 L_cst\nL_nc1:")
a(f"s_waitcnt lgkmcnt(0)\ns_barrier\nds_read_b128 v[76:79], v137 offset:{L_ST3}\ns_waitcnt lgkmcnt(0)")
a("v_mul_f32 v76, s58, v76\nv_fma_f32 v77, v77, s58, v18\nv_fma_f32 v77, -v76, v76, v77\nv_max_f32 v77, v77, v18\nv_rsq_f32 v77, v77\nv_fma_f32 v78, -v76, v79, v78\nv_mul_f32 v78, v78, v77")
a("v_ashrrev_i32 v79, 31, v78\nv_or_b32 v79, 0x80000000, v79\nv_xor_b32 v79, v79, v78\nv_bfi_b32 v79, s59, v135, v79\nv_min_u32 v79, -2, v79")
a("s_cmp_lg_u32 s3, 0\ns_cbranch_scc1 L_nokey\ns_mov_b64 exec, 0xffff\nglobal_store_dword v136, v79, s[40:41] sc1\ns_mov_b64 exec, -1\nL_nokey:")
stamp(12)
a("v_mul_f32 v76, v76, v77\nv_readlane_b32 s8, v77, s48\nv_readlane_b32 s12, v77, s49\nv_readlane_b32 s10, v76, s48\nv_readlane_b32 s18, v76, s49")
a("v_readlane_b32 s20, v79, s48\nv_readlane_b32 s21, v79, s49\nv_readlane_b32 s22, v78, s48\nv_readlane_b32 s23, v78, s49")
a("s_cmp_eq_u32 s50, 0\ns_cselect_b32 s21, 0, s21\nv_mov_b32 v80, s10\nv_mov_b32 v82, s18")
a("s_cmp_eq_u32 s55, 0\ns_cbranch_scc1 L_nc2")
poll(["global_load_dword v71, v19, s[40:41] sc1"],[71],opt("sll",2),None)
a("v_cmp_eq_u32_e64 s[24:25], s46, v71\nv_cmp_eq_u32_e64 s[26:27], s47, v71\ns_ff1_i32_b64 s52, s[24:25]\ns_ff1_i32_b64 s53, s[26:27]\ns_cmp_eq_u32 s50, 0\ns_cselect_b32 s53, -1, s53\ns_and_b32 s54, s52, s53\ns_cmp_lt_i32 s54, 0\ns_cbranch_scc1 L_nc2\n"+HINT+"\ns_branch L_cand\nL_nc2:")
a("s_cmp_lt_i32 s52, 0\ns_cbranch_scc0 L_na")
hsum(YA,32,60)
a("L_na:\ns_cmp_lt_i32 s53, 0\ns_cbranch_scc0 L_nb2")
hsum(YB,42,66)
a("L_nb2:")
hnorm(32,8,8,80)
hnorm(42,20,12,82)
top2()
def cand():
    a("L_wm0:\ns_branch L_wm1\nL_cand:\ns_setprio 3")
    for R,(sl,Y,hb,pk,o0) in enumerate(((52,YA,32,60,138),(53,YB,42,66,141))):
        a(f"s_cmp_lt_i32 s{sl}, 0\ns_cbranch_scc1 L_cs{R}")
        hsum(Y,hb,pk)
        publish(HN,sl,pk,o0)
        a(f"L_cs{R}:")
    stamp(16)
    a("s_cmp_eq_u32 s55, 0\ns_cbranch_scc1 L_nc\nL_cst:")
    for R,(sl,acc) in enumerate(((52,A0),(53,B0))):
        a(f"s_cmp_lt_i32 s{sl}, 0\ns_cbranch_scc1 L_ct{R}")
        pubstat(STAT,sl,acc)
        a(f"L_ct{R}:")
    a("s_setprio 0\ns_cmp_eq_u32 s55, 0\ns_cbranch_scc1 L_nc1\ns_branch L_nc2\nL_wm1:\ns_branch L_b1")
def outprep1():
    for R,(hb,nb,ob) in enumerate(((32,8,88),(42,20,94))):
        for i in range(5):
            a(f"v_pk_add_f32 v[4:5], v[{hb+2*i}:{hb+1+2*i}], v[{nb+2*i}:{nb+1+2*i}]\nv_cvt_pk_bf16_f32 v{ob+i}, v4, v5")
    a(f"ds_write_b64 v125, v[88:89]\nds_write_b64 v125, v[90:91] offset:{8*U}\nds_write_b32 v126, v92 offset:{16*U}\ns_cmp_eq_u32 s50, 0\ns_cbranch_scc1 L_nob")
    a(f"ds_write_b64 v125, v[94:95] offset:{RS+10*U}\nds_write_b64 v127, v[96:97] offset:{RS}\nds_write_b32 v126, v98 offset:{RS+6*U}\nL_nob:")
def outprep2():
    for i in range(10):
        t=4+2*(i&1)
        a(f"v_add_u32_sdwa v{t}, v{144+i}, v156 {SD.format(0)}\nv_add_u32_sdwa v{t+1}, v{144+i}, v156 {SD.format(1)}")
        a(f"ds_read_u16 v{8+i}, v{t}\nds_read_u16 v{20+i}, v{t+1}")
    a("v_cmp_lt_u32 vcc, 7, v3\nv_mov_b32 v4, s46\nv_mov_b32 v5, s47\nv_cndmask_b32 v52, v4, v5, vcc\nv_mov_b32 v4, s22\nv_mov_b32 v5, s23\nv_cndmask_b32 v53, v4, v5, vcc\nv_mov_b32 v4, s52\nv_mov_b32 v5, s53\nv_cndmask_b32 v54, v4, v5, vcc")
    a("v_mul_f32 v53, 0xbfb8aa3b, v53\nv_exp_f32 v53, v53\nv_and_b32 v54, 255, v54\nv_add_f32 v53, 1.0, v53\nv_rcp_f32 v53, v53\nv_mov_b32 v55, 0\ns_waitcnt lgkmcnt(0)")
    for i in range(10): a(f"v_lshl_or_b32 v{8+i}, v{20+i}, 16, v{8+i}")
OP=opt("op",1)
if OP>=1: outprep1()
if OP>=2: outprep2()
stamp(13)
if opt("pre3",0): a(f"s_sleep {opt('pre3',0)}")
poll(["global_load_dwordx4 v[72:75], v154, s[40:41] sc1"],range(72,76),opt("sl3",2),4,between=lambda: (outprep1() if OP<1 else None, outprep2() if OP<2 else None))
stamp(14)
a("L_round:")
SP=[24,26,28,30,8,10,16,58]
for i in range(4): a(f"v_cmp_gt_u32_e64 s[{SP[i]}:{SP[i]+1}], v{72+i}, s6")
for i in range(4): a(f"v_cmp_gt_u32_e64 s[{SP[4+i]}:{SP[4+i]+1}], v{72+i}, s7")
for i in range(8): a(f"s_bcnt1_i32_b64 s{SP[i]}, s[{SP[i]}:{SP[i]+1}]")
a("s_add_u32 s24, s24, s26\ns_add_u32 s28, s28, s30\ns_add_u32 s8, s8, s10\ns_add_u32 s16, s16, s58\ns_add_u32 s24, s24, s28\ns_add_u32 s8, s8, s16\ns_lshl_b32 s8, s8, 16\ns_add_u32 s24, s24, s8")
a("v_mov_b32 v4, s24\ns_mov_b64 exec, s[56:57]\nds_add_u32 v119, v4\ns_mov_b64 exec, -1\ns_waitcnt lgkmcnt(0)\ns_barrier\nds_read_b32 v4, v119\ns_waitcnt lgkmcnt(0)")
a("v_readfirstlane_b32 s24, v4\ns_and_b32 s25, s24, 0xffff\ns_lshr_b32 s24, s24, 16\ns_cmp_ge_u32 s25, 8\ns_cbranch_scc1 L_rdone")
for sk,srk in ((20,44),(21,45)):
    a(f"s_cmp_eq_u32 s{sk}, s7\ns_cselect_b32 s{srk}, s24, s{srk}\ns_cmp_eq_u32 s{sk}, s6\ns_cselect_b32 s{srk}, s25, s{srk}")
a("s_cmp_ge_u32 s24, 7\ns_cbranch_scc1 L_rdone\ns_cmp_ge_u32 s61, 3\ns_cbranch_scc1 L_rdone\ns_add_u32 s61, s61, 1\nv_add_u32 v119, 4, v119")
top2()
a("s_branch L_round\nL_rdone:")
stamp(15)
a("s_mov_b32 s24, 0x00ff00ff\ns_cmp_lt_u32 s44, 8\ns_cselect_b32 s30, 0, s24\ns_cselect_b32 s28, s24, 0\ns_not_b32 s24, s24\ns_cmp_lt_u32 s45, 8\ns_cselect_b32 s31, 0, s24\ns_cselect_b32 s29, s24, 0")
a("s_cmp_eq_u32 s50, 0\ns_cselect_b32 s31, 0, s31\ns_or_b32 s30, s30, s31\ns_mov_b32 s31, s30\ns_or_b32 s28, s28, s29\ns_cbranch_scc0 L_nosel\ns_mov_b32 s29, s28")
a(f"v_cmp_lt_u32 vcc, 7, v3\nv_mov_b32 v4, s44\nv_mov_b32 v5, s45\nv_cndmask_b32 v20, v4, v5, vcc\nv_and_b32 v20, 7, v20\nv_lshlrev_b32 v22, 7, v20\nv_add_u32 v22, {META}, v22")
MC=opt("mc",1)
if MC: a(f"v_and_b32 v4, 1, v0\nv_mul_u32_u24 v4, {META2-META}, v4\nv_add_u32 v22, v22, v4")
a(f"s_and_b32 exec_lo, s28, {'0x0303' if MC else '0x0101'}\ns_mov_b32 exec_hi, 0\nglobal_store_dwordx4 v22, v[52:55], s[40:41] sc1\ns_mov_b64 exec, s[28:29]")
a(f"v_mul_u32_u24 v21, 1280, v20\nv_add_u32 v21, {BASE}, v21\nv_lshl_add_u32 v21, v2, 6, v21\nv_and_b32 v4, 7, v0\nv_lshl_add_u32 v21, v4, 3, v21")
for i in range(5): a(f"global_store_dwordx2 v21, v[{8+2*i}:{9+2*i}], s[40:41] offset:{256*i} sc1")
a("s_mov_b64 exec, -1\ns_cmp_ge_u32 s44, 8\ns_cbranch_scc1 L_ns0")
publish(HN8,44,60,138)
pubstat(STAT8,44,A0)
a("L_ns0:\ns_cmp_ge_u32 s45, 8\ns_cbranch_scc1 L_nosel")
publish(HN8,45,66,141)
pubstat(STAT8,45,B0)
a("L_nosel:")
a("s_cmp_eq_u32 s30, 0\ns_cbranch_scc1 L_noout\ns_mov_b64 exec, s[30:31]")
for i in range(5): a(f"global_store_dwordx2 v158, v[{8+2*i}:{9+2*i}], s[36:37] offset:{256*i} {OUTF}")
a("s_mov_b64 exec, -1\nL_noout:")
a("s_or_b32 s24, s2, s3\ns_cbranch_scc1 L_fin")
a("s_load_dword s16, s[40:41], 0\nv_mov_b32 v4, 0\ns_waitcnt lgkmcnt(0)\ns_add_u32 s16, s16, 1\nv_mov_b32 v5, s16\ns_mov_b64 exec, 1\nglobal_store_dword v4, v5, s[40:41]\ns_mov_b64 exec, -1\ns_branch L_fin")
cand()
flush_tail()
a("L_a8b:\nv_mov_b32 v112, 0\nv_mov_b32 v113, 0\nv_mov_b32 v121, 0\ns_waitcnt lgkmcnt(0)\nglobal_load_ushort v87, v87, s[28:29]\ns_cmp_eq_u32 s3, 8\ns_cbranch_scc1 "+("L_wm0" if opt("wm",1) else "L_b1"))
a(f"v_cvt_f32_u32 v20, s2\nv_mul_f32 v20, {fhex(1/256)}, v20\nv_cos_f32 v21, v20\nv_sin_f32 v22, v20\nv_and_b32 v6, 7, v0\nv_and_b32 v23, 8, v0\nv_cmp_eq_u32 vcc, 0, v6")
a("v_cndmask_b32 v21, 1.0, v21, vcc\nv_cndmask_b32 v22, 0, v22, vcc\nv_lshlrev_b32 v24, 28, v23\ns_cmp_eq_u32 s2, 0\ns_cselect_b64 s[8:9], vcc, 0\nv_cndmask_b32_e64 v24, v24, 0, s[8:9]\nv_xor_b32 v21, v21, v24")
a("v_sub_u32 v24, 8, v6\nv_and_b32 v24, 7, v24\nv_add3_u32 v24, v24, v23, 16\nv_sub_u32 v25, 24, v23\nv_cmp_eq_u32 vcc, 1, v2\nv_cndmask_b32 v112, v3, v24, vcc\nv_cndmask_b32 v113, 1.0, v21, vcc")
a(f"v_cmp_eq_u32 vcc, 2, v2\nv_cndmask_b32 v112, v112, v25, vcc\nv_cndmask_b32 v113, v113, v22, vcc\nv_cmp_eq_u32 vcc, 3, v2\nv_cndmask_b32_e64 v113, v113, 0, vcc\nv_lshlrev_b32 v112, 2, v112\ns_lshl_b32 s8, s2, 7\ns_add_u32 s8, s8, {EXT}\nv_lshl_add_u32 v120, v3, 1, s8")
stamp(2)
a("s_branch L_b1")
a("L_a10:\ns_setprio 2")
a("v_lshrrev_b32 v20, 2, v3\nv_and_b32 v21, 3, v0\nv_mad_u32_u24 v20, v20, 5, v21\nv_cvt_f32_u32 v28, v2")
for tile in range(2):
    if tile: a("v_add_u32 v20, 3, v20")
    a("v_lshrrev_b32 v22, 1, v20\nv_and_b32 v24, 1, v20")
    if tile==0:
        a("v_cmp_eq_u32 vcc, 1, v20\nv_cndmask_b32_e64 v22, v22, 10, vcc\nv_cndmask_b32_e64 v24, v24, 0, vcc\nv_cmp_eq_u32 vcc, 3, v21\nv_cndmask_b32_e64 v22, v22, 0, vcc\nv_cndmask_b32_e64 v24, v24, 0, vcc")
    a(f"v_cvt_f32_u32 v22, v22\nv_cvt_f32_u32 v24, v24\nv_mul_f32 v22, {fhex(0.05)}, v22\nv_mul_f32 v24, {fhex(0.25)}, v24\nv_fmac_f32 v24, v28, v22\nv_mul_f32 v22, 4.0, v22")
    for i in range(5):
        a(f"v_cos_f32 v{29+i}, v24")
        if i<4: a("v_add_f32 v24, v24, v22")
    a(f"v_cvt_pk_bf16_f32 v{36+4*tile}, v29, v30\nv_cvt_pk_bf16_f32 v{37+4*tile}, v31, v32\nv_cvt_pk_bf16_f32 v{38+4*tile}, v33, 0\nv_mov_b32 v{39+4*tile}, 0")
a(f"ds_write_b128 v157, v[36:39] offset:{L_R20}\nds_write_b128 v157, v[40:43] offset:{L_R20+1024}\ns_waitcnt lgkmcnt(0)\ns_barrier")
a("s_setprio 1\ns_lshl_b32 s7, s2, 7\ns_waitcnt lgkmcnt(0)\ns_load_dword s6, s[40:41], 0")
LATE10=f"s_movk_i32 m0, {L_PM}\nglobal_load_lds_dwordx4 v157, s[42:43]\nglobal_load_lds_dwordx4 v157, s[42:43] offset:1024"
a(f"s_add_u32 s7, s7, {WS_FA-0x4000}\nv_mov_b32 v17, s7\nv_add_u32 v18, {WS_F3-WS_FA+0x4000}, v17\ns_sub_u32 s7, 256, s2\ns_cmp_eq_u32 s2, 0\ns_cselect_b32 s7, 128, s7")
a("v_lshrrev_b32 v20, 1, v3\nv_and_b32 v21, 1, v0\nv_lshrrev_b32 v22, 1, v2\nv_and_b32 v23, 1, v2")
a("v_mov_b32 v24, s7\nv_mov_b32 v25, s2\nv_cmp_eq_u32 vcc, 1, v22\nv_cndmask_b32 v24, v25, v24, vcc\nv_lshl_add_u32 v24, v23, 10, v24")
a("v_subrev_u32 v25, 4, v20\nv_mul_i32_i24 v24, v24, v25\nv_lshl_add_u32 v24, v21, 9, v24")
a("v_cmp_gt_u32 vcc, v22, v21\ns_cmp_lg_u32 s2, 0\ns_cselect_b32 s49, 1024, 0\nv_mov_b32 v25, s49\nv_cndmask_b32 v25, 0, v25, vcc\nv_add_u32 v24, v24, v25\nv_and_b32 v24, 2047, v24")
a(f"v_cvt_f32_u32 v24, v24\nv_cvt_f32_u32 v25, v20\nv_mul_f32 v24, {fhex(1/2048)}, v24\nv_mul_f32 v25, {fhex(0.125)}, v25")
a("v_cmp_eq_u32 vcc, v22, v21\ns_cselect_b64 s[52:53], -1, 0\ns_or_b64 vcc, vcc, s[52:53]")
for i in range(4):
    a(f"v_cos_f32 v{60+i}, v24\nv_sin_f32 v{64+i}, v24")
    if i<3: a("v_add_f32 v24, v24, v25")
for i in range(8): a(f"v_cndmask_b32 v{60+i}, 0, v{60+i}, vcc")
a(f"s_mov_b32 s60, {fhex(1/640)}\ns_mov_b32 s61, {fhex(1/640)}\nv_mov_b32 v86, {fhex(1e-5)}\nv_and_b32 v165, 3, v0\nv_lshl_add_u32 v165, v2, 2, v165\nv_lshlrev_b32 v166, 4, v165\nv_lshlrev_b32 v165, 2, v165")
a(LATE10)
a("s_waitcnt lgkmcnt(0)\ns_add_u32 s6, s6, 1")
NH1=opt("nh1",8); H1POS=opt("h1pos",1); H10=128-NH1
a(f"s_sub_u32 s8, s2, {H10-8}\ns_and_b32 s8, s8, 31\ns_lshl_b32 s8, s8, 7\ns_add_u32 s8, s8, {WS_GO}\nv_lshrrev_b32 v5, 3, v1\nv_lshl_add_u32 v5, v5, 12, s8\nv_lshl_add_u32 v16, v6, 4, v5\nv_mov_b32 v8, s6\nv_mov_b32 v9, s6\nv_mov_b32 v10, s6\nv_mov_b32 v11, s6")
def h1(): a(f"s_cmp_lt_u32 s2, {H10}\ns_cbranch_scc1 L_h1\nglobal_store_dwordx4 v16, v[8:11], s[40:41] sc1\nL_h1:")
a(f"v_mov_b32 v12, -1\nv_mov_b32 v13, -1\nv_mov_b32 v14, -1\nv_mov_b32 v15, -1\nds_write_b128 v157, v[12:15] offset:{L_SM}\ns_waitcnt vmcnt(0)\nglobal_load_dword v21, v17, s[40:41] sc1")
stamp(2)
a("s_setprio 3\ns_waitcnt lgkmcnt(0)\ns_barrier")
stamp(4)
a(f"ds_read_b128 v[36:39], v166 offset:{L_SQ4}\nds_read_b32 v40, v165 offset:{L_SUM}")
def smat():
    if H1POS==0: h1()
    stamp(8)
    a("s_waitcnt lgkmcnt(0)")
    stamp(9)
    a("v_add_f32 v36, v36, v37\nv_add_f32 v38, v38, v39\nv_mul_f32 v40, s60, v40\nv_add_f32 v36, v36, v38\nv_fma_f32 v40, -v40, v40, v86\nv_fmac_f32 v40, s60, v36\nv_max_f32 v40, v40, v86\nv_rsq_f32 v40, v40")
    for h in range(4):
        for e_ in range(2):
            jj=2*h+e_; k=jj&3
            a(f"v_mul_f32_dpp v{60+jj}, v40, v{60+jj} quad_perm:[{k},{k},{k},{k}] {DPPM}")
        a(f"v_cvt_pk_bf16_f32 v{32+h}, v{60+2*h}, v{61+2*h}")
    stamp(10)
    if H1POS==0: a(f"s_waitcnt vmcnt(2)\ns_cmp_ge_u32 s2, {H10}\ns_cbranch_scc1 L_h1b\ns_waitcnt vmcnt(1)\nL_h1b:")
    else: a("s_waitcnt vmcnt(1)")
    stamp(11)
    a(f"v_cmp_ne_u32 vcc, s6, v21\ns_cbranch_vccz LD{pc[0]-1}")
poll(["global_load_dword v20, v18, s[40:41] sc1"],None,opt("slf",1),None,chk="v_cmp_ne_u32 vcc, s6, v20",between=smat)
a(f"ds_write_b128 v157, v[32:35] offset:{L_SM}")
stamp(5)
if opt("h1d",0): a(f"s_sleep {opt('h1d',0)}")
if H1POS==1 and NH1: h1()
a("s_barrier\ns_setprio 0")
if H1POS==2 and NH1: h1()
NGO=opt("ngo",8); NH4=opt("nh4",8)
def gowait(n=8,off=0):
    a(f"s_and_b32 s7, s2, 7\ns_lshl_b32 s7, s7, 12\ns_add_u32 s7, s7, {WS_GO}\nv_lshl_add_u32 v4, v1, 7, s7\ns_mov_b64 exec, {hex((1<<n)-1)}")
    poll([f"global_load_dword v20, v4, s[40:41] offset:{off} sc1"],None,opt("slf",1),None,chk="v_cmp_ne_u32 vcc, s6, v20")
a("L_flagchk:")
gowait(8+NH1)
stamp(6)
a("s_mov_b64 exec, 0xff")
poll(["global_load_dword v20, v4, s[40:41] offset:3072 sc1"],None,opt("slf",1),None,chk="v_cmp_ne_u32 vcc, s6, v20",between=lambda: a("s_barrier"))
stamp(7)
a("s_barrier\ns_branch L_fin")
a(f"L_agg:\ns_and_b32 s7, s4, 7\ns_lshl_b32 s7, s7, 7\ns_cmp_lt_u32 s4, 8\ns_cselect_b32 s8, 0x4000, 0\ns_cselect_b32 s9, 0, 3072\ns_add_u32 s8, s8, s7\ns_add_u32 s8, s8, {WS_FA}\nv_lshl_add_u32 v4, v1, 10, s8\ns_add_u32 s8, s7, s9\ns_add_u32 s8, s8, {WS_GO}\nv_lshrrev_b32 v5, 3, v1\nv_lshl_add_u32 v5, v5, 12, s8\nv_lshl_add_u32 v5, v6, 4, v5\ns_mov_b64 exec, 0xffff")
poll(["global_load_dword v20, v4, s[40:41] sc1"],None,opt("sla",1),None,chk="v_cmp_ne_u32 vcc, s6, v20")
stamp(5)
if opt("gdel",0): a(f"s_sleep {opt('gdel',0)}")
a("global_store_dwordx4 v5, v[8:11], s[40:41] sc1\ns_branch L_flagchk")
L_FT=L_XS+21504
a(f"L_fw:\ns_cmp_ge_u32 s14, 216\ns_cbranch_scc1 L_fw1\ns_mov_b32 m0, {L_FT}")
for o in range(1,3): a(f"global_load_lds_dwordx4 v157, s[42:43] offset:{1024*o}")
a("L_fw1:\ns_waitcnt vmcnt(0)\ns_barrier")
gowait(8,3072)
a(f"s_and_b32 s9, s2, 7\ns_lshl_b32 s9, s9, 11\ns_add_u32 s9, s9, {H3}\ns_cmp_ge_u32 s14, 216\ns_cselect_b32 s7, {NH4-1}, {NH3-1}\ns_cselect_b32 s8, {H4}, s9\nv_min_u32 v4, s7, v1\nv_lshl_add_u32 v4, v4, 7, s8")
poll(["global_load_dword v20, v4, s[40:41] sc1"],[20],opt("slh",1),None)
stamp(14)
a(f"s_barrier\ns_cmp_ge_u32 s14, 216\ns_cbranch_scc1 L_fin\nv_lshlrev_b32 v4, 7, v6\nv_add_u32 v4, {(META2 if MC else META)+8}, v4\nv_mov_b32 v5, {L_VD}\ns_barrier")
a(f"v_min_u32 v7, {NH4-1}, v1\nv_lshlrev_b32 v7, 7, v7\nv_add_u32 v7, {H4}, v7")
poll(["global_load_dword v20, v7, s[40:41] sc1"],[20],opt("slh",1),None)
if opt("vdel",0): a(f"s_sleep {opt('vdel',0)}")
poll(["global_load_dword v20, v4, s[40:41] sc1"],[20],opt("slm",2),None)
a("v_cmp_lt_u32 vcc, 15, v20\nv_mov_b32 v6, vcc_lo\nds_write_b32 v5, v6\ns_waitcnt lgkmcnt(0)")
stamp(13)
a("s_barrier\ns_branch L_fin")
a("L_bf3:\ns_cmp_ge_u32 s2, 160\ns_cbranch_scc1 L_f\nv_mov_b32 v158, 0")
p2addr()
a("s_branch L_b2")
a("L_f:\ns_cmp_eq_u32 s14, 214\ns_cbranch_scc1 L_fin\ns_cmp_lg_u32 s14, 215\ns_cbranch_scc1 L_fx")
S_GM=8192; S_X=8448; S_C=8704
KTH=opt("kth",12)
a("L_sel:\ns_cmp_ge_u32 s3, 4\ns_cbranch_scc1 L_fin")
if not opt("gt2",0): gentab("s_add_u32 s56, s3, 8",88)
gentab("s_mov_b32 s56, s3",56)
a(f"v_lshrrev_b32 v4, 1, v0\nv_and_b32 v5, 1, v0\nv_lshlrev_b32 v120, 7, v4\nv_lshl_add_u32 v120, v5, 4, v120\nv_add_u32 v120, {EXT}, v120\nv_lshlrev_b32 v121, 4, v0")
a("v_lshrrev_b32 v4, 2, v3\nv_lshl_add_u32 v4, v2, 3, v4\nv_lshlrev_b32 v122, 5, v4\nv_and_b32 v5, 1, v0\nv_lshl_add_u32 v122, v5, 3, v122")
a("s_lshl_b32 s56, s3, 6\nv_lshl_add_u32 v4, v6, 3, s56\nv_and_b32 v5, 8, v0\nv_lshl_add_u32 v4, v5, 5, v4\nv_sub_u32 v5, 2040, v4\nv_cmp_lt_u32 vcc, 31, v1\nv_bfe_u32 v7, v0, 4, 1\nv_cndmask_b32 v124, v4, v5, vcc\nv_lshl_add_u32 v124, v7, 2, v124")
a("v_cndmask_b32_e64 v123, -1.0, 1.0, vcc\ns_mov_b64 s[26:27], vcc\nv_xor_b32 v128, 512, v124")
for i_ in range(1,4): a(f"v_add_u32 v{124+i_}, {i_}, v124\nv_add_u32 v{128+i_}, {i_}, v128")
a(f"v_and_b32 v132, 0xf0, v0\ns_lshl_b32 s56, s3, 6\nv_lshl_add_u32 v133, v3, 2, s56\nv_lshlrev_b32 v134, 6, v2\nv_and_b32 v136, 3, v0\nv_lshlrev_b32 v136, 4, v136\nv_lshrrev_b32 v135, 2, v1\nv_lshl_add_u32 v135, v135, 7, v136\nv_add_u32 v135, {LIST}, v135\ns_movk_i32 s59, 0x7ff\nv_bfrev_b32 v140, 1")
gowait(8+NH1)
stamp(7)
if opt("gt2",0): gentab("s_add_u32 s56, s3, 8",88)
if opt("pres",0): a(f"s_sleep {opt('pres',0)}")
poll(["global_load_dwordx4 v[8:11], v120, s[40:41] sc1"],range(8,12),opt("sls",1),16)
stamp(8)
a("ds_write_b128 v121, v[8:11]\nv_lshl_add_u32 v4, v6, 7, s7\nglobal_load_dword v142, v4, s[40:41] offset:3072 sc1\ns_waitcnt lgkmcnt(0)\ns_barrier")
for k in range(4):
    for c in range(2): a(f"ds_read_b64_tr_b16 v[{8+8*k+4*c}:{9+8*k+4*c}], v122 offset:{1024*k+16*c}\nds_read_b64_tr_b16 v[{10+8*k+4*c}:{11+8*k+4*c}], v122 offset:{1024*k+16*c+128}")
def fin(t_,r):
    b=144+8*t_
    a(f"v_fmac_f32 v{b+r}, v{b+4+r}, v123")
    if opt("forcemiss",0): a(f"v_xor_b32 v{b+r}, 0x80000000, v{b+r}")
    a(f"v_bfi_b32 v{40+4*t_+r}, s59, v{124+4*t_+r}, v{b+r}")
for t_ in range(2):
    for k in range(4):
        for c in range(2):
            if t_==0: a(f"s_waitcnt lgkmcnt({14-4*k-2*c})")
            a(f"{MF} {vr(144+8*t_+4*c)}, {vr(8+8*k+4*c)}, {vr(56+32*t_+16*c+4*k)}, {'0' if k==0 else vr(144+8*t_+4*c)}")
for r in range(4): fin(0,r)
for r in range(4): fin(1,r)
a("v_max3_i32 v8, v40, v41, v42\nv_med3_i32 v9, v40, v41, v42\nv_max3_i32 v10, v43, v44, v45\nv_med3_i32 v11, v43, v44, v45\nv_max_i32 v12, v46, v47\nv_min_i32 v13, v46, v47")
a("v_max3_i32 v48, v8, v10, v12\nv_med3_i32 v49, v8, v10, v12\nv_max3_i32 v9, v9, v11, v13\nv_max_i32 v49, v49, v9")
for ps in range(2):
    d1,d2=52+2*ps,53+2*ps
    for st,s_ in enumerate((8,4,2,1)):
        a1,a2=(48,49) if st==0 else ((10,11) if st&1 else (d1,d2))
        o1,o2=(d1,d2) if st&1 else (10,11)
        a(f"v_mov_b32_dpp v8, v{a1} row_ror:{s_} {DPPM}\nv_max_i32_dpp v9, v{a2}, v{a2} row_ror:{s_} {DPPM}\nv_max_i32 v{o1}, v{a1}, v8\nv_med3_i32 v{o2}, v{a1}, v8, v9")
    if ps==0: a("v_cmp_le_i32 vcc, v53, v48\nv_cmp_le_i32_e64 s[16:17], v53, v49\nv_cndmask_b32 v48, v48, v49, vcc\nv_cndmask_b32 v49, v49, v140, vcc\nv_cndmask_b32_e64 v48, v48, v140, s[16:17]")
a(f"ds_write_b128 v132, v[52:55] offset:{S_GM}\ns_waitcnt lgkmcnt(0)\ns_barrier")
stamp(9)
a(f"ds_read_b32 v32, v133 offset:{S_GM}")
for q in range(4): a(f"ds_read_b128 {vr(8+4*q)}, v134 offset:{S_GM+16*q}")
a("v_mov_b32 v33, 0\nv_mov_b32 v34, 0")
for q in range(4):
    lg(3-q)
    for e_ in range(4): a(f"v_cmp_gt_i32_e64 s[{16+2*e_}:{17+2*e_}], v{8+4*q+e_}, v32")
    for e_ in range(4): a(f"v_addc_co_u32_e64 v{33+(e_&1)}, s[24:25], 0, v{33+(e_&1)}, s[{16+2*e_}:{17+2*e_}]")
a("v_add_u32 v33, v33, v34\nv_mov_b32 v34, v33\nv_and_b32 v32, 0x7ff, v32\nv_permlane32_swap_b32 v33, v34\nv_add_u32 v33, v33, v34\nv_mov_b32 v34, v33\nv_permlane16_swap_b32 v33, v34\nv_add_u32 v33, v33, v34")
a(f"v_lshlrev_b32 v33, 2, v33\nds_write_b32 v33, v32 offset:{S_X}\ns_waitcnt lgkmcnt(0)\ns_barrier\ns_cmp_lg_u32 s3, 0\ns_cbranch_scc1 L_fin\nds_read_b128 v[8:11], v136 offset:{S_X}\ns_waitcnt vmcnt(0)\nv_cmp_ne_u32 vcc, s6, v142\ns_cbranch_vccz L_sg")
gowait(8,3072)
a("L_sg:\ns_waitcnt lgkmcnt(0)\nglobal_store_dwordx4 v135, v[8:11], s[40:41] sc1")
stamp(10)
a("s_branch L_fin")
a("L_fx:")
if opt("fdel",0): a(f"s_sleep {opt('fdel',2)}")
a("s_branch L_f2" if EK else "s_cmp_ge_u32 s14, 216\ns_cbranch_scc1 L_f2")
a("L_f1:\ns_setprio 0\ns_sub_u32 s49, s14, 160\ns_and_b32 s50, s49, 7\ns_lshr_b32 s56, s49, 4\ns_lshl3_add_u32 s50, s56, s50\ns_lshl1_add_u32 s50, s50, s5\ns_cmp_ge_u32 s49, 48\ns_cselect_b32 s50, s49, s50")
a(f"s_mul_i32 s56, s3, 80\ns_lshl_b32 s57, s50, 6\nv_lshrrev_b32 v4, 2, v1\nv_mul_u32_u24 v6, 80, v4\nv_add_u32 v4, s56, v4\nv_and_b32 v5, 3, v0\nv_lshl_add_u32 v7, v5, 4, s57\ns_movk_i32 s56, 3456")
for i_ in range(5): a(f"v_add_u32 v5, {16*i_}, v4\nv_lshrrev_b32 v13, 5, v5\nv_and_b32 v5, 31, v5\nv_mad_u32_u24 v5, v5, 20, v13\nv_mad_u32_u24 v{8+i_}, v5, s56, v7")
a(f"s_mul_i32 s58, s3, 5120\ns_add_u32 s59, s58, {UPO}\ns_bitcmp1_b32 s50, 0\ns_cselect_b64 s[8:9], s[32:33], s[30:31]\ns_cselect_b64 s[10:11], s[30:31], s[32:33]\ns_cselect_b32 s60, s59, s58\ns_cselect_b32 s61, s58, s59")
for h in range(2):
    for i_ in range(5):
        a(f"s_add_u32 m0, s{60+h}, {1024*i_}\nglobal_load_lds_dwordx4 v{8+i_}, s[{8+2*h}:{9+2*h}]")
        if EK and 5*h+i_+1==EK:
            a(f"s_waitcnt vmcnt({EK})\ns_barrier\ns_barrier")
            if opt("fdel",0): a(f"s_sleep {opt('fdel',2)}")
a(f"v_add_u32 v89, {L_FT+TO_W}, v6\nv_lshlrev_b32 v161, 4, v3\nv_add_u32 v161, {STAT}, v161\ns_mov_b32 s22, {fhex(1/640)}\nv_mov_b32 v158, {fhex(1e-5)}")
a(f"v_add_u32 v160, {HN}, v157\ns_mul_i32 s16, s3, 3072\nv_add_u32 v162, s16, v160\ns_add_u32 s17, s16, {L_XS}\ns_mov_b64 s[20:21], 0xffff")
a(f"v_mul_u32_u24 v165, {XSS}, v3\nv_lshl_add_u32 v165, v2, 4, v165\nv_add_u32 v165, {L_XS}, v165")
a(f"s_lshl2_add_u32 s16, s50, s3\ns_lshl_b32 s16, s16, 7\ns_add_u32 s16, s16, {ACT}\nv_and_b32 v164, 7, v0\nv_lshl_add_u32 v164, v164, 4, s16\nv_lshrrev_b32 v166, 3, v3\nv_mul_u32_u24 v166, 27648, v166\nv_add_u32 v164, v164, v166\nv_and_b32 v166, 1, v2\nv_lshl_add_u32 v164, v166, 3, v164\nv_lshrrev_b32 v166, 1, v2\nv_lshl_add_u32 v164, v166, 2, v164")
a(f"s_lshl_b32 s16, s49, 7\ns_add_u32 s16, s16, {H4}\nv_mov_b32 v167, s16\nv_mov_b32 v159, {L_VD}\ns_mov_b32 s62, 0")
a(f"v_and_b32 v4, 1, v0\nv_lshlrev_b32 v4, 3, v4\nv_bfe_u32 v5, v0, 1, 1\nv_mul_u32_u24 v5, {UPO}, v5\ns_lshl_b32 s56, s3, 4\nv_add3_u32 v7, v4, v5, s56")
stamp(3)
a("s_waitcnt vmcnt(0)\ns_barrier")
stamp(4)
a("s_cmp_ge_u32 s3, 4\ns_cbranch_scc1 L_f1w")
for i_ in range(5): a(f"ds_read_b128 {vr(104+4*i_)}, v89 offset:{16*i_}")
a("s_waitcnt lgkmcnt(0)")
for k in range(20):
    a(f"v_add_u32_sdwa v4, v{104+k}, v7 {SD.format(0)}\nv_add_u32_sdwa v5, v{104+k}, v7 {SD.format(1)}")
    a(f"ds_read_b64_tr_b16 v[{8+4*k}:{9+4*k}], v4\nds_read_b64_tr_b16 v[{10+4*k}:{11+4*k}], v5")
a("s_waitcnt lgkmcnt(0)")
a("L_f1w:")
stamp(5)
a("s_barrier")
stamp(14)
if opt("pre4",0): a(f"s_sleep {opt('pre4',0)}")
H4E=opt("h4e",1)
a(f"L_f1p:\ns_cmp_eq_u32 s3, 7\ns_cbranch_scc1 {'L_f1h' if H4E else 'L_f1q'}\ns_mov_b32 m0, s17")
if H4E: tail.append(f"L_f1h:\ns_cmp_ge_u32 s49, {NH4}\ns_cbranch_scc1 L_f1q\ns_mov_b64 exec, 1\nglobal_load_dword v150, v161, s[40:41] sc1\ns_waitcnt vmcnt(0)\nglobal_store_dword v167, v167, s[40:41] sc1\ns_mov_b64 exec, -1\ns_branch L_f1q")
for o in range(3): a(f"global_load_lds_dwordx4 v162, s[40:41] offset:{1024*o} sc1")
a("s_cmp_ge_u32 s3, 4\ns_cbranch_scc1 L_f1r\nglobal_load_dwordx2 v[150:151], v161, s[40:41] sc1")
for i_ in range(4): a(f"v_mov_b32 v{88+i_}, 0x3f803f80")
for k in range(20): a(f"{MF} v[152:155], {vr(8+4*k)}, v[88:91], {'0' if k==0 else 'v[152:155]'}")
a("L_f1r:\ns_waitcnt vmcnt(0)\nL_f1q:")
stamp(15)
a(f"s_barrier\ns_cmp_lt_u32 s3, 4\ns_cbranch_scc1 L_p4\ns_cmp_lg_u32 s3, 7\ns_cbranch_scc1 L_p4e\ns_cmp_ge_u32 s49, {NH4}\ns_cbranch_scc1 L_p4e")
if not H4E: store1(167,167)
a("s_branch L_p4e\nL_p4:")
NR=12
for i_ in range(4): a(f"ds_read_b128 {vr(92+4*i_)}, v165 offset:{64*i_}")
a("v_cmp_u_f32 vcc, v150, v151\nv_mul_f32 v88, s22, v150")
for i_ in range(4,NR): a(f"ds_read_b128 {vr(92+4*i_)}, v165 offset:{64*i_}")
SC=["v_fma_f32 v90, v151, s22, v158","v_fma_f32 v91, -v88, v88, v90","v_max_f32 v91, v91, v158","v_rsq_f32 v89, v91","v_rcp_f32 v91, v91","v_mul_f32 v89, 0xbfb8aa3b, v89"]
for i_ in range(20):
    issued=min(20,NR+max(0,i_-1))
    a(f"s_waitcnt lgkmcnt({issued-i_-1})\n{MF} v[144:147], {vr(8+4*i_)}, {vr(92+4*(i_%(NR+1)))}, {'0' if i_==0 else 'v[144:147]'}")
    if i_>=1 and NR+i_-1<20: a(f"ds_read_b128 {vr(92+4*((NR+i_-1)%(NR+1)))}, v165 offset:{64*(NR+i_-1)}")
    if 10<=i_<10+len(SC): a(SC[i_-10])
a("s_cbranch_vccnz L_st\nL_std:\nv_pk_fma_f32 v[144:145], v[152:153], v[88:89], v[144:145] op_sel_hi:[1,0,1] neg_lo:[1,0,0] neg_hi:[1,0,0]\nv_pk_fma_f32 v[146:147], v[154:155], v[88:89], v[146:147] op_sel_hi:[1,0,1] neg_lo:[1,0,0] neg_hi:[1,0,0]")
tail.append(f"L_st:\nglobal_load_dwordx2 v[150:151], v161, s[40:41] sc1\ns_add_u32 s15, s15, 1\ns_cmp_lt_u32 s15, {LIMIT}\ns_waitcnt vmcnt(0)\nv_cmp_u_f32 vcc, v150, v151\ns_cbranch_scc0 L_su\ns_cbranch_vccnz L_st\nL_su:\nv_mul_f32 v88, s22, v150\n"+"\n".join(SC)+"\ns_branch L_std")
a("v_permlane32_swap_b32 v144, v146\nv_permlane32_swap_b32 v145, v147")
a("v_mul_f32 v148, v89, v144\nv_mul_f32 v149, v89, v145\nv_exp_f32 v148, v148\nv_exp_f32 v149, v149\nv_mul_f32 v144, v144, v146\nv_mul_f32 v145, v145, v147")
a("v_add_f32 v148, 1.0, v148\nv_add_f32 v149, 1.0, v149\nv_rcp_f32 v148, v148\nv_rcp_f32 v149, v149\nv_cmp_u_f32 vcc, v146, v90\nv_mul_f32 v144, v144, v91\nv_mul_f32 v145, v145, v91\nv_mul_f32 v144, v144, v148\nv_mul_f32 v145, v145, v149\nv_cvt_pk_bf16_f32 v144, v144, v145")
a("s_and_b64 vcc, vcc, s[20:21]\ns_cbranch_vccnz L_p4r\nL_p4s:\nglobal_store_dword v164, v144, s[40:41] sc1")
tail.append(f"L_p4r:\ns_add_u32 s15, s15, 1\ns_cmp_lt_u32 s15, {LIMIT}\ns_cbranch_scc0 L_p4s\ns_and_b32 s16, vcc_lo, s20\nL_p4t:\ns_ff1_i32_b32 s18, s16\ns_bitset0_b32 s16, s18\ns_mulk_i32 s18, {XSS}\nv_add_u32 v4, s18, v160\ns_add_u32 m0, s18, {L_XS}\ns_nop 0\nglobal_load_lds_dwordx4 v4, s[40:41] sc1\nglobal_load_lds_dwordx4 v4, s[40:41] offset:256 sc1\ns_cmp_lg_u32 s16, 0\ns_cbranch_scc1 L_p4t\ns_waitcnt vmcnt(0)\ns_branch L_p4")
stamp(16)
a("L_p4e:\ns_cmp_lg_u32 s62, 0\ns_cbranch_scc1 L_fin\ns_barrier\nds_read_b32 v4, v159\ns_waitcnt lgkmcnt(0)\nv_readfirstlane_b32 s62, v4\ns_cmp_eq_u32 s62, 0\ns_cbranch_scc1 L_fin")
a(f"v_add_u32 v162, {HN8-HN}, v162\nv_add_u32 v160, {HN8-HN}, v160\nv_add_u32 v164, {ACT2-ACT}, v164\nv_and_b32 v4, 7, v0\nv_mul_u32_u24 v165, {XSS}, v4\nv_lshl_add_u32 v165, v2, 4, v165\nv_add_u32 v165, {L_XS}, v165\nv_lshlrev_b32 v161, 4, v4\nv_add_u32 v161, {STAT8}, v161\ns_movk_i32 s20, 0xff\ns_branch L_f1p")
a("L_bf8:\ns_cmp_lt_u32 s14, 216\ns_cbranch_scc1 L_fin\nL_f2:")
a(f"s_sub_u32 s49, s14, 216\ns_and_b32 s52, s49, 7\ns_lshr_b32 s50, s49, 3\ns_and_b32 s56, s49, 3\ns_lshr_b32 s57, s49, 2\ns_cmp_ge_u32 s49, 32\ns_cselect_b32 s50, s56, s50\ns_cselect_b32 s52, s57, s52")
a(f"s_lshr_b32 s51, s50, 1\ns_lshl1_add_u32 s51, s52, s51\ns_lshl_b32 s51, s51, 6\ns_and_b32 s53, s50, 1\nv_mov_b32 v159, {L_VD}\nv_bfe_u32 v7, v0, 3, 1\ns_cmp_ge_u32 s3, 8\ns_cbranch_scc1 L_f2e")
a("v_lshrrev_b32 v4, 2, v1\nv_mul_u32_u24 v4, 1280, v4\nv_and_b32 v5, 3, v0\nv_lshl_add_u32 v4, v5, 4, v4\ns_mul_i32 s56, s3, 81920\ns_add_u32 s56, s56, s51\nv_add_u32 v4, s56, v4\ns_lshl_b32 s58, s3, 14")
a("s_cmp_ge_u32 s3, 3\ns_cselect_b32 s61, 2, 3\ns_mov_b32 s62, 0")
for i_ in range(4):
    a(f"s_add_u32 s59, s50, {i_}\ns_and_b32 s59, s59, 3\ns_cmp_gt_u32 s59, s61\ns_cbranch_scc1 L_f2s{i_}\ns_mul_i32 s60, s59, 655360\ns_lshl_b32 s59, s59, 12\ns_add_u32 m0, s59, s58\nv_add_u32 v5, s60, v4\nglobal_load_lds_dwordx4 v5, s[34:35]")
    for q in range(3): a(f"s_add_u32 m0, m0, 1024\nv_add_u32 v5, 20480, v5\nglobal_load_lds_dwordx4 v5, s[34:35]")
    a(f"L_f2s{i_}:")
a(f"s_mul_i32 s17, s53, 27648\ns_lshl_b32 s16, s3, 10\ns_add_u32 s17, s17, s16\ns_add_u32 s17, s17, {ACT}\nv_lshl_add_u32 v104, v6, 4, s17\nv_lshl_add_u32 v104, v2, 7, v104\nv_lshl_add_u32 v104, v7, 9, v104")
a(f"v_add_u32 v105, 0x2000, v104\nv_add_u32 v106, 0x4000, v104\ns_lshl_b32 s61, s61, 13\nv_add_u32 v107, s61, v104\ns_add_u32 s16, s16, {L_RED}\nv_add_u32 v157, s16, v157\nv_cmp_eq_u32_e64 s[20:21], 1, v7")
a("v_lshrrev_b32 v4, 2, v3\nv_lshl_add_u32 v4, v2, 3, v4\nv_lshlrev_b32 v4, 6, v4\nv_and_b32 v5, 3, v0\nv_lshl_add_u32 v4, v5, 3, v4\nv_add_u32 v4, s58, v4")
stamp(3)
a("s_waitcnt vmcnt(0)")
stamp(4)
for k in range(8):
    for t_ in range(2):
        b=8+8*k+4*t_
        a(f"ds_read_b64_tr_b16 v[{b}:{b+1}], v4 offset:{2048*k+32*t_}\nds_read_b64_tr_b16 v[{b+2}:{b+3}], v4 offset:{2048*k+32*t_+256}")
a("s_waitcnt lgkmcnt(0)\ns_cmp_lt_u32 s3, 3\ns_cbranch_scc1 L_p5a")
for i_ in range(16): a(f"v_mov_b32 v{56+i_}, 0")
a("L_p5a:\ns_barrier")
stamp(5)
a("s_barrier")
stamp(14)
if opt("pre5",0): a(f"s_sleep {opt('pre5',0)}")
a("L_f2p:")
ck="s_mov_b64 exec, -1\n"
for i_ in range(4):
    b=72+4*i_
    ck+=f"s_waitcnt vmcnt({3-i_})\n"
    for h in range(2):
        for t_ in range(2):
            ac=88+8*t_+4*h
            ck+=f"{MF} {vr(ac)}, {vr(8+16*i_+8*h+4*t_)}, {vr(b)}, {'0' if i_==0 else vr(ac)}\n"
        if h==0: ck+=(f"v_max_u32 v114, v{b}, v{b+1}\n" if i_==0 else f"v_max3_u32 v114, v114, v{b}, v{b+1}\n")+f"v_max3_u32 v114, v114, v{b+2}, v{b+3}\n"
ck+="v_cmp_eq_u32 vcc, -1, v114"
poll([f"global_load_dwordx4 {vr(72+4*i_)}, v{104+i_}, s[40:41] sc1" for i_ in range(4)],None,opt("sl5",2),None,chk=ck,wait=1)
stamp(15)
for r in range(4): a(f"v_add_f32_dpp v{88+r}, v{92+r}, v{88+r} row_ror:8 row_mask:0xf bank_mask:0x3")
for r in range(4): a(f"v_add_f32_dpp v{88+r}, v{96+r}, v{100+r} row_ror:8 row_mask:0xf bank_mask:0xc")
a(f"ds_write_b128 v157, v[88:91]\ns_waitcnt lgkmcnt(0)\ns_barrier\ns_cmp_lg_u32 s62, 0\ns_cbranch_scc1 L_fin\nds_read_b32 v4, v159\ns_waitcnt lgkmcnt(0)\nv_readfirstlane_b32 s62, v4\ns_cmp_eq_u32 s62, 0\ns_cbranch_scc1 L_fin")
for i_ in range(4): a(f"v_add_u32 v{104+i_}, {ACT2-ACT}, v{104+i_}")
a("s_branch L_f2p\nL_f2e:")
a(f"s_and_b32 s56, s3, 1\ns_lshl_b32 s57, s56, 5\ns_add_u32 s51, s51, s57\nv_lshlrev_b32 v104, 7, v6\nv_add_u32 v104, {META}, v104\nv_mul_u32_u24 v105, 1280, v6\nv_lshl_add_u32 v106, v2, 3, s51\nv_add_u32 v105, v105, v106\nv_add_u32 v105, {BASE}, v105")
a(f"s_lshl_b32 s56, s56, 7\ns_add_u32 s56, s56, {L_RED}\nv_lshl_add_u32 v107, v2, 8, s56\nv_lshl_add_u32 v107, v7, 12, v107\ns_mov_b32 s18, 0x00ff00ff\ns_mov_b32 s19, 0x00ff00ff")
a(f"s_setprio {opt('ep',0)}\ns_barrier\ns_barrier")
if opt("edel",0): a(f"s_sleep {opt('edel',0)}")
poll(["global_load_dwordx4 v[60:63], v104, s[40:41] sc1","global_load_dwordx2 v[58:59], v105, s[40:41] sc1"],range(58,64),opt("slm",2),114)
a("v_cmp_lt_u32 vcc, 15, v62\nv_lshlrev_b32 v64, 16, v58\nv_and_b32 v65, 0xffff0000, v58\nv_mov_b32 v4, vcc_lo\nds_write_b32 v159, v4\nv_lshlrev_b32 v66, 16, v59\nv_and_b32 v67, 0xffff0000, v59")
a("v_and_b32 v60, 2047, v60\nv_mul_u32_u24 v60, 1280, v60\nv_add_u32 v60, v60, v106\ns_waitcnt lgkmcnt(0)\ns_cbranch_vccz L_hit\nv_mov_b32 v62, v6\ns_barrier\nL_hit:")
a("v_lshrrev_b32 v4, 3, v62\nv_cmp_eq_u32 vcc, s53, v4\nv_and_b32 v62, 7, v62\nv_lshl_add_u32 v62, v62, 4, v107\ns_and_b64 s[18:19], s[18:19], vcc")
stamp(13)
a("s_barrier")
for i_ in range(4): a(f"ds_read_b128 {vr(72+4*i_)}, v62 offset:{1024*i_}")
a("s_waitcnt lgkmcnt(0)")
a("v_pk_add_f32 v[72:73], v[72:73], v[76:77]\nv_pk_add_f32 v[74:75], v[74:75], v[78:79]\nv_pk_add_f32 v[80:81], v[80:81], v[84:85]\nv_pk_add_f32 v[82:83], v[82:83], v[86:87]\nv_pk_add_f32 v[72:73], v[72:73], v[80:81]\nv_pk_add_f32 v[74:75], v[74:75], v[82:83]")
for i_ in range(4): a(f"v_add_f32_dpp v{72+i_}, v{72+i_}, v{72+i_} row_ror:8 {DPPM}")
for i_ in range(4): a(f"v_fma_f32 v{72+i_}, v{72+i_}, v61, v{64+i_}")
a(f"v_cvt_pk_bf16_f32 v72, v72, v73\nv_cvt_pk_bf16_f32 v73, v74, v75\ns_mov_b64 exec, s[18:19]\ns_cbranch_execz L_f2z\nglobal_store_dwordx2 v60, v[72:73], s[36:37] {OUTG}\nL_f2z:\ns_mov_b64 exec, -1")
stamp(16)
a("L_fin:")
if STAMP:
    a("s_waitcnt vmcnt(0)")
    stamp(17)
    if "probe" in kw:
        k=int(kw["probe"])
        a(f"s_waitcnt lgkmcnt(0)\ns_cmp_ge_u32 s3, {opt('pw',4)}\ns_cbranch_scc1 L_end\ns_cmp_lt_u32 s3, {opt('pw0',0)}\ns_cbranch_scc1 L_end\ns_cmp_lt_u32 s2, {opt('plo',0)}\ns_cbranch_scc1 L_end\ns_cmp_ge_u32 s2, {opt('phi',256)}\ns_cbranch_scc1 L_end")
        if opt("xp",0): a("s_getreg_b32 s17, hwreg(HW_REG_XCC_ID)\ns_sub_u32 s17, s17, s2\ns_and_b32 s17, s17, 7\ns_mulk_i32 s17, 200\ns_add_u32 s64, s64, s17")
        a(f"s_add_u32 s16, s{64+2*k}, 4000\nL_spin:\ns_sleep 1\ns_memrealtime s[18:19]\ns_waitcnt lgkmcnt(0)\ns_sub_u32 s17, s16, s18\ns_cmp_lt_u32 s17, 7001\ns_cbranch_scc1 L_spin\ns_endpgm")
    else:
        a(f"s_waitcnt lgkmcnt(0)")
        for k in range(NST): a(f"v_writelane_b32 v5, s{64+2*k}, {k}")
        a(f"v_writelane_b32 v5, s15, 31\ns_mul_i32 s16, s2, {NW}\ns_add_u32 s16, s16, s3\ns_lshl_b32 s16, s16, 7\ns_add_u32 s16, s16, {WS_STAMP}\nv_lshl_add_u32 v4, v1, 2, s16\ns_mov_b32 exec_hi, 0\nglobal_store_dword v4, v5, s[40:41]")
a("L_end:\ns_endpgm")
flush_tail()
if opt("now",0): a.L=[l for l in a.L if not ("global_load_lds" in l and "s[4" not in l)]
if kw.get("wf"): a.L=[l+" "+kw["wf"] if ("global_load_lds" in l and "s[42:43]" not in l) else l for l in a.L]
if opt("noy",0): a.L=[l for l in a.L if not l.startswith("global_store_dwordx4 v7, v[12:15]")]
if opt("noi",0): a.L=[l for l in a.L if not l.startswith("global_store_dwordx4 v5, v[12:15]")]
if opt("noout",0): a.L=[l for l in a.L if not l.startswith("global_store_dwordx2 v158")]
body=a.finish()
small=np.zeros(1536,np.uint16)
small[0:768]=T.t_pm().reshape(-1); small[768:768+640]=T.t_w().reshape(-1)
tab=".p2align 7\n.type T_0,@object\nT_0:\n"+T.emit(small)+"T_end:\n"
txt=f"""; FNet (hidden DFT 20x32, sequence DFT 8x256 with real/Hermitian folding) + LayerNorm + top-8 SwiGLU, one persistent launch.
; @launch grid=(256,1,1) block=({64*NW},1,1) lds={LDS_BYTES}
.amdgcn_target "amdgcn-amd-amdhsa--gfx950"
.text
.globl {KN}
.p2align 8
.type {KN},@function
{body}
{tab}.section .rodata,"a"
.p2align 6
.amdhsa_kernel {KN}
  .amdhsa_next_free_vgpr 168
  .amdhsa_next_free_sgpr 102
  .amdhsa_accum_offset 168
  .amdhsa_group_segment_fixed_size 0
  .amdhsa_kernarg_size 104
  .amdhsa_user_sgpr_count 2
  .amdhsa_user_sgpr_kernarg_segment_ptr 1
  .amdhsa_system_sgpr_workgroup_id_x 1
.end_amdhsa_kernel
"""
open(outp,"w").write(txt)
print("nops inserted",a.nops,"bytes",len(txt),file=sys.stderr)
```
